```python
import torch

def _softmax(x, axis=-1):
    return torch.softmax(x, dim=axis)
def _gelu(x):
    return torch.nn.functional.gelu(x, approximate="tanh")
def _silu(x):
    return torch.nn.functional.silu(x)
def _sigmoid(x):
    return torch.sigmoid(x)
def _layernorm(x, axis=-1, eps=1e-5):
    m = x.mean(dim=axis, keepdim=True)
    v = x.var(dim=axis, keepdim=True, unbiased=False)
    return (x - m) / torch.sqrt(v + eps)
def _scatter_add(tgt, idx, src, axis=0):
    return tgt.clone().index_add_(axis, idx, src)
def _segment_sum(src, seg, n):
    out = torch.zeros((n,) + src.shape[1:], dtype=src.dtype)
    return out.index_add_(0, seg, src)
def _pad(x, pw):
    flat = tuple(v for pair in reversed(pw) for v in pair)
    return torch.nn.functional.pad(x, flat)

kernel_name = 'gated_mix__ssm_conv_s4__softmax_full_mha__prompt'

def setup_inputs():

    _w = (lambda a: (lambda t: t.to(torch.bfloat16) if t.is_floating_point() else t)(torch.as_tensor(a)))
    def _A_setup():
        B, L, D, N = 1, 2048, 512, 128
        A_re = -(lambda _x: torch.exp(torch.as_tensor(_x)))((lambda *s: torch.randn(*s, dtype=torch.bfloat16) * 6.4)(D, N))
        A_im = torch.pi * (lambda *s: torch.randn(*s, dtype=torch.bfloat16) * 0.1)(D, N)
        B_re = (lambda *s: torch.randn(*s, dtype=torch.bfloat16) * 0.2)(D, N)
        B_im = (lambda *s: torch.randn(*s, dtype=torch.bfloat16) * 0.2)(D, N)
        C_re = (lambda *s: torch.randn(*s, dtype=torch.bfloat16) * 0.2)(D, N)
        C_im = (lambda *s: torch.randn(*s, dtype=torch.bfloat16) * 0.2)(D, N)
        log_dt = (lambda *s: torch.randn(*s, dtype=torch.bfloat16) * 0.1)(D) * 0.5 - 4.0
        Dskip = (lambda *s: torch.randn(*s, dtype=torch.bfloat16) * 0.1)(D)
        return {
            "u": _w((lambda *s: torch.randn(*s, dtype=torch.bfloat16) * 0.05)(B, L, D)),
            "A_re": _w(A_re),
            "A_im": _w(A_im),
            "B_re": _w(B_re),
            "B_im": _w(B_im),
            "C_re": _w(C_re),
            "C_im": _w(C_im),
            "log_dt": _w(log_dt),
            "Dskip": _w(Dskip),
        }
    _A_in = _A_setup()

    def _B_setup():
        B, S, D = 1, 2048, 512
        return {
            "x": _w((lambda *s: torch.randn(*s, dtype=torch.bfloat16) * 0.05)(B, S, D)),
            "wqkv": _w((lambda *s: torch.randn(*s, dtype=torch.bfloat16) * 0.8)(D, 3 * D)),
            "wo": _w((lambda *s: torch.randn(*s, dtype=torch.bfloat16) * 0.05)(D, D)),
        }
    _B_in = _B_setup()

    return {
        "A_u": _A_in["u"],
        "A_A_re": _A_in["A_re"],
        "A_A_im": _A_in["A_im"],
        "A_B_re": _A_in["B_re"],
        "A_B_im": _A_in["B_im"],
        "A_C_re": _A_in["C_re"],
        "A_C_im": _A_in["C_im"],
        "A_log_dt": _A_in["log_dt"],
        "A_Dskip": _A_in["Dskip"],
        "B_x": _B_in["x"],
        "B_wqkv": _B_in["wqkv"],
        "B_wo": _B_in["wo"],
        "gate_w": _w((lambda *s: torch.randn(*s, dtype=torch.bfloat16) * 0.05)(512) * 16.0),
    }

def reference(A_u, A_A_re, A_A_im, A_B_re, A_B_im, A_C_re, A_C_im, A_log_dt, A_Dskip, B_x, B_wqkv, B_wo, gate_w):
    def _A_ref(u, A_re, A_im, B_re, B_im, C_re, C_im, log_dt, Dskip):
        Bsz, L, D = u.shape
        dt = torch.exp(log_dt)[:, None]
        A = A_re + 1j * A_im
        Bc = B_re + 1j * B_im
        Cc = C_re + 1j * C_im
        logdA = dt * A
        dB = dt * Bc
        l = (lambda x, dt: x.to(dt))(torch.arange(L), A_re.dtype)
        P = torch.exp(logdA[:, :, None] * l[None, None, :])
        K = torch.einsum("dn,dnl,dn->dl", Cc, P, dB).real
        L2 = 2 * L
        Kp = _pad(K, ((0, 0), (0, L)))
        up = (lambda x, *d: x.permute(*d))(u, 0, 2, 1)
        up = _pad(up, ((0, 0), (0, 0), (0, L)))
        Kf = (lambda x, axes=(-2,-1): torch.fft.rfft2(x.float(), dim=axes))(Kp[:, None, :], axes=(-2, -1))
        Uf = (lambda x, axes=(-2,-1): torch.fft.rfft2(x.float(), dim=axes))(up[:, :, None, :], axes=(-2, -1))
        Yf = Uf * Kf[None, :, :, :]
        y = (lambda x, s, axes=(-2,-1): torch.fft.irfft2(x, s=s, dim=axes).to(torch.bfloat16))(Yf, (1, L2), axes=(-2, -1))[:, :, 0, :L]
        y = (lambda x, *d: x.permute(*d))(y, 0, 2, 1) + u * Dskip[None, None, :]
        return y

    def _B_ref(x, wqkv, wo):
        B, S, D = x.shape
        H = 32; Dh = D // H
        qkv = (lambda x, *d: x.permute(*d))((x @ wqkv).reshape(B, S, 3, H, Dh), 2, 0, 3, 1, 4)
        q, k, v = qkv[0], qkv[1], qkv[2]
        scale = Dh ** -0.5
        scores = torch.einsum("bhqd,bhkd->bhqk", q, k) * scale
        p = _softmax(scores, axis=-1)
        o = torch.einsum("bhqk,bhkd->bhqd", p, v)
        return (lambda x, *d: x.permute(*d))(o, 0, 2, 1, 3).reshape(B, S, D) @ wo

    x = A_u
    g = _sigmoid((x * gate_w).sum(-1, keepdims=True))
    a = _A_ref(x, A_A_re, A_A_im, A_B_re, A_B_im, A_C_re, A_C_im, A_log_dt, A_Dskip)
    b = _B_ref(x, B_wqkv, B_wo)
    return g * a + (1 - g) * b
```

```python
class Asm:
    def __init__(self):
        self.lines = []
    def __call__(self, s=""):
        for l in s.split("\n"):
            l = l.strip()
            if not l:
                continue
            if l.endswith(":") or l.startswith("."):
                self.lines.append(l)
            else:
                self.lines.append("    " + l)
    def c(self, s):
        self.lines.append("    ; " + s)
    def text(self):
        return "\n".join(self.lines) + "\n"

def vr(a, n=1):
    return f"v{a}" if n == 1 else f"v[{a}:{a+n-1}]"
def sr(a, n=1):
    return f"s{a}" if n == 1 else f"s[{a}:{a+n-1}]"

KA_U, KA_ARE, KA_AIM, KA_BRE, KA_BIM, KA_CRE, KA_CIM, KA_LDT, KA_DSK = 0, 8, 16, 24, 32, 40, 48, 56, 64
KA_WQKV, KA_WO, KA_GW, KA_OUT, KA_DBG, KA_WS = 80, 88, 96, 104, 112, 120

HS = 65536 + 66560 + 65536
OFF_K, OFF_V, OFF_Q = 0, 65536, 132096
WS_H = 0
WS_KP = 32 * HS
KPROW = 4160
WS_UT = WS_KP + 512 * KPROW + 4096
WS_G = WS_UT + 256 * 9216
WS_O = WS_G + 2048 * 8
WS_GA = WS_O + 64 * 32 * 1024
WS_END = WS_GA + 64 * 16 * 2 * 1024
WS_SIZE = 268435456

def srd(a, base, lo, hi, nbytes):
    a(f"s_mov_b32 s{base}, s{lo}")
    a(f"s_and_b32 s{base+1}, s{hi}, 0xffff")
    a(f"s_mov_b32 s{base+2}, {nbytes}")
    a(f"s_mov_b32 s{base+3}, 0x20000")

def kd(name, vgpr, sgpr=96):
    acc = (vgpr + 3) // 4 * 4
    return f""".amdhsa_kernel {name}
  .amdhsa_next_free_vgpr {vgpr}
  .amdhsa_next_free_sgpr {sgpr}
  .amdhsa_accum_offset {acc}
  .amdhsa_group_segment_fixed_size 0
  .amdhsa_kernarg_size 128
  .amdhsa_user_sgpr_count 2
  .amdhsa_user_sgpr_kernarg_segment_ptr 1
  .amdhsa_system_sgpr_workgroup_id_x 1
.end_amdhsa_kernel
"""
def f2u(x):
    import struct
    return struct.unpack("<I", struct.pack("<f", x))[0]
```

```python
from common import *
import math

LOG2E = 1.4426950408889634
LOG2E_HI = f2u(LOG2E)
import struct
_hi = struct.unpack("<f", struct.pack("<I", LOG2E_HI))[0]
LOG2E_LO = f2u(LOG2E - _hi)
LN2 = f2u(math.log(2.0))
QSCALE = f2u(0.25 * LOG2E)

K1_XRING, K1_WRING, K1_KG = 0, 65536, 114688
K1_KGW = 8704
K1_LDS = K1_KG + 4 * K1_KGW

def interleave(chains):
    out = []
    chains = [list(c) for c in chains]
    while any(chains):
        for c in chains:
            if c:
                out.append(c.pop(0))
    return out

def cmul(d, x, w):
    return [f"v_pk_mul_f32 {vr(d,2)}, {vr(x,2)}, {vr(w,2)} op_sel:[0,0] op_sel_hi:[0,1]",
            f"v_pk_fma_f32 {vr(d,2)}, {vr(x,2)}, {vr(w,2)}, {vr(d,2)} op_sel:[1,1,0] op_sel_hi:[1,0,1] neg_lo:[0,1,0]"]

def gen_k1(name, ST=""):
    a = Asm()
    a(f".globl {name}\n.p2align 8\n.type {name},@function\n{name}:")
    a("s_cmp_ge_u32 s2, 256")
    a("s_cbranch_scc1 K1_END")
    a("s_load_dwordx16 s[4:19], s[0:1], 0")
    a("s_load_dwordx16 s[20:35], s[0:1], 64")
    a("v_lshrrev_b32 v2, 6, v0")
    a("v_and_b32 v1, 63, v0")
    a("s_and_b32 s51, s2, 7")
    a("v_readfirstlane_b32 s48, v2")
    a("s_lshr_b32 s52, s2, 3")
    a("s_and_b32 s49, s51, 3")
    a("s_lshl_b32 s49, s49, 2")
    a("s_and_b32 s53, s52, 3")
    a("s_add_u32 s49, s49, s53")
    a("s_lshr_b32 s50, s51, 2")
    a("s_lshl_b32 s50, s50, 3")
    a("s_lshr_b32 s53, s52, 2")
    a("s_add_u32 s50, s50, s53")
    a("s_lshl_b32 s54, s51, 5")
    a("s_add_u32 s54, s54, s52")
    a("s_waitcnt lgkmcnt(0)")
    srd(a, 44, 34, 35, WS_END)
    a("s_cmp_ge_u32 s48, 4")
    a("s_cbranch_scc1 K1_LOADER")

    a.c("consumer: kernel generation for channel 2p+(w>>1), n = 64*(w&1)+lane")
    a("s_lshl_b32 s55, s54, 2")
    a("s_load_dword s56, s[18:19], s55")
    a("s_load_dword s57, s[20:21], s55")
    a("s_lshl_b32 s58, s54, 9")
    a("s_lshl_b32 s59, s48, 7")
    a("s_add_u32 s58, s58, s59")
    a("v_lshl_add_u32 v2, v1, 1, s58")
    for i in range(6):
        a(f"v_mov_b32 v{4+i}, 0")
    for i in range(6):
        a(f"global_load_short_d16_hi v{4+i}, v2, s[{6+2*i}:{7+2*i}]")
    a("s_mul_i32 s60, s48, %d" % K1_KGW)
    a("s_add_u32 s60, s60, %d" % K1_KG)
    a("v_lshl_add_u32 v10, v1, 2, s60")
    a("v_and_b32 v11, 31, v1")
    a("v_mul_u32_u24 v11, 272, v11")
    a("v_lshrrev_b32 v3, 5, v1")
    a("v_lshl_add_u32 v11, v3, 4, v11")
    a("v_add_u32 v11, s60, v11")
    a("v_lshl_add_u32 v12, v1, 4, s60")
    a("s_xor_b32 s61, s48, 1")
    a("s_mul_i32 s61, s61, %d" % K1_KGW)
    a("s_add_u32 s61, s61, %d" % K1_KG)
    a("v_lshl_add_u32 v13, v1, 4, s61")
    a("s_waitcnt lgkmcnt(0)")
    a("s_lshr_b32 s59, s48, 1")
    a("s_lshl_b32 s59, s59, 4")
    a("s_lshr_b32 s56, s56, s59")
    a("s_lshl_b32 s56, s56, 16")
    a("s_lshr_b32 s57, s57, s59")
    a("s_lshl_b32 s57, s57, 16")
    a(f"s_mov_b32 s62, {hex(LOG2E_HI)}")
    a("v_mov_b32 v14, s56")
    a("v_mul_f32 v15, s62, v14")
    a("v_fma_f32 v16, v14, s62, -v15")
    a(f"v_fmac_f32 v16, {hex(LOG2E_LO)}, v14")
    a("v_exp_f32 v15, v15")
    a(f"v_mul_f32 v16, {hex(LN2)}, v16")
    a("v_fma_f32 v15, v15, v16, v15")
    a("v_cvt_pk_bf16_f32 v15, v15, v15")
    a("v_and_b32 v15, 0xffff0000, v15")
    a("s_waitcnt vmcnt(0)")
    a("v_mul_f32 v4, v15, v4")
    a("v_mul_f32 v5, v15, v5")
    a("v_mul_f32 v6, v15, v6")
    a("v_mul_f32 v7, v15, v7")
    a("v_mul_f32 v4, s62, v4")
    a("v_mul_f32 v5, 0.15915494, v5")
    W1, W8, W256, W2, W4, W16 = 20, 22, 24, 26, 28, 30
    tmp = 32
    for k, (wr, mult) in enumerate(((W1, 1.0), (W8, 8.0), (W256, 256.0))):
        t = tmp + 2 * k
        a(f"v_mul_f32 v{t}, {hex(f2u(mult))}, v4")
        a(f"v_mul_f32 v{t+1}, {hex(f2u(mult))}, v5")
    for k in range(3):
        t = tmp + 2 * k
        a(f"v_exp_f32 v{t}, v{t}")
        a(f"v_fract_f32 v{t+1}, v{t+1}")
    for k, wr in enumerate((W1, W8, W256)):
        t = tmp + 2 * k
        a(f"v_cos_f32 v{wr}, v{t+1}")
        a(f"v_sin_f32 v{wr+1}, v{t+1}")
    U = {}
    nxt = [40]
    def newU(av):
        U[av] = nxt[0]; nxt[0] += 2
        return U[av]
    for l in cmul(newU(0), 8, 6): a(l)
    for k, wr in enumerate((W1, W8, W256)):
        t = tmp + 2 * k
        a(f"v_mul_f32 v{wr}, v{t}, v{wr}")
        a(f"v_mul_f32 v{wr+1}, v{t}, v{wr+1}")
    for l in interleave([cmul(W2, W1, W1), cmul(W16, W8, W8)]): a(l)
    for l in cmul(W4, W2, W2): a(l)
    WA, WB, PK = 100, 104, 108
    def wchain(start_j, start_reg, pp, pk):
        ops = []
        cur = start_reg
        j = start_j
        k = 0
        while True:
            ops.append(f"v_cvt_pk_bf16_f32 v{pk+(k&1)}, v{cur}, v{cur+1}")
            if j + 2 <= 31:
                d = pp + 2 * (k & 1)
                c = cmul(d, cur, W16)
                ops.append(c[0])
                ops.append(f"ds_write_b32 v10, v{pk+(k&1)} offset:{(31-j)*272}")
                ops.append(c[1])
                cur = d
            else:
                ops.append(f"ds_write_b32 v10, v{pk+(k&1)} offset:{(31-j)*272}")
                break
            j += 2; k += 1
        return ops
    a(f"v_mov_b32 v112, 0x3f80")
    a(f"ds_write_b32 v10, v112 offset:{31*272}")
    chA = wchain(2, W16, WA, PK)
    chB = wchain(1, W8, WB, PK + 2)
    u1 = []
    prev = 0
    for av in (256, 512, 768, 1024, 1280, 1536, 1792):
        u1 += cmul(newU(av), U[prev], W256); prev = av
    for av in (1024, 1280, 1536, 1792):
        u1 += cmul(newU(av + 8), U[av], W8)
    for av in (516, 520):
        u1 += cmul(newU(av), U[av - 4], W4)
    u2 = []
    for av in range(1, 8):
        u2 += cmul(newU(av), U[av - 1], W1)
    for av in (258, 260, 262, 264):
        u2 += cmul(newU(av), U[av - 2], W2)
    for av in (772, 776):
        u2 += cmul(newU(av), U[av - 4], W4)
    assert nxt[0] <= 100
    for l in interleave([chA, u1, chB, u2]): a(l)
    WF, UF, KD = 128, 160, 192
    for s in range(8):
        a(f"ds_read_b128 {vr(WF+4*s,4)}, v11 offset:{32*s}")
    rows = [0,1,2,3,4,5,6,7, 256,258,260,None,260,262,264,None, 512,516,520,None,768,772,776,None,
            1024,1032,1280,1288,1536,1544,1792,1800]
    k = 0
    pend = None
    for r, av in enumerate(rows):
        if av is None: continue
        t = PK + (k & 3); k += 1
        a(f"v_cvt_pk_bf16_f32 v{t}, v{U[av]}, -v{U[av]+1}")
        if pend: a(pend)
        pend = f"ds_write_b32 v10, v{t} offset:{r*272}"
    a(pend)
    for s in range(8):
        a(f"ds_read_b128 {vr(UF+4*s,4)}, v11 offset:{32*s}")
    for s in range(8):
        a(f"s_waitcnt lgkmcnt({7-s})")
        c = "0" if s == 0 else vr(KD, 16)
        a(f"v_mfma_f32_32x32x16_bf16 {vr(KD,16)}, {vr(UF+4*s,4)}, {vr(WF+4*s,4)}, {c}")
    XA, WAD, XB, WBASE = 16, 20, 24, 28
    a("v_and_b32 v4, 31, v1")
    a("s_lshl_b32 s62, s48, 12")
    a("v_lshl_add_u32 v5, v4, 7, s62")
    a("v_bfe_u32 v6, v4, 1, 3")
    a("v_xor_b32 v6, v6, v3")
    a(f"v_lshl_add_u32 v{XB}, v6, 4, v5")
    for ks in range(1, 4):
        a(f"v_xor_b32 v{XB+ks}, {ks<<5}, v{XB}")
    a("v_bfe_u32 v6, v1, 2, 2")
    a("v_lshl_add_u32 v6, v3, 3, v6")
    a("v_mul_u32_u24 v6, 192, v6")
    a("v_bfe_u32 v7, v1, 4, 1")
    a("v_lshl_add_u32 v6, v7, 5, v6")
    a("v_and_b32 v7, 3, v1")
    a("v_lshl_add_u32 v6, v7, 3, v6")
    a(f"v_add_u32 v{WBASE}, {K1_WRING}, v6")
    a("s_lshl_b32 s63, s54, 1")
    a("s_lshr_b32 s59, s48, 1")
    a("s_add_u32 s63, s63, s59")
    a(f"s_mul_i32 s63, s63, {KPROW}")
    a(f"s_add_u32 s63, s63, {WS_KP}")
    a("v_lshlrev_b32 v8, 4, v4")
    a("s_and_b32 s64, s48, 1")
    a("s_cmp_eq_u32 s64, 0")
    a("s_cbranch_scc0 K1_X1")
    a(f"ds_write_b128 v12, {vr(KD+8,4)}")
    a(f"ds_write_b128 v12, {vr(KD+12,4)} offset:1024")
    a("s_waitcnt lgkmcnt(0)")
    a("s_barrier")
    a(f"ds_read_b128 {vr(KD+8,4)}, v13")
    a(f"ds_read_b128 {vr(KD+12,4)}, v13 offset:1024")
    a("v_cmp_eq_u32 s[66:67], 31, v1")
    a("v_mov_b32 v9, s57")
    a("v_lshlrev_b32 v7, 3, v3")
    a("v_cndmask_b32 v9, 0, v9, s[66:67]")
    a("v_xor_b32 v7, 8, v7")
    a("v_add_u32 v8, v8, v7")
    a(f"v_add_f32 v{KD}, v{KD}, v9")
    a("v_mov_b32 v36, 0\nv_mov_b32 v37, 0\nv_mov_b32 v38, 0\nv_mov_b32 v39, 0")
    a("v_lshlrev_b32 v9, 4, v1")
    a("s_waitcnt lgkmcnt(0)")
    for i in range(7):
        a(f"v_add_f32 v{KD+i}, v{KD+i}, v{KD+8+i}")
    a(f"v_cvt_pk_bf16_f32 v32, v{KD+3}, v{KD+2}")
    a(f"v_cvt_pk_bf16_f32 v33, v{KD+1}, v{KD+0}")
    a(f"v_cvt_pk_bf16_f32 v34, v{KD+6}, v{KD+5}")
    a(f"v_cvt_pk_bf16_f32 v35, v{KD+4}, v{KD+4}")
    a(f"buffer_store_dwordx2 v[32:33], v8, s[44:47], s63 offen offset:3584{ST}")
    a(f"buffer_store_dwordx2 v[34:35], v8, s[44:47], s63 offen offset:3072{ST}")
    a("s_add_u32 s65, s63, 4096")
    a("s_mov_b64 exec, 15")
    a(f"buffer_store_dwordx4 v[36:39], v9, s[44:47], s65 offen{ST}")
    a("s_mov_b64 exec, -1")
    a("s_branch K1_GEMM")
    a("K1_X1:")
    a(f"ds_write_b128 v12, {vr(KD,4)}")
    a(f"ds_write_b128 v12, {vr(KD+4,4)} offset:1024")
    a("s_waitcnt lgkmcnt(0)")
    a("s_barrier")
    a(f"ds_read_b128 {vr(KD,4)}, v13")
    a(f"ds_read_b128 {vr(KD+4,4)}, v13 offset:1024")
    a("v_and_b32 v7, 1, v1")
    a("v_cmp_eq_u32 s[66:67], 1, v7")
    a("v_lshlrev_b32 v7, 9, v3")
    a("v_sub_u32 v9, v8, v7")
    a("v_add_u32 v9, 512, v9")
    a("v_sub_u32 v8, v9, v7")
    a("v_add_u32 v8, 512, v8")
    a("s_waitcnt lgkmcnt(0)")
    for i in range(8):
        a(f"v_add_f32 v{KD+8+i}, v{KD+8+i}, v{KD+i}")
    r8, r9, r10, r12, r13, r14, r15 = [KD + i for i in (8, 9, 10, 12, 13, 14, 15)]
    a(f"v_cndmask_b32 v44, v{r13}, v{r12}, s[66:67]")
    a(f"v_cndmask_b32 v45, v{r15}, v{r14}, s[66:67]")
    a(f"v_cvt_pk_bf16_f32 v32, v{r10}, v{r10}")
    a(f"v_cvt_pk_bf16_f32 v33, v{r9}, v{r9}")
    a(f"v_cvt_pk_bf16_f32 v34, v{r9}, v{r8}")
    a(f"v_cvt_pk_bf16_f32 v35, v{r8}, v{r8}")
    a(f"v_cvt_pk_bf16_f32 v36, v{r13}, v{r13}")
    a(f"v_cvt_pk_bf16_f32 v37, v{r13}, v44")
    a(f"v_cvt_pk_bf16_f32 v38, v{r12}, v{r12}")
    a(f"v_mov_b32 v39, v38")
    a(f"v_cvt_pk_bf16_f32 v40, v{r15}, v{r15}")
    a(f"v_cvt_pk_bf16_f32 v41, v{r15}, v45")
    a(f"v_cvt_pk_bf16_f32 v42, v{r14}, v{r14}")
    a(f"v_mov_b32 v43, v42")
    a(f"buffer_store_dwordx4 v[32:35], v9, s[44:47], s63 offen offset:{2560-512}{ST}")
    a(f"buffer_store_dwordx4 v[36:39], v8, s[44:47], s63 offen offset:{1536-1024}{ST}")
    a(f"buffer_store_dwordx4 v[40:43], v8, s[44:47], s63 offen offset:{1024-1024}{ST}")

    a("K1_GEMM:")
    ACC, F0, F1 = 64, 112, 128
    for i in range(48):
        a(f"v_mov_b32 v{ACC+i}, 0")
    for k in range(4):
        a(f"v_mov_b32 v{XA+k}, v{XB+k}")
    a(f"v_mov_b32 v{WAD}, v{WBASE}")
    def reads(F, ks):
        a(f"ds_read_b128 {vr(F,4)}, v{XA+ks}")
        for ct in range(3):
            for hh in range(2):
                a(f"ds_read_b64_tr_b16 {vr(F+4+4*ct+2*hh,2)}, v{WAD} offset:{ct*64+ks*3072+hh*768}")
    def mfmas(F, pat):
        for ct in range(3):
            x, w = vr(F, 4), vr(F + 4 + 4 * ct, 4)
            A, B = (w, x) if pat[ct] == "Q" else (x, w)
            a(f"v_mfma_f32_32x32x16_bf16 {vr(ACC+16*ct,16)}, {A}, {B}, {vr(ACC+16*ct,16)}")
    reads(F0, 0)
    a("s_mov_b32 s68, 0")
    a("s_cmp_lt_u32 s50, 10")
    a("s_cbranch_scc1 K1_LQQQ")
    a("s_cmp_eq_u32 s50, 10")
    a("s_cbranch_scc1 K1_LQQV")
    for pat in ("VVV", "QQV", "QQQ"):
        a(f"K1_L{pat}:")
        reads(F1, 1); a("s_waitcnt lgkmcnt(7)"); mfmas(F0, pat)
        reads(F0, 2); a("s_waitcnt lgkmcnt(7)"); mfmas(F1, pat)
        reads(F1, 3); a("s_waitcnt lgkmcnt(7)"); mfmas(F0, pat)
        a("s_add_u32 s68, s68, 1")
        a("s_and_b32 s69, s68, 3")
        a("s_lshl_b32 s70, s69, 14")
        a("s_mul_i32 s71, s69, 12288")
        a("s_cmp_eq_u32 s68, 8")
        a("s_waitcnt lgkmcnt(0)")
        a(f"s_cbranch_scc1 K1_E{pat}")
        for k in range(4):
            a(f"v_add_u32 v{XA+k}, s70, v{XB+k}")
        a(f"v_add_u32 v{WAD}, s71, v{WBASE}")
        a("s_barrier")
        reads(F0, 0)
        mfmas(F1, pat)
        a(f"s_branch K1_L{pat}")
        a(f"K1_E{pat}:")
        mfmas(F1, pat)
        a("s_lshl_b32 s72, s49, 2")
        a("s_add_u32 s72, s72, s48")
        a("s_mul_i32 s73, s50, 3")
        a("v_lshlrev_b32 v4, 4, v1")
        if "V" in pat:
            a("v_bfe_u32 v5, v1, 4, 1")
            a(f"v_mul_u32_u24 v5, {HS}, v5")
            a("v_and_b32 v6, 15, v1")
            a("v_lshl_add_u32 v6, v3, 4, v6")
            a("v_lshl_add_u32 v6, v6, 4, v5")
            a("v_mov_b32 v8, 0x3f803f80\nv_mov_b32 v9, v8\nv_mov_b32 v10, v8\nv_mov_b32 v11, v8")
        a("s_nop 7")
        for ct in range(3):
            A0 = ACC + 16 * ct
            PKD = 32 + 8 * ct
            a(f"s_add_u32 s74, s73, {ct}")
            a("s_and_b32 s75, s74, 15")
            a(f"s_mul_i32 s75, s75, {2*HS}")
            if pat[ct] == "Q":
                a("s_cmp_lt_u32 s74, 16")
                a(f"s_cselect_b32 s76, {hex(QSCALE)}, 1.0")
                a(f"s_cselect_b32 s77, {OFF_Q}, {OFF_K}")
                a("s_add_u32 s75, s75, s77")
                a("s_lshl_b32 s77, s72, 10")
                a("s_add_u32 s75, s75, s77")
                a(f"s_add_u32 s77, s75, {HS}")
                for i in range(16):
                    a(f"v_mul_f32 v{A0+i}, s76, v{A0+i}")
                for i in range(8):
                    a(f"v_cvt_pk_bf16_f32 v{PKD+i}, v{A0+2*i}, v{A0+2*i+1}")
                a(f"buffer_store_dwordx4 {vr(PKD,4)}, v4, s[44:47], s75 offen{ST}")
                a(f"buffer_store_dwordx4 {vr(PKD+4,4)}, v4, s[44:47], s77 offen{ST}")
            else:
                a("s_mul_i32 s77, s72, 1040")
                a("s_add_u32 s75, s75, s77")
                a(f"s_add_u32 s75, s75, {OFF_V}")
                for i in range(8):
                    a(f"v_cvt_pk_bf16_f32 v{PKD+i}, v{A0+2*i}, v{A0+2*i+1}")
                a(f"buffer_store_dwordx4 {vr(PKD,4)}, v6, s[44:47], s75 offen{ST}")
                a(f"buffer_store_dwordx4 {vr(PKD+4,4)}, v6, s[44:47], s75 offen offset:512{ST}")
                a("s_mov_b64 exec, 0x10001")
                a(f"buffer_store_dwordx4 v[8:11], v6, s[44:47], s75 offen offset:1024{ST}")
                a("s_mov_b64 exec, -1")
        a("s_endpgm")

    a("K1_LOADER:")
    srd(a, 36, 4, 5, 2048 * 512 * 2)
    srd(a, 40, 24, 25, 512 * 1536 * 2)
    a("s_sub_u32 s48, s48, 4")
    a("v_lshrrev_b32 v2, 3, v1")
    a("v_lshrrev_b32 v3, 4, v1")
    a("v_and_b32 v8, 7, v1")
    a("v_xor_b32 v8, v8, v3")
    a("v_lshlrev_b32 v8, 4, v8")
    a("v_lshl_add_u32 v4, v2, 10, v8")
    a("v_xor_b32 v5, 64, v4")
    a(f"v_add_u32 v5, {7168}, v5")
    a(f"v_add_u32 v6, {2*7168}, v4")
    a(f"v_add_u32 v7, {2*7168}, v5")
    for i in range(3):
        a(f"v_add_u32 v11, {64*i}, v1")
        a("v_mul_u32_u24 v12, 0x1556, v11")
        a("v_lshrrev_b32 v12, 16, v12")
        a("v_mul_u32_u24 v13, 12, v12")
        a("v_sub_u32 v13, v11, v13")
        a("v_mul_u32_u24 v12, 3072, v12")
        a(f"v_lshl_add_u32 v{8+i}, v13, 4, v12")
        if i: a(f"v_subrev_u32 v{8+i}, {1024*i}, v{8+i}")
    a("s_add_u32 s55, s49, s50")
    a("s_and_b32 s55, s55, 1")
    a("s_lshl_b32 s55, s55, 2")
    a("s_lshl_b32 s56, s49, 17")
    a("s_lshl_b32 s57, s48, 15")
    a("s_add_u32 s56, s56, s57")
    a("s_mul_i32 s57, s48, 49152")
    a("s_mul_i32 s58, s50, 192")
    a("s_add_u32 s57, s57, s58")
    a("s_lshl_b32 s58, s48, 12")
    a("s_mul_i32 s59, s48, 3072")
    a(f"s_add_u32 s59, s59, {K1_WRING}")
    def issue(st):
        slot = st & 3
        a(f"s_add_u32 s60, s55, {st}")
        a("s_and_b32 s60, s60, 7")
        a("s_lshl_b32 s61, s60, 7")
        a("s_add_u32 s61, s61, s56")
        a(f"s_add_u32 m0, s58, {slot*16384}")
        a("s_mul_i32 s62, s60, 196608")
        for q in range(4):
            a(f"buffer_load_dwordx4 v{4+q}, s[36:39], s61 offen offset:{1024*q} lds")
        a(f"s_add_u32 m0, s59, {slot*12288}")
        a("s_add_u32 s62, s62, s57")
        for i in range(3):
            a(f"buffer_load_dwordx4 v{8+i}, s[40:43], s62 offen offset:{1024*i} lds")
    issue(0)
    a("s_lshl_b32 s63, s2, 3")
    a("s_lshl_b32 s64, s48, 1")
    a("s_add_u32 s63, s63, s64")
    a("s_lshl_b32 s64, s63, 10")
    a("v_lshlrev_b32 v14, 4, v1")
    a("buffer_load_dwordx4 v[20:23], v14, s[36:39], s64 offen")
    a("buffer_load_dwordx4 v[24:27], v14, s[36:39], s64 offen offset:1024")
    a("global_load_dwordx4 v[28:31], v14, s[28:29]")
    for st in range(1, 4): issue(st)
    a("v_lshrrev_b32 v3, 5, v1")
    a("v_bfe_u32 v11, v1, 2, 2")
    a("v_lshl_add_u32 v12, v3, 3, v11")
    a("v_lshrrev_b32 v13, 1, v12")
    a("v_bfe_u32 v15, v1, 4, 1")
    a("v_bfe_u32 v16, v1, 1, 1")
    a("v_lshl_add_u32 v15, v15, 1, v16")
    a("s_and_b32 s65, s50, 1")
    a("s_lshl_b32 s65, s65, 2")
    a("v_add_u32 v15, s65, v15")
    a("v_xor_b32 v15, v15, v13")
    a("v_lshlrev_b32 v15, 4, v15")
    a("v_lshl_add_u32 v15, v12, 7, v15")
    a("v_and_b32 v16, 1, v1")
    a("v_lshl_add_u32 v15, v16, 3, v15")
    a("s_lshr_b32 s66, s50, 1")
    a("s_sub_u32 s66, s66, s55")
    a("s_and_b32 s66, s66, 7")
    a("s_and_b32 s67, s66, 3")
    a("s_lshl_b32 s67, s67, 14")
    a("s_add_u32 s67, s67, s58")
    a("v_add_u32 v15, s67, v15")
    a("v_xor_b32 v16, 32, v15")
    a("v_add_u32 v16, 512, v16")
    for i in range(8): a(f"v_mov_b32 v{32+i}, 0")
    waits = [24, 14, 14, 14, 14, 14, 7, 0]
    for st in range(8):
        a(f"s_waitcnt vmcnt({waits[st]})")
        a("s_barrier")
        if 1 <= st <= 4: issue(st + 3)
        a(f"s_cmp_lg_u32 s66, {st}")
        a(f"s_cbranch_scc1 K1_NX{st}")
        a("ds_read_b64_tr_b16 v[32:33], v15")
        a("ds_read_b64_tr_b16 v[34:35], v16")
        a("ds_read_b64_tr_b16 v[36:37], v15 offset:2048")
        a("ds_read_b64_tr_b16 v[38:39], v16 offset:2048")
        a("s_waitcnt lgkmcnt(0)")
        a(f"K1_NX{st}:")
    a("v_bfe_u32 v11, v1, 1, 4")
    a("v_mul_u32_u24 v11, 9216, v11")
    a("v_and_b32 v12, 1, v1")
    a("v_lshl_add_u32 v12, v12, 2, v3")
    a("v_lshl_add_u32 v11, v12, 4, v11")
    a("s_lshl_b32 s68, s49, 2")
    a("s_add_u32 s68, s68, s48")
    a("s_mul_i32 s68, s68, 144")
    a(f"s_mul_i32 s69, s50, {16*9216}")
    a("s_add_u32 s68, s68, s69")
    a(f"s_add_u32 s68, s68, {WS_UT}")
    a(f"buffer_store_dwordx4 v[32:35], v11, s[44:47], s68 offen{ST}")
    a(f"buffer_store_dwordx4 v[36:39], v11, s[44:47], s68 offen offset:32{ST}")
    a("v_mov_b32 v40, 0\nv_mov_b32 v41, 0")
    for i in range(4):
        a(f"v_dot2_f32_bf16 v40, v{20+i}, v{28+i}, v40")
        a(f"v_dot2_f32_bf16 v41, v{24+i}, v{28+i}, v41")
    a("s_nop 3")
    for ror in (8, 4, 2, 1):
        a(f"v_add_f32_dpp v40, v40, v40 row_ror:{ror} row_mask:0xf bank_mask:0xf")
        a(f"v_add_f32_dpp v41, v41, v41 row_ror:{ror} row_mask:0xf bank_mask:0xf")
        a("s_nop 0")
    a("v_and_b32 v42, 1, v1")
    a("v_cmp_eq_u32 s[70:71], 1, v42")
    a("s_nop 1")
    a("v_cndmask_b32 v40, v40, v41, s[70:71]")
    a("v_mov_b32 v41, v40")
    a("s_nop 1")
    a("v_permlane32_swap_b32 v40, v41")
    a("v_add_f32 v40, v40, v41")
    a("v_mov_b32 v41, v40")
    a("s_nop 1")
    a("v_permlane16_swap_b32 v40, v41")
    a("v_add_f32 v40, v40, v41")
    a("v_cvt_pk_bf16_f32 v40, v40, v40")
    a("v_and_b32 v40, 0xffff0000, v40")
    a(f"v_mul_f32 v40, {hex(f2u(-LOG2E))}, v40")
    a("v_exp_f32 v40, v40")
    a("s_nop 0")
    a("v_add_f32 v40, 1.0, v40")
    a("v_rcp_f32 v40, v40")
    a("s_nop 0")
    a("v_cvt_pk_bf16_f32 v40, v40, v40")
    a("v_and_b32 v40, 0xffff0000, v40")
    a("v_sub_f32 v41, 1.0, v40")
    a("v_cvt_pk_bf16_f32 v41, v41, v41")
    a("v_and_b32 v41, 0xffff0000, v41")
    a("v_lshlrev_b32 v42, 3, v1")
    a("s_lshl_b32 s63, s63, 3")
    a(f"s_add_u32 s63, s63, {WS_G}")
    a("s_mov_b64 exec, 3")
    a(f"buffer_store_dwordx2 v[40:41], v42, s[44:47], s63 offen{ST}")
    a("K1_END:")
    a("s_endpgm")
    return a.text(), 208
```

```python
from common import *

L_K, L_V, L_KPE, L_KPO, L_U = 0, 65536, 132096, 140480, 148800
K2_LDS = 163840
UNR = 4

def gen_k2(name, ST=""):
    a = Asm()
    a(f".globl {name}\n.p2align 8\n.type {name},@function\n{name}:")
    a("s_cmp_ge_u32 s2, 256")
    a("s_cbranch_scc1 K2_END")
    a(f"s_load_dwordx2 s[4:5], s[0:1], {KA_WS}")
    a("v_lshrrev_b32 v2, 6, v0")
    a("v_and_b32 v1, 63, v0")
    a("s_and_b32 s16, s2, 7")
    a("v_readfirstlane_b32 s12, v2")
    a("s_lshr_b32 s17, s2, 3")
    a("s_lshl_b32 s13, s16, 2")
    a("s_and_b32 s18, s17, 3")
    a("s_add_u32 s13, s13, s18")
    a("s_lshr_b32 s14, s2, 5")
    a("s_lshl_b32 s15, s16, 5")
    a("s_add_u32 s15, s15, s17")
    a(f"s_mul_i32 s19, s13, {HS}")
    a("v_lshlrev_b32 v4, 4, v1")
    a("v_lshrrev_b32 v3, 5, v1")
    a("s_waitcnt lgkmcnt(0)")
    srd(a, 8, 4, 5, WS_END)
    a("s_cmp_ge_u32 s12, 8")
    a("s_cbranch_scc1 K2_AUX")

    Q, KF, V0, V1, P, O, S0, S1, C = 8, 12, 16, 20, 24, 32, 48, 64, 80
    AK, AV0, AV1, OMG = 5, 6, 7, 96
    a("s_lshl_b32 s20, s14, 3")
    a("s_add_u32 s20, s20, s12")
    a("s_lshl_b32 s21, s20, 10")
    a("s_add_u32 s21, s21, s19")
    a(f"s_add_u32 s21, s21, {OFF_Q}")
    a(f"buffer_load_dwordx4 {vr(Q,4)}, v4, s[8:11], s21 offen")
    a("v_and_b32 v2, 31, v1")
    a("v_lshlrev_b32 v2, 3, v2")
    a("s_lshl_b32 s22, s20, 8")
    a(f"s_add_u32 s22, s22, {WS_G+4}")
    a(f"buffer_load_dword v{OMG}, v2, s[8:11], s22 offen")
    a("v_and_b32 v97, 15, v1")
    a("v_bfe_u32 v98, v1, 4, 1")
    a("v_lshlrev_b32 v99, 3, v98")
    a("v_xor_b32 v97, v97, v99")
    a("v_lshl_add_u32 v97, v3, 4, v97")
    a("v_lshlrev_b32 v97, 4, v97")
    a("v_and_b32 v98, 31, v1")
    a("v_cmp_eq_u32 s[24:25], 16, v98")
    a("v_mov_b32 v98, 1024")
    a("v_add_u32 v99, 512, v97")
    a("v_cndmask_b32 v100, v97, v98, s[24:25]")
    a("v_cndmask_b32 v101, v99, v98, s[24:25]")
    a(f"v_add_u32 v100, {L_V}, v100")
    a(f"v_add_u32 v101, {L_V}, v101")
    for i in range(16):
        a(f"v_mov_b32 v{C+i}, 0")
    a("s_mov_b32 s26, 0x22")
    a("s_mov_b32 s27, 0")
    a("s_waitcnt vmcnt(0)")
    a("s_barrier")
    a("K2_PASS:")
    a(f"v_mov_b32 v{AK}, v4")
    a(f"v_mov_b32 v{AV0}, v100")
    a(f"v_mov_b32 v{AV1}, v101")
    a(f"ds_read_b128 {vr(KF,4)}, v{AK}")
    for i in range(16):
        a(f"v_mov_b32 v{O+i}, 0")
    for i in range(4):
        a(f"v_mov_b32 v{V1+i}, 0")
        a(f"v_mov_b32 v{P+4+i}, 0")
    a("s_waitcnt lgkmcnt(0)")
    a(f"v_mfma_f32_32x32x16_bf16 {vr(S0,16)}, {vr(KF,4)}, {vr(Q,4)}, {vr(C,16)}")
    a(f"ds_read_b128 {vr(KF,4)}, v{AK} offset:1024")
    a(f"ds_read_b128 {vr(V0,4)}, v{AV0}")
    a("s_mov_b32 s28, 0")
    a("s_nop 7")
    a(".p2align 6")
    a("K2_LOOP:")
    a("s_bitcmp1_b32 s26, s28")
    a("s_cbranch_scc0 K2_NOBAR")
    a("s_barrier")
    a("K2_NOBAR:")
    for u in range(UNR):
        Sc, Sn = (S0, S1) if u % 2 == 0 else (S1, S0)
        e = lambda i: a(f"v_exp_f32 v{Sc+i}, v{Sc+i}")
        c = lambda j: a(f"v_cvt_pk_bf16_f32 v{P+j}, v{Sc+2*j}, v{Sc+2*j+1}")
        e(0); e(1)
        a("s_waitcnt lgkmcnt(2)")
        a(f"v_mfma_f32_32x32x16_bf16 {vr(O,16)}, {vr(V1,4)}, {vr(P+4,4)}, {vr(O,16)}")
        a(f"ds_read_b128 {vr(V1,4)}, v{AV1} offset:{1040*u}")
        e(2); e(3); c(0); e(4); c(1); e(5)
        a("s_waitcnt lgkmcnt(2)")
        a(f"v_mfma_f32_32x32x16_bf16 {vr(Sn,16)}, {vr(KF,4)}, {vr(Q,4)}, {vr(C,16)}")
        a(f"ds_read_b128 {vr(KF,4)}, v{AK} offset:{1024*(u+2)}")
        e(6); e(7); c(2); e(8); c(3); e(9); e(10)
        a("s_waitcnt lgkmcnt(2)")
        a(f"v_mfma_f32_32x32x16_bf16 {vr(O,16)}, {vr(V0,4)}, {vr(P,4)}, {vr(O,16)}")
        a(f"ds_read_b128 {vr(V0,4)}, v{AV0} offset:{1040*(u+1)}")
        c(4); e(11); e(12); e(13); c(5); e(14); e(15); c(6)
        if u == UNR - 1:
            a("s_add_u32 s28, s28, 1")
            a(f"v_add_u32 v{AK}, {1024*UNR}, v{AK}")
            a(f"v_add_u32 v{AV0}, {1040*UNR}, v{AV0}")
            a(f"v_add_u32 v{AV1}, {1040*UNR}, v{AV1}")
            a(f"s_cmp_lt_u32 s28, {64//UNR}")
        c(7)
    a("s_cbranch_scc1 K2_LOOP")
    a("s_waitcnt lgkmcnt(0)")
    a("s_nop 0")
    a(f"v_mfma_f32_32x32x16_bf16 {vr(O,16)}, {vr(V1,4)}, {vr(P+4,4)}, {vr(O,16)}")
    a("s_nop 11")
    a(f"v_mov_b32 v{S0}, v{O+8}")
    a(f"v_mov_b32 v{S0+1}, v{O+8}")
    a("s_nop 1")
    a(f"v_permlane32_swap_b32 v{S0}, v{S0+1}")
    a("s_cmp_lg_u32 s27, 0")
    a("s_cbranch_scc1 K2_FIN")
    a(f"v_add_f32 v{S0+2}, |v{O}|, |v{O+1}|")
    for i in range(2, 8):
        a(f"v_add_f32 v{S0+2}, |v{O+i}|, v{S0+2}")
    a(f"s_mov_b32 s30, {hex(f2u(2.0**-80))}")
    a(f"s_mov_b32 s31, {hex(f2u(2.0**80))}")
    a(f"s_mov_b32 s29, {hex(f2u(2.0**120))}")
    a(f"v_cmp_ge_f32 s[32:33], v{S0}, s30")
    a(f"v_cmp_le_f32 s[34:35], v{S0}, s31")
    a(f"v_cmp_le_f32 s[36:37], v{S0+2}, s29")
    a("s_nop 1")
    a("s_and_b64 s[32:33], s[32:33], s[34:35]")
    a("s_and_b64 s[32:33], s[32:33], s[36:37]")
    a("s_cmp_eq_u64 s[32:33], -1")
    a("s_cbranch_scc1 K2_FIN")
    a(f"v_mov_b32 v{AK}, v4")
    a(f"v_mov_b32 v{S1}, 0xff800000")
    a("s_mov_b32 s28, 0")
    a("K2_MAXL:")
    a(f"ds_read_b128 {vr(KF,4)}, v{AK}")
    a(f"v_add_u32 v{AK}, 1024, v{AK}")
    a("s_add_u32 s28, s28, 1")
    a("s_waitcnt lgkmcnt(0)")
    a(f"v_mfma_f32_32x32x16_bf16 {vr(S0,16)}, {vr(KF,4)}, {vr(Q,4)}, 0")
    a("s_nop 15")
    for i in range(8):
        a(f"v_max3_f32 v{S1}, v{S0+2*i}, v{S0+2*i+1}, v{S1}")
    a("s_cmp_lt_u32 s28, 64")
    a("s_cbranch_scc1 K2_MAXL")
    a(f"v_mov_b32 v{S1+1}, v{S1}")
    a("s_nop 1")
    a(f"v_permlane32_swap_b32 v{S1}, v{S1+1}")
    a(f"v_max_f32 v{S1}, v{S1}, v{S1+1}")
    for i in range(16):
        a(f"v_sub_f32 v{C+i}, 0, v{S1}")
    a("s_mov_b32 s26, 0")
    a("s_mov_b32 s27, 1")
    a("s_branch K2_PASS")
    a("K2_FIN:")
    a(f"v_rcp_f32 v{S0}, v{S0}")
    a("s_lshl_b32 s21, s20, 5")
    a("s_add_u32 s21, s21, s13")
    a(f"v_mul_f32 v{S0}, v{S0}, v{OMG}")
    a("s_lshl_b32 s21, s21, 10")
    a(f"s_add_u32 s21, s21, {WS_O}")
    for i in range(8):
        a(f"v_mul_f32 v{O+i}, v{O+i}, v{S0}")
    for i in range(4):
        a(f"v_cvt_pk_bf16_f32 v{P+i}, v{O+2*i}, v{O+2*i+1}")
    a(f"buffer_store_dwordx4 {vr(P,4)}, v4, s[8:11], s21 offen{ST}")
    a("s_endpgm")

    a("K2_AUX:")
    a("s_sub_u32 s12, s12, 8")
    a("s_lshl_b32 s20, s12, 10")
    a("s_add_u32 s21, s19, s20")
    def dma(e):
        a(f"s_add_u32 m0, s20, {e*1024}")
        a(f"s_add_u32 s22, s21, {e*1024}")
        a("buffer_load_dwordx4 v4, s[8:11], s22 offen lds")
    for e in (0, 64, 4, 68): dma(e)
    for e in (8, 72, 12, 76, 16, 80, 20, 84): dma(e)
    def dmaloop(lbl, lo, hi):
        a(f"s_mov_b32 s23, {lo*1024}")
        a(f"{lbl}:")
        a("s_add_u32 m0, s20, s23")
        a("s_add_u32 s22, s21, s23")
        a("buffer_load_dwordx4 v4, s[8:11], s22 offen lds")
        a("s_add_u32 s24, s23, 65536")
        a("s_add_u32 m0, s20, s24")
        a("s_add_u32 s22, s21, s24")
        a("buffer_load_dwordx4 v4, s[8:11], s22 offen lds")
        a("s_add_u32 s23, s23, 4096")
        a(f"s_cmp_lt_u32 s23, {hi*1024}")
        a(f"s_cbranch_scc1 {lbl}")
    a("s_waitcnt vmcnt(8)")
    a("s_barrier")
    dmaloop("K2_DMA1", 24, 44)
    a("s_waitcnt vmcnt(10)")
    a("s_barrier")
    dmaloop("K2_DMA2", 44, 64)
    a(f"s_mul_i32 s24, s15, {2*KPROW}")
    a(f"s_add_u32 s24, s24, {WS_KP}")
    a("s_mul_i32 s25, s15, 9216")
    a(f"s_add_u32 s25, s25, {WS_UT}")
    a("s_cmp_eq_u32 s12, 3")
    a("s_cbranch_scc1 K2_LASTV")
    a(f"s_mov_b32 s26, {L_KPE}")
    a("s_cmp_eq_u32 s12, 1")
    a(f"s_cselect_b32 s26, {L_KPO}, s26")
    a("s_cselect_b32 s27, 2, 0")
    a("s_add_u32 s24, s24, s27")
    a("s_cmp_eq_u32 s12, 2")
    a(f"s_cselect_b32 s26, {L_U+31*144}, s26")
    a("s_cselect_b32 s24, s25, s24")
    a("s_cselect_b64 s[28:29], -1, 0xff")
    a("s_mov_b32 m0, s26")
    a("s_add_u32 s25, s24, 4096")
    for i in range(4):
        a(f"buffer_load_dwordx4 v4, s[8:11], s24 offen offset:{1024*i} lds")
    a("s_add_u32 m0, s26, 4096")
    a("s_add_u32 s24, s24, 8192")
    for i in range(4):
        a(f"buffer_load_dwordx4 v4, s[8:11], s25 offen offset:{1024*i} lds")
    a("s_add_u32 m0, s26, 8192")
    a("s_mov_b64 exec, s[28:29]")
    a("buffer_load_dwordx4 v4, s[8:11], s24 offen lds")
    a("s_mov_b64 exec, -1")
    a("s_branch K2_B1")
    a("K2_LASTV:")
    a("s_mov_b32 m0, 131072")
    a("s_add_u32 s22, s19, 131072")
    a("buffer_load_dwordx4 v4, s[8:11], s22 offen lds")
    for i in range(4): a(f"v_mov_b32 v{8+i}, 0")
    a(f"v_add_u32 v5, {L_U}, v4")
    for i in range(4):
        a(f"ds_write_b128 v5, v[8:11] offset:{1024*i}")
    a("s_mov_b64 exec, 0x7fffff")
    a("ds_write_b128 v5, v[8:11] offset:4096")
    a("s_mov_b64 exec, -1")
    a("K2_B1:")
    a("s_lshr_b32 s30, s12, 1")
    a("s_and_b32 s31, s12, 1")
    a("v_and_b32 v5, 31, v1")
    a("v_lshrrev_b32 v6, 1, v5")
    a("v_sub_u32 v6, 1031, v6")
    a("v_lshlrev_b32 v6, 2, v6")
    a("v_lshl_add_u32 v6, v3, 4, v6")
    a("v_and_b32 v7, 1, v5")
    a(f"v_mul_u32_u24 v7, {L_KPO-L_KPE}, v7")
    a("v_sub_u32 v6, v6, v7")
    a(f"s_mul_i32 s32, s30, {KPROW}")
    a(f"s_add_u32 s32, s32, {L_KPO}")
    a("s_lshl_b32 s33, s31, 11")
    a(f"s_add_u32 s33, s33, {63*32}")
    a("s_sub_u32 s32, s32, s33")
    a("v_add_u32 v6, s32, v6")
    a("v_mul_u32_u24 v7, 144, v5")
    a("v_lshl_add_u32 v7, v3, 4, v7")
    a("s_lshl_b32 s33, s30, 6")
    a(f"s_add_u32 s33, s33, {L_U}")
    a("v_add_u32 v7, s33, v7")
    D, FA, FB = 16, 32, 64
    for i in range(16): a(f"v_mov_b32 v{D+i}, 0")
    a("s_lshl_b32 s34, s31, 3")
    a("s_add_u32 s34, s34, 8")
    a("s_waitcnt vmcnt(0) lgkmcnt(0)")
    a("s_barrier")
    def rd(slot, step):
        a(f"ds_read2_b32 {vr(FA+4*slot,2)}, v6 offset0:{8*step} offset1:{8*step+1}")
        a(f"ds_read2_b32 {vr(FA+4*slot+2,2)}, v6 offset0:{8*step+2} offset1:{8*step+3}")
        a(f"ds_read_b128 {vr(FB+4*slot,4)}, v7 offset:{144*(step>>1)+32*(step&1)}")
    for s in range(4): rd(s, s)
    a("K2_CONV:")
    for s in range(8):
        a("s_waitcnt lgkmcnt(9)")
        a(f"v_mfma_f32_32x32x16_bf16 {vr(D,16)}, {vr(FA+4*(s&3),4)}, {vr(FB+4*(s&3),4)}, {vr(D,16)}")
        rd(s & 3, s + 4)
    a("v_add_u32 v6, 256, v6")
    a(f"v_add_u32 v7, {144*4}, v7")
    a("s_sub_u32 s34, s34, 1")
    a("s_cmp_lg_u32 s34, 0")
    a("s_cbranch_scc1 K2_CONV")
    a("s_lshl_b32 s35, s15, 1")
    a("s_add_u32 s35, s35, s30")
    a("s_lshr_b32 s36, s35, 5")
    a("s_lshl_b32 s36, s36, 11")
    a("s_and_b32 s35, s35, 31")
    a("s_lshl_b32 s35, s35, 4")
    a("s_add_u32 s35, s35, s36")
    a("s_lshl_b32 s36, s31, 20")
    a("s_add_u32 s35, s35, s36")
    a(f"s_add_u32 s35, s35, {WS_GA}")
    a("v_lshlrev_b32 v5, 15, v5")
    a("v_lshl_add_u32 v5, v3, 9, v5")
    a("s_waitcnt lgkmcnt(0)")
    for i in range(8):
        a(f"v_cvt_pk_bf16_f32 v{8+i}, v{D+2*i}, v{D+2*i+1}")
    a(f"buffer_store_dwordx4 v[8:11], v5, s[8:11], s35 offen{ST}")
    a(f"buffer_store_dwordx4 v[12:15], v5, s[8:11], s35 offen offset:1024{ST}")
    a("K2_END:")
    a("s_endpgm")
    return a.text(), 104
```

```python
from common import *
K3_LDS = 131072

def gen_k3(name):
    a = Asm()
    a(f".globl {name}\n.p2align 8\n.type {name},@function\n{name}:")
    a("s_cmp_ge_u32 s2, 256")
    a("s_cbranch_scc1 K3_END")
    a(f"s_load_dwordx2 s[4:5], s[0:1], {KA_WS}")
    a(f"s_load_dwordx2 s[6:7], s[0:1], {KA_WO}")
    a(f"s_load_dwordx2 s[20:21], s[0:1], {KA_OUT}")
    a("v_lshrrev_b32 v2, 6, v0")
    a("v_and_b32 v1, 63, v0")
    a("s_and_b32 s26, s2, 7")
    a("v_readfirstlane_b32 s22, v2")
    a("s_lshr_b32 s27, s2, 3")
    a("s_and_b32 s23, s26, 3")
    a("s_lshl_b32 s23, s23, 3")
    a("s_and_b32 s28, s27, 7")
    a("s_add_u32 s23, s23, s28")
    a("s_lshr_b32 s24, s26, 2")
    a("s_lshl_b32 s24, s24, 2")
    a("s_lshr_b32 s28, s27, 3")
    a("s_add_u32 s24, s24, s28")
    a("v_lshlrev_b32 v4, 4, v1")
    a("v_lshrrev_b32 v3, 5, v1")
    a("s_waitcnt lgkmcnt(0)")
    srd(a, 8, 4, 5, WS_END)
    a("s_cmp_ge_u32 s22, 4")
    a("s_cbranch_scc1 K3_LOADER")
    srd(a, 16, 20, 21, 2048 * 512 * 2)
    D, GA, DG, FA, FB = 16, 32, 40, 48, 64
    a("s_and_b32 s29, s22, 1")
    a("s_lshr_b32 s30, s22, 1")
    a("s_lshl_b32 s31, s23, 1")
    a("s_add_u32 s31, s31, s29")
    a("s_lshl_b32 s32, s24, 1")
    a("s_add_u32 s32, s32, s30")
    a("s_lshl_b32 s33, s31, 4")
    a("s_add_u32 s33, s33, s32")
    a("s_lshl_b32 s33, s33, 11")
    a(f"s_add_u32 s33, s33, {WS_GA}")
    a("v_and_b32 v5, 31, v1")
    a("v_lshlrev_b32 v6, 3, v5")
    a("s_lshl_b32 s34, s31, 8")
    a(f"s_add_u32 s34, s34, {WS_G}")
    a("buffer_load_dword v7, v6, s[8:11], s34 offen")
    a(f"buffer_load_dwordx4 {vr(GA,4)}, v4, s[8:11], s33 offen")
    a(f"buffer_load_dwordx4 {vr(GA+4,4)}, v4, s[8:11], s33 offen offset:1024")
    a("s_lshl_b32 s35, s29, 15")
    a("v_add_u32 v8, s35, v4")
    a("v_bfe_u32 v10, v1, 2, 2")
    a("v_lshl_add_u32 v9, v3, 2, v10")
    a("v_lshlrev_b32 v9, 7, v9")
    a("v_lshrrev_b32 v10, 1, v10")
    a("v_xor_b32 v10, s30, v10")
    a("v_lshl_add_u32 v9, v10, 6, v9")
    a("v_bfe_u32 v10, v1, 4, 1")
    a("v_lshl_add_u32 v9, v10, 5, v9")
    a("v_and_b32 v10, 3, v1")
    a("v_lshl_add_u32 v9, v10, 3, v9")
    a("v_add_u32 v9, 65536, v9")
    a("v_lshrrev_b32 v10, 3, v5")
    a("v_bfe_u32 v11, v5, 1, 1")
    a("v_lshl_add_u32 v10, v10, 1, v11")
    a("v_bfe_u32 v11, v5, 2, 1")
    a("v_xor_b32 v11, v11, v3")
    a("v_lshl_add_u32 v10, v11, 3, v10")
    a("v_and_b32 v11, 1, v5")
    a("v_xor_b32 v11, 1, v11")
    a("v_lshlrev_b32 v11, 4, v11")
    for k in range(8):
        a(f"v_cmp_eq_u32 s[{40+2*k}:{41+2*k}], {k}, v10")
    a("v_lshlrev_b32 v12, 10, v5")
    a("v_lshl_add_u32 v12, v3, 4, v12")
    a("s_lshl_b32 s36, s31, 15")
    a("s_lshl_b32 s37, s32, 6")
    a("s_add_u32 s36, s36, s37")
    a("s_waitcnt vmcnt(2)")
    a("v_lshrrev_b32 v7, v11, v7")
    for k in range(8):
        a(f"v_cndmask_b32 v{DG+k}, 0, v7, s[{40+2*k}:{41+2*k}]")
    a("s_waitcnt vmcnt(0)")
    a("s_nop 0")
    a(f"v_mfma_f32_32x32x16_bf16 {vr(D,16)}, {vr(GA,4)}, {vr(DG,4)}, 0")
    a(f"v_mfma_f32_32x32x16_bf16 {vr(D,16)}, {vr(GA+4,4)}, {vr(DG+4,4)}, {vr(D,16)}")
    a("s_mov_b32 s38, 4")
    a("K3_LOOP:")
    a("s_barrier")
    def rd(slot, hd):
        a(f"ds_read_b64_tr_b16 {vr(FA+4*slot,2)}, v9 offset:{2048*hd}")
        a(f"ds_read_b64_tr_b16 {vr(FA+4*slot+2,2)}, v9 offset:{2048*hd+1024}")
        a(f"ds_read_b128 {vr(FB+4*slot,4)}, v8 offset:{1024*hd}")
    for s in range(4): rd(s, s)
    for s in range(8):
        a(f"s_waitcnt lgkmcnt({9 if s <= 4 else 3*(7-s)})")
        a(f"v_mfma_f32_32x32x16_bf16 {vr(D,16)}, {vr(FA+4*(s&3),4)}, {vr(FB+4*(s&3),4)}, {vr(D,16)}")
        if s < 4: rd(s, s + 4)
    a("v_add_u32 v8, 8192, v8")
    a("v_add_u32 v9, 16384, v9")
    a("s_sub_u32 s38, s38, 1")
    a("s_cmp_lg_u32 s38, 0")
    a("s_cbranch_scc1 K3_LOOP")
    a("s_nop 7")
    for i in range(8):
        a(f"v_cvt_pk_bf16_f32 v{GA+i}, v{D+2*i}, v{D+2*i+1}")
    a("s_nop 1")
    a(f"v_permlane32_swap_b32 v{GA}, v{GA+2}")
    a(f"v_permlane32_swap_b32 v{GA+1}, v{GA+3}")
    a(f"v_permlane32_swap_b32 v{GA+4}, v{GA+6}")
    a(f"v_permlane32_swap_b32 v{GA+5}, v{GA+7}")
    a(f"buffer_store_dwordx4 {vr(GA,4)}, v12, s[16:19], s36 offen")
    a(f"buffer_store_dwordx4 {vr(GA+4,4)}, v12, s[16:19], s36 offen offset:32")
    a("s_endpgm")
    a("K3_LOADER:")
    srd(a, 12, 6, 7, 512 * 512 * 2)
    a("s_sub_u32 s22, s22, 4")
    a("v_lshrrev_b32 v5, 3, v1")
    a("v_bfe_u32 v6, v1, 4, 1")
    a("v_lshlrev_b32 v6, 2, v6")
    a("v_and_b32 v7, 7, v1")
    a("v_xor_b32 v6, v6, v7")
    a("v_lshlrev_b32 v6, 4, v6")
    a("v_lshl_add_u32 v8, v5, 10, v6")
    for q in range(1, 4):
        a(f"v_add_u32 v{8+q}, {7168*q}, v8")
    a("s_lshr_b32 s29, s22, 1")
    a("s_lshl_b32 s29, s29, 15")
    a("s_and_b32 s30, s22, 1")
    a("s_lshl_b32 s30, s30, 12")
    a("s_add_u32 s29, s29, s30")
    a("s_lshl_b32 s30, s23, 16")
    a("s_add_u32 s30, s30, s29")
    a(f"s_add_u32 s30, s30, {WS_O}")
    a("s_lshl_b32 s31, s22, 12")
    a("s_add_u32 s31, s31, 65536")
    a("s_lshl_b32 s32, s22, 15")
    a("s_lshl_b32 s33, s24, 7")
    a("s_add_u32 s32, s32, s33")
    def issue(c):
        a(f"s_add_u32 m0, s29, {8192*c}")
        a(f"s_add_u32 s34, s30, {8192*c}")
        for q in range(4):
            a(f"buffer_load_dwordx4 v4, s[8:11], s34 offen offset:{1024*q} lds")
        a(f"s_add_u32 m0, s31, {16384*c}")
        a(f"s_add_u32 s34, s32, {131072*c}")
        for q in range(4):
            a(f"buffer_load_dwordx4 v{8+q}, s[12:15], s34 offen offset:{1024*q} lds")
    issue(0); issue(1); issue(2)
    a("s_waitcnt vmcnt(16)")
    a("s_barrier")
    issue(3)
    a("s_waitcnt vmcnt(16)")
    a("s_barrier")
    a("s_waitcnt vmcnt(8)")
    a("s_barrier")
    a("s_waitcnt vmcnt(0)")
    a("s_barrier")
    a("K3_END:")
    a("s_endpgm")
    return a.text(), 80
```

```python
import sys
sys.path.insert(0, "gen")
from common import *
import k1, k2, k3
def build(ST="", only=None):
    hdr = open("gated_mix__ssm_conv_s4__softmax_full_mha__prompt.s.ref").read().split("; Override launch")[0]
    t1, v1 = k1.gen_k1("qkv_kernel", ST)
    t2, v2 = k2.gen_k2("attn_kernel", ST)
    t3, v3 = k3.gen_k3("proj_kernel")
    L = [f"; @launch kernel=qkv_kernel grid=(256,1,1) block=(512,1,1) lds={k1.K1_LDS}",
         f"; @launch kernel=attn_kernel grid=(256,1,1) block=(768,1,1) lds={k2.K2_LDS}",
         f"; @launch kernel=proj_kernel grid=(256,1,1) block=(512,1,1) lds={k3.K3_LDS}"]
    s = hdr + "\n".join(L) + "\n"
    s += '.amdgcn_target "amdgcn-amd-amdhsa--gfx950"\n.text\n'
    s += t1 + t2 + t3
    s += '.section .rodata,"a"\n.p2align 6\n' + kd("qkv_kernel", v1) + ".p2align 6\n" + kd("attn_kernel", v2) + ".p2align 6\n" + kd("proj_kernel", v3)
    return s
if __name__ == "__main__":
    out = sys.argv[1] if len(sys.argv) > 1 else "gated_mix__ssm_conv_s4__softmax_full_mha__prompt.s"
    ST = sys.argv[2] if len(sys.argv) > 2 else ""
    open(out, "w").write(build(" " + ST if ST else ""))
```

```python
DIAG = [False]
WS_DIAG = 32 << 20
class Asm:
    def __init__(self):
        self.lines = []
    def __call__(self, s=""):
        for l in s.split("\n"):
            l = l.strip()
            if not l:
                continue
            if l.endswith(":") or l.startswith("."):
                self.lines.append(l)
            else:
                self.lines.append("    " + l)
    def c(self, s):
        self.lines.append("    ; " + s)
    def stamp(self, i):
        if DIAG[0]:
            self(f"s_memtime s[{80+2*i}:{81+2*i}]")
    def start(self):
        if DIAG[0]:
            for i in range(11):
                self(f"s_mov_b64 s[{78+2*i}:{79+2*i}], 0")
            self("s_memrealtime s[78:79]")
            self.stamp(0)
    def end(self, kern):
        if DIAG[0]:
            self("s_mov_b64 exec, -1")
            self.stamp(8)
            self("s_waitcnt vmcnt(0)")
            self.stamp(9)
            self("s_memrealtime s[100:101]")
            self(f"s_load_dwordx2 s[4:5], s[0:1], {KA_WS}")
            self("s_waitcnt lgkmcnt(0)")
            self(f"s_and_b32 s5, s5, 0xffff\ns_mov_b32 s6, {WS_DIAG + (4<<20)}\ns_mov_b32 s7, 0x20000")
            self("v_lshrrev_b32 v2, 6, v0\nv_lshlrev_b32 v2, 6, v2")
            self(f"s_lshl_b32 s3, s2, 10\ns_add_u32 s3, s3, {WS_DIAG + kern*256*1024}")
            self("s_getreg_b32 s79, hwreg(HW_REG_XCC_ID)\ns_getreg_b32 s81, hwreg(HW_REG_HW_ID)")
            regs = [78, 100] + [80 + 2*i for i in range(10)] + [79, 81, 79, 79]
            for k, r in enumerate(regs):
                self(f"v_mov_b32 v{4+k}, s{r}")
            self("s_mov_b64 exec, 1")
            for k in range(4):
                self(f"buffer_store_dwordx4 v[{4+4*k}:{7+4*k}], v2, s[4:7], s3 offen offset:{16*k}")
        self("s_endpgm")
    def text(self):
        return "\n".join(self.lines) + "\n"

def vr(a, n=1):
    return f"v{a}" if n == 1 else f"v[{a}:{a+n-1}]"
def sr(a, n=1):
    return f"s{a}" if n == 1 else f"s[{a}:{a+n-1}]"

KA_U, KA_ARE, KA_AIM, KA_BRE, KA_BIM, KA_CRE, KA_CIM, KA_LDT, KA_DSK = 0, 8, 16, 24, 32, 40, 48, 56, 64
KA_WQKV, KA_WO, KA_GW, KA_OUT, KA_DBG, KA_WS = 80, 88, 96, 104, 112, 120

HS = 65536 + 66560 + 65536
OFF_K, OFF_V, OFF_Q = 0, 65536, 132096
WS_H = 0
WS_KP = 32 * HS
KPROW = 4160
WS_UT = WS_KP + 512 * KPROW + 4096
WS_G = WS_UT + 256 * 9216
WS_O = WS_G + 2048 * 8
WS_GA = WS_O + 64 * 32 * 1024
WS_END = WS_GA + 64 * 16 * 2 * 1024
WS_SIZE = 268435456

def srd(a, base, lo, hi, nbytes):
    a(f"s_mov_b32 s{base}, s{lo}")
    a(f"s_and_b32 s{base+1}, s{hi}, 0xffff")
    a(f"s_mov_b32 s{base+2}, {nbytes}")
    a(f"s_mov_b32 s{base+3}, 0x20000")

def kd(name, vgpr, sgpr=102):
    acc = (vgpr + 3) // 4 * 4
    return f""".amdhsa_kernel {name}
  .amdhsa_next_free_vgpr {vgpr}
  .amdhsa_next_free_sgpr {sgpr}
  .amdhsa_accum_offset {acc}
  .amdhsa_group_segment_fixed_size 0
  .amdhsa_kernarg_size 128
  .amdhsa_user_sgpr_count 2
  .amdhsa_user_sgpr_kernarg_segment_ptr 1
  .amdhsa_system_sgpr_workgroup_id_x 1
.end_amdhsa_kernel
"""
def f2u(x):
    import struct
    return struct.unpack("<I", struct.pack("<f", x))[0]

GRS = 0x110000
G_HEAD = 196608
G_UT = 0xC0000
G_FL = 0x100000
W2_G = 8 * GRS
W2_O = W2_G + 2048 * 8
W2_GA = W2_O + 64 * 32 * 1024
W2_END = W2_GA + 64 * 16 * 2 * 1024
```

```python
from common import *
import math, struct
LOG2E = 1.4426950408889634
LOG2E_HI = f2u(LOG2E)
_hi = struct.unpack("<f", struct.pack("<I", LOG2E_HI))[0]
LOG2E_LO = f2u(LOG2E - _hi)
LN2 = f2u(math.log(2.0))
QSCALE = f2u(0.25 * LOG2E)
MF = "v_mfma_f32_32x32x16_bf16"

L_X, L_W, L_KG = 0, 65536, 114688
KGW = 8704
L_K, L_V, L_KPE, L_KPO, L_U = 0, 65536, 132096, 140480, 148800
L_XCH = 151552
L_SY = 162816
KA_LDS = 163840
S_FULL, S_FREE = 0, 64
S_DONE, S_UDONE, S_GO, S_A0, S_A1, S_A3, S_KGX, S_GOU, S_UIN, S_CV0, S_CV1, S_NONCE = 128, 132, 136, 140, 144, 148, 152, 156, 160, 164, 172, 180
VSY, VONE, VTMP = 164, 165, 166
UNR = 4
PRIO1, PRIO0 = 6, 7
LDS_SPIN = 1 << 20
FAST_TRIES = 64
SLOW_TRIES = 20000

def interleave(chains):
    out = []
    chains = [list(c) for c in chains]
    while any(chains):
        for c in chains:
            if c: out.append(c.pop(0))
    return out

def cmul(d, x, w):
    return [f"v_pk_mul_f32 {vr(d,2)}, {vr(x,2)}, {vr(w,2)} op_sel:[0,0] op_sel_hi:[0,1]",
            f"v_pk_fma_f32 {vr(d,2)}, {vr(x,2)}, {vr(w,2)}, {vr(d,2)} op_sel:[1,1,0] op_sel_hi:[1,0,1] neg_lo:[0,1,0]"]

def gen_ka(name, X=()):
    a = Asm()
    cnt = [0]
    def lbl(p):
        cnt[0] += 1
        return f"KA_{p}{cnt[0]}"
    def sig(off, addr=VSY):
        a("s_mov_b64 exec, 1")
        a(f"ds_add_u32 v{addr}, v{VONE} offset:{off}")
        a("s_mov_b64 exec, -1")
    def wait(off, n, addr=VSY, out=76):
        l, e = lbl("W"), lbl("E")
        a(f"s_mov_b32 s77, {LDS_SPIN}")
        a(f"{l}:")
        a(f"ds_read_b32 v{VTMP}, v{addr} offset:{off}")
        a("s_sub_u32 s77, s77, 1")
        a("s_cbranch_scc1 " + e)
        a("s_waitcnt lgkmcnt(0)")
        a(f"v_readfirstlane_b32 s{out}, v{VTMP}")
        a(f"s_cmp_lt_u32 s{out}, {n}")
        a("s_cbranch_scc1 " + l)
        a(f"{e}:")
    def group_sync(fl_off):
        lf, ls, done = lbl("GF"), lbl("GS"), lbl("GD")
        a("s_getreg_b32 s60, hwreg(HW_REG_XCC_ID)")
        a("s_and_b32 s60, s60, 15")
        a("s_add_u32 s60, s60, 1")
        a("s_lshl_b32 s60, s60, 1")
        a("s_xor_b32 s60, s60, s52")
        a(f"s_add_u32 s61, s51, {G_FL + fl_off}")
        a("s_lshl_b32 s62, s50, 2")
        a("v_mov_b32 v8, s60")
        a("v_mov_b32 v9, s62")
        a("v_and_b32 v10, 31, v1")
        a("v_lshlrev_b32 v10, 2, v10")
        a("s_mov_b64 exec, 1")
        a("buffer_store_dword v8, v9, s[44:47], s61 offen")
        a("s_mov_b64 exec, -1")
        a(f"s_mov_b32 s63, {FAST_TRIES}")
        a(f"{lf}:")
        a("buffer_load_dword v11, v10, s[44:47], s61 offen sc1")
        a("s_waitcnt vmcnt(0)")
        a("v_cmp_ne_u32 vcc, s60, v11")
        a(f"s_cbranch_vccz {done}")
        a("s_sub_u32 s63, s63, 1")
        a(f"s_cbranch_scc0 {lf}")
        a("buffer_wbl2 sc1")
        a("s_waitcnt vmcnt(0)")
        a("v_mov_b32 v8, s52")
        a("s_mov_b64 exec, 1")
        a("buffer_store_dword v8, v9, s[44:47], s61 offen offset:256 sc1")
        a("s_mov_b64 exec, -1")
        a(f"s_mov_b32 s63, {SLOW_TRIES}")
        a(f"{ls}:")
        a("buffer_load_dword v11, v10, s[44:47], s61 offen sc1")
        a("buffer_load_dword v12, v10, s[44:47], s61 offen offset:256 sc1")
        a("s_waitcnt vmcnt(0)")
        a("v_cmp_ne_u32 vcc, s60, v11")
        a("v_cmp_ne_u32 s[64:65], s52, v12")
        a("s_and_b64 vcc, vcc, s[64:65]")
        a("s_cbranch_scc0 " + done + "A")
        a("s_sleep 8")
        a("s_sub_u32 s63, s63, 1")
        a(f"s_cbranch_scc0 {ls}")
        a(f"{done}A:")
        a("buffer_inv sc1")
        a("s_waitcnt vmcnt(0)")
        a(f"{done}:")

    a(f".globl {name}\n.p2align 8\n.type {name},@function\n{name}:")
    a("s_cmp_ge_u32 s2, 256")
    a("s_cbranch_scc1 KA_END")
    a.start()
    a("s_load_dwordx16 s[4:19], s[0:1], 0")
    a("s_load_dwordx16 s[20:35], s[0:1], 64")
    a("v_lshrrev_b32 v2, 6, v0")
    a("v_and_b32 v1, 63, v0")
    a("s_and_b32 s49, s2, 7")
    a("v_readfirstlane_b32 s48, v2")
    a("s_lshr_b32 s50, s2, 3")
    a(f"s_mul_i32 s51, s49, {GRS}")
    a("s_add_u32 s53, s49, s50")
    a("v_lshlrev_b32 v4, 4, v1")
    a("v_lshrrev_b32 v3, 5, v1")
    a(f"v_mov_b32 v{VSY}, {L_SY}")
    a(f"v_mov_b32 v{VONE}, 1")
    a(f"v_lshl_add_u32 v5, v1, 2, v{VSY}")
    a("v_mov_b32 v6, 0")
    a("ds_write_b32 v5, v6")
    a("s_waitcnt lgkmcnt(0)")
    a("s_barrier")
    srd(a, 44, 34, 35, W2_END)
    a("s_cmp_ge_u32 s48, 8")
    a("s_cbranch_scc1 KA_AUX")
    a("s_cmp_ge_u32 s48, 4")
    a("s_cbranch_scc1 KA_LOADER")

    a("s_setprio 2")
    ACC, F0, F1 = 64, 112, 128
    XA, WAD, FLA = 16, 20, 21
    a("s_and_b32 s54, s48, 1")
    a("s_lshr_b32 s55, s48, 1")
    a("v_and_b32 v5, 31, v1")
    a("s_lshl_b32 s56, s54, 12")
    a("v_lshl_add_u32 v6, v5, 7, s56")
    a("v_bfe_u32 v7, v5, 1, 3")
    a("v_xor_b32 v7, v7, v3")
    a(f"v_lshl_add_u32 v{XA}, v7, 4, v6")
    for ks in range(1, 4):
        a(f"v_xor_b32 v{XA+ks}, {ks<<5}, v{XA}")
    a("v_bfe_u32 v7, v1, 2, 2")
    a("v_lshl_add_u32 v6, v3, 3, v7")
    a("v_lshlrev_b32 v6, 7, v6")
    a("v_lshrrev_b32 v7, 1, v7")
    a("v_xor_b32 v7, s55, v7")
    a("v_lshl_add_u32 v6, v7, 6, v6")
    a("v_bfe_u32 v7, v1, 4, 1")
    a("v_lshl_add_u32 v6, v7, 5, v6")
    a("v_and_b32 v7, 3, v1")
    a("v_lshl_add_u32 v6, v7, 3, v6")
    a(f"v_add_u32 v{WAD}, {L_W}, v6")
    a(f"v_mov_b32 v{FLA}, v{VSY}")
    for i in range(48):
        a(f"v_mov_b32 v{ACC+i}, 0")
    def reads(F, step):
        xo = (step >> 2) * 8192
        wo = (step >> 1) * 12288 + (step & 1) * 2048
        r = [f"ds_read_b128 {vr(F,4)}, v{XA+(step&3)} offset:{xo}"]
        for ct in range(3):
            for hh in range(2):
                r.append(f"ds_read_b64_tr_b16 {vr(F+4+4*ct+2*hh,2)}, v{WAD} offset:{wo+ct*4096+hh*512}")
        return r
    def mfmas(F):
        r = []
        for ct in range(3):
            x, w = vr(F, 4), vr(F + 4 + 4 * ct, 4)
            A, B = (w, x) if ct < 2 else (x, w)
            r.append(f"{MF} {vr(ACC+16*ct,16)}, {A}, {B}, {vr(ACC+16*ct,16)}")
        return r
    def mix(m, r):
        a(m[0]); [a(t) for t in r[:3]]; a(m[1]); [a(t) for t in r[3:6]]; a(m[2]); [a(t) for t in r[6:]]
    wait(S_FULL, 1)
    a.stamp(1)
    for t in reads(F0, 0): a(t)
    a("s_mov_b32 s57, 0")
    a("KA_GEMM:")
    for sub in range(4):
        a("s_waitcnt lgkmcnt(0)")
        mix(mfmas(F0), reads(F1, 2*sub+1) + [f"ds_read_b32 v{VTMP}, v{FLA} offset:{S_FULL+4*sub+4}"])
        a("s_waitcnt lgkmcnt(0)")
        a(f"v_readfirstlane_b32 s76, v{VTMP}")
        m = mfmas(F1)
        a(m[0])
        sig(S_FREE + 4*sub, FLA)
        if sub == 3:
            a("s_add_u32 s57, s57, 1")
            a("s_cmp_eq_u32 s57, 4")
            a("s_cbranch_scc1 KA_GEND")
            for k in range(4):
                a(f"v_add_u32 v{XA+k}, 16384, v{XA+k}")
        ok = lbl("OK")
        a("s_cmp_ge_u32 s76, 1")
        a(f"s_cbranch_scc1 {ok}")
        wait(S_FULL + 4*sub + 4, 1, FLA)
        a(f"{ok}:")
        r = reads(F0, (2*sub+2) & 7)
        [a(t) for t in r[:3]]; a(m[1]); [a(t) for t in r[3:6]]; a(m[2]); a(r[6])
    a(f"v_add_u32 v{FLA}, 16, v{FLA}")
    a("s_branch KA_GEMM")
    a("KA_GEND:")
    m = mfmas(F1)
    a(m[1]); a(m[2])
    a.stamp(2)
    a("s_lshl_b32 s58, s50, 1")
    a("s_add_u32 s58, s58, s54")
    a("s_lshl_b32 s58, s58, 10")
    a(f"s_mul_i32 s59, s55, {2*G_HEAD}")
    a("s_add_u32 s58, s58, s59")
    a("s_add_u32 s58, s58, s51")
    a(f"s_add_u32 s59, s58, {G_HEAD}")
    a("s_add_u32 s60, s58, 131072")
    a("s_add_u32 s61, s59, 131072")
    a("s_add_u32 s62, s58, 65536")
    a(f"s_mov_b32 s63, {hex(QSCALE)}")
    a("v_bfe_u32 v5, v1, 4, 1")
    a(f"v_mul_u32_u24 v5, {G_HEAD}, v5")
    a("v_and_b32 v6, 15, v1")
    a("v_lshl_add_u32 v6, v3, 4, v6")
    a("v_lshl_add_u32 v6, v6, 4, v5")
    for i in range(16):
        a(f"v_mul_f32 v{ACC+i}, s63, v{ACC+i}")
    for i in range(8):
        a(f"v_cvt_pk_bf16_f32 v{40+i}, v{ACC+16+2*i}, v{ACC+16+2*i+1}")
    a("buffer_store_dwordx4 v[40:43], v4, s[44:47], s58 offen")
    a("buffer_store_dwordx4 v[44:47], v4, s[44:47], s59 offen")
    for i in range(8):
        a(f"v_cvt_pk_bf16_f32 v{48+i}, v{ACC+32+2*i}, v{ACC+32+2*i+1}")
    a("buffer_store_dwordx4 v[48:51], v6, s[44:47], s62 offen")
    a("buffer_store_dwordx4 v[52:55], v6, s[44:47], s62 offen offset:512")
    for i in range(8):
        a(f"v_cvt_pk_bf16_f32 v{32+i}, v{ACC+2*i}, v{ACC+2*i+1}")
    a("buffer_store_dwordx4 v[32:35], v4, s[44:47], s60 offen")
    a("buffer_store_dwordx4 v[36:39], v4, s[44:47], s61 offen")
    a("s_waitcnt vmcnt(0)")
    sig(S_DONE)
    a.stamp(3)
    a("s_branch KA_ATT")

    a("KA_LOADER:")
    a("s_setprio 3")
    srd(a, 36, 4, 5, 2048 * 512 * 2)
    srd(a, 40, 24, 25, 512 * 1536 * 2)
    a("s_sub_u32 s54, s48, 4")
    a("v_lshrrev_b32 v5, 3, v1")
    a("v_and_b32 v6, 7, v1")
    a("v_lshrrev_b32 v7, 4, v1")
    a("v_xor_b32 v8, v6, v7")
    a("v_lshlrev_b32 v8, 4, v8")
    a("v_lshl_add_u32 v16, v5, 10, v8")
    a("v_xor_b32 v17, 64, v16")
    a("v_add_u32 v17, 7168, v17")
    a(f"v_add_u32 v18, {2*7168}, v16")
    a(f"v_add_u32 v19, {2*7168}, v17")
    a("v_and_b32 v7, 1, v7")
    a("v_lshlrev_b32 v7, 2, v7")
    a("v_xor_b32 v8, v6, v7")
    a("v_mul_u32_u24 v9, 3072, v5")
    a("v_lshl_add_u32 v20, v8, 4, v9")
    for q in range(1, 4):
        a(f"v_add_u32 v{20+q}, {23552*q}, v20")
    a("s_lshl_b32 s55, s50, 16")
    a("s_lshl_b32 s56, s49, 7")
    a("s_mul_i32 s57, s54, 12288")
    a(f"s_add_u32 s57, s57, {L_W}")
    def xload(add):
        a(f"s_add_u32 s58, s54, {add}")
        a("s_lshl_b32 s59, s58, 13")
        a("s_add_u32 s58, s58, s53")
        a("s_and_b32 s58, s58, 7")
        a("s_lshl_b32 s58, s58, 7")
        a("s_mov_b32 m0, s59")
        a("s_add_u32 s58, s58, s55")
        for q in range(4):
            a(f"buffer_load_dwordx4 v{16+q}, s[36:39], s58 offen offset:{1024*q} lds")
        a("s_add_u32 m0, s59, 4096")
        a("s_add_u32 s58, s58, 32768")
        for q in range(4):
            a(f"buffer_load_dwordx4 v{16+q}, s[36:39], s58 offen offset:{1024*q} lds")
    def wload():
        a("s_lshl_b32 s58, s53, 1")
        a("s_add_u32 s58, s58, s70")
        a("s_and_b32 s58, s58, 15")
        a(f"s_mul_i32 s58, s58, {32*3072}")
        a("s_add_u32 s58, s58, s56")
        for seg in range(3):
            a(f"s_add_u32 m0, s57, {4096*seg}")
            if seg: a("s_add_u32 s58, s58, 1024")
            else: a("s_nop 0")
            for q in range(4):
                a(f"buffer_load_dwordx4 v{20+q}, s[40:43], s58 offen offset:{1024*q} lds")
    a("s_mov_b32 s70, s54")
    xload(0); wload(); xload(4)
    a("s_lshl_b32 s58, s54, 2")
    a(f"v_add_u32 v24, s58, v{VSY}")
    a("s_waitcnt vmcnt(8)")
    sig(S_FULL, 24)
    a.stamp(1)
    a("v_lshrrev_b32 v5, 4, v1")
    a("v_min_u32 v5, 2, v5")
    a("v_lshlrev_b32 v5, 16, v5")
    a("v_and_b32 v6, 15, v1")
    a("v_lshl_add_u32 v25, v6, 7, v5")
    a(f"s_mul_i32 s71, s54, {G_HEAD}")
    a("s_lshl_b32 s58, s50, 11")
    a("s_add_u32 s71, s71, s58")
    a("s_add_u32 s71, s71, s51")
    a("KA_LRND:")
    wait(S_FREE, 4, 24)
    a("s_add_u32 s70, s70, 4")
    wload()
    a("v_add_u32 v24, 16, v24")
    a("s_cmp_ge_u32 s70, 12")
    a("s_cbranch_scc1 KA_LLAST")
    a("s_waitcnt vmcnt(0)")
    sig(S_FULL, 24)
    a("s_branch KA_LRND")
    a("KA_LLAST:")
    a("buffer_load_dword v26, v25, s[44:47], s71 offen sc1")
    a("s_waitcnt vmcnt(1)")
    sig(S_FULL, 24)
    a.stamp(2)
    a("s_cmp_lg_u32 s54, 0")
    a("s_cbranch_scc1 KA_LGO")
    wait(S_NONCE, 1, out=52)
    a("v_mov_b32 v28, 0x3f803f80\nv_mov_b32 v29, v28\nv_mov_b32 v30, v28\nv_mov_b32 v31, v28")
    a("v_mul_u32_u24 v27, 1040, v1")
    a(f"v_add_u32 v27, {L_V+1024}, v27")
    wait(S_UDONE, 4)
    wait(S_DONE, 4)
    a.stamp(3)
    a("ds_write_b128 v27, v[28:31]")
    group_sync(128)
    a("s_waitcnt lgkmcnt(0)")
    sig(S_GO)
    a("KA_LGO:")
    wait(S_GO, 1)
    a.stamp(4)
    a("s_and_b32 s58, s50, 3")
    a(f"s_mul_i32 s58, s58, {G_HEAD}")
    a("s_add_u32 s58, s58, s51")
    a("s_lshl_b32 s59, s54, 10")
    a("s_add_u32 s58, s58, s59")
    a("s_add_u32 s60, s58, 65536")
    a("s_mul_i32 s61, s54, 1040")
    a(f"s_add_u32 s61, s61, {L_V}")
    def kvloop(n):
        l = lbl("KV")
        a(f"s_mov_b32 s62, {n}")
        a(f"{l}:")
        a("s_mov_b32 m0, s59")
        a("s_add_u32 s59, s59, 4096")
        a("buffer_load_dwordx4 v4, s[44:47], s58 offen lds")
        a("s_mov_b32 m0, s61")
        a("s_add_u32 s61, s61, 4160")
        a("buffer_load_dwordx4 v4, s[44:47], s60 offen lds")
        a("s_add_u32 s58, s58, 4096")
        a("s_add_u32 s60, s60, 4096")
        a("s_sub_u32 s62, s62, 1")
        a("s_cmp_lg_u32 s62, 0")
        a(f"s_cbranch_scc1 {l}")
    kvloop(3)
    a("s_waitcnt vmcnt(4)")
    sig(S_A0)
    kvloop(3)
    a("s_waitcnt vmcnt(6)")
    sig(S_A1)
    kvloop(10)

    a("KA_ATT:")
    QA, QB, KF, V0, V1, P, OA, OB, SA, SB = 8, 12, 16, 20, 24, 28, 36, 52, 68, 84
    AK, AV0, AV1 = 5, 6, 7
    a("s_and_b32 s54, s48, 3")
    a("s_lshr_b32 s55, s48, 2")
    a("s_lshr_b32 s56, s50, 2")
    a("s_lshl_b32 s56, s56, 3")
    a("s_lshl_b32 s57, s54, 1")
    a("s_add_u32 s56, s56, s57")
    a("s_and_b32 s58, s50, 3")
    a(f"s_mul_i32 s57, s58, {G_HEAD}")
    a("s_add_u32 s57, s57, s51")
    a("s_lshl_b32 s59, s56, 10")
    a("s_add_u32 s57, s57, s59")
    a("s_add_u32 s57, s57, 131072")
    a("s_add_u32 s56, s56, s55")
    a("s_lshl_b32 s59, s49, 2")
    a("s_add_u32 s58, s58, s59")
    a("s_lshl_b32 s56, s56, 5")
    a("s_add_u32 s56, s56, s58")
    a("s_lshl_b32 s56, s56, 10")
    a(f"s_add_u32 s56, s56, {W2_O}")
    a("v_and_b32 v2, 31, v1")
    a("v_lshl_add_u32 v101, v3, 4, v2")
    a("v_lshlrev_b32 v101, 4, v101")
    a("v_cmp_eq_u32 s[60:61], 16, v2")
    a("v_cmp_lt_u32 s[62:63], 16, v2")
    a("v_mov_b32 v102, 1024")
    a("v_add_u32 v103, 512, v101")
    a("v_mov_b32 v104, 0x100000")
    a("v_cndmask_b32 v101, v101, v102, s[60:61]")
    a("v_cndmask_b32 v103, v103, v102, s[60:61]")
    a("v_cndmask_b32 v101, v101, v104, s[62:63]")
    a("v_cndmask_b32 v103, v103, v104, s[62:63]")
    a(f"v_add_u32 v101, {L_V}, v101")
    a(f"v_add_u32 v102, {L_V}, v103")
    a("s_lshl_b32 s59, s55, 15")
    a(f"v_add_u32 v{AK}, s59, v4")
    a("s_mul_i32 s59, s55, 33280")
    a(f"v_add_u32 v{AV0}, s59, v101")
    a(f"v_add_u32 v{AV1}, s59, v102")
    for i in range(32):
        a(f"v_mov_b32 v{OA+i}, 0")
    for i in range(4):
        a(f"v_mov_b32 v{V1+i}, 0")
        a(f"v_mov_b32 v{P+4+i}, 0")
    a(f"v_add_u32 v107, {S_A1}, v{VSY}")
    a("s_mov_b32 s65, 0")
    a("s_cmp_eq_u32 s55, 0")
    a("s_cbranch_scc0 KA_ATTL")
    a(f"s_mov_b32 s64, {hex((1<<0)|(1<<2)|(1<<PRIO1)|(1<<PRIO0))}")
    wait(S_GO, 1)
    a(f"buffer_load_dwordx4 {vr(QA,4)}, v4, s[44:47], s57 offen")
    a(f"buffer_load_dwordx4 {vr(QB,4)}, v4, s[44:47], s57 offen offset:1024")
    a.stamp(4)
    wait(S_A0, 4)
    a("s_branch KA_ATTG")
    a("KA_ATTL:")
    a(f"s_mov_b32 s64, {hex((1<<PRIO1)|(1<<PRIO0))}")
    a(f"buffer_load_dwordx4 {vr(QA,4)}, v4, s[44:47], s57 offen")
    a(f"buffer_load_dwordx4 {vr(QB,4)}, v4, s[44:47], s57 offen offset:1024")
    a("s_waitcnt vmcnt(2)")
    sig(S_A3)
    wait(S_A3, 4)
    a("s_setprio 2")
    a("KA_ATTG:")
    a(f"ds_read_b128 {vr(KF,4)}, v{AK}")
    a(f"ds_read_b128 {vr(V0,4)}, v{AV0}")
    a("s_waitcnt vmcnt(0) lgkmcnt(1)")
    a.stamp(5)
    a(f"{MF} {vr(SA,16)}, {vr(KF,4)}, {vr(QA,4)}, 0")
    a("s_nop 11")
    a(".p2align 6")
    a("KA_LOOP:")
    for u in range(UNR):
        if u == 2:
            a("s_bitcmp1_b32 s64, s65")
            a("s_cbranch_scc1 KA_SPECIAL")
            a("KA_BODY:")
        for unit in range(2):
            Sc, Sn, Oc, Op, Qn = (SA, SB, OA, OB, QB) if unit == 0 else (SB, SA, OB, OA, QA)
            e = lambda i: a(f"v_exp_f32 v{Sc+i}, v{Sc+i}")
            c = lambda j: a(f"v_cvt_pk_bf16_f32 v{P+j}, v{Sc+2*j}, v{Sc+2*j+1}")
            e(0); e(1)
            if unit == 1: a("s_waitcnt lgkmcnt(0)")
            a(f"{MF} {vr(Op,16)}, {vr(V1,4)}, {vr(P+4,4)}, {vr(Op,16)}")
            if unit == 0: a(f"ds_read_b128 {vr(V1,4)}, v{AV1} offset:{1040*u}")
            e(2); e(3); c(0); e(4); c(1); e(5)
            a(f"{MF} {vr(Sn,16)}, {vr(KF,4)}, {vr(Qn,4)}, 0")
            if unit == 0: a(f"ds_read_b128 {vr(KF,4)}, v{AK} offset:{1024*(u+1)}")
            e(6); e(7); c(2); e(8); c(3); e(9); e(10)
            if unit == 0: a("s_waitcnt lgkmcnt(2)")
            a(f"{MF} {vr(Oc,16)}, {vr(V0,4)}, {vr(P,4)}, {vr(Oc,16)}")
            if unit == 1: a(f"ds_read_b128 {vr(V0,4)}, v{AV0} offset:{1040*(u+1)}")
            c(4); e(11); e(12); e(13); c(5); e(14); e(15); c(6)
            if u == UNR - 1 and unit == 1:
                a("s_add_u32 s65, s65, 1")
                a(f"v_add_u32 v{AK}, {1024*UNR}, v{AK}")
                a(f"v_add_u32 v{AV0}, {1040*UNR}, v{AV0}")
                a(f"v_add_u32 v{AV1}, {1040*UNR}, v{AV1}")
                a(f"s_cmp_lt_u32 s65, {32//UNR}")
            c(7)
    a("s_cbranch_scc1 KA_LOOP")
    a("s_nop 0")
    a(f"{MF} {vr(OB,16)}, {vr(V1,4)}, {vr(P+4,4)}, {vr(OB,16)}")
    a.stamp(6)
    a("s_mul_i32 s59, s48, 2304")
    a(f"s_add_u32 s59, s59, {L_KPE}")
    a("s_xor_b32 s60, s48, 4")
    a("s_mul_i32 s60, s60, 2304")
    a(f"s_add_u32 s60, s60, {L_KPE}")
    a("v_add_u32 v103, s59, v4")
    a("v_add_u32 v104, s60, v4")
    a("v_lshl_add_u32 v105, v1, 2, s59")
    a("v_lshl_add_u32 v106, v1, 2, s60")
    a("s_waitcnt lgkmcnt(0)")
    a("s_barrier")
    a("s_cmp_eq_u32 s55, 0")
    a("s_cbranch_scc1 KA_KEEPA")
    for i in range(9):
        a(f"v_swap_b32 v{OA+i}, v{OB+i}")
    for i in range(4):
        a(f"v_mov_b32 v{QA+i}, v{QB+i}")
    a("KA_KEEPA:")
    a(f"ds_write_b128 v103, {vr(OB,4)}")
    a(f"ds_write_b128 v103, {vr(OB+4,4)} offset:1024")
    a(f"ds_write_b32 v105, v{OB+8} offset:2048")
    a("s_waitcnt lgkmcnt(0)")
    a("s_barrier")
    a(f"ds_read_b32 v{OB+8}, v106 offset:2048")
    a(f"ds_read_b128 {vr(OB,4)}, v104")
    a(f"ds_read_b128 {vr(OB+4,4)}, v104 offset:1024")
    a(f"s_mov_b32 s60, {hex(f2u(2.0**-80))}")
    a(f"s_mov_b32 s61, {hex(f2u(2.0**80))}")
    a(f"s_mov_b32 s62, {hex(f2u(2.0**120))}")
    a("s_waitcnt lgkmcnt(2)")
    a(f"v_add_f32 v{SA}, v{OA+8}, v{OB+8}")
    a(f"v_add_f32 v{SA+1}, v{OA+8}, v{OB+8}")
    a("s_waitcnt lgkmcnt(0)")
    for i in range(8):
        a(f"v_add_f32 v{OA+i}, v{OA+i}, v{OB+i}")
    a(f"v_permlane32_swap_b32 v{SA}, v{SA+1}")
    a.c("safety check of the zero stand-in for the row max: l inside [2^-80, 2^80] and O finite")
    a(f"v_add_f32 v{SA+2}, |v{OA}|, |v{OA+1}|")
    for i in range(2, 8):
        a(f"v_add_f32 v{SA+2}, |v{OA+i}|, v{SA+2}")
    a(f"v_cmp_ge_f32 s[66:67], v{SA}, s60")
    a(f"v_cmp_le_f32 s[68:69], v{SA}, s61")
    a(f"v_cmp_le_f32 s[70:71], v{SA+2}, s62")
    a(f"v_rcp_f32 v{SA}, v{SA}")
    a("s_and_b64 s[66:67], s[66:67], s[68:69]")
    a("s_and_b64 s[66:67], s[66:67], s[70:71]")
    a("s_cmp_eq_u64 s[66:67], -1")
    a("s_cbranch_scc0 KA_SLOW")
    a("KA_FIN:")
    for i in range(8):
        a(f"v_mul_f32 v{OA+i}, v{OA+i}, v{SA}")
    for i in range(4):
        a(f"v_cvt_pk_bf16_f32 v{P+i}, v{OA+2*i}, v{OA+2*i+1}")
    a(f"buffer_store_dwordx4 {vr(P,4)}, v4, s[44:47], s56 offen")
    a.end(0)
    a("KA_SPECIAL:")
    a(f"s_cmp_ge_u32 s65, {PRIO1}")
    a("s_cbranch_scc1 KA_SP1")
    wait(0, 4, 107)
    a("v_add_u32 v107, 4, v107")
    a("s_branch KA_BODY")
    a("KA_SP1:")
    a("s_setprio 1")
    a(f"s_cmp_eq_u32 s65, {PRIO1}")
    a("s_cbranch_scc1 KA_BODY")
    a("s_setprio 0")
    a("s_branch KA_BODY")
    a.c("fallback: true row max over all keys, then recompute this query tile")
    a("KA_SLOW:")
    a(f"v_mov_b32 v{AK}, v4")
    a(f"v_mov_b32 v{SB}, 0xff800000")
    a("s_mov_b32 s65, 0")
    a("KA_MAXL:")
    a(f"ds_read_b128 {vr(KF,4)}, v{AK}")
    a(f"v_add_u32 v{AK}, 1024, v{AK}")
    a("s_add_u32 s65, s65, 1")
    a("s_waitcnt lgkmcnt(0)")
    a(f"{MF} {vr(SA,16)}, {vr(KF,4)}, {vr(QA,4)}, 0")
    a("s_nop 15")
    for i in range(8):
        a(f"v_max3_f32 v{SB}, v{SA+2*i}, v{SA+2*i+1}, v{SB}")
    a("s_cmp_lt_u32 s65, 64")
    a("s_cbranch_scc1 KA_MAXL")
    a(f"v_mov_b32 v{SB+1}, v{SB}")
    a("s_nop 1")
    a(f"v_permlane32_swap_b32 v{SB}, v{SB+1}")
    a(f"v_max_f32 v{SB}, v{SB}, v{SB+1}")
    a(f"v_mov_b32 v{AK}, v4")
    for i in range(16):
        a(f"v_mov_b32 v{OA+i}, 0")
    a("s_mov_b32 s65, 0")
    a("KA_SLOWL:")
    a(f"ds_read_b128 {vr(KF,4)}, v{AK}")
    a(f"ds_read_b128 {vr(V0,4)}, v101")
    a(f"ds_read_b128 {vr(V1,4)}, v102")
    a(f"v_add_u32 v{AK}, 1024, v{AK}")
    a("v_add_u32 v101, 1040, v101")
    a("v_add_u32 v102, 1040, v102")
    a("s_add_u32 s65, s65, 1")
    a("s_waitcnt lgkmcnt(0)")
    a(f"{MF} {vr(SA,16)}, {vr(KF,4)}, {vr(QA,4)}, 0")
    a("s_nop 15")
    for i in range(16):
        a(f"v_sub_f32 v{SA+i}, v{SA+i}, v{SB}")
    for i in range(16):
        a(f"v_exp_f32 v{SA+i}, v{SA+i}")
    a("s_nop 0")
    for j in range(8):
        a(f"v_cvt_pk_bf16_f32 v{P+j}, v{SA+2*j}, v{SA+2*j+1}")
    a("s_nop 1")
    a(f"{MF} {vr(OA,16)}, {vr(V0,4)}, {vr(P,4)}, {vr(OA,16)}")
    a(f"{MF} {vr(OA,16)}, {vr(V1,4)}, {vr(P+4,4)}, {vr(OA,16)}")
    a("s_cmp_lt_u32 s65, 64")
    a("s_cbranch_scc1 KA_SLOWL")
    a("s_nop 15")
    a(f"v_mov_b32 v{SA}, v{OA+8}")
    a(f"v_mov_b32 v{SA+1}, v{OA+8}")
    a("s_nop 1")
    a(f"v_permlane32_swap_b32 v{SA}, v{SA+1}")
    a(f"v_rcp_f32 v{SA}, v{SA}")
    a("s_nop 0")
    a("s_branch KA_FIN")

    import ka_aux
    ka_aux.gen_aux(a, sig, wait, group_sync, lbl, X)
    a("KA_END:")
    a("s_endpgm")
    return a.text(), 168
```

```python
from common import *
from ka import *

def gen_aux(a, sig, wait, group_sync, lbl, X):
    a("KA_AUX:")
    a("s_sub_u32 s54, s48, 8")
    a("s_lshl_b32 s55, s49, 5")
    a("s_add_u32 s55, s55, s50")
    a("s_lshl_b32 s56, s55, 2")
    a("s_load_dword s57, s[18:19], s56")
    a("s_load_dword s58, s[20:21], s56")
    a("s_lshl_b32 s59, s55, 9")
    a("s_lshl_b32 s60, s54, 7")
    a("s_add_u32 s59, s59, s60")
    a("v_lshl_add_u32 v2, v1, 1, s59")
    for i in range(6):
        a(f"v_mov_b32 v{8+i}, 0")
    for i in range(6):
        a(f"global_load_short_d16_hi v{8+i}, v2, s[{6+2*i}:{7+2*i}]")
    a("s_and_b32 s61, s54, 1")
    a("s_lshr_b32 s62, s54, 1")
    a("s_lshl_b32 s63, s50, 1")
    a("s_add_u32 s63, s63, s61")
    a("s_lshl_b32 s63, s63, 7")
    a("s_lshl_b32 s64, s62, 17")
    a("s_add_u32 s63, s63, s64")
    a("s_add_u32 s63, s63, s51")
    a(f"s_add_u32 s72, s63, {G_UT}")
    a("v_lshlrev_b32 v5, 13, v1")
    a("s_mov_b64 exec, 0xffff")
    a("buffer_load_dword v160, v5, s[44:47], s72 offen sc1")
    a("v_lshlrev_b32 v5, 7, v1")
    a(f"s_add_u32 s63, s51, {G_FL}")
    a("s_mov_b64 exec, 3")
    a("buffer_load_dword v161, v5, s[44:47], s63 offen sc1")
    a("s_mov_b64 exec, -1")
    a("s_lshl_b32 s63, s2, 2")
    a("s_add_u32 s63, s63, s54")
    a("s_cmp_lg_u32 s63, 3")
    a("s_cbranch_scc1 KA_NOPUB")
    a("s_memrealtime s[64:65]")
    a("s_waitcnt lgkmcnt(0)")
    a("s_or_b32 s64, s64, 1")
    a("v_mov_b32 v5, 0")
    a("v_mov_b32 v6, s64")
    a("s_mov_b64 exec, 1")
    a("global_store_dword v5, v6, s[32:33] sc1")
    a("s_mov_b64 exec, -1")
    a("KA_NOPUB:")
    a(f"s_mul_i32 s63, s54, {KGW}")
    a(f"s_add_u32 s63, s63, {L_KG}")
    a("v_lshl_add_u32 v14, v1, 2, s63")
    a("v_and_b32 v7, 31, v1")
    a("v_mul_u32_u24 v15, 272, v7")
    a("v_lshl_add_u32 v15, v3, 4, v15")
    a("v_add_u32 v15, s63, v15")
    a("s_waitcnt lgkmcnt(0)")
    a("s_lshl_b32 s63, s62, 4")
    a("s_lshr_b32 s57, s57, s63")
    a("s_lshl_b32 s57, s57, 16")
    a("s_lshr_b32 s58, s58, s63")
    a("s_lshl_b32 s58, s58, 16")
    a(f"s_mov_b32 s63, {hex(LOG2E_HI)}")
    a("v_mov_b32 v16, s57")
    a("v_mul_f32 v17, s63, v16")
    a("v_fma_f32 v18, v16, s63, -v17")
    a(f"v_fmac_f32 v18, {hex(LOG2E_LO)}, v16")
    a("v_exp_f32 v17, v17")
    a(f"v_mul_f32 v18, {hex(LN2)}, v18")
    a("v_fma_f32 v17, v17, v18, v17")
    a("v_cvt_pk_bf16_f32 v17, v17, v17")
    a("v_and_b32 v17, 0xffff0000, v17")
    a("s_waitcnt vmcnt(2)")
    a.stamp(1)
    for r in (8, 9, 10, 11):
        a(f"v_mul_f32 v{r}, v17, v{r}")
    a("v_mul_f32 v8, s63, v8")
    a("v_mul_f32 v9, 0.15915494, v9")
    W1, W8, W256, W2, W4, W16 = 20, 22, 24, 26, 28, 30
    tmp = 32
    for k, mult in enumerate((1.0, 8.0, 256.0)):
        t = tmp + 2 * k
        a(f"v_mul_f32 v{t}, {hex(f2u(mult))}, v8")
        a(f"v_mul_f32 v{t+1}, {hex(f2u(mult))}, v9")
    for k in range(3):
        t = tmp + 2 * k
        a(f"v_exp_f32 v{t}, v{t}")
        a(f"v_fract_f32 v{t+1}, v{t+1}")
    for k, wr in enumerate((W1, W8, W256)):
        t = tmp + 2 * k
        a(f"v_cos_f32 v{wr}, v{t+1}")
        a(f"v_sin_f32 v{wr+1}, v{t+1}")
    U = {}
    nxt = [40]
    def newU(av):
        U[av] = nxt[0]; nxt[0] += 2
        return U[av]
    for l in cmul(newU(0), 12, 10): a(l)
    for k, wr in enumerate((W1, W8, W256)):
        t = tmp + 2 * k
        a(f"v_mul_f32 v{wr}, v{t}, v{wr}")
        a(f"v_mul_f32 v{wr+1}, v{t}, v{wr+1}")
    for l in interleave([cmul(W2, W1, W1), cmul(W16, W8, W8)]): a(l)
    for l in cmul(W4, W2, W2): a(l)
    WA, WB, PK = 96, 100, 104
    def wchain(start_j, start_reg, pp, pk):
        ops = []; cur = start_reg; j = start_j; k = 0
        while True:
            ops.append(f"v_cvt_pk_bf16_f32 v{pk+(k&1)}, v{cur}, v{cur+1}")
            if j + 2 <= 31:
                d = pp + 2 * (k & 1)
                c = cmul(d, cur, W16)
                ops += [c[0], f"ds_write_b32 v14, v{pk+(k&1)} offset:{(31-j)*272}", c[1]]
                cur = d
            else:
                ops.append(f"ds_write_b32 v14, v{pk+(k&1)} offset:{(31-j)*272}")
                break
            j += 2; k += 1
        return ops
    a("v_mov_b32 v108, 0x3f80")
    a(f"ds_write_b32 v14, v108 offset:{31*272}")
    chA = wchain(2, W16, WA, PK)
    chB = wchain(1, W8, WB, PK + 2)
    u1 = []; prev = 0
    for av in (256, 512, 768, 1024, 1280, 1536, 1792):
        u1 += cmul(newU(av), U[prev], W256); prev = av
    for av in (1024, 1280, 1536, 1792):
        u1 += cmul(newU(av + 8), U[av], W8)
    for av in (516, 520):
        u1 += cmul(newU(av), U[av - 4], W4)
    u2 = []
    for av in range(1, 8):
        u2 += cmul(newU(av), U[av - 1], W1)
    for av in (258, 260, 262, 264):
        u2 += cmul(newU(av), U[av - 2], W2)
    for av in (772, 776):
        u2 += cmul(newU(av), U[av - 4], W4)
    assert nxt[0] <= 96
    seq = interleave([chA, u1, chB, u2])
    for i, l in enumerate(seq):
        a(l)
        if i == (len(seq) * 3) // 5:
            a("s_load_dword s52, s[32:33], 0")
    WF, UF, KD = 112, 40, 144
    for s in range(8):
        a(f"ds_read_b128 {vr(WF+4*s,4)}, v15 offset:{32*s}")
    rows = [0,1,2,3,4,5,6,7, 256,258,260,None,260,262,264,None, 512,516,520,None,768,772,776,None,
            1024,1032,1280,1288,1536,1544,1792,1800]
    k = 0; pend = None
    for r, av in enumerate(rows):
        if av is None: continue
        t = PK + (k & 3); k += 1
        a(f"v_cvt_pk_bf16_f32 v{t}, v{U[av]}, -v{U[av]+1}")
        if pend: a(pend)
        pend = f"ds_write_b32 v14, v{t} offset:{r*272}"
    a(pend)
    for s in range(8):
        a(f"ds_read_b128 {vr(UF+4*s,4)}, v15 offset:{32*s}")
    for s in range(8):
        a(f"s_waitcnt lgkmcnt({7-s})")
        c = "0" if s == 0 else vr(KD, 16)
        a(f"{MF} {vr(KD,16)}, {vr(UF+4*s,4)}, {vr(WF+4*s,4)}, {c}")
    a.stamp(2)
    a("s_lshl_b32 s63, s54, 11")
    a(f"s_add_u32 s63, s63, {L_XCH}")
    a("v_add_u32 v16, s63, v4")
    a("v_xor_b32 v17, 2048, v16")
    a(f"s_mul_i32 s63, s62, {KPROW}")
    a(f"s_add_u32 s63, s63, {L_KPE}")
    a("v_lshl_add_u32 v18, v7, 4, s63")
    a("v_bfe_u32 v19, v1, 2, 2")
    a("v_lshl_add_u32 v20, v3, 3, v19")
    a("v_lshrrev_b32 v21, 1, v20")
    a("v_bfe_u32 v22, v1, 4, 1")
    a("v_bfe_u32 v23, v1, 1, 1")
    a("v_lshl_add_u32 v22, v22, 1, v23")
    a("s_lshl_b32 s64, s62, 2")
    a("v_add_u32 v22, s64, v22")
    a("v_xor_b32 v22, v22, v21")
    a("v_lshlrev_b32 v22, 4, v22")
    a("v_lshl_add_u32 v22, v20, 7, v22")
    a("v_and_b32 v23, 1, v1")
    a("v_lshl_add_u32 v22, v23, 3, v22")
    a("s_sub_u32 s64, s49, s53")
    a("s_and_b32 s64, s64, 7")
    a("s_lshl_b32 s65, s64, 13")
    a("s_lshl_b32 s66, s61, 12")
    a("s_add_u32 s65, s65, s66")
    a("v_add_u32 v22, s65, v22")
    a("v_xor_b32 v23, 32, v22")
    a("v_add_u32 v23, 512, v23")
    a("s_lshl_b32 s64, s64, 2")
    a(f"v_add_u32 v24, s64, v{VSY}")
    DO = L_KPO - L_KPE - 2
    a("s_cmp_eq_u32 s61, 0")
    a("s_cbranch_scc0 KA_X1")
    a(f"ds_write_b128 v16, {vr(KD+8,4)}")
    a(f"ds_write_b128 v16, {vr(KD+12,4)} offset:1024")
    a("s_waitcnt lgkmcnt(0)")
    sig(S_KGX)
    wait(S_KGX, 4)
    a(f"ds_read_b128 {vr(KD+8,4)}, v17")
    a(f"ds_read_b128 {vr(KD+12,4)}, v17 offset:1024")
    a("v_cmp_eq_u32 s[66:67], 31, v1")
    a("v_mov_b32 v25, s58")
    a("v_lshlrev_b32 v26, 3, v3")
    a("v_cndmask_b32 v25, 0, v25, s[66:67]")
    a("v_xor_b32 v26, 8, v26")
    a("v_add_u32 v18, v18, v26")
    a(f"v_add_f32 v{KD}, v{KD}, v25")
    a("v_mov_b32 v36, 0\nv_mov_b32 v37, 0\nv_mov_b32 v38, 0\nv_mov_b32 v39, 0")
    a("v_add_u32 v25, s63, v4")
    a("s_waitcnt lgkmcnt(0)")
    for i in range(7):
        a(f"v_add_f32 v{KD+i}, v{KD+i}, v{KD+8+i}")
    a(f"v_cvt_pk_bf16_f32 v32, v{KD+3}, v{KD+2}")
    a(f"v_cvt_pk_bf16_f32 v33, v{KD+1}, v{KD+0}")
    a(f"v_cvt_pk_bf16_f32 v34, v{KD+6}, v{KD+5}")
    a(f"v_cvt_pk_bf16_f32 v35, v{KD+4}, v{KD+4}")
    for d in (0, DO):
        a(f"ds_write_b64 v18, v[32:33] offset:{3584+d}")
        a(f"ds_write_b64 v18, v[34:35] offset:{3072+d}")
    a("s_mov_b64 exec, 15")
    for d in (0, DO):
        a(f"ds_write_b128 v25, v[36:39] offset:{4096+d}")
    a("s_mov_b64 exec, -1")
    a("s_branch KA_XD")
    a("KA_X1:")
    a(f"ds_write_b128 v16, {vr(KD,4)}")
    a(f"ds_write_b128 v16, {vr(KD+4,4)} offset:1024")
    a("s_waitcnt lgkmcnt(0)")
    sig(S_KGX)
    wait(S_KGX, 4)
    a(f"ds_read_b128 {vr(KD,4)}, v17")
    a(f"ds_read_b128 {vr(KD+4,4)}, v17 offset:1024")
    a("v_and_b32 v26, 1, v1")
    a("v_cmp_eq_u32 s[66:67], 1, v26")
    a("v_lshlrev_b32 v26, 9, v3")
    a("v_sub_u32 v25, v18, v26")
    a("v_sub_u32 v18, v25, v26")
    a("s_waitcnt lgkmcnt(0)")
    for i in range(8):
        a(f"v_add_f32 v{KD+8+i}, v{KD+8+i}, v{KD+i}")
    r8, r9, r10, r12, r13, r14, r15 = [KD + i for i in (8, 9, 10, 12, 13, 14, 15)]
    a(f"v_cndmask_b32 v44, v{r13}, v{r12}, s[66:67]")
    a(f"v_cndmask_b32 v45, v{r15}, v{r14}, s[66:67]")
    a(f"v_cvt_pk_bf16_f32 v32, v{r10}, v{r10}")
    a(f"v_cvt_pk_bf16_f32 v33, v{r9}, v{r9}")
    a(f"v_cvt_pk_bf16_f32 v34, v{r9}, v{r8}")
    a(f"v_cvt_pk_bf16_f32 v35, v{r8}, v{r8}")
    a(f"v_cvt_pk_bf16_f32 v36, v{r13}, v{r13}")
    a(f"v_cvt_pk_bf16_f32 v37, v{r13}, v44")
    a(f"v_cvt_pk_bf16_f32 v38, v{r12}, v{r12}")
    a("v_mov_b32 v39, v38")
    a(f"v_cvt_pk_bf16_f32 v40, v{r15}, v{r15}")
    a(f"v_cvt_pk_bf16_f32 v41, v{r15}, v45")
    a(f"v_cvt_pk_bf16_f32 v42, v{r14}, v{r14}")
    a("v_mov_b32 v43, v42")
    for d in (0, DO):
        a(f"ds_write_b128 v25, v[32:35] offset:{2560+d}")
        a(f"ds_write_b128 v18, v[36:39] offset:{1536+d}")
        a(f"ds_write_b128 v18, v[40:43] offset:{1024+d}")
    a("KA_XD:")
    a.stamp(3)
    wait(S_FULL, 1, 24)
    a("ds_read_b64_tr_b16 v[48:49], v22")
    a("ds_read_b64_tr_b16 v[50:51], v23")
    a("ds_read_b64_tr_b16 v[52:53], v22 offset:2048")
    a("ds_read_b64_tr_b16 v[54:55], v23 offset:2048")
    a("v_bfe_u32 v19, v1, 1, 4")
    a("v_lshlrev_b32 v19, 13, v19")
    a("v_and_b32 v20, 1, v1")
    a("v_lshl_add_u32 v20, v20, 2, v3")
    a("v_lshl_add_u32 v19, v20, 4, v19")
    a("s_waitcnt lgkmcnt(0)")
    a("buffer_store_dwordx4 v[48:51], v19, s[44:47], s72 offen")
    a("buffer_store_dwordx4 v[52:55], v19, s[44:47], s72 offen offset:32")
    a("s_lshl_b32 s64, s54, 6")
    for k in range(3):
        a(f"v_add_u32 v20, s64, v1")
        if k: a(f"v_add_u32 v20, {256*k}, v20")
        a("v_mul_u32_u24 v21, 7282, v20")
        a("v_lshrrev_b32 v21, 16, v21")
        a("v_mul_u32_u24 v22, 9, v21")
        a("v_sub_u32 v22, v20, v22")
        a("v_min_u32 v22, 7, v22")
        a("v_lshlrev_b32 v22, 4, v22")
        a(f"v_lshl_add_u32 v{56+k}, v21, 7, v22")
    a("s_waitcnt vmcnt(0)")
    sig(S_UDONE)
    a.stamp(4)
    a("s_cmp_lg_u32 s54, 0")
    a("s_cbranch_scc1 KA_UGO")
    a("s_cmp_lg_u32 s52, 0")
    a("s_cbranch_scc1 KA_TAGOK")
    a("v_mov_b32 v8, 0")
    a(f"s_mov_b32 s63, {SLOW_TRIES}")
    a("KA_TAGL:")
    a("global_load_dword v9, v8, s[32:33] sc1")
    a("s_waitcnt vmcnt(0)")
    a("v_readfirstlane_b32 s52, v9")
    a("s_cmp_lg_u32 s52, 0")
    a("s_cbranch_scc1 KA_TAGOK")
    a("s_sub_u32 s63, s63, 1")
    a("s_cbranch_scc0 KA_TAGL")
    a("s_mov_b32 s52, 1")
    a("KA_TAGOK:")
    a("v_mov_b32 v8, s52")
    a(f"ds_write_b32 v{VSY}, v8 offset:{S_NONCE}")
    wait(S_UDONE, 4)
    group_sync(0)
    sig(S_GOU)
    a("KA_UGO:")
    wait(S_GOU, 1)
    a.stamp(5)
    a("s_lshl_b32 s63, s50, 13")
    a("s_add_u32 s63, s63, s51")
    a(f"s_add_u32 s63, s63, {G_UT}")
    a("s_lshl_b32 s64, s54, 10")
    a(f"s_add_u32 s64, s64, {L_U+31*144}")
    a("s_mov_b32 m0, s64")
    a("s_cmp_lg_u32 s54, 0")
    a("buffer_load_dwordx4 v56, s[44:47], s63 offen lds")
    a("s_cbranch_scc1 KA_U2")
    a("s_add_u32 m0, s64, 8192")
    a("s_nop 0")
    a("buffer_load_dwordx4 v58, s[44:47], s63 offen lds")
    a("KA_U2:")
    a("s_add_u32 m0, s64, 4096")
    a("s_nop 0")
    a("buffer_load_dwordx4 v57, s[44:47], s63 offen lds")
    for i in range(4): a(f"v_mov_b32 v{8+i}, 0")
    a("s_lshl_b32 s64, s54, 10")
    a(f"s_add_u32 s64, s64, {L_U}")
    a("v_add_u32 v5, s64, v4")
    a("ds_write_b128 v5, v[8:11]")
    a("s_cmp_lg_u32 s54, 3")
    a("s_cbranch_scc1 KA_U3")
    a("s_mov_b64 exec, 0x7fffff")
    a("ds_write_b128 v5, v[8:11] offset:1024")
    a("s_mov_b64 exec, -1")
    a("KA_U3:")
    a("s_and_b32 s61, s54, 1")
    a("s_lshr_b32 s62, s54, 1")
    a("v_and_b32 v5, 31, v1")
    a("v_lshrrev_b32 v6, 1, v5")
    a("v_sub_u32 v6, 1031, v6")
    a("v_lshlrev_b32 v6, 2, v6")
    a("v_lshl_add_u32 v6, v3, 4, v6")
    a("v_and_b32 v7, 1, v5")
    a(f"v_mul_u32_u24 v7, {L_KPO-L_KPE}, v7")
    a("v_sub_u32 v6, v6, v7")
    a(f"s_mul_i32 s63, s62, {KPROW}")
    a("s_lshl_b32 s64, s61, 6")
    a("s_add_u32 s63, s63, s64")
    a(f"s_add_u32 s63, s63, {L_KPO-127*32}")
    a("v_add_u32 v6, s63, v6")
    a("v_mul_u32_u24 v7, 144, v5")
    a("v_lshl_add_u32 v7, v3, 4, v7")
    a("s_lshl_b32 s63, s62, 6")
    a("s_mul_i32 s64, s61, 144")
    a("s_add_u32 s63, s63, s64")
    a(f"s_add_u32 s63, s63, {L_U}")
    a("v_add_u32 v7, s63, v7")
    D0, D1, FA, FB, FC = 16, 32, 48, 64, 80
    for i in range(32): a(f"v_mov_b32 v{D0+i}, 0")
    a("s_waitcnt vmcnt(0) lgkmcnt(0)")
    sig(S_UIN)
    wait(S_UIN, 4)
    a("s_setprio 3")
    a.stamp(6)
    def rdA(slot, step):
        o = 32 * (step >> 1) + 8 * (step & 1)
        a(f"ds_read2_b32 {vr(FA+4*slot,2)}, v6 offset0:{o} offset1:{o+1}")
        a(f"ds_read2_b32 {vr(FA+4*slot+2,2)}, v6 offset0:{o+2} offset1:{o+3}")
    def rdB(R, slot, step, extra=0):
        a(f"ds_read_b128 {vr(R+4*slot,4)}, v7 offset:{288*(step>>1)+32*(step&1)+extra}")
    for s in range(4): rdA(s, s); rdB(FB, s, s)
    a("s_mov_b32 s63, 4")
    a("KA_CV1:")
    for s in range(8):
        a("s_waitcnt lgkmcnt(9)")
        a(f"{MF} {vr(D1,16)}, {vr(FA+4*(s&3),4)}, {vr(FB+4*(s&3),4)}, {vr(D1,16)}")
        rdA(s & 3, s + 4); rdB(FB, s & 3, s + 4)
    a("v_add_u32 v6, 512, v6")
    a(f"v_add_u32 v7, {288*4}, v7")
    a("s_sub_u32 s63, s63, 1")
    a("s_cmp_lg_u32 s63, 0")
    a("s_cbranch_scc1 KA_CV1")
    a(f"v_subrev_u32 v7, {32*144}, v7")
    a("s_waitcnt lgkmcnt(4)")
    for s in range(4): rdB(FC, s, s)
    a("s_waitcnt lgkmcnt(0)")
    a("s_mov_b32 s63, 4")
    a("KA_CV2:")
    for s in range(8):
        a("s_waitcnt lgkmcnt(11)")
        a(f"{MF} {vr(D1,16)}, {vr(FA+4*(s&3),4)}, {vr(FB+4*(s&3),4)}, {vr(D1,16)}")
        rdB(FB, s & 3, s + 4, 32 * 144)
        a(f"{MF} {vr(D0,16)}, {vr(FA+4*(s&3),4)}, {vr(FC+4*(s&3),4)}, {vr(D0,16)}")
        rdA(s & 3, s + 4); rdB(FC, s & 3, s + 4)
    a("v_add_u32 v6, 512, v6")
    a(f"v_add_u32 v7, {288*4}, v7")
    a("s_sub_u32 s63, s63, 1")
    a("s_cmp_lg_u32 s63, 0")
    a("s_cbranch_scc1 KA_CV2")
    a.stamp(7)
    a("s_lshl_b32 s63, s62, 2")
    a(f"v_add_u32 v12, s63, v{VSY}")
    a(f"s_mul_i32 s63, s62, {KPROW}")
    a(f"s_mul_i32 s64, s61, {L_KPO-L_KPE}")
    a(f"s_add_u32 s65, s63, {L_KPE}")
    a("s_add_u32 s65, s65, s64")
    a("v_add_u32 v13, s65, v4")
    a(f"s_add_u32 s65, s63, {L_KPO}")
    a("s_sub_u32 s65, s65, s64")
    a("v_add_u32 v14, s65, v4")
    a("s_waitcnt lgkmcnt(0)")
    sig(S_CV0, 12)
    a("s_cmp_eq_u32 s61, 0")
    a("s_cbranch_scc1 KA_CVK")
    for i in range(16): a(f"v_swap_b32 v{D0+i}, v{D1+i}")
    a("KA_CVK:")
    wait(S_CV0, 2, 12)
    for i in range(4): a(f"ds_write_b128 v13, {vr(D1+4*i,4)} offset:{1024*i}")
    a("s_waitcnt lgkmcnt(0)")
    sig(S_CV1, 12)
    srd(a, 36, 4, 5, 2048 * 512 * 2)
    a("s_lshl_b32 s66, s2, 3")
    a("s_lshl_b32 s67, s54, 1")
    a("s_add_u32 s66, s66, s67")
    a("s_lshl_b32 s67, s66, 10")
    a("buffer_load_dwordx4 v[48:51], v4, s[36:39], s67 offen")
    a("buffer_load_dwordx4 v[52:55], v4, s[36:39], s67 offen offset:1024")
    a("global_load_dwordx4 v[56:59], v4, s[28:29]")
    wait(S_CV1, 2, 12)
    for i in range(4): a(f"ds_read_b128 {vr(D1+4*i,4)}, v14 offset:{1024*i}")
    a("s_lshl_b32 s63, s55, 1")
    a("s_add_u32 s63, s63, s62")
    a("s_lshr_b32 s64, s63, 5")
    a("s_lshl_b32 s64, s64, 11")
    a("s_and_b32 s63, s63, 31")
    a("s_lshl_b32 s63, s63, 4")
    a("s_add_u32 s63, s63, s64")
    a("s_lshl_b32 s64, s61, 20")
    a("s_add_u32 s63, s63, s64")
    a(f"s_add_u32 s63, s63, {W2_GA}")
    a("v_lshlrev_b32 v5, 15, v5")
    a("v_lshl_add_u32 v5, v3, 9, v5")
    a("s_waitcnt lgkmcnt(0)")
    for i in range(16): a(f"v_add_f32 v{D0+i}, v{D0+i}, v{D1+i}")
    for i in range(8): a(f"v_cvt_pk_bf16_f32 v{64+i}, v{D0+2*i}, v{D0+2*i+1}")
    a("buffer_store_dwordx4 v[64:67], v5, s[44:47], s63 offen")
    a("buffer_store_dwordx4 v[68:71], v5, s[44:47], s63 offen offset:1024")
    a("v_mov_b32 v40, 0\nv_mov_b32 v41, 0")
    a("s_waitcnt vmcnt(2)")
    for i in range(4):
        a(f"v_dot2_f32_bf16 v40, v{48+i}, v{56+i}, v40")
        a(f"v_dot2_f32_bf16 v41, v{52+i}, v{56+i}, v41")
    a("s_nop 3")
    for ror in (8, 4, 2, 1):
        a(f"v_add_f32_dpp v40, v40, v40 row_ror:{ror} row_mask:0xf bank_mask:0xf")
        a(f"v_add_f32_dpp v41, v41, v41 row_ror:{ror} row_mask:0xf bank_mask:0xf")
        a("s_nop 0")
    a("v_and_b32 v42, 1, v1")
    a("v_cmp_eq_u32 s[70:71], 1, v42")
    a("s_nop 1")
    a("v_cndmask_b32 v40, v40, v41, s[70:71]")
    a("v_mov_b32 v41, v40")
    a("s_nop 1")
    a("v_permlane32_swap_b32 v40, v41")
    a("v_add_f32 v40, v40, v41")
    a("v_mov_b32 v41, v40")
    a("s_nop 1")
    a("v_permlane16_swap_b32 v40, v41")
    a("v_add_f32 v40, v40, v41")
    a("v_cvt_pk_bf16_f32 v40, v40, v40")
    a("v_and_b32 v40, 0xffff0000, v40")
    a(f"v_mul_f32 v40, {hex(f2u(-LOG2E))}, v40")
    a("v_exp_f32 v40, v40")
    a("s_nop 0")
    a("v_add_f32 v40, 1.0, v40")
    a("v_rcp_f32 v40, v40")
    a("s_nop 0")
    a("v_cvt_pk_bf16_f32 v40, v40, v40")
    a("v_and_b32 v40, 0xffff0000, v40")
    a("v_sub_f32 v41, 1.0, v40")
    a("v_cvt_pk_bf16_f32 v41, v41, v41")
    a("v_and_b32 v41, 0xffff0000, v41")
    a("v_lshlrev_b32 v42, 3, v1")
    a("s_lshl_b32 s66, s66, 3")
    a(f"s_add_u32 s66, s66, {W2_G}")
    a("s_mov_b64 exec, 3")
    a("buffer_store_dwordx2 v[40:41], v42, s[44:47], s66 offen")
    a("s_mov_b64 exec, -1")
    if "prewo" in X:
        a("v_lshlrev_b32 v14, 7, v1")
        a("s_lshl_b32 s63, s50, 2")
        a("s_add_u32 s63, s63, s54")
        a("s_and_b32 s63, s63, 63")
        a("s_lshl_b32 s63, s63, 13")
        a("v_add_u32 v14, s63, v14")
        a("global_load_dword v13, v14, s[26:27]")
    if "wb" in X:
        a("s_cmp_lg_u32 s54, 0")
        a("s_cbranch_scc1 KA_NOWB")
        wait(S_A3, 4)
        a("s_waitcnt vmcnt(0)")
        a("buffer_wbl2 sc1")
        a("KA_NOWB:")
    a.end(0)
```

```python
from common import *
KB_LDS = 131072

def gen_kb(name, X=()):
    a = Asm()
    a(f".globl {name}\n.p2align 8\n.type {name},@function\n{name}:")
    a("s_cmp_ge_u32 s2, 256")
    a("s_cbranch_scc1 KB_END")
    a.start()
    a(f"s_load_dwordx2 s[4:5], s[0:1], {KA_WS}")
    a(f"s_load_dwordx2 s[6:7], s[0:1], {KA_WO}")
    a(f"s_load_dwordx2 s[20:21], s[0:1], {KA_OUT}")
    a("v_lshrrev_b32 v2, 6, v0")
    a("v_and_b32 v1, 63, v0")
    a("s_and_b32 s26, s2, 7")
    a("v_readfirstlane_b32 s22, v2")
    a("s_lshr_b32 s27, s2, 3")
    a("s_and_b32 s23, s26, 3")
    a("s_lshl_b32 s23, s23, 3")
    a("s_and_b32 s28, s27, 7")
    a("s_add_u32 s23, s23, s28")
    a("s_lshr_b32 s24, s26, 2")
    a("s_lshl_b32 s24, s24, 2")
    a("s_lshr_b32 s28, s27, 3")
    a("s_add_u32 s24, s24, s28")
    a("s_add_u32 s25, s23, s24")
    a("v_lshlrev_b32 v4, 4, v1")
    a("v_lshrrev_b32 v3, 5, v1")
    a("s_waitcnt lgkmcnt(0)")
    srd(a, 8, 4, 5, W2_END)
    a("s_cmp_ge_u32 s22, 4")
    a("s_cbranch_scc1 KB_LOADER")
    srd(a, 16, 20, 21, 2048 * 512 * 2)
    D, GA, DG, FA, FB, DA = 16, 32, 40, 48, 64, 80
    a("s_and_b32 s29, s22, 1")
    a("s_lshr_b32 s30, s22, 1")
    a("s_lshl_b32 s31, s23, 1")
    a("s_add_u32 s31, s31, s29")
    a("s_lshl_b32 s32, s24, 1")
    a("s_add_u32 s32, s32, s30")
    a("s_lshl_b32 s33, s31, 4")
    a("s_add_u32 s33, s33, s32")
    a("s_lshl_b32 s33, s33, 11")
    a(f"s_add_u32 s33, s33, {W2_GA}")
    a("v_and_b32 v5, 31, v1")
    a("v_lshlrev_b32 v6, 3, v5")
    a("s_lshl_b32 s34, s31, 8")
    a(f"s_add_u32 s34, s34, {W2_G}")
    a("buffer_load_dwordx2 v[14:15], v6, s[8:11], s34 offen")
    a(f"buffer_load_dwordx4 {vr(GA,4)}, v4, s[8:11], s33 offen")
    a(f"buffer_load_dwordx4 {vr(GA+4,4)}, v4, s[8:11], s33 offen offset:1024")
    a("s_lshl_b32 s56, s30, 15")
    a("s_lshl_b32 s57, s29, 12")
    a("s_add_u32 s56, s56, s57")
    a("s_lshl_b32 s57, s23, 16")
    a("s_add_u32 s57, s57, s56")
    a(f"s_add_u32 s57, s57, {W2_O}")
    for c in range(4):
        a(f"s_add_u32 s58, s25, {c}")
        a("s_and_b32 s58, s58, 3")
        a("s_lshl_b32 s58, s58, 13")
        a(f"s_add_u32 m0, s56, {8192*c}")
        a("s_add_u32 s58, s58, s57")
        for q in range(4):
            a(f"buffer_load_dwordx4 v4, s[8:11], s58 offen offset:{1024*q} lds")
    a("s_lshl_b32 s35, s29, 15")
    a("v_add_u32 v8, s35, v4")
    a("v_bfe_u32 v10, v1, 2, 2")
    a("v_lshl_add_u32 v9, v3, 2, v10")
    a("v_lshlrev_b32 v9, 7, v9")
    a("v_lshrrev_b32 v10, 1, v10")
    a("v_xor_b32 v10, s30, v10")
    a("v_lshl_add_u32 v9, v10, 6, v9")
    a("v_bfe_u32 v10, v1, 4, 1")
    a("v_lshl_add_u32 v9, v10, 5, v9")
    a("v_and_b32 v10, 3, v1")
    a("v_lshl_add_u32 v9, v10, 3, v9")
    a("v_add_u32 v9, 65536, v9")
    a("v_lshrrev_b32 v10, 3, v5")
    a("v_bfe_u32 v11, v5, 1, 1")
    a("v_lshl_add_u32 v10, v10, 1, v11")
    a("v_bfe_u32 v11, v5, 2, 1")
    a("v_xor_b32 v11, v11, v3")
    a("v_lshl_add_u32 v10, v11, 3, v10")
    a("v_and_b32 v11, 1, v5")
    a("v_xor_b32 v11, 1, v11")
    a("v_lshlrev_b32 v11, 4, v11")
    for k in range(8):
        a(f"v_cmp_eq_u32 s[{40+2*k}:{41+2*k}], {k}, v10")
    a("v_lshlrev_b32 v12, 10, v5")
    a("v_lshl_add_u32 v12, v3, 4, v12")
    a("s_lshl_b32 s36, s31, 15")
    a("s_lshl_b32 s37, s32, 6")
    a("s_add_u32 s36, s36, s37")
    a("s_waitcnt vmcnt(18)")
    a("v_lshrrev_b32 v7, v11, v14")
    for k in range(8):
        a(f"v_cndmask_b32 v{DG+k}, 0, v7, s[{40+2*k}:{41+2*k}]")
    a("s_waitcnt vmcnt(16)")
    a("s_nop 0")
    a(f"v_mfma_f32_32x32x16_bf16 {vr(DA,16)}, {vr(GA,4)}, {vr(DG,4)}, 0")
    a(f"v_mfma_f32_32x32x16_bf16 {vr(DA,16)}, {vr(GA+4,4)}, {vr(DG+4,4)}, {vr(DA,16)}")
    a.stamp(1)
    def rd(slot, hd):
        a(f"ds_read_b64_tr_b16 {vr(FA+4*slot,2)}, v9 offset:{2048*hd}")
        a(f"ds_read_b64_tr_b16 {vr(FA+4*slot+2,2)}, v9 offset:{2048*hd+1024}")
        a(f"ds_read_b128 {vr(FB+4*slot,4)}, v8 offset:{1024*hd}")
    for c in range(4):
        a(f"s_waitcnt vmcnt({12-4*c})")
        a("s_barrier")
        if c: a.stamp(2 + c)
        for s in range(4): rd(s, 8*c + s)
        for s in range(8):
            a(f"s_waitcnt lgkmcnt({9 if s <= 4 else 3*(7-s)})")
            cc = "0" if c == 0 and s == 0 else vr(D,16)
            a(f"v_mfma_f32_32x32x16_bf16 {vr(D,16)}, {vr(FA+4*(s&3),4)}, {vr(FB+4*(s&3),4)}, {cc}")
            if s < 4: rd(s, 8*c + s + 4)
    a("s_nop 3")
    a.stamp(2)
    a("s_nop 7")
    for i in range(16):
        a(f"v_fmac_f32 v{DA+i}, v15, v{D+i}")
    for i in range(8):
        a(f"v_cvt_pk_bf16_f32 v{GA+i}, v{DA+2*i}, v{DA+2*i+1}")
    a("s_nop 1")
    a(f"v_permlane32_swap_b32 v{GA}, v{GA+2}")
    a(f"v_permlane32_swap_b32 v{GA+1}, v{GA+3}")
    a(f"v_permlane32_swap_b32 v{GA+4}, v{GA+6}")
    a(f"v_permlane32_swap_b32 v{GA+5}, v{GA+7}")
    a(f"buffer_store_dwordx4 {vr(GA,4)}, v12, s[16:19], s36 offen")
    a(f"buffer_store_dwordx4 {vr(GA+4,4)}, v12, s[16:19], s36 offen offset:32")
    a.end(1)
    a("KB_LOADER:")
    srd(a, 12, 6, 7, 512 * 512 * 2)
    a("s_sub_u32 s22, s22, 4")
    a("v_lshrrev_b32 v5, 3, v1")
    a("v_bfe_u32 v6, v1, 4, 1")
    a("v_lshlrev_b32 v6, 2, v6")
    a("v_and_b32 v7, 7, v1")
    a("v_xor_b32 v6, v6, v7")
    a("v_lshlrev_b32 v6, 4, v6")
    a("v_lshl_add_u32 v8, v5, 10, v6")
    for q in range(1, 4):
        a(f"v_add_u32 v{8+q}, {7168*q}, v8")
    a("s_lshl_b32 s31, s22, 12")
    a("s_add_u32 s31, s31, 65536")
    a("s_lshl_b32 s32, s22, 15")
    a("s_lshl_b32 s33, s24, 7")
    a("s_add_u32 s32, s32, s33")
    for c in range(4):
        a(f"s_add_u32 s34, s25, {c}")
        a("s_and_b32 s34, s34, 3")
        a("s_lshl_b32 s34, s34, 17")
        a(f"s_add_u32 m0, s31, {16384*c}")
        a("s_add_u32 s34, s34, s32")
        for q in range(4):
            a(f"buffer_load_dwordx4 v{8+q}, s[12:15], s34 offen offset:{1024*q} lds")
    NP = 0
    if "pre3" in X:
        srd(a, 16, 20, 21, 2048 * 512 * 2)
        a("v_lshlrev_b32 v12, 10, v1")
        a("s_lshl_b32 s36, s23, 16")
        a("s_add_u32 s36, s36, s33")
        a("s_cmp_lg_u32 s22, 0")
        a("s_cbranch_scc1 KB_NOPRE")
        a("buffer_load_dword v13, v12, s[16:19], s36 offen sc1")
        a("KB_NOPRE:")
    a.stamp(1)
    for c in range(4):
        a(f"s_waitcnt vmcnt({12-4*c})")
        a.stamp(2 + c)
        a("s_barrier")
    a.end(1)
    a("KB_END:")
    a("s_endpgm")
    return a.text(), 96
```

```python
DIAG = [False]
WS_DIAG = 32 << 20
class Asm:
    def __init__(self):
        self.lines = []
    def __call__(self, s=""):
        for l in s.split("\n"):
            l = l.strip()
            if not l:
                continue
            if l.endswith(":") or l.startswith("."):
                self.lines.append(l)
            else:
                self.lines.append("    " + l)
    def c(self, s):
        self.lines.append("    ; " + s)
    def stamp(self, i):
        if DIAG[0]:
            self(f"s_memtime s[{80+2*i}:{81+2*i}]")
    def start(self):
        if DIAG[0]:
            for i in range(11):
                self(f"s_mov_b64 s[{78+2*i}:{79+2*i}], 0")
            self("s_memrealtime s[78:79]")
            self.stamp(0)
    def end(self, kern):
        if DIAG[0]:
            self("s_mov_b64 exec, -1")
            self.stamp(8)
            self("s_waitcnt vmcnt(0)")
            self.stamp(9)
            self("s_memrealtime s[100:101]")
            self(f"s_load_dwordx2 s[4:5], s[0:1], {KA_WS}")
            self("s_waitcnt lgkmcnt(0)")
            self(f"s_and_b32 s5, s5, 0xffff\ns_mov_b32 s6, {WS_DIAG + (4<<20)}\ns_mov_b32 s7, 0x20000")
            self("v_lshrrev_b32 v2, 6, v0\nv_lshlrev_b32 v2, 6, v2")
            self(f"s_lshl_b32 s3, s2, 10\ns_add_u32 s3, s3, {WS_DIAG + kern*256*1024}")
            self("s_getreg_b32 s79, hwreg(HW_REG_XCC_ID)\ns_getreg_b32 s81, hwreg(HW_REG_HW_ID)")
            regs = [78, 100] + [80 + 2*i for i in range(10)] + [79, 81, 79, 79]
            for k, r in enumerate(regs):
                self(f"v_mov_b32 v{4+k}, s{r}")
            self("s_mov_b64 exec, 1")
            for k in range(4):
                self(f"buffer_store_dwordx4 v[{4+4*k}:{7+4*k}], v2, s[4:7], s3 offen offset:{16*k}")
        self("s_endpgm")
    def text(self):
        return "\n".join(self.lines) + "\n"

def vr(a, n=1):
    return f"v{a}" if n == 1 else f"v[{a}:{a+n-1}]"
def sr(a, n=1):
    return f"s{a}" if n == 1 else f"s[{a}:{a+n-1}]"

KA_U, KA_ARE, KA_AIM, KA_BRE, KA_BIM, KA_CRE, KA_CIM, KA_LDT, KA_DSK = 0, 8, 16, 24, 32, 40, 48, 56, 64
KA_WQKV, KA_WO, KA_GW, KA_OUT, KA_DBG, KA_WS = 80, 88, 96, 104, 112, 120

HS = 65536 + 66560 + 65536
OFF_K, OFF_V, OFF_Q = 0, 65536, 132096
WS_H = 0
WS_KP = 32 * HS
KPROW = 4160
WS_UT = WS_KP + 512 * KPROW + 4096
WS_G = WS_UT + 256 * 9216
WS_O = WS_G + 2048 * 8
WS_GA = WS_O + 64 * 32 * 1024
WS_END = WS_GA + 64 * 16 * 2 * 1024
WS_SIZE = 268435456

def srd(a, base, lo, hi, nbytes):
    a(f"s_mov_b32 s{base}, s{lo}")
    a(f"s_and_b32 s{base+1}, s{hi}, 0xffff")
    a(f"s_mov_b32 s{base+2}, {nbytes}")
    a(f"s_mov_b32 s{base+3}, 0x20000")

def kd(name, vgpr, sgpr=102):
    acc = (vgpr + 3) // 4 * 4
    return f""".amdhsa_kernel {name}
  .amdhsa_next_free_vgpr {vgpr}
  .amdhsa_next_free_sgpr {sgpr}
  .amdhsa_accum_offset {acc}
  .amdhsa_group_segment_fixed_size 0
  .amdhsa_kernarg_size 128
  .amdhsa_user_sgpr_count 2
  .amdhsa_user_sgpr_kernarg_segment_ptr 1
  .amdhsa_system_sgpr_workgroup_id_x 1
.end_amdhsa_kernel
"""
def f2u(x):
    import struct
    return struct.unpack("<I", struct.pack("<f", x))[0]
```

```python
import sys
sys.path.insert(0, "gen")
from common import *
import ka, kb
def build(X=()):
    hdr = open("gated_mix__ssm_conv_s4__softmax_full_mha__prompt.s.ref").read().split("; Override launch")[0]
    t1, v1 = ka.gen_ka("main_kernel", X)
    t2, v2 = kb.gen_kb("proj_kernel", X)
    L = [f"; @launch kernel=main_kernel grid=(256,1,1) block=(768,1,1) lds={ka.KA_LDS}",
         f"; @launch kernel=proj_kernel grid=(256,1,1) block=(512,1,1) lds={kb.KB_LDS}"]
    s = hdr + "\n".join(L) + "\n"
    s += '.amdgcn_target "amdgcn-amd-amdhsa--gfx950"\n.text\n'
    s += t1 + t2
    s += '.section .rodata,"a"\n.p2align 6\n' + kd("main_kernel", v1) + ".p2align 6\n" + kd("proj_kernel", v2)
    return s
if __name__ == "__main__":
    out = sys.argv[1]
    if sys.argv[2] == "diag": DIAG[0] = True
    open(out, "w").write(build(tuple(sys.argv[3:])))
```

```python
from common import *
import math

LOG2E = 1.4426950408889634
LOG2E_HI = f2u(LOG2E)
import struct
_hi = struct.unpack("<f", struct.pack("<I", LOG2E_HI))[0]
LOG2E_LO = f2u(LOG2E - _hi)
LN2 = f2u(math.log(2.0))
QSCALE = f2u(0.25 * LOG2E)

K1_XRING, K1_WRING, K1_KG = 0, 65536, 114688
K1_KGW = 8704
K1_LDS = K1_KG + 4 * K1_KGW

def interleave(chains):
    out = []
    chains = [list(c) for c in chains]
    while any(chains):
        for c in chains:
            if c:
                out.append(c.pop(0))
    return out

def cmul(d, x, w):
    return [f"v_pk_mul_f32 {vr(d,2)}, {vr(x,2)}, {vr(w,2)} op_sel:[0,0] op_sel_hi:[0,1]",
            f"v_pk_fma_f32 {vr(d,2)}, {vr(x,2)}, {vr(w,2)}, {vr(d,2)} op_sel:[1,1,0] op_sel_hi:[1,0,1] neg_lo:[0,1,0]"]

def gen_k1(name, ST="", X=()):
    a = Asm()
    a(f".globl {name}\n.p2align 8\n.type {name},@function\n{name}:")
    a("s_cmp_ge_u32 s2, 256")
    a("s_cbranch_scc1 K1_END")
    a.start()
    a("s_load_dwordx16 s[4:19], s[0:1], 0")
    a("s_load_dwordx16 s[20:35], s[0:1], 64")
    a("v_lshrrev_b32 v2, 6, v0")
    a("v_and_b32 v1, 63, v0")
    a("s_and_b32 s51, s2, 7")
    a("v_readfirstlane_b32 s48, v2")
    a("s_lshr_b32 s52, s2, 3")
    a("s_and_b32 s49, s51, 3")
    a("s_lshl_b32 s49, s49, 2")
    a("s_and_b32 s53, s52, 3")
    a("s_add_u32 s49, s49, s53")
    a("s_lshr_b32 s50, s51, 2")
    a("s_lshl_b32 s50, s50, 3")
    a("s_lshr_b32 s53, s52, 2")
    a("s_add_u32 s50, s50, s53")
    a("s_lshl_b32 s54, s51, 5")
    a("s_add_u32 s54, s54, s52")
    a("s_waitcnt lgkmcnt(0)")
    srd(a, 44, 34, 35, WS_END)
    a("s_cmp_ge_u32 s48, 4")
    a("s_cbranch_scc1 K1_LOADER")

    a.c("consumer: kernel generation for channel 2p+(w>>1), n = 64*(w&1)+lane")
    a("s_lshl_b32 s55, s54, 2")
    a("s_load_dword s56, s[18:19], s55")
    a("s_load_dword s57, s[20:21], s55")
    a("s_lshl_b32 s58, s54, 9")
    a("s_lshl_b32 s59, s48, 7")
    a("s_add_u32 s58, s58, s59")
    a("v_lshl_add_u32 v2, v1, 1, s58")
    for i in range(6):
        a(f"v_mov_b32 v{4+i}, 0")
    for i in range(6):
        a(f"global_load_short_d16_hi v{4+i}, v2, s[{6+2*i}:{7+2*i}]")
    if "pre1" in X:
        a("v_and_b32 v200, 15, v1")
        a("v_min_u32 v200, 8, v200")
        a("v_lshlrev_b32 v200, 7, v200")
        a("v_bfe_u32 v201, v1, 4, 1")
        a(f"v_mul_u32_u24 v201, {HS}, v201")
        a("v_add_u32 v200, v200, v201")
        a("s_lshl_b32 s72, s49, 2")
        a("s_add_u32 s72, s72, s48")
        a("s_mul_i32 s73, s50, 3")
        a("s_mov_b32 exec_hi, 0")
        for ct in range(3):
            a(f"s_add_u32 s74, s73, {ct}")
            a("s_and_b32 s75, s74, 15")
            a(f"s_mul_i32 s75, s75, {2*HS}")
            a("s_lshl_b32 s76, s72, 10")
            a("s_mul_i32 s77, s72, 1040")
            a(f"s_add_u32 s77, s77, {OFF_V}")
            a("s_cmp_lt_u32 s74, 32")
            a("s_cselect_b32 s77, s76, s77")
            a(f"s_add_u32 s76, s76, {OFF_Q}")
            a("s_cmp_lt_u32 s74, 16")
            a("s_cselect_b32 s77, s76, s77")
            a("s_add_u32 s75, s75, s77")
            a(f"buffer_load_dword v{202+ct}, v200, s[44:47], s75 offen sc1")
        a("s_mov_b32 exec_hi, -1")
        a("v_lshlrev_b32 v200, 7, v1")
        a(f"s_mul_i32 s75, s54, {2*KPROW}")
        a(f"s_add_u32 s75, s75, {WS_KP}")
        a("buffer_load_dword v205, v200, s[44:47], s75 offen sc1")
        a("v_and_b32 v200, 15, v1")
        a("v_mul_u32_u24 v200, 9216, v200")
        a("v_lshrrev_b32 v201, 4, v1")
        a("v_min_u32 v201, 1, v201")
        a("v_lshl_add_u32 v200, v201, 7, v200")
        a("s_mul_i32 s75, s72, 144")
        a(f"s_mul_i32 s76, s50, {16*9216}")
        a("s_add_u32 s75, s75, s76")
        a(f"s_add_u32 s75, s75, {WS_UT}")
        a("buffer_load_dword v206, v200, s[44:47], s75 offen sc1")
    a("s_mul_i32 s60, s48, %d" % K1_KGW)
    a("s_add_u32 s60, s60, %d" % K1_KG)
    a("v_lshl_add_u32 v10, v1, 2, s60")
    a("v_and_b32 v11, 31, v1")
    a("v_mul_u32_u24 v11, 272, v11")
    a("v_lshrrev_b32 v3, 5, v1")
    a("v_lshl_add_u32 v11, v3, 4, v11")
    a("v_add_u32 v11, s60, v11")
    a("v_lshl_add_u32 v12, v1, 4, s60")
    a("s_xor_b32 s61, s48, 1")
    a("s_mul_i32 s61, s61, %d" % K1_KGW)
    a("s_add_u32 s61, s61, %d" % K1_KG)
    a("v_lshl_add_u32 v13, v1, 4, s61")
    a("s_waitcnt lgkmcnt(0)")
    a("s_lshr_b32 s59, s48, 1")
    a("s_lshl_b32 s59, s59, 4")
    a("s_lshr_b32 s56, s56, s59")
    a("s_lshl_b32 s56, s56, 16")
    a("s_lshr_b32 s57, s57, s59")
    a("s_lshl_b32 s57, s57, 16")
    a(f"s_mov_b32 s62, {hex(LOG2E_HI)}")
    a("v_mov_b32 v14, s56")
    a("v_mul_f32 v15, s62, v14")
    a("v_fma_f32 v16, v14, s62, -v15")
    a(f"v_fmac_f32 v16, {hex(LOG2E_LO)}, v14")
    a("v_exp_f32 v15, v15")
    a(f"v_mul_f32 v16, {hex(LN2)}, v16")
    a("v_fma_f32 v15, v15, v16, v15")
    a("v_cvt_pk_bf16_f32 v15, v15, v15")
    a("v_and_b32 v15, 0xffff0000, v15")
    a("s_waitcnt vmcnt(%d)" % (5 if "pre1" in X else 0))
    a.stamp(1)
    a("v_mul_f32 v4, v15, v4")
    a("v_mul_f32 v5, v15, v5")
    a("v_mul_f32 v6, v15, v6")
    a("v_mul_f32 v7, v15, v7")
    a("v_mul_f32 v4, s62, v4")
    a("v_mul_f32 v5, 0.15915494, v5")
    W1, W8, W256, W2, W4, W16 = 20, 22, 24, 26, 28, 30
    tmp = 32
    for k, (wr, mult) in enumerate(((W1, 1.0), (W8, 8.0), (W256, 256.0))):
        t = tmp + 2 * k
        a(f"v_mul_f32 v{t}, {hex(f2u(mult))}, v4")
        a(f"v_mul_f32 v{t+1}, {hex(f2u(mult))}, v5")
    for k in range(3):
        t = tmp + 2 * k
        a(f"v_exp_f32 v{t}, v{t}")
        a(f"v_fract_f32 v{t+1}, v{t+1}")
    for k, wr in enumerate((W1, W8, W256)):
        t = tmp + 2 * k
        a(f"v_cos_f32 v{wr}, v{t+1}")
        a(f"v_sin_f32 v{wr+1}, v{t+1}")
    U = {}
    nxt = [40]
    def newU(av):
        U[av] = nxt[0]; nxt[0] += 2
        return U[av]
    for l in cmul(newU(0), 8, 6): a(l)
    for k, wr in enumerate((W1, W8, W256)):
        t = tmp + 2 * k
        a(f"v_mul_f32 v{wr}, v{t}, v{wr}")
        a(f"v_mul_f32 v{wr+1}, v{t}, v{wr+1}")
    for l in interleave([cmul(W2, W1, W1), cmul(W16, W8, W8)]): a(l)
    for l in cmul(W4, W2, W2): a(l)
    WA, WB, PK = 100, 104, 108
    def wchain(start_j, start_reg, pp, pk):
        ops = []
        cur = start_reg
        j = start_j
        k = 0
        while True:
            ops.append(f"v_cvt_pk_bf16_f32 v{pk+(k&1)}, v{cur}, v{cur+1}")
            if j + 2 <= 31:
                d = pp + 2 * (k & 1)
                c = cmul(d, cur, W16)
                ops.append(c[0])
                ops.append(f"ds_write_b32 v10, v{pk+(k&1)} offset:{(31-j)*272}")
                ops.append(c[1])
                cur = d
            else:
                ops.append(f"ds_write_b32 v10, v{pk+(k&1)} offset:{(31-j)*272}")
                break
            j += 2; k += 1
        return ops
    a(f"v_mov_b32 v112, 0x3f80")
    a(f"ds_write_b32 v10, v112 offset:{31*272}")
    chA = wchain(2, W16, WA, PK)
    chB = wchain(1, W8, WB, PK + 2)
    u1 = []
    prev = 0
    for av in (256, 512, 768, 1024, 1280, 1536, 1792):
        u1 += cmul(newU(av), U[prev], W256); prev = av
    for av in (1024, 1280, 1536, 1792):
        u1 += cmul(newU(av + 8), U[av], W8)
    for av in (516, 520):
        u1 += cmul(newU(av), U[av - 4], W4)
    u2 = []
    for av in range(1, 8):
        u2 += cmul(newU(av), U[av - 1], W1)
    for av in (258, 260, 262, 264):
        u2 += cmul(newU(av), U[av - 2], W2)
    for av in (772, 776):
        u2 += cmul(newU(av), U[av - 4], W4)
    assert nxt[0] <= 100
    for l in interleave([chA, u1, chB, u2]): a(l)
    WF, UF, KD = 128, 160, 192
    for s in range(8):
        a(f"ds_read_b128 {vr(WF+4*s,4)}, v11 offset:{32*s}")
    rows = [0,1,2,3,4,5,6,7, 256,258,260,None,260,262,264,None, 512,516,520,None,768,772,776,None,
            1024,1032,1280,1288,1536,1544,1792,1800]
    k = 0
    pend = None
    for r, av in enumerate(rows):
        if av is None: continue
        t = PK + (k & 3); k += 1
        a(f"v_cvt_pk_bf16_f32 v{t}, v{U[av]}, -v{U[av]+1}")
        if pend: a(pend)
        pend = f"ds_write_b32 v10, v{t} offset:{r*272}"
    a(pend)
    for s in range(8):
        a(f"ds_read_b128 {vr(UF+4*s,4)}, v11 offset:{32*s}")
    a("s_waitcnt vmcnt(0)")
    for s in range(8):
        a(f"s_waitcnt lgkmcnt({7-s})")
        c = "0" if s == 0 else vr(KD, 16)
        a(f"v_mfma_f32_32x32x16_bf16 {vr(KD,16)}, {vr(UF+4*s,4)}, {vr(WF+4*s,4)}, {c}")
    a.stamp(2)
    XA, WAD, XB, WBASE = 16, 20, 24, 28
    a("v_and_b32 v4, 31, v1")
    a("s_lshl_b32 s62, s48, 12")
    a("v_lshl_add_u32 v5, v4, 7, s62")
    a("v_bfe_u32 v6, v4, 1, 3")
    a("v_xor_b32 v6, v6, v3")
    a(f"v_lshl_add_u32 v{XB}, v6, 4, v5")
    for ks in range(1, 4):
        a(f"v_xor_b32 v{XB+ks}, {ks<<5}, v{XB}")
    a("v_bfe_u32 v6, v1, 2, 2")
    a("v_lshl_add_u32 v6, v3, 3, v6")
    a("v_mul_u32_u24 v6, 192, v6")
    a("v_bfe_u32 v7, v1, 4, 1")
    a("v_lshl_add_u32 v6, v7, 5, v6")
    a("v_and_b32 v7, 3, v1")
    a("v_lshl_add_u32 v6, v7, 3, v6")
    a(f"v_add_u32 v{WBASE}, {K1_WRING}, v6")
    a("s_lshl_b32 s63, s54, 1")
    a("s_lshr_b32 s59, s48, 1")
    a("s_add_u32 s63, s63, s59")
    a(f"s_mul_i32 s63, s63, {KPROW}")
    a(f"s_add_u32 s63, s63, {WS_KP}")
    a("v_lshlrev_b32 v8, 4, v4")
    a("s_and_b32 s64, s48, 1")
    a("s_cmp_eq_u32 s64, 0")
    a("s_cbranch_scc0 K1_X1")
    a(f"ds_write_b128 v12, {vr(KD+8,4)}")
    a(f"ds_write_b128 v12, {vr(KD+12,4)} offset:1024")
    a("s_waitcnt lgkmcnt(0)")
    a("s_barrier")
    a(f"ds_read_b128 {vr(KD+8,4)}, v13")
    a(f"ds_read_b128 {vr(KD+12,4)}, v13 offset:1024")
    a("v_cmp_eq_u32 s[66:67], 31, v1")
    a("v_mov_b32 v9, s57")
    a("v_lshlrev_b32 v7, 3, v3")
    a("v_cndmask_b32 v9, 0, v9, s[66:67]")
    a("v_xor_b32 v7, 8, v7")
    a("v_add_u32 v8, v8, v7")
    a(f"v_add_f32 v{KD}, v{KD}, v9")
    a("v_mov_b32 v36, 0\nv_mov_b32 v37, 0\nv_mov_b32 v38, 0\nv_mov_b32 v39, 0")
    a("v_lshlrev_b32 v9, 4, v1")
    a("s_waitcnt lgkmcnt(0)")
    for i in range(7):
        a(f"v_add_f32 v{KD+i}, v{KD+i}, v{KD+8+i}")
    a(f"v_cvt_pk_bf16_f32 v32, v{KD+3}, v{KD+2}")
    a(f"v_cvt_pk_bf16_f32 v33, v{KD+1}, v{KD+0}")
    a(f"v_cvt_pk_bf16_f32 v34, v{KD+6}, v{KD+5}")
    a(f"v_cvt_pk_bf16_f32 v35, v{KD+4}, v{KD+4}")
    a(f"buffer_store_dwordx2 v[32:33], v8, s[44:47], s63 offen offset:3584{ST}")
    a(f"buffer_store_dwordx2 v[34:35], v8, s[44:47], s63 offen offset:3072{ST}")
    a("s_add_u32 s65, s63, 4096")
    a("s_mov_b64 exec, 15")
    a(f"buffer_store_dwordx4 v[36:39], v9, s[44:47], s65 offen{ST}")
    a("s_mov_b64 exec, -1")
    a("s_branch K1_GEMM")
    a("K1_X1:")
    a(f"ds_write_b128 v12, {vr(KD,4)}")
    a(f"ds_write_b128 v12, {vr(KD+4,4)} offset:1024")
    a("s_waitcnt lgkmcnt(0)")
    a("s_barrier")
    a(f"ds_read_b128 {vr(KD,4)}, v13")
    a(f"ds_read_b128 {vr(KD+4,4)}, v13 offset:1024")
    a("v_and_b32 v7, 1, v1")
    a("v_cmp_eq_u32 s[66:67], 1, v7")
    a("v_lshlrev_b32 v7, 9, v3")
    a("v_sub_u32 v9, v8, v7")
    a("v_add_u32 v9, 512, v9")
    a("v_sub_u32 v8, v9, v7")
    a("v_add_u32 v8, 512, v8")
    a("s_waitcnt lgkmcnt(0)")
    for i in range(8):
        a(f"v_add_f32 v{KD+8+i}, v{KD+8+i}, v{KD+i}")
    r8, r9, r10, r12, r13, r14, r15 = [KD + i for i in (8, 9, 10, 12, 13, 14, 15)]
    a(f"v_cndmask_b32 v44, v{r13}, v{r12}, s[66:67]")
    a(f"v_cndmask_b32 v45, v{r15}, v{r14}, s[66:67]")
    a(f"v_cvt_pk_bf16_f32 v32, v{r10}, v{r10}")
    a(f"v_cvt_pk_bf16_f32 v33, v{r9}, v{r9}")
    a(f"v_cvt_pk_bf16_f32 v34, v{r9}, v{r8}")
    a(f"v_cvt_pk_bf16_f32 v35, v{r8}, v{r8}")
    a(f"v_cvt_pk_bf16_f32 v36, v{r13}, v{r13}")
    a(f"v_cvt_pk_bf16_f32 v37, v{r13}, v44")
    a(f"v_cvt_pk_bf16_f32 v38, v{r12}, v{r12}")
    a(f"v_mov_b32 v39, v38")
    a(f"v_cvt_pk_bf16_f32 v40, v{r15}, v{r15}")
    a(f"v_cvt_pk_bf16_f32 v41, v{r15}, v45")
    a(f"v_cvt_pk_bf16_f32 v42, v{r14}, v{r14}")
    a(f"v_mov_b32 v43, v42")
    a(f"buffer_store_dwordx4 v[32:35], v9, s[44:47], s63 offen offset:{2560-512}{ST}")
    a(f"buffer_store_dwordx4 v[36:39], v8, s[44:47], s63 offen offset:{1536-1024}{ST}")
    a(f"buffer_store_dwordx4 v[40:43], v8, s[44:47], s63 offen offset:{1024-1024}{ST}")

    a("K1_GEMM:")
    a.stamp(3)
    ACC, F0, F1 = 64, 112, 128
    for i in range(48):
        a(f"v_mov_b32 v{ACC+i}, 0")
    for k in range(4):
        a(f"v_mov_b32 v{XA+k}, v{XB+k}")
    a(f"v_mov_b32 v{WAD}, v{WBASE}")
    def reads(F, ks):
        a(f"ds_read_b128 {vr(F,4)}, v{XA+ks}")
        for ct in range(3):
            for hh in range(2):
                a(f"ds_read_b64_tr_b16 {vr(F+4+4*ct+2*hh,2)}, v{WAD} offset:{ct*64+ks*3072+hh*768}")
    def mfmas(F, pat):
        for ct in range(3):
            x, w = vr(F, 4), vr(F + 4 + 4 * ct, 4)
            A, B = (w, x) if pat[ct] == "Q" else (x, w)
            a(f"v_mfma_f32_32x32x16_bf16 {vr(ACC+16*ct,16)}, {A}, {B}, {vr(ACC+16*ct,16)}")
    reads(F0, 0)
    a("s_mov_b32 s68, 0")
    a("s_cmp_lt_u32 s50, 10")
    a("s_cbranch_scc1 K1_LQQQ")
    a("s_cmp_eq_u32 s50, 10")
    a("s_cbranch_scc1 K1_LQQV")
    for pat in ("VVV", "QQV", "QQQ"):
        a(f"K1_L{pat}:")
        reads(F1, 1); a("s_waitcnt lgkmcnt(7)"); mfmas(F0, pat)
        reads(F0, 2); a("s_waitcnt lgkmcnt(7)"); mfmas(F1, pat)
        reads(F1, 3); a("s_waitcnt lgkmcnt(7)"); mfmas(F0, pat)
        a("s_add_u32 s68, s68, 1")
        a("s_and_b32 s69, s68, 3")
        a("s_lshl_b32 s70, s69, 14")
        a("s_mul_i32 s71, s69, 12288")
        a("s_cmp_eq_u32 s68, 8")
        a("s_waitcnt lgkmcnt(0)")
        a(f"s_cbranch_scc1 K1_E{pat}")
        for k in range(4):
            a(f"v_add_u32 v{XA+k}, s70, v{XB+k}")
        a(f"v_add_u32 v{WAD}, s71, v{WBASE}")
        a("s_barrier")
        reads(F0, 0)
        mfmas(F1, pat)
        a(f"s_branch K1_L{pat}")
        a(f"K1_E{pat}:")
        mfmas(F1, pat)
        a.stamp(4)
        a("s_lshl_b32 s72, s49, 2")
        a("s_add_u32 s72, s72, s48")
        a("s_mul_i32 s73, s50, 3")
        a("v_lshlrev_b32 v4, 4, v1")
        if "V" in pat:
            a("v_bfe_u32 v5, v1, 4, 1")
            a(f"v_mul_u32_u24 v5, {HS}, v5")
            a("v_and_b32 v6, 15, v1")
            a("v_lshl_add_u32 v6, v3, 4, v6")
            a("v_lshl_add_u32 v6, v6, 4, v5")
            a("v_mov_b32 v8, 0x3f803f80\nv_mov_b32 v9, v8\nv_mov_b32 v10, v8\nv_mov_b32 v11, v8")
        a("s_nop 7")
        for ct in range(3):
            A0 = ACC + 16 * ct
            PKD = 32 + 8 * ct
            a(f"s_add_u32 s74, s73, {ct}")
            a("s_and_b32 s75, s74, 15")
            a(f"s_mul_i32 s75, s75, {2*HS}")
            if pat[ct] == "Q":
                a("s_cmp_lt_u32 s74, 16")
                a(f"s_cselect_b32 s76, {hex(QSCALE)}, 1.0")
                a(f"s_cselect_b32 s77, {OFF_Q}, {OFF_K}")
                a("s_add_u32 s75, s75, s77")
                a("s_lshl_b32 s77, s72, 10")
                a("s_add_u32 s75, s75, s77")
                a(f"s_add_u32 s77, s75, {HS}")
                for i in range(16):
                    a(f"v_mul_f32 v{A0+i}, s76, v{A0+i}")
                for i in range(8):
                    a(f"v_cvt_pk_bf16_f32 v{PKD+i}, v{A0+2*i}, v{A0+2*i+1}")
                a(f"buffer_store_dwordx4 {vr(PKD,4)}, v4, s[44:47], s75 offen{ST}")
                a(f"buffer_store_dwordx4 {vr(PKD+4,4)}, v4, s[44:47], s77 offen{ST}")
            else:
                a("s_mul_i32 s77, s72, 1040")
                a("s_add_u32 s75, s75, s77")
                a(f"s_add_u32 s75, s75, {OFF_V}")
                for i in range(8):
                    a(f"v_cvt_pk_bf16_f32 v{PKD+i}, v{A0+2*i}, v{A0+2*i+1}")
                a(f"buffer_store_dwordx4 {vr(PKD,4)}, v6, s[44:47], s75 offen{ST}")
                a(f"buffer_store_dwordx4 {vr(PKD+4,4)}, v6, s[44:47], s75 offen offset:512{ST}")
                a("s_mov_b64 exec, 0x10001")
                a(f"buffer_store_dwordx4 v[8:11], v6, s[44:47], s75 offen offset:1024{ST}")
                a("s_mov_b64 exec, -1")
        a.end(0)

    a("K1_LOADER:")
    srd(a, 36, 4, 5, 2048 * 512 * 2)
    srd(a, 40, 24, 25, 512 * 1536 * 2)
    a("s_sub_u32 s48, s48, 4")
    a("v_lshrrev_b32 v2, 3, v1")
    a("v_lshrrev_b32 v3, 4, v1")
    a("v_and_b32 v8, 7, v1")
    a("v_xor_b32 v8, v8, v3")
    a("v_lshlrev_b32 v8, 4, v8")
    a("v_lshl_add_u32 v4, v2, 10, v8")
    a("v_xor_b32 v5, 64, v4")
    a(f"v_add_u32 v5, {7168}, v5")
    a(f"v_add_u32 v6, {2*7168}, v4")
    a(f"v_add_u32 v7, {2*7168}, v5")
    for i in range(3):
        a(f"v_add_u32 v11, {64*i}, v1")
        a("v_mul_u32_u24 v12, 0x1556, v11")
        a("v_lshrrev_b32 v12, 16, v12")
        a("v_mul_u32_u24 v13, 12, v12")
        a("v_sub_u32 v13, v11, v13")
        a("v_mul_u32_u24 v12, 3072, v12")
        a(f"v_lshl_add_u32 v{8+i}, v13, 4, v12")
        if i: a(f"v_subrev_u32 v{8+i}, {1024*i}, v{8+i}")
    a("s_lshl_b32 s55, s49, 1")
    a("s_add_u32 s55, s55, s50")
    a("s_and_b32 s55, s55, 7")
    a("s_lshl_b32 s56, s49, 17")
    a("s_lshl_b32 s57, s48, 15")
    a("s_add_u32 s56, s56, s57")
    a("s_mul_i32 s57, s48, 49152")
    a("s_mul_i32 s58, s50, 192")
    a("s_add_u32 s57, s57, s58")
    a("s_lshl_b32 s58, s48, 12")
    a("s_mul_i32 s59, s48, 3072")
    a(f"s_add_u32 s59, s59, {K1_WRING}")
    def issue(st):
        slot = st & 3
        a(f"s_add_u32 s60, s55, {st}")
        a("s_and_b32 s60, s60, 7")
        a("s_lshl_b32 s61, s60, 7")
        a("s_add_u32 s61, s61, s56")
        a(f"s_add_u32 m0, s58, {slot*16384}")
        a("s_mul_i32 s62, s60, 196608")
        for q in range(4):
            a(f"buffer_load_dwordx4 v{4+q}, s[36:39], s61 offen offset:{1024*q} lds")
        a(f"s_add_u32 m0, s59, {slot*12288}")
        a("s_add_u32 s62, s62, s57")
        for i in range(3):
            a(f"buffer_load_dwordx4 v{8+i}, s[40:43], s62 offen offset:{1024*i} lds")
    issue(0)
    a("s_lshl_b32 s63, s2, 3")
    a("s_lshl_b32 s64, s48, 1")
    a("s_add_u32 s63, s63, s64")
    a("s_lshl_b32 s64, s63, 10")
    a("v_lshlrev_b32 v14, 4, v1")
    a("buffer_load_dwordx4 v[20:23], v14, s[36:39], s64 offen")
    a("buffer_load_dwordx4 v[24:27], v14, s[36:39], s64 offen offset:1024")
    a("global_load_dwordx4 v[28:31], v14, s[28:29]")
    for st in range(1, 4): issue(st)
    a.stamp(1)
    a("v_lshrrev_b32 v3, 5, v1")
    a("v_bfe_u32 v11, v1, 2, 2")
    a("v_lshl_add_u32 v12, v3, 3, v11")
    a("v_lshrrev_b32 v13, 1, v12")
    a("v_bfe_u32 v15, v1, 4, 1")
    a("v_bfe_u32 v16, v1, 1, 1")
    a("v_lshl_add_u32 v15, v15, 1, v16")
    a("s_and_b32 s65, s50, 1")
    a("s_lshl_b32 s65, s65, 2")
    a("v_add_u32 v15, s65, v15")
    a("v_xor_b32 v15, v15, v13")
    a("v_lshlrev_b32 v15, 4, v15")
    a("v_lshl_add_u32 v15, v12, 7, v15")
    a("v_and_b32 v16, 1, v1")
    a("v_lshl_add_u32 v15, v16, 3, v15")
    a("s_lshr_b32 s66, s50, 1")
    a("s_sub_u32 s66, s66, s55")
    a("s_and_b32 s66, s66, 7")
    a("s_and_b32 s67, s66, 3")
    a("s_lshl_b32 s67, s67, 14")
    a("s_add_u32 s67, s67, s58")
    a("v_add_u32 v15, s67, v15")
    a("v_xor_b32 v16, 32, v15")
    a("v_add_u32 v16, 512, v16")
    for i in range(8): a(f"v_mov_b32 v{32+i}, 0")
    waits = [24, 14, 14, 14, 14, 14, 7, 0]
    for st in range(8):
        a(f"s_waitcnt vmcnt({waits[st]})")
        if st in (0, 1, 3, 4, 5, 7): a.stamp({0:2, 1:3, 3:4, 4:5, 5:6, 7:7}[st])
        a("s_barrier")
        if 1 <= st <= 4: issue(st + 3)
        a(f"s_cmp_lg_u32 s66, {st}")
        a(f"s_cbranch_scc1 K1_NX{st}")
        a("ds_read_b64_tr_b16 v[32:33], v15")
        a("ds_read_b64_tr_b16 v[34:35], v16")
        a("ds_read_b64_tr_b16 v[36:37], v15 offset:2048")
        a("ds_read_b64_tr_b16 v[38:39], v16 offset:2048")
        a("s_waitcnt lgkmcnt(0)")
        a(f"K1_NX{st}:")
    a("v_bfe_u32 v11, v1, 1, 4")
    a("v_mul_u32_u24 v11, 9216, v11")
    a("v_and_b32 v12, 1, v1")
    a("v_lshl_add_u32 v12, v12, 2, v3")
    a("v_lshl_add_u32 v11, v12, 4, v11")
    a("s_lshl_b32 s68, s49, 2")
    a("s_add_u32 s68, s68, s48")
    a("s_mul_i32 s68, s68, 144")
    a(f"s_mul_i32 s69, s50, {16*9216}")
    a("s_add_u32 s68, s68, s69")
    a(f"s_add_u32 s68, s68, {WS_UT}")
    a(f"buffer_store_dwordx4 v[32:35], v11, s[44:47], s68 offen{ST}")
    a(f"buffer_store_dwordx4 v[36:39], v11, s[44:47], s68 offen offset:32{ST}")
    a("v_mov_b32 v40, 0\nv_mov_b32 v41, 0")
    for i in range(4):
        a(f"v_dot2_f32_bf16 v40, v{20+i}, v{28+i}, v40")
        a(f"v_dot2_f32_bf16 v41, v{24+i}, v{28+i}, v41")
    a("s_nop 3")
    for ror in (8, 4, 2, 1):
        a(f"v_add_f32_dpp v40, v40, v40 row_ror:{ror} row_mask:0xf bank_mask:0xf")
        a(f"v_add_f32_dpp v41, v41, v41 row_ror:{ror} row_mask:0xf bank_mask:0xf")
        a("s_nop 0")
    a("v_and_b32 v42, 1, v1")
    a("v_cmp_eq_u32 s[70:71], 1, v42")
    a("s_nop 1")
    a("v_cndmask_b32 v40, v40, v41, s[70:71]")
    a("v_mov_b32 v41, v40")
    a("s_nop 1")
    a("v_permlane32_swap_b32 v40, v41")
    a("v_add_f32 v40, v40, v41")
    a("v_mov_b32 v41, v40")
    a("s_nop 1")
    a("v_permlane16_swap_b32 v40, v41")
    a("v_add_f32 v40, v40, v41")
    a("v_cvt_pk_bf16_f32 v40, v40, v40")
    a("v_and_b32 v40, 0xffff0000, v40")
    a(f"v_mul_f32 v40, {hex(f2u(-LOG2E))}, v40")
    a("v_exp_f32 v40, v40")
    a("s_nop 0")
    a("v_add_f32 v40, 1.0, v40")
    a("v_rcp_f32 v40, v40")
    a("s_nop 0")
    a("v_cvt_pk_bf16_f32 v40, v40, v40")
    a("v_and_b32 v40, 0xffff0000, v40")
    a("v_sub_f32 v41, 1.0, v40")
    a("v_cvt_pk_bf16_f32 v41, v41, v41")
    a("v_and_b32 v41, 0xffff0000, v41")
    a("v_lshlrev_b32 v42, 3, v1")
    a("s_lshl_b32 s63, s63, 3")
    a(f"s_add_u32 s63, s63, {WS_G}")
    a("s_mov_b64 exec, 3")
    a(f"buffer_store_dwordx2 v[40:41], v42, s[44:47], s63 offen{ST}")
    a.end(0)
    a("K1_END:")
    a("s_endpgm")
    return a.text(), 208
```

```python
from common import *

L_K, L_V, L_KPE, L_KPO, L_U = 0, 65536, 132096, 140480, 148800
K2_LDS = 163840
UNR = 4
PRIO1, PRIO0 = 6, 7
BARMASK = (1 << 0) | (1 << 2) | (1 << PRIO1) | (1 << PRIO0)
L_FLAG = 162816

def gen_k2(name, ST="", X=()):
    a = Asm()
    a(f".globl {name}\n.p2align 8\n.type {name},@function\n{name}:")
    a("s_cmp_ge_u32 s2, 256")
    a("s_cbranch_scc1 K2_END")
    a.start()
    a(f"s_load_dwordx2 s[4:5], s[0:1], {KA_WS}")
    a("v_lshrrev_b32 v2, 6, v0")
    a("v_and_b32 v1, 63, v0")
    a("s_and_b32 s16, s2, 7")
    a("v_readfirstlane_b32 s12, v2")
    a("s_lshr_b32 s17, s2, 3")
    a("s_lshl_b32 s13, s16, 2")
    a("s_and_b32 s18, s17, 3")
    a("s_add_u32 s13, s13, s18")
    a("s_lshr_b32 s14, s2, 5")
    a("s_lshl_b32 s15, s16, 5")
    a("s_add_u32 s15, s15, s17")
    a(f"s_mul_i32 s19, s13, {HS}")
    a("v_lshlrev_b32 v4, 4, v1")
    a("v_lshrrev_b32 v3, 5, v1")
    a("s_waitcnt lgkmcnt(0)")
    srd(a, 8, 4, 5, WS_END)
    a("s_cmp_ge_u32 s12, 8")
    a("s_cbranch_scc1 K2_AUX")

    QA, QB, KF, V0, V1, P, OA, OB, SA, SB = 8, 12, 16, 20, 24, 28, 36, 52, 68, 84
    AK, AV0, AV1, OMG = 5, 6, 7, 100
    MF = "v_mfma_f32_32x32x16_bf16"
    a("s_and_b32 s23, s12, 3")
    a("s_lshr_b32 s24, s12, 2")
    a("s_lshl_b32 s20, s14, 3")
    a("s_lshl_b32 s21, s23, 1")
    a("s_add_u32 s20, s20, s21")
    a("s_lshl_b32 s21, s20, 10")
    a("s_add_u32 s21, s21, s19")
    a(f"s_add_u32 s21, s21, {OFF_Q}")
    a(f"buffer_load_dwordx4 {vr(QA,4)}, v4, s[8:11], s21 offen")
    a(f"buffer_load_dwordx4 {vr(QB,4)}, v4, s[8:11], s21 offen offset:1024")
    a("s_add_u32 s20, s20, s24")
    a("v_and_b32 v2, 31, v1")
    a("v_lshlrev_b32 v101, 3, v2")
    a("s_lshl_b32 s22, s20, 8")
    a(f"s_add_u32 s22, s22, {WS_G+4}")
    a(f"buffer_load_dword v{OMG}, v101, s[8:11], s22 offen")
    a("s_setprio 2")
    a("v_lshl_add_u32 v101, v3, 4, v2")
    a("v_lshlrev_b32 v101, 4, v101")
    a("v_cmp_eq_u32 s[26:27], 16, v2")
    a("v_cmp_lt_u32 s[28:29], 16, v2")
    a("v_mov_b32 v102, 1024")
    a("v_add_u32 v103, 512, v101")
    a("v_mov_b32 v104, 0x100000")
    a("v_cndmask_b32 v101, v101, v102, s[26:27]")
    a("v_cndmask_b32 v103, v103, v102, s[26:27]")
    a("v_cndmask_b32 v101, v101, v104, s[28:29]")
    a("v_cndmask_b32 v103, v103, v104, s[28:29]")
    a(f"v_add_u32 v101, {L_V}, v101")
    a(f"v_add_u32 v102, {L_V}, v103")
    a("s_lshl_b32 s25, s24, 15")
    a(f"v_add_u32 v{AK}, s25, v4")
    a("s_mul_i32 s25, s24, 33280")
    a(f"v_add_u32 v{AV0}, s25, v101")
    a(f"v_add_u32 v{AV1}, s25, v102")
    for i in range(32):
        a(f"v_mov_b32 v{OA+i}, 0")
    for i in range(4):
        a(f"v_mov_b32 v{V1+i}, 0")
        a(f"v_mov_b32 v{P+4+i}, 0")
    a(f"s_mov_b32 s26, {hex(BARMASK)}")
    a("s_mov_b32 s28, 0")
    a(f"v_mov_b32 v107, {L_FLAG}")
    a(f"ds_write_b64 v107, {vr(OA,2)}")
    a("s_waitcnt vmcnt(0) lgkmcnt(0)")
    a.stamp(1)
    a("s_barrier")
    a.stamp(2)
    a(f"ds_read_b128 {vr(KF,4)}, v{AK}")
    a(f"ds_read_b128 {vr(V0,4)}, v{AV0}")
    a("s_waitcnt lgkmcnt(1)")
    a(f"{MF} {vr(SA,16)}, {vr(KF,4)}, {vr(QA,4)}, 0")
    a("s_nop 11")
    a(".p2align 6")
    a("K2_LOOP:")
    for u in range(UNR):
        if u == 2:
            a("s_bitcmp1_b32 s26, s28")
            a("s_cbranch_scc1 K2_SPECIAL")
            a("K2_BODY:")
        for unit in range(2):
            Sc, Sn, Oc, Op, Qn = (SA, SB, OA, OB, QB) if unit == 0 else (SB, SA, OB, OA, QA)
            e = lambda i: a(f"v_exp_f32 v{Sc+i}, v{Sc+i}")
            c = lambda j: a(f"v_cvt_pk_bf16_f32 v{P+j}, v{Sc+2*j}, v{Sc+2*j+1}")
            e(0); e(1)
            if unit == 1: a("s_waitcnt lgkmcnt(0)")
            a(f"{MF} {vr(Op,16)}, {vr(V1,4)}, {vr(P+4,4)}, {vr(Op,16)}")
            if unit == 0: a(f"ds_read_b128 {vr(V1,4)}, v{AV1} offset:{1040*u}")
            e(2); e(3); c(0); e(4); c(1); e(5)
            a(f"{MF} {vr(Sn,16)}, {vr(KF,4)}, {vr(Qn,4)}, 0")
            if unit == 0: a(f"ds_read_b128 {vr(KF,4)}, v{AK} offset:{1024*(u+1)}")
            e(6); e(7); c(2); e(8); c(3); e(9); e(10)
            if unit == 0: a("s_waitcnt lgkmcnt(2)")
            a(f"{MF} {vr(Oc,16)}, {vr(V0,4)}, {vr(P,4)}, {vr(Oc,16)}")
            if unit == 1: a(f"ds_read_b128 {vr(V0,4)}, v{AV0} offset:{1040*(u+1)}")
            c(4); e(11); e(12); e(13); c(5); e(14); e(15); c(6)
            if u == UNR - 1 and unit == 1:
                a("s_add_u32 s28, s28, 1")
                a(f"v_add_u32 v{AK}, {1024*UNR}, v{AK}")
                a(f"v_add_u32 v{AV0}, {1040*UNR}, v{AV0}")
                a(f"v_add_u32 v{AV1}, {1040*UNR}, v{AV1}")
                a(f"s_cmp_lt_u32 s28, {32//UNR}")
            c(7)
    a("s_cbranch_scc1 K2_LOOP")
    a("s_nop 0")
    a(f"{MF} {vr(OB,16)}, {vr(V1,4)}, {vr(P+4,4)}, {vr(OB,16)}")
    a.stamp(3)
    a("s_mul_i32 s25, s12, 2304")
    a(f"s_add_u32 s25, s25, {L_KPE}")
    a("s_xor_b32 s29, s12, 4")
    a("s_mul_i32 s29, s29, 2304")
    a(f"s_add_u32 s29, s29, {L_KPE}")
    a("v_add_u32 v103, s25, v4")
    a("v_add_u32 v104, s29, v4")
    a("v_lshl_add_u32 v105, v1, 2, s25")
    a("v_lshl_add_u32 v106, v1, 2, s29")
    a("s_waitcnt lgkmcnt(0)")
    a("s_barrier")
    a("s_cmp_eq_u32 s24, 0")
    a("s_cbranch_scc1 K2_KEEPA")
    for i in range(9):
        a(f"v_swap_b32 v{OA+i}, v{OB+i}")
    for i in range(4):
        a(f"v_mov_b32 v{QA+i}, v{QB+i}")
    a("K2_KEEPA:")
    a(f"ds_write_b128 v103, {vr(OB,4)}")
    a(f"ds_write_b128 v103, {vr(OB+4,4)} offset:1024")
    a(f"ds_write_b32 v105, v{OB+8} offset:2048")
    a("s_waitcnt lgkmcnt(0)")
    a("s_barrier")
    a(f"ds_read_b32 v{OB+8}, v106 offset:2048")
    a(f"ds_read_b128 {vr(OB,4)}, v104")
    a(f"ds_read_b128 {vr(OB+4,4)}, v104 offset:1024")
    a(f"s_mov_b32 s30, {hex(f2u(2.0**-80))}")
    a(f"s_mov_b32 s31, {hex(f2u(2.0**80))}")
    a(f"s_mov_b32 s29, {hex(f2u(2.0**120))}")
    a("s_lshl_b32 s21, s20, 5")
    a("s_add_u32 s21, s21, s13")
    a("s_lshl_b32 s21, s21, 10")
    a(f"s_add_u32 s21, s21, {WS_O}")
    a("s_waitcnt lgkmcnt(2)")
    a(f"v_add_f32 v{SA}, v{OA+8}, v{OB+8}")
    a(f"v_add_f32 v{SA+1}, v{OA+8}, v{OB+8}")
    a("s_waitcnt lgkmcnt(0)")
    for i in range(8):
        a(f"v_add_f32 v{OA+i}, v{OA+i}, v{OB+i}")
    a(f"v_permlane32_swap_b32 v{SA}, v{SA+1}")
    a(f"v_add_f32 v{SA+2}, |v{OA}|, |v{OA+1}|")
    for i in range(2, 8):
        a(f"v_add_f32 v{SA+2}, |v{OA+i}|, v{SA+2}")
    a(f"v_cmp_ge_f32 s[32:33], v{SA}, s30")
    a(f"v_cmp_le_f32 s[34:35], v{SA}, s31")
    a(f"v_cmp_le_f32 s[36:37], v{SA+2}, s29")
    a(f"v_rcp_f32 v{SA}, v{SA}")
    a("s_and_b64 s[32:33], s[32:33], s[34:35]")
    a("s_and_b64 s[32:33], s[32:33], s[36:37]")
    a("s_cmp_eq_u64 s[32:33], -1")
    a("s_cbranch_scc0 K2_SLOW")
    a("K2_FIN:")
    a(f"v_mul_f32 v{SA}, v{SA}, v{OMG}")
    for i in range(8):
        a(f"v_mul_f32 v{OA+i}, v{OA+i}, v{SA}")
    for i in range(4):
        a(f"v_cvt_pk_bf16_f32 v{P+i}, v{OA+2*i}, v{OA+2*i+1}")
    a(f"buffer_store_dwordx4 {vr(P,4)}, v4, s[8:11], s21 offen{ST}")
    a.end(1)
    a("K2_SPECIAL:")
    a(f"s_cmp_ge_u32 s28, {PRIO1}")
    a("s_cbranch_scc1 K2_SP1")
    a("K2_POLL:")
    a("ds_read_b32 v106, v107")
    a("s_waitcnt lgkmcnt(0)")
    a("v_readfirstlane_b32 s30, v106")
    a("s_cmp_lt_u32 s30, 4")
    a("s_cbranch_scc1 K2_POLL")
    a("v_add_u32 v107, 4, v107")
    a("s_branch K2_BODY")
    a("K2_SP1:")
    a("s_setprio 1")
    a(f"s_cmp_eq_u32 s28, {PRIO1}")
    a("s_cbranch_scc1 K2_BODY")
    a("s_setprio 0")
    a("s_branch K2_BODY")
    a("K2_SLOW:")
    a(f"v_mov_b32 v{AK}, v4")
    a(f"v_mov_b32 v{SB}, 0xff800000")
    a("s_mov_b32 s28, 0")
    a("K2_MAXL:")
    a(f"ds_read_b128 {vr(KF,4)}, v{AK}")
    a(f"v_add_u32 v{AK}, 1024, v{AK}")
    a("s_add_u32 s28, s28, 1")
    a("s_waitcnt lgkmcnt(0)")
    a(f"{MF} {vr(SA,16)}, {vr(KF,4)}, {vr(QA,4)}, 0")
    a("s_nop 15")
    for i in range(8):
        a(f"v_max3_f32 v{SB}, v{SA+2*i}, v{SA+2*i+1}, v{SB}")
    a("s_cmp_lt_u32 s28, 64")
    a("s_cbranch_scc1 K2_MAXL")
    a(f"v_mov_b32 v{SB+1}, v{SB}")
    a("s_nop 1")
    a(f"v_permlane32_swap_b32 v{SB}, v{SB+1}")
    a(f"v_max_f32 v{SB}, v{SB}, v{SB+1}")
    a(f"v_mov_b32 v{AK}, v4")
    for i in range(16):
        a(f"v_mov_b32 v{OA+i}, 0")
    a("s_mov_b32 s28, 0")
    a("K2_SLOWL:")
    a(f"ds_read_b128 {vr(KF,4)}, v{AK}")
    a(f"ds_read_b128 {vr(V0,4)}, v101")
    a(f"ds_read_b128 {vr(V1,4)}, v102")
    a(f"v_add_u32 v{AK}, 1024, v{AK}")
    a("v_add_u32 v101, 1040, v101")
    a("v_add_u32 v102, 1040, v102")
    a("s_add_u32 s28, s28, 1")
    a("s_waitcnt lgkmcnt(0)")
    a(f"{MF} {vr(SA,16)}, {vr(KF,4)}, {vr(QA,4)}, 0")
    a("s_nop 15")
    for i in range(16):
        a(f"v_sub_f32 v{SA+i}, v{SA+i}, v{SB}")
    for i in range(16):
        a(f"v_exp_f32 v{SA+i}, v{SA+i}")
    a("s_nop 0")
    for j in range(8):
        a(f"v_cvt_pk_bf16_f32 v{P+j}, v{SA+2*j}, v{SA+2*j+1}")
    a("s_nop 1")
    a(f"{MF} {vr(OA,16)}, {vr(V0,4)}, {vr(P,4)}, {vr(OA,16)}")
    a(f"{MF} {vr(OA,16)}, {vr(V1,4)}, {vr(P+4,4)}, {vr(OA,16)}")
    a("s_cmp_lt_u32 s28, 64")
    a("s_cbranch_scc1 K2_SLOWL")
    a("s_nop 15")
    a(f"v_mov_b32 v{SA}, v{OA+8}")
    a(f"v_mov_b32 v{SA+1}, v{OA+8}")
    a("s_nop 1")
    a(f"v_permlane32_swap_b32 v{SA}, v{SA+1}")
    a(f"v_rcp_f32 v{SA}, v{SA}")
    a("s_nop 0")
    a("s_branch K2_FIN")

    a("K2_AUX:")
    a("s_sub_u32 s12, s12, 8")
    a("s_lshl_b32 s20, s12, 10")
    a("s_add_u32 s21, s19, s20")
    def dma(e):
        a(f"s_add_u32 m0, s20, {e*1024}")
        a(f"s_add_u32 s22, s21, {e*1024}")
        a("buffer_load_dwordx4 v4, s[8:11], s22 offen lds")
    a("s_setprio 3")
    def grp(g):
        for e in (4*g, 32+4*g, 64+4*g, 96+4*g): dma(e)
    grp(0)
    grp(1); grp(2)
    a.stamp(1)
    a("s_waitcnt vmcnt(8)")
    a.stamp(2)
    a("s_barrier")
    a(f"v_mov_b32 v12, {L_FLAG}")
    a("v_mov_b32 v13, 1")
    grp(3); grp(4)
    a("s_waitcnt vmcnt(8)")
    a.stamp(3)
    a("s_mov_b64 exec, 1")
    a("ds_add_u32 v12, v13")
    a("s_mov_b64 exec, -1")
    grp(5); grp(6); grp(7)
    a(f"s_mul_i32 s24, s15, {2*KPROW}")
    a(f"s_add_u32 s24, s24, {WS_KP}")
    a("s_mul_i32 s25, s15, 9216")
    a(f"s_add_u32 s25, s25, {WS_UT}")
    a("s_cmp_eq_u32 s12, 3")
    a("s_cbranch_scc1 K2_LASTV")
    a(f"s_mov_b32 s26, {L_KPE}")
    a("s_cmp_eq_u32 s12, 1")
    a(f"s_cselect_b32 s26, {L_KPO}, s26")
    a("s_cselect_b32 s27, 2, 0")
    a("s_add_u32 s24, s24, s27")
    a("s_cmp_eq_u32 s12, 2")
    a(f"s_cselect_b32 s26, {L_U+31*144}, s26")
    a("s_cselect_b32 s24, s25, s24")
    a("s_cselect_b64 s[28:29], -1, 0xff")
    a("s_mov_b32 m0, s26")
    a("s_add_u32 s25, s24, 4096")
    for i in range(4):
        a(f"buffer_load_dwordx4 v4, s[8:11], s24 offen offset:{1024*i} lds")
    a("s_add_u32 m0, s26, 4096")
    a("s_add_u32 s24, s24, 8192")
    for i in range(4):
        a(f"buffer_load_dwordx4 v4, s[8:11], s25 offen offset:{1024*i} lds")
    a("s_add_u32 m0, s26, 8192")
    a("s_mov_b64 exec, s[28:29]")
    a("buffer_load_dwordx4 v4, s[8:11], s24 offen lds")
    a("s_mov_b64 exec, -1")
    a("s_branch K2_B1")
    a("K2_LASTV:")
    a("s_mov_b32 m0, 131072")
    a("s_add_u32 s22, s19, 131072")
    a("buffer_load_dwordx4 v4, s[8:11], s22 offen lds")
    for i in range(4): a(f"v_mov_b32 v{8+i}, 0")
    a(f"v_add_u32 v5, {L_U}, v4")
    for i in range(4):
        a(f"ds_write_b128 v5, v[8:11] offset:{1024*i}")
    a("s_mov_b64 exec, 0x7fffff")
    a("ds_write_b128 v5, v[8:11] offset:4096")
    a("s_mov_b64 exec, -1")
    a("K2_B1:")
    a("s_lshr_b32 s30, s12, 1")
    a("s_and_b32 s31, s12, 1")
    a("v_and_b32 v5, 31, v1")
    a("v_lshrrev_b32 v6, 1, v5")
    a("v_sub_u32 v6, 1031, v6")
    a("v_lshlrev_b32 v6, 2, v6")
    a("v_lshl_add_u32 v6, v3, 4, v6")
    a("v_and_b32 v7, 1, v5")
    a(f"v_mul_u32_u24 v7, {L_KPO-L_KPE}, v7")
    a("v_sub_u32 v6, v6, v7")
    a(f"s_mul_i32 s32, s30, {KPROW}")
    a(f"s_add_u32 s32, s32, {L_KPO}")
    a("s_lshl_b32 s33, s31, 11")
    a(f"s_add_u32 s33, s33, {63*32}")
    a("s_sub_u32 s32, s32, s33")
    a("v_add_u32 v6, s32, v6")
    a("v_mul_u32_u24 v7, 144, v5")
    a("v_lshl_add_u32 v7, v3, 4, v7")
    a("s_lshl_b32 s33, s30, 6")
    a(f"s_add_u32 s33, s33, {L_U}")
    a("v_add_u32 v7, s33, v7")
    D, FA, FB = 16, 32, 64
    for i in range(16): a(f"v_mov_b32 v{D+i}, 0")
    a("s_lshl_b32 s34, s31, 3")
    a("s_add_u32 s34, s34, 8")
    a("s_waitcnt vmcnt(0) lgkmcnt(0)")
    a.stamp(5)
    a("s_mov_b64 exec, 1")
    a("ds_add_u32 v12, v13 offset:4")
    a("s_mov_b64 exec, -1")
    a("K2_CPOLL:")
    a("ds_read_b32 v13, v12 offset:4")
    a("s_waitcnt lgkmcnt(0)")
    a("v_readfirstlane_b32 s36, v13")
    a("s_cmp_lt_u32 s36, 4")
    a("s_cbranch_scc1 K2_CPOLL")
    a.stamp(6)
    if "pre2" in X:
        a("v_lshrrev_b32 v14, 3, v1")
        a("v_lshlrev_b32 v14, 15, v14")
        a("v_and_b32 v15, 7, v1")
        a("v_lshl_add_u32 v14, v15, 7, v14")
        a("s_lshl_b32 s37, s14, 18")
        a("s_lshl_b32 s38, s13, 10")
        a("s_add_u32 s37, s37, s38")
        a(f"s_add_u32 s37, s37, {WS_O}")
        a("buffer_load_dword v13, v14, s[8:11], s37 offen sc1")
        a("v_lshlrev_b32 v14, 15, v1")
        a("s_lshr_b32 s37, s15, 4")
        a("s_lshl_b32 s37, s37, 11")
        a("s_and_b32 s38, s15, 15")
        a("s_lshl_b32 s38, s38, 5")
        a("s_add_u32 s37, s37, s38")
        a("s_lshl_b32 s38, s12, 9")
        a("s_add_u32 s37, s37, s38")
        a(f"s_add_u32 s37, s37, {WS_GA}")
        a("buffer_load_dword v13, v14, s[8:11], s37 offen sc1")
    if "prewo" in X:
        a(f"s_load_dwordx2 s[40:41], s[0:1], {KA_WO}")
        a("v_lshlrev_b32 v14, 7, v1")
        a("s_lshr_b32 s37, s2, 3")
        a("s_lshl_b32 s37, s37, 2")
        a("s_add_u32 s37, s37, s12")
        a("s_and_b32 s37, s37, 63")
        a("s_lshl_b32 s37, s37, 13")
        a("v_add_u32 v14, s37, v14")
        a("s_waitcnt lgkmcnt(0)")
        a("global_load_dword v13, v14, s[40:41]")
    def rd(slot, step):
        a(f"ds_read2_b32 {vr(FA+4*slot,2)}, v6 offset0:{8*step} offset1:{8*step+1}")
        a(f"ds_read2_b32 {vr(FA+4*slot+2,2)}, v6 offset0:{8*step+2} offset1:{8*step+3}")
        a(f"ds_read_b128 {vr(FB+4*slot,4)}, v7 offset:{144*(step>>1)+32*(step&1)}")
    if "noconv" in X: a("s_mov_b32 s34, 1")
    DEPTH = 4 if "cd4" in X else 2 if "cd2" in X else 1
    for s in range(DEPTH): rd(s, s)
    a("K2_CONV:")
    for s in range(8):
        a(f"s_waitcnt lgkmcnt({3*(DEPTH-1)})")
        a(f"v_mfma_f32_32x32x16_bf16 {vr(D,16)}, {vr(FA+4*(s%DEPTH),4)}, {vr(FB+4*(s%DEPTH),4)}, {vr(D,16)}")
        rd(s % DEPTH, s + DEPTH)
    a("v_add_u32 v6, 256, v6")
    a(f"v_add_u32 v7, {144*4}, v7")
    a("s_sub_u32 s34, s34, 1")
    a("s_cmp_lg_u32 s34, 0")
    a("s_cbranch_scc1 K2_CONV")
    a.stamp(7)
    a("s_lshl_b32 s35, s15, 1")
    a("s_add_u32 s35, s35, s30")
    a("s_lshr_b32 s36, s35, 5")
    a("s_lshl_b32 s36, s36, 11")
    a("s_and_b32 s35, s35, 31")
    a("s_lshl_b32 s35, s35, 4")
    a("s_add_u32 s35, s35, s36")
    a("s_lshl_b32 s36, s31, 20")
    a("s_add_u32 s35, s35, s36")
    a(f"s_add_u32 s35, s35, {WS_GA}")
    a("v_lshlrev_b32 v5, 15, v5")
    a("v_lshl_add_u32 v5, v3, 9, v5")
    a("s_waitcnt lgkmcnt(0)")
    for i in range(8):
        a(f"v_cvt_pk_bf16_f32 v{8+i}, v{D+2*i}, v{D+2*i+1}")
    a(f"buffer_store_dwordx4 v[8:11], v5, s[8:11], s35 offen{ST}")
    a(f"buffer_store_dwordx4 v[12:15], v5, s[8:11], s35 offen offset:1024{ST}")
    a.end(1)
    a("K2_END:")
    a("s_endpgm")
    return a.text(), 108
```

```python
from common import *
K3_LDS = 131072

def gen_k3(name, X=()):
    a = Asm()
    a(f".globl {name}\n.p2align 8\n.type {name},@function\n{name}:")
    a("s_cmp_ge_u32 s2, 256")
    a("s_cbranch_scc1 K3_END")
    a.start()
    a(f"s_load_dwordx2 s[4:5], s[0:1], {KA_WS}")
    a(f"s_load_dwordx2 s[6:7], s[0:1], {KA_WO}")
    a(f"s_load_dwordx2 s[20:21], s[0:1], {KA_OUT}")
    a("v_lshrrev_b32 v2, 6, v0")
    a("v_and_b32 v1, 63, v0")
    a("s_and_b32 s26, s2, 7")
    a("v_readfirstlane_b32 s22, v2")
    a("s_lshr_b32 s27, s2, 3")
    a("s_and_b32 s23, s26, 3")
    a("s_lshl_b32 s23, s23, 3")
    a("s_and_b32 s28, s27, 7")
    a("s_add_u32 s23, s23, s28")
    a("s_lshr_b32 s24, s26, 2")
    a("s_lshl_b32 s24, s24, 2")
    a("s_lshr_b32 s28, s27, 3")
    a("s_add_u32 s24, s24, s28")
    a("s_add_u32 s25, s23, s24")
    a("v_lshlrev_b32 v4, 4, v1")
    a("v_lshrrev_b32 v3, 5, v1")
    a("s_waitcnt lgkmcnt(0)")
    srd(a, 8, 4, 5, WS_END)
    a("s_cmp_ge_u32 s22, 4")
    a("s_cbranch_scc1 K3_LOADER")
    srd(a, 16, 20, 21, 2048 * 512 * 2)
    D, GA, DG, FA, FB = 16, 32, 40, 48, 64
    a("s_and_b32 s29, s22, 1")
    a("s_lshr_b32 s30, s22, 1")
    a("s_lshl_b32 s31, s23, 1")
    a("s_add_u32 s31, s31, s29")
    a("s_lshl_b32 s32, s24, 1")
    a("s_add_u32 s32, s32, s30")
    a("s_lshl_b32 s33, s31, 4")
    a("s_add_u32 s33, s33, s32")
    a("s_lshl_b32 s33, s33, 11")
    a(f"s_add_u32 s33, s33, {WS_GA}")
    a("v_and_b32 v5, 31, v1")
    a("v_lshlrev_b32 v6, 3, v5")
    a("s_lshl_b32 s34, s31, 8")
    a(f"s_add_u32 s34, s34, {WS_G}")
    a("buffer_load_dword v7, v6, s[8:11], s34 offen")
    a(f"buffer_load_dwordx4 {vr(GA,4)}, v4, s[8:11], s33 offen")
    a(f"buffer_load_dwordx4 {vr(GA+4,4)}, v4, s[8:11], s33 offen offset:1024")
    a("s_lshl_b32 s56, s30, 15")
    a("s_lshl_b32 s57, s29, 12")
    a("s_add_u32 s56, s56, s57")
    a("s_lshl_b32 s57, s23, 16")
    a("s_add_u32 s57, s57, s56")
    a(f"s_add_u32 s57, s57, {WS_O}")
    for c in range(4):
        a(f"s_add_u32 s58, s25, {c}")
        a("s_and_b32 s58, s58, 3")
        a("s_lshl_b32 s58, s58, 13")
        a(f"s_add_u32 m0, s56, {8192*c}")
        a("s_add_u32 s58, s58, s57")
        for q in range(4):
            a(f"buffer_load_dwordx4 v4, s[8:11], s58 offen offset:{1024*q} lds")
    a("s_lshl_b32 s35, s29, 15")
    a("v_add_u32 v8, s35, v4")
    a("v_bfe_u32 v10, v1, 2, 2")
    a("v_lshl_add_u32 v9, v3, 2, v10")
    a("v_lshlrev_b32 v9, 7, v9")
    a("v_lshrrev_b32 v10, 1, v10")
    a("v_xor_b32 v10, s30, v10")
    a("v_lshl_add_u32 v9, v10, 6, v9")
    a("v_bfe_u32 v10, v1, 4, 1")
    a("v_lshl_add_u32 v9, v10, 5, v9")
    a("v_and_b32 v10, 3, v1")
    a("v_lshl_add_u32 v9, v10, 3, v9")
    a("v_add_u32 v9, 65536, v9")
    a("v_lshrrev_b32 v10, 3, v5")
    a("v_bfe_u32 v11, v5, 1, 1")
    a("v_lshl_add_u32 v10, v10, 1, v11")
    a("v_bfe_u32 v11, v5, 2, 1")
    a("v_xor_b32 v11, v11, v3")
    a("v_lshl_add_u32 v10, v11, 3, v10")
    a("v_and_b32 v11, 1, v5")
    a("v_xor_b32 v11, 1, v11")
    a("v_lshlrev_b32 v11, 4, v11")
    for k in range(8):
        a(f"v_cmp_eq_u32 s[{40+2*k}:{41+2*k}], {k}, v10")
    a("v_lshlrev_b32 v12, 10, v5")
    a("v_lshl_add_u32 v12, v3, 4, v12")
    a("s_lshl_b32 s36, s31, 15")
    a("s_lshl_b32 s37, s32, 6")
    a("s_add_u32 s36, s36, s37")
    a("s_waitcnt vmcnt(18)")
    a("v_lshrrev_b32 v7, v11, v7")
    for k in range(8):
        a(f"v_cndmask_b32 v{DG+k}, 0, v7, s[{40+2*k}:{41+2*k}]")
    a("s_waitcnt vmcnt(16)")
    a("s_nop 0")
    a(f"v_mfma_f32_32x32x16_bf16 {vr(D,16)}, {vr(GA,4)}, {vr(DG,4)}, 0")
    a(f"v_mfma_f32_32x32x16_bf16 {vr(D,16)}, {vr(GA+4,4)}, {vr(DG+4,4)}, {vr(D,16)}")
    a.stamp(1)
    def rd(slot, hd):
        a(f"ds_read_b64_tr_b16 {vr(FA+4*slot,2)}, v9 offset:{2048*hd}")
        a(f"ds_read_b64_tr_b16 {vr(FA+4*slot+2,2)}, v9 offset:{2048*hd+1024}")
        a(f"ds_read_b128 {vr(FB+4*slot,4)}, v8 offset:{1024*hd}")
    for c in range(4):
        a(f"s_waitcnt vmcnt({12-4*c})")
        a("s_barrier")
        if c: a.stamp(2 + c)
        for s in range(4): rd(s, 8*c + s)
        for s in range(8):
            a(f"s_waitcnt lgkmcnt({9 if s <= 4 else 3*(7-s)})")
            a(f"v_mfma_f32_32x32x16_bf16 {vr(D,16)}, {vr(FA+4*(s&3),4)}, {vr(FB+4*(s&3),4)}, {vr(D,16)}")
            if s < 4: rd(s, 8*c + s + 4)
    a("s_nop 3")
    a.stamp(2)
    a("s_nop 7")
    for i in range(8):
        a(f"v_cvt_pk_bf16_f32 v{GA+i}, v{D+2*i}, v{D+2*i+1}")
    a("s_nop 1")
    a(f"v_permlane32_swap_b32 v{GA}, v{GA+2}")
    a(f"v_permlane32_swap_b32 v{GA+1}, v{GA+3}")
    a(f"v_permlane32_swap_b32 v{GA+4}, v{GA+6}")
    a(f"v_permlane32_swap_b32 v{GA+5}, v{GA+7}")
    a(f"buffer_store_dwordx4 {vr(GA,4)}, v12, s[16:19], s36 offen")
    a(f"buffer_store_dwordx4 {vr(GA+4,4)}, v12, s[16:19], s36 offen offset:32")
    a.end(2)
    a("K3_LOADER:")
    srd(a, 12, 6, 7, 512 * 512 * 2)
    a("s_sub_u32 s22, s22, 4")
    a("v_lshrrev_b32 v5, 3, v1")
    a("v_bfe_u32 v6, v1, 4, 1")
    a("v_lshlrev_b32 v6, 2, v6")
    a("v_and_b32 v7, 7, v1")
    a("v_xor_b32 v6, v6, v7")
    a("v_lshlrev_b32 v6, 4, v6")
    a("v_lshl_add_u32 v8, v5, 10, v6")
    for q in range(1, 4):
        a(f"v_add_u32 v{8+q}, {7168*q}, v8")
    a("s_lshl_b32 s31, s22, 12")
    a("s_add_u32 s31, s31, 65536")
    a("s_lshl_b32 s32, s22, 15")
    a("s_lshl_b32 s33, s24, 7")
    a("s_add_u32 s32, s32, s33")
    for c in range(4):
        a(f"s_add_u32 s34, s25, {c}")
        a("s_and_b32 s34, s34, 3")
        a("s_lshl_b32 s34, s34, 17")
        a(f"s_add_u32 m0, s31, {16384*c}")
        a("s_add_u32 s34, s34, s32")
        for q in range(4):
            a(f"buffer_load_dwordx4 v{8+q}, s[12:15], s34 offen offset:{1024*q} lds")
    NP = 0
    if "pre3" in X:
        srd(a, 16, 20, 21, 2048 * 512 * 2)
        a("v_lshlrev_b32 v12, 10, v1")
        a("s_lshl_b32 s36, s23, 16")
        a("s_add_u32 s36, s36, s33")
        a("s_cmp_lg_u32 s22, 0")
        a("s_cbranch_scc1 K3_NOPRE")
        a("buffer_load_dword v13, v12, s[16:19], s36 offen sc1")
        a("K3_NOPRE:")
    a.stamp(1)
    for c in range(4):
        a(f"s_waitcnt vmcnt({12-4*c})")
        a.stamp(2 + c)
        a("s_barrier")
    a.end(2)
    a("K3_END:")
    a("s_endpgm")
    return a.text(), 80
```

```python
import sys
sys.path.insert(0, "gen")
from common import *
import k1, k2, k3
def build(ST="", X=()):
    hdr = open("gated_mix__ssm_conv_s4__softmax_full_mha__prompt.s.ref").read().split("; Override launch")[0]
    t1, v1 = k1.gen_k1("qkv_kernel", ST, X)
    t2, v2 = k2.gen_k2("attn_kernel", ST, X)
    t3, v3 = k3.gen_k3("proj_kernel", X)
    L = [f"; @launch kernel=qkv_kernel grid=(256,1,1) block=(512,1,1) lds={k1.K1_LDS}",
         f"; @launch kernel=attn_kernel grid=(256,1,1) block=(768,1,1) lds={k2.K2_LDS}",
         f"; @launch kernel=proj_kernel grid=(256,1,1) block=(512,1,1) lds={k3.K3_LDS}"]
    s = hdr + "\n".join(L) + "\n"
    s += '.amdgcn_target "amdgcn-amd-amdhsa--gfx950"\n.text\n'
    s += t1 + t2 + t3
    s += '.section .rodata,"a"\n.p2align 6\n' + kd("qkv_kernel", v1) + ".p2align 6\n" + kd("attn_kernel", v2) + ".p2align 6\n" + kd("proj_kernel", v3)
    return s
if __name__ == "__main__":
    out = sys.argv[1] if len(sys.argv) > 1 else "gated_mix__ssm_conv_s4__softmax_full_mha__prompt.s"
    ST = sys.argv[2] if len(sys.argv) > 2 else ""
    if len(sys.argv) > 3 and sys.argv[3] == "diag": DIAG[0] = True
    open(out, "w").write(build(" " + ST if ST else "", tuple(sys.argv[4:])))
```

```python
from common import *
import math, struct
LOG2E = 1.4426950408889634
LOG2E_HI = f2u(LOG2E)
_hi = struct.unpack("<f", struct.pack("<I", LOG2E_HI))[0]
LOG2E_LO = f2u(LOG2E - _hi)
LN2 = f2u(math.log(2.0))
QSCALE = f2u(0.25 * LOG2E)
MF = "v_mfma_f32_32x32x16_bf16"

L_X, L_W = 0, 65536
NSLOT = 6
L_OX = 0
L_Q = 65536
L_CX = 73728
L_KP, KPC = 18688, 8384
L_U = 139264
L_XCH = 153600
L_GW = 161792
L_SY = 162816
KA_LDS = 163840
S_UA = 0
S_WB, S_UDONE, S_QRDY, S_NONCE, S_CV, S_OX = 16, 20, 24, 28, 32, 64
VSY, VONE, VTMP, VT4 = 164, 165, 166, 160
UNR = 4
PRIO1, PRIO0, WBIT, NEARLY = 6, 7, 4, 3
LDS_SPIN = 1 << 20
FAST_TRIES = 64
SLOW_TRIES = 20000

def interleave(chains):
    out = []
    chains = [list(c) for c in chains]
    while any(chains):
        for c in chains:
            if c: out.append(c.pop(0))
    return out

def cmul(d, x, w):
    return [f"v_mul_f32 v{d}, v{x}, v{w}", f"v_mul_f32 v{d+1}, v{x}, v{w+1}",
            f"v_fma_f32 v{d}, -v{x+1}, v{w+1}, v{d}", f"v_fmac_f32 v{d+1}, v{x+1}, v{w}"]
def cmul_pk(d, x, w):
    return [f"v_pk_mul_f32 {vr(d,2)}, {vr(x,2)}, {vr(w,2)} op_sel:[0,0] op_sel_hi:[0,1]",
            f"v_pk_fma_f32 {vr(d,2)}, {vr(x,2)}, {vr(w,2)}, {vr(d,2)} op_sel:[1,1,0] op_sel_hi:[1,0,1] neg_lo:[0,1,0]"]

def gen_ka(name, X=()):
    a = Asm()
    cnt = [0]
    def lbl(p):
        cnt[0] += 1
        return f"KA_{p}{cnt[0]}"
    def sig(off, addr=VSY, val=VONE):
        a("s_mov_b64 exec, 1")
        a(f"ds_add_u32 v{addr}, v{val} offset:{off}")
        a("s_mov_b64 exec, -1")
    def wait(off, n, addr=VSY, out=76, nap=0):
        l, e = lbl("W"), lbl("E")
        a(f"s_mov_b32 s77, {LDS_SPIN}")
        if nap:
            a(f"s_branch {l}F")
        a(f"{l}:")
        if nap:
            a(f"s_sleep {nap}")
            a(f"{l}F:")
        a(f"ds_read_b32 v{VTMP}, v{addr} offset:{off}")
        a("s_sub_u32 s77, s77, 1")
        a("s_cbranch_scc1 " + e)
        a("s_waitcnt lgkmcnt(0)")
        a(f"v_readfirstlane_b32 s{out}, v{VTMP}")
        a(f"s_cmp_lt_u32 s{out}, {n}")
        a("s_cbranch_scc1 " + l)
        a(f"{e}:")
    def wait4(off, addr=VSY, nap=0):
        l, e = lbl("W"), lbl("E")
        a(f"s_mov_b32 s77, {LDS_SPIN}")
        if nap:
            a(f"s_branch {l}F")
        a(f"{l}:")
        if nap:
            a(f"s_sleep {nap}")
            a(f"{l}F:")
        a(f"ds_read_b128 {vr(VT4,4)}, v{addr} offset:{off}")
        a("s_sub_u32 s77, s77, 1")
        a("s_cbranch_scc1 " + e)
        a("s_waitcnt lgkmcnt(0)")
        a(f"v_or3_b32 v{VT4}, v{VT4}, v{VT4+1}, v{VT4+2}")
        a(f"v_or_b32 v{VT4}, v{VT4}, v{VT4+3}")
        a(f"v_cmp_ne_u32 vcc, 0, v{VT4}")
        a("s_cbranch_vccnz " + l)
        a(f"{e}:")
    def gettag():
        l, ok = lbl("TL"), lbl("TK")
        a("s_waitcnt lgkmcnt(0)")
        a("s_cmp_lg_u32 s52, 0")
        a(f"s_cbranch_scc1 {ok}")
        a("v_mov_b32 v155, 0")
        a(f"s_mov_b32 s69, {SLOW_TRIES}")
        a(f"{l}:")
        a("global_load_dword v158, v155, s[32:33] sc1")
        a("s_waitcnt vmcnt(0)")
        a("v_readfirstlane_b32 s52, v158")
        a("s_cmp_lg_u32 s52, 0")
        a(f"s_cbranch_scc1 {ok}")
        a("s_sub_u32 s69, s69, 1")
        a(f"s_cbranch_scc0 {l}")
        a("s_mov_b32 s52, 1")
        a(f"{ok}:")
    def dsig(m0expr):
        a(m0expr)
        a("s_mov_b64 exec, 1")
        a("buffer_load_dword v154, s[44:47], 0 offen lds")
        a("s_mov_b64 exec, -1")
    def mktag(fl_off):
        a("s_getreg_b32 s66, hwreg(HW_REG_XCC_ID)")
        a("s_and_b32 s66, s66, 15")
        a("s_add_u32 s66, s66, 1")
        a("s_lshl_b32 s66, s66, 1")
        a("s_xor_b32 s66, s66, s52")
        a(f"s_add_u32 s67, s51, {G_FL + fl_off}")
    def publish():
        a("v_mov_b32 v155, s66")
        a("s_mov_b64 exec, 1")
        a("buffer_store_dword v155, v156, s[44:47], s67 offen")
        a("s_mov_b64 exec, -1")
    def collect(wide, own):
        lf, ls, done = lbl("GF"), lbl("GS"), lbl("GD")
        def ld(r, off):
            if wide: a(f"buffer_load_dwordx2 v[{r}:{r+1}], v157, s[44:47], s67 offen offset:{off} sc1")
            else: a(f"buffer_load_dword v{r}, v157, s[44:47], s67 offen offset:{off} sc1")
        a(f"s_mov_b32 s69, {FAST_TRIES}")
        a(f"{lf}:")
        ld(158, 0)
        a("s_waitcnt vmcnt(0)")
        a("v_cmp_ne_u32 vcc, s66, v158")
        if wide:
            a("v_cmp_ne_u32 s[70:71], s66, v159")
            a("s_or_b64 vcc, vcc, s[70:71]")
            a(f"s_cbranch_scc0 {done}")
        else:
            a(f"s_cbranch_vccz {done}")
        a("s_sub_u32 s69, s69, 1")
        a(f"s_cbranch_scc0 {lf}")
        a("buffer_wbl2 sc1")
        a("s_waitcnt vmcnt(0)")
        a("v_mov_b32 v155, s52")
        if own is not None:
            a(own)
            a(f"s_cbranch_scc0 {ls}N")
        a("s_mov_b64 exec, 1")
        a("buffer_store_dword v155, v156, s[44:47], s67 offen offset:1024 sc1")
        a("s_mov_b64 exec, -1")
        a(f"{ls}N:")
        a(f"s_mov_b32 s69, {SLOW_TRIES}")
        a(f"{ls}:")
        ld(158, 0)
        ld(160, 1024)
        a("s_waitcnt vmcnt(0)")
        a("v_cmp_ne_u32 vcc, s66, v158")
        a("v_cmp_ne_u32 s[70:71], s52, v160")
        a("s_and_b64 vcc, vcc, s[70:71]")
        if wide:
            a("v_cmp_ne_u32 s[70:71], s66, v159")
            a("v_cmp_ne_u32 s[72:73], s52, v161")
            a("s_and_b64 s[70:71], s[70:71], s[72:73]")
            a("s_or_b64 vcc, vcc, s[70:71]")
        a(f"s_cbranch_scc0 {done}A")
        a("s_sleep 8")
        a("s_sub_u32 s69, s69, 1")
        a(f"s_cbranch_scc0 {ls}")
        a(f"{done}A:")
        a("buffer_inv sc1")
        a("s_waitcnt vmcnt(0)")
        a(f"{done}:")

    a(f".globl {name}\n.p2align 8\n.type {name},@function\n{name}:")
    a("s_cmp_ge_u32 s2, 256")
    a("s_cbranch_scc1 KA_END")
    a.start()
    a("s_load_dwordx16 s[4:19], s[0:1], 0")
    a("s_load_dwordx16 s[20:35], s[0:1], 64")
    a("v_lshrrev_b32 v2, 6, v0")
    a("v_and_b32 v1, 63, v0")
    a(f"v_mov_b32 v{VSY}, {L_SY}")
    a("v_readfirstlane_b32 s48, v2")
    a(f"v_lshl_add_u32 v5, v1, 2, v{VSY}")
    a("v_cmp_gt_u32 vcc, 4, v1")
    a("v_mov_b32 v6, 0")
    a("v_addc_co_u32 v6, vcc, 0, v6, vcc")
    a("ds_write_b32 v5, v6")
    a("s_and_b32 s49, s2, 7")
    a("s_lshr_b32 s50, s2, 3")
    a(f"s_mul_i32 s51, s49, {GRS}")
    a("s_add_u32 s53, s49, s50")
    a("v_lshlrev_b32 v4, 4, v1")
    a("v_lshrrev_b32 v3, 5, v1")
    a(f"v_mov_b32 v{VONE}, 1")
    a("s_cmp_lt_u32 s48, 4")
    if "cpf" in X:
        a("s_cbranch_scc0 KA_NOPF")
        a("s_getpc_b64 s[56:57]")
        a("KA_PCB:")
        a("v_lshlrev_b32 v8, 7, v0")
        a("v_min_u32 v8, KB_END-KA_PCB, v8")
        a("v_mov_b32 v9, s57")
        a("v_add_co_u32 v8, vcc, s56, v8")
        a("v_addc_co_u32 v9, vcc, 0, v9, vcc")
        a("s_cmp_lt_u32 s48, (KB_END-KA_PCB+8191)/8192")
        a("s_cbranch_scc0 KA_CONS")
        a("global_load_dword v24, v[8:9], off")
        a("s_branch KA_CONS")
        a("KA_NOPF:")
    else:
        a("s_cbranch_scc1 KA_CONS")
    a("v_lshlrev_b32 v156, 2, s50")
    a("s_cmp_lt_u32 s48, 8")
    a("s_cbranch_scc1 KA_LOADER")
    a("s_sub_u32 s54, s48, 8")
    a("s_lshl_b32 s55, s49, 5")
    a("s_add_u32 s55, s55, s50")
    a("s_lshl_b32 s59, s55, 9")
    a("s_lshl_b32 s60, s54, 7")
    a("s_add_u32 s59, s59, s60")
    a("v_lshl_add_u32 v2, v1, 1, s59")
    a("s_lshr_b32 s59, s59, 8")
    a("s_lshl_b32 s59, s59, 1")
    a("v_mov_b32 v5, s59")
    for i in range(8):
        a(f"v_mov_b32 v{8+i}, 0")
    a("s_setprio 3")
    a("s_waitcnt lgkmcnt(0)")
    a("global_load_short_d16_hi v14, v5, s[18:19]")
    for i in range(6):
        a(f"global_load_short_d16_hi v{8+i}, v2, s[{6+2*i}:{7+2*i}]")
    a("global_load_short_d16_hi v15, v5, s[20:21]")
    if "kglow" in X: a("s_setprio 0")
    a("s_branch KA_AUX")
    a("KA_LOADER:")

    a("s_sub_u32 s54, s48, 4")
    a("v_lshrrev_b32 v5, 3, v1")
    a("v_and_b32 v6, 7, v1")
    a("v_lshrrev_b32 v7, 4, v1")
    a("v_xor_b32 v8, v6, v7")
    a("v_lshlrev_b32 v8, 4, v8")
    a("v_lshl_add_u32 v16, v5, 10, v8")
    a("s_and_b32 s73, s54, 1")
    a("s_lshl_b32 s58, s73, 6")
    a("s_lshl_b32 s55, s50, 16")
    a("s_lshl_b32 s60, s54, 13")
    a("s_add_u32 s60, s60, s55")
    a("v_xor_b32 v18, s58, v16")
    a("v_add_u32 v18, s60, v18")
    a("v_add_u32 v19, 32768, v18")
    a("v_and_b32 v7, 1, v7")
    a("v_lshlrev_b32 v7, 2, v7")
    a("v_xor_b32 v8, v6, v7")
    a("v_mul_u32_u24 v9, 3072, v5")
    a("v_lshl_add_u32 v9, v8, 4, v9")
    a("s_lshl_b32 s56, s49, 7")
    a("s_mul_i32 s62, s54, 3")
    for i in range(3):
        a(f"s_add_u32 s58, s62, {i}")
        a("s_and_b32 s59, s58, 3")
        a("s_mul_i32 s59, s59, 24576")
        a("s_lshr_b32 s58, s58, 2")
        a("s_lshl_b32 s58, s58, 10")
        a("s_add_u32 s58, s58, s59")
        a("s_add_u32 s58, s58, s56")
        if i: a(f"s_sub_u32 s58, s58, {1024*i}")
        a(f"v_add_u32 v{20+i}, s58, v9")
    a("s_lshl_b32 s61, s54, 10")
    a("s_lshl_b32 s62, s62, 10")
    a("s_and_b32 s64, s53, 7")
    a("s_lshl_b32 s65, s64, 7")
    a(f"s_mul_i32 s64, s64, {64*3072}")
    a("s_mov_b32 s38, %d\ns_mov_b32 s39, 0x20000\ns_mov_b32 s42, %d\ns_mov_b32 s43, 0x20000" % (2048*512*2, 512*1536*2))
    a("s_mov_b32 m0, s61")
    a("s_waitcnt lgkmcnt(0)")
    a("s_mov_b32 s36, s4\ns_and_b32 s37, s5, 0xffff\ns_mov_b32 s40, s24\ns_and_b32 s41, s25, 0xffff")
    a.stamp(1)
    ops = []
    def vm(t, tag):
        a(t); ops.append(tag)
    def need(tag, extra=""):
        last = max(i for i, t in enumerate(ops) if t == tag)
        a(f"s_waitcnt vmcnt({len(ops)-1-last}){extra}")
    def sub(j):
        hi = j + 1
        if hi < 16:
            a(f"s_add_u32 m0, s61, {4096*hi}")
            if hi % 2 == 0:
                a("s_add_u32 s65, s65, 128")
                a("s_and_b32 s65, s65, 1023")
            else:
                a("s_nop 0")
            vm(f"buffer_load_dwordx4 v{18+(hi&1)}, s[36:39], s65 offen lds", j)
        a(f"s_add_u32 m0, s62, {L_W+12288*(j%NSLOT)}")
        a(f"s_add_u32 s58, s64, {32*3072}")
        for i in range(3):
            vm(f"buffer_load_dwordx4 v{20+i}, s[40:43], s64 offen offset:{1024*i} lds", j)
        a(f"s_cmp_lt_u32 s58, {512*3072}")
        a("s_cselect_b32 s64, s58, 0")
    vm("buffer_load_dwordx4 v18, s[36:39], s65 offen lds", 0)
    sub(0)
    srd(a, 44, 34, 35, W2_END)
    a("v_xor_b32 v17, 64, v16")
    a("v_add_u32 v17, 7168, v17")
    a("s_sub_u32 s74, 0, s50")
    a("s_and_b32 s74, s74, 7")
    a("s_lshl_b32 s74, s74, 13")
    a("s_lshl_b32 s58, s54, 11")
    a("s_add_u32 s74, s74, s58")
    a("s_mov_b32 m0, s74")
    a("s_lshl_b32 s58, s54, 14")
    a("s_add_u32 s58, s58, s55")
    a("s_add_u32 s58, s58, s56")
    vm("buffer_load_dwordx4 v16, s[36:39], s58 offen lds", "xs")
    vm("buffer_load_dwordx4 v17, s[36:39], s58 offen offset:1024 lds", "xs")
    sub(1); sub(2)
    a("v_lshlrev_b32 v5, 7, v1")
    a(f"s_add_u32 s67, s51, {G_FL}")
    a(f"s_mov_b32 m0, {L_GW}")
    a("s_mov_b64 exec, 0xf1")
    vm("buffer_load_dword v26, v5, s[44:47], s67 offen sc1", "fl")
    a("s_mov_b64 exec, -1")
    vm("global_load_lds_dwordx4 v4, s[28:29]", "gw")
    sub(3)
    a("v_bfe_u32 v5, v1, 2, 2")
    a("v_lshrrev_b32 v6, 4, v1")
    a("v_bfe_u32 v7, v1, 1, 1")
    a("v_lshl_add_u32 v6, v6, 1, v7")
    a("v_lshrrev_b32 v7, 1, v5")
    a("v_xor_b32 v6, v6, v7")
    a("v_lshlrev_b32 v6, 4, v6")
    a("v_lshl_add_u32 v6, v5, 7, v6")
    a("v_and_b32 v7, 1, v1")
    a("v_lshl_add_u32 v6, v7, 3, v6")
    a("v_add_u32 v28, s74, v6")
    for i in range(1, 4):
        a(f"v_xor_b32 v{28+i}, {32*i}, v28")
    need("xs")
    a("s_setprio 3")
    for i in range(4):
        a(f"ds_read_b64_tr_b16 {vr(32+2*i,2)}, v{28+i} offset:{512*i}")
    a("v_lshrrev_b32 v5, 1, v1")
    a("v_lshlrev_b32 v5, 13, v5")
    a("v_lshl_add_u32 v27, v7, 6, v5")
    a("s_lshl_b32 s75, s50, 8")
    a("s_lshr_b32 s59, s54, 1")
    a("s_lshl_b32 s59, s59, 7")
    a("s_add_u32 s75, s75, s59")
    a("s_add_u32 s75, s75, s51")
    a(f"s_add_u32 s75, s75, {G_UT}")
    a("s_lshl_b32 s58, s73, 5")
    a("s_add_u32 s75, s75, s58")
    a("s_waitcnt lgkmcnt(0)")
    vm("buffer_store_dwordx4 v[32:35], v27, s[44:47], s75 offen", 3)
    vm("buffer_store_dwordx4 v[36:39], v27, s[44:47], s75 offen offset:16", 3)
    if "lst" in X: a.stamp(3)
    PRE = 6 if "p6" in X else 5 if "p5" in X else 4
    for j in range(4, PRE): sub(j)
    a("v_lshrrev_b32 v10, 3, v1")
    a("s_lshl_b32 s58, s49, 3")
    a("v_add_u32 v10, s58, v10")
    a("v_and_b32 v11, 7, v1")
    a("v_bfe_u32 v12, v10, 1, 3")
    a("v_xor_b32 v12, v12, v11")
    a("v_lshlrev_b32 v12, 4, v12")
    a("v_lshl_add_u32 v12, v10, 7, v12")
    a("s_and_b32 s58, s53, 7")
    a("s_lshl_b32 s58, s58, 7")
    a("v_lshl_add_u32 v11, v11, 4, s58")
    a("v_bfe_u32 v5, v1, 4, 1")
    a("v_lshlrev_b32 v5, 16, v5")
    a("v_and_b32 v6, 15, v1")
    a("v_lshl_add_u32 v13, v6, 7, v5")
    a(f"s_mul_i32 s71, s54, {G_HEAD}")
    a("s_lshl_b32 s58, s50, 11")
    a("s_add_u32 s71, s71, s58")
    a("s_add_u32 s71, s71, s51")
    a("s_and_b32 s58, s50, 15")
    a(f"s_cmp_lt_u32 s58, {NEARLY}")
    a("s_cselect_b32 s58, 0, 0x7ff00000")
    a("v_add_u32 v13, s58, v13")
    for c in range(8):
        a(f"v_add_u32 v{40+c}, {128*c}, v11")
        a(f"v_and_b32 v{40+c}, 1023, v{40+c}")
        a(f"v_add_u32 v{40+c}, {L_GW}, v{40+c}")
    for j in range(12):
        need(j)
        if "lst" in X and j in (0, 4, 8): a.stamp(4 + j // 4)
        a("s_barrier")
        if j + 4 >= PRE: sub(j + 4)
    if "tq" in X:
        a("s_mov_b32 exec_hi, 0")
        vm("buffer_load_dword v26, v13, s[44:47], s71 offen sc1", "tq")
        a("s_mov_b64 exec, -1")
    need(12)
    a("s_barrier")
    a("s_cmp_eq_u32 s54, 3")
    a("s_cbranch_scc1 KA_LG")
    for j in (13, 14, 15):
        need(j)
        a("s_barrier")
    a.stamp(2)
    a("s_cmp_eq_u32 s54, 2")
    a("s_cbranch_scc1 KA_LZ")

    a("KA_ATT:")
    QA, QB, P, OA, OB, SA, SB = 8, 12, 28, 36, 52, 68, 84
    KBUF = [100, 112, 124, 136]
    a("s_and_b32 s54, s48, 3")
    a("s_lshr_b32 s55, s48, 2")
    a(f"s_mul_i32 s57, s54, {G_HEAD}")
    a("s_add_u32 s57, s57, s51")
    a("s_lshl_b32 s58, s55, 15")
    a("s_add_u32 s58, s58, s57")
    a("s_add_u32 s59, s58, 65536")
    a("s_lshl_b32 s56, s50, 1")
    a("s_add_u32 s56, s56, s55")
    a("s_lshl_b32 s56, s56, 5")
    a("s_lshl_b32 s60, s49, 2")
    a("s_add_u32 s56, s56, s60")
    a("s_add_u32 s56, s56, s54")
    a("s_lshl_b32 s56, s56, 10")
    a(f"s_add_u32 s56, s56, {W2_O}")
    a("s_mov_b32 s62, 0xffff")
    a("s_mov_b32 s63, 0xffff")
    a("v_and_b32 v2, 31, v1")
    a("v_and_b32 v6, 15, v1")
    a("v_lshl_add_u32 v6, v3, 4, v6")
    a("v_lshlrev_b32 v6, 4, v6")
    a("v_cmp_eq_u32 vcc, 16, v2")
    a("v_mov_b32 v7, 0x3f803f80")
    a("v_lshlrev_b32 v157, 3, v1")
    a("v_cndmask_b32 v7, 0, v7, vcc")
    a("s_lshl_b32 s60, s54, 11")
    a(f"s_add_u32 s60, s60, {L_Q}")
    a("v_add_u32 v5, s60, v4")
    for B in KBUF:
        for i in range(8): a(f"v_mov_b32 v{B+4+i}, v7")
    for i in range(32): a(f"v_mov_b32 v{OA+i}, 0")
    for i in range(4): a(f"v_mov_b32 v{P+4+i}, 0")
    a(f"s_mov_b32 s64, {hex((1<<PRIO1)|(1<<PRIO0))}")
    a("s_mov_b32 s65, 0")
    a("s_cmp_eq_u32 s55, 0")
    a("s_cbranch_scc1 KA_AT1")
    wait(S_NONCE, 1, out=52)
    mktag(512)
    a("KA_AT1:")
    wait(S_QRDY, 4)
    a(f"ds_read_b128 {vr(QA,4)}, v5")
    a(f"ds_read_b128 {vr(QB,4)}, v5 offset:1024")
    if "lst" not in X: a.stamp(4)
    collect(True, "s_cmp_eq_u32 s55, 0")
    def kvload(B, off):
        a(f"buffer_load_dwordx4 {vr(B,4)}, v4, s[44:47], s58 offen offset:{off}")
        a("s_mov_b64 exec, s[62:63]")
        a(f"buffer_load_dwordx4 {vr(B+4,4)}, v6, s[44:47], s59 offen offset:{off}")
        a(f"buffer_load_dwordx4 {vr(B+8,4)}, v6, s[44:47], s59 offen offset:{off+512}")
        a("s_mov_b64 exec, -1")
    for t in range(3): kvload(KBUF[t], 1024 * t)
    a("s_add_u32 s58, s58, 3072")
    a("s_add_u32 s59, s59, 3072")
    a("s_setprio 2")
    if "lst" not in X: a.stamp(7)
    a("s_waitcnt vmcnt(6) lgkmcnt(0)")
    a.stamp(7 if "lst" in X else 5)
    a(f"{MF} {vr(SA,16)}, {vr(KBUF[0],4)}, {vr(QA,4)}, 0")
    a("s_nop 11")
    a(".p2align 6")
    a("KA_LOOP:")
    if "ast" in X:
        for k, b in enumerate((1, 2, 3, 5)):
            a(f"s_cmp_lg_u32 s65, {b}\ns_cbranch_scc1 KA_Q{k}")
            a.stamp(1 + k)
            a(f"KA_Q{k}:")
    for u in range(4):
        B, Bn, Bp = KBUF[u], KBUF[(u+1) % 4], KBUF[(u+3) % 4]
        if u == 2:
            a("s_bitcmp1_b32 s64, s65")
            a("s_cbranch_scc1 KA_SPECIAL")
            a("KA_BODY:")
        for unit in range(2):
            Sc, Sn, Oc, Op, Qn = (SA, SB, OA, OB, QB) if unit == 0 else (SB, SA, OB, OA, QA)
            e = lambda i: a(f"v_exp_f32 v{Sc+i}, v{Sc+i}")
            c = lambda j: a(f"v_cvt_pk_bf16_f32 v{P+j}, v{Sc+2*j}, v{Sc+2*j+1}")
            e(0); e(1)
            a(f"{MF} {vr(Op,16)}, {vr((Bp if unit == 0 else B)+8,4)}, {vr(P+4,4)}, {vr(Op,16)}")
            if unit == 0: kvload(Bp, 1024 * u)
            e(2); e(3); c(0); e(4); c(1); e(5)
            if unit == 1: a("s_waitcnt vmcnt(6)")
            a(f"{MF} {vr(Sn,16)}, {vr(B if unit == 0 else Bn,4)}, {vr(Qn,4)}, 0")
            e(6); e(7); c(2); e(8); c(3); e(9); e(10)
            a(f"{MF} {vr(Oc,16)}, {vr(B+4,4)}, {vr(P,4)}, {vr(Oc,16)}")
            c(4); e(11); e(12); e(13); c(5); e(14); e(15); c(6)
            if u == 3 and unit == 1:
                a("s_add_u32 s58, s58, 4096")
                a("s_add_u32 s59, s59, 4096")
                a("s_add_u32 s65, s65, 1")
                a("s_cmp_lt_u32 s65, 8")
            c(7)
    a("s_cbranch_scc1 KA_LOOP")
    a("s_nop 0")
    a(f"{MF} {vr(OB,16)}, {vr(KBUF[3]+8,4)}, {vr(P+4,4)}, {vr(OB,16)}")
    if "lst" not in X: a.stamp(6)
    a("s_mul_i32 s59, s48, 2304")
    a(f"s_add_u32 s59, s59, {L_OX}")
    a("s_xor_b32 s60, s48, 4")
    a("s_mul_i32 s60, s60, 2304")
    a(f"s_add_u32 s60, s60, {L_OX}")
    a("v_add_u32 v16, s59, v4")
    a("v_add_u32 v17, s60, v4")
    a("v_lshl_add_u32 v18, v1, 2, s59")
    a("v_lshl_add_u32 v19, v1, 2, s60")
    a("s_lshl_b32 s59, s54, 2")
    a(f"v_add_u32 v20, s59, v{VSY}")
    a("s_cmp_eq_u32 s55, 0")
    a("s_cbranch_scc1 KA_KEEPA")
    for i in range(9):
        a(f"v_swap_b32 v{OA+i}, v{OB+i}")
    for i in range(4):
        a(f"v_mov_b32 v{QA+i}, v{QB+i}")
    a("KA_KEEPA:")
    a(f"ds_write_b128 v16, {vr(OB,4)}")
    a(f"ds_write_b128 v16, {vr(OB+4,4)} offset:1024")
    a(f"ds_write_b32 v18, v{OB+8} offset:2048")
    sig(S_OX, 20)
    wait(S_OX, 2, 20, nap=1)
    a(f"ds_read_b32 v{OB+8}, v19 offset:2048")
    a(f"ds_read_b128 {vr(OB,4)}, v17")
    a(f"ds_read_b128 {vr(OB+4,4)}, v17 offset:1024")
    a(f"s_mov_b32 s60, {hex(f2u(2.0**-80))}")
    a(f"s_mov_b32 s61, {hex(f2u(2.0**80))}")
    a(f"s_mov_b32 s59, {hex(f2u(2.0**120))}")
    a("s_waitcnt lgkmcnt(2)")
    a(f"v_add_f32 v{SA}, v{OA+8}, v{OB+8}")
    a(f"v_add_f32 v{SA+1}, v{OA+8}, v{OB+8}")
    a("s_waitcnt lgkmcnt(0)")
    for i in range(8):
        a(f"v_add_f32 v{OA+i}, v{OA+i}, v{OB+i}")
    a(f"v_permlane32_swap_b32 v{SA}, v{SA+1}")
    a.c("safety check of the zero stand-in for the row max: l inside [2^-80, 2^80] and O finite")
    a(f"v_add_f32 v{SA+2}, |v{OA}|, |v{OA+1}|")
    for i in range(2, 8):
        a(f"v_add_f32 v{SA+2}, |v{OA+i}|, v{SA+2}")
    a(f"v_cmp_ge_f32 s[66:67], v{SA}, s60")
    a(f"v_cmp_le_f32 s[68:69], v{SA}, s61")
    a(f"v_cmp_le_f32 s[70:71], v{SA+2}, s59")
    a(f"v_rcp_f32 v{SA}, v{SA}")
    a("s_and_b64 s[66:67], s[66:67], s[68:69]")
    a("s_and_b64 s[66:67], s[66:67], s[70:71]")
    a("s_cmp_eq_u64 s[66:67], -1")
    a("s_cbranch_scc0 KA_SLOW")
    a("KA_FIN:")
    for i in range(8):
        a(f"v_mul_f32 v{OA+i}, v{OA+i}, v{SA}")
    for i in range(4):
        a(f"v_cvt_pk_bf16_f32 v{P+i}, v{OA+2*i}, v{OA+2*i+1}")
    a(f"buffer_store_dwordx4 {vr(P,4)}, v4, s[44:47], s56 offen")
    a.end(0)
    a("KA_SPECIAL:")
    if "wb" in X: sig(S_WB)
    a("s_setprio 1")
    a(f"s_cmp_eq_u32 s65, {PRIO1}")
    a("s_cbranch_scc1 KA_BODY")
    a("s_setprio 0")
    a("s_branch KA_BODY")
    a.c("fallback: true row max over all keys, then recompute this query tile")
    a("KA_SLOW:")
    B = KBUF[0]
    a("s_waitcnt vmcnt(0)")
    a(f"v_mov_b32 v{SB}, 0xff800000")
    a("s_mov_b32 s58, s57")
    a("s_mov_b32 s65, 0")
    a("KA_MAXL:")
    a(f"buffer_load_dwordx4 {vr(B,4)}, v4, s[44:47], s58 offen")
    a("s_add_u32 s58, s58, 1024")
    a("s_add_u32 s65, s65, 1")
    a("s_waitcnt vmcnt(0)")
    a(f"{MF} {vr(SA,16)}, {vr(B,4)}, {vr(QA,4)}, 0")
    a("s_nop 15")
    for i in range(8):
        a(f"v_max3_f32 v{SB}, v{SA+2*i}, v{SA+2*i+1}, v{SB}")
    a("s_cmp_lt_u32 s65, 64")
    a("s_cbranch_scc1 KA_MAXL")
    a(f"v_mov_b32 v{SB+1}, v{SB}")
    a("s_nop 1")
    a(f"v_permlane32_swap_b32 v{SB}, v{SB+1}")
    a(f"v_max_f32 v{SB}, v{SB}, v{SB+1}")
    for i in range(16):
        a(f"v_mov_b32 v{OA+i}, 0")
    a("s_mov_b32 s58, s57")
    a("s_add_u32 s59, s57, 65536")
    a("s_mov_b32 s65, 0")
    a("KA_SLOWL:")
    kvload(B, 0)
    a("s_add_u32 s58, s58, 1024")
    a("s_add_u32 s59, s59, 1024")
    a("s_add_u32 s65, s65, 1")
    a("s_waitcnt vmcnt(0)")
    a(f"{MF} {vr(SA,16)}, {vr(B,4)}, {vr(QA,4)}, 0")
    a("s_nop 15")
    for i in range(16):
        a(f"v_sub_f32 v{SA+i}, v{SA+i}, v{SB}")
    for i in range(16):
        a(f"v_exp_f32 v{SA+i}, v{SA+i}")
    a("s_nop 0")
    for j in range(8):
        a(f"v_cvt_pk_bf16_f32 v{P+j}, v{SA+2*j}, v{SA+2*j+1}")
    a("s_nop 1")
    a(f"{MF} {vr(OA,16)}, {vr(B+4,4)}, {vr(P,4)}, {vr(OA,16)}")
    a(f"{MF} {vr(OA,16)}, {vr(B+8,4)}, {vr(P+4,4)}, {vr(OA,16)}")
    a("s_nop 7")
    a("s_cmp_lt_u32 s65, 64")
    a("s_cbranch_scc1 KA_SLOWL")
    a("s_nop 15")
    a(f"v_mov_b32 v{SA}, v{OA+8}")
    a(f"v_mov_b32 v{SA+1}, v{OA+8}")
    a("s_nop 1")
    a(f"v_permlane32_swap_b32 v{SA}, v{SA+1}")
    a(f"v_rcp_f32 v{SA}, v{SA}")
    a("s_nop 0")
    a("s_branch KA_FIN")

    a("KA_LZ:")
    a("v_mov_b32 v8, 0")
    a("v_lshlrev_b32 v5, 2, v1")
    a(f"v_add_u32 v5, {L_KP+4092}, v5")
    a("s_mov_b64 exec, 0x7fff")
    for c in range(4):
        for ch in range(2): a(f"ds_write_b32 v5, v8 offset:{c*KPC+ch*KPROW+(4 if c < 2 else 0)}")
    a("s_mov_b64 exec, -1")
    sig(S_UDONE)
    a("s_branch KA_ATT")
    a("KA_LG:")
    def grd(c):
        a(f"ds_read_b128 {vr(64+4*c,4)}, v12 offset:{8192*c}")
        a(f"ds_read_b128 {vr(96+4*c,4)}, v{40+c}")
    grd(0); grd(1); grd(2)
    need(13)
    a("s_barrier")
    grd(3); grd(4); grd(5); grd(6)
    need(14)
    a("s_barrier")
    a("s_waitcnt lgkmcnt(6)")
    grd(7)
    need(15, " lgkmcnt(0)")
    a("s_barrier")
    a.stamp(2)
    a("v_mov_b32 v9, 0")
    a("s_lshl_b32 s58, s50, 9")
    a(f"s_add_u32 s58, s58, {W2_G}")
    a("v_lshlrev_b32 v5, 3, v10")
    for i in range(32): a(f"v_dot2_f32_bf16 v9, v{64+i}, v{96+i}, v9")
    a("s_nop 3")
    a("v_add_f32_dpp v9, v9, v9 quad_perm:[1,0,3,2] row_mask:0xf bank_mask:0xf")
    a("s_nop 1")
    a("v_add_f32_dpp v9, v9, v9 quad_perm:[2,3,0,1] row_mask:0xf bank_mask:0xf")
    a("s_nop 1")
    a("v_add_f32_dpp v9, v9, v9 row_half_mirror row_mask:0xf bank_mask:0xf")
    a("v_cvt_pk_bf16_f32 v9, v9, v9")
    a("v_and_b32 v9, 0xffff0000, v9")
    a(f"v_mul_f32 v9, {hex(f2u(-LOG2E))}, v9")
    a("v_exp_f32 v9, v9")
    a("s_nop 0")
    a("v_add_f32 v9, 1.0, v9")
    a("v_rcp_f32 v9, v9")
    a("s_nop 0")
    a("v_cvt_pk_bf16_f32 v10, v9, v9")
    a("v_and_b32 v10, 0xffff0000, v10")
    a("v_sub_f32 v11, 1.0, v10")
    a("v_cvt_pk_bf16_f32 v11, v11, v11")
    a("v_and_b32 v11, 0xffff0000, v11")
    a("s_mov_b32 exec_lo, 0x01010101")
    a("s_mov_b32 exec_hi, 0x01010101")
    a("buffer_store_dwordx2 v[10:11], v5, s[44:47], s58 offen")
    a("s_mov_b64 exec, -1")
    a("s_branch KA_ATT")

    a("KA_CONS:")
    a("s_setprio 3")
    ACC, FB = 112, 32
    XA, WAD, FLA = 16, 20, 21
    a("s_and_b32 s54, s48, 1")
    a("s_lshr_b32 s55, s48, 1")
    a("v_and_b32 v5, 31, v1")
    a("s_lshl_b32 s56, s54, 12")
    a("v_lshl_add_u32 v6, v5, 7, s56")
    a("v_bfe_u32 v7, v5, 1, 3")
    a("v_xor_b32 v7, v7, v3")
    a(f"v_lshl_add_u32 v{XA}, v7, 4, v6")
    for ks in range(1, 4):
        a(f"v_xor_b32 v{XA+ks}, {ks<<5}, v{XA}")
    a("v_bfe_u32 v7, v1, 2, 2")
    a("v_lshl_add_u32 v6, v3, 3, v7")
    a("v_lshlrev_b32 v6, 7, v6")
    a("v_lshrrev_b32 v7, 1, v7")
    a("v_xor_b32 v7, s55, v7")
    a("v_lshl_add_u32 v6, v7, 6, v6")
    a("v_bfe_u32 v7, v1, 4, 1")
    a("v_lshl_add_u32 v6, v7, 5, v6")
    a("v_and_b32 v7, 3, v1")
    a("v_lshl_add_u32 v6, v7, 3, v6")
    a(f"v_add_u32 v{WAD}, {L_W}, v6")
    for i in range(48):
        a(f"v_mov_b32 v{ACC+i}, 0")
    a("s_lshl_b32 s58, s48, 10")
    a(f"s_add_u32 s58, s58, {L_U}")
    a("v_add_u32 v5, s58, v4")
    a(f"ds_write_b128 v5, {vr(ACC,4)}")
    a(f"v_add_u32 v5, {L_U+4096}, v4")
    a("s_mov_b64 exec, 0x7fffff")
    a(f"ds_write_b128 v5, {vr(ACC,4)}")
    a("s_mov_b64 exec, -1")
    a("s_waitcnt lgkmcnt(0)")
    srd(a, 44, 34, 35, W2_END)
    WB = 22
    a(f"v_mov_b32 v{WB}, v{WAD}")
    def reads(step):
        F = FB + 16 * (step & 3)
        xo = (step >> 2) * 8192
        wo = (step & 1) * 2048
        r = [f"ds_read_b128 {vr(F,4)}, v{XA+(step&3)} offset:{xo}"]
        for ct in range(3):
            for hh in range(2):
                r.append(f"ds_read_b64_tr_b16 {vr(F+4+4*ct+2*hh,2)}, v{WAD} offset:{wo+ct*4096+hh*512}")
        return r
    def mfmas(step):
        F = FB + 16 * (step & 3)
        r = []
        for ct in range(3):
            x, w = vr(F, 4), vr(F + 4 + 4 * ct, 4)
            A, B = (w, x) if ct < 2 else (x, w)
            r.append(f"{MF} {vr(ACC+16*ct,16)}, {A}, {B}, {vr(ACC+16*ct,16)}")
        return r
    a("s_mov_b32 s58, 0")
    a("s_mov_b32 s57, 3")
    a("s_barrier")
    a.stamp(1)
    for t in reads(0) + reads(1): a(t)
    a("KA_GEMM:")
    for st in range(8):
        m, r = mfmas(st), reads(st + 2)
        if st % 2 == 0:
            a("s_add_u32 s58, s58, 12288")
            a(f"s_cmp_eq_u32 s58, {NSLOT*12288}")
            a("s_cselect_b32 s58, 0, s58")
            a(f"v_add_u32 v{WAD}, s58, v{WB}")
            if st == 6: a("s_cmp_eq_u32 s57, 0")
        a("s_waitcnt lgkmcnt(7)")
        a(m[0])
        if st == 6: a("s_cbranch_scc1 KA_GEND")
        if st % 2 == 0: a("s_barrier")
        [a(t) for t in r[:3]]; a(m[1]); [a(t) for t in r[3:6]]; a(m[2]); a(r[6])
    for k in range(4):
        a(f"v_add_u32 v{XA+k}, 16384, v{XA+k}")
    a("s_sub_u32 s57, s57, 1")
    a("s_branch KA_GEMM")
    a("KA_GEND:")
    m = mfmas(6); a(m[1]); a(m[2])
    a("s_waitcnt lgkmcnt(0)")
    for t in mfmas(7): a(t)
    a.stamp(2)
    a("s_lshl_b32 s58, s50, 1")
    a("s_add_u32 s58, s58, s54")
    a("s_lshl_b32 s58, s58, 10")
    a(f"s_mul_i32 s59, s55, {2*G_HEAD}")
    a("s_add_u32 s58, s58, s59")
    a("s_add_u32 s58, s58, s51")
    a(f"s_add_u32 s59, s58, {G_HEAD}")
    a("s_add_u32 s62, s58, 65536")
    a(f"s_mov_b32 s63, {hex(QSCALE)}")
    a("v_bfe_u32 v5, v1, 4, 1")
    a(f"v_mul_u32_u24 v5, {G_HEAD}, v5")
    a("v_and_b32 v6, 15, v1")
    a("v_lshl_add_u32 v6, v3, 4, v6")
    a("v_lshl_add_u32 v6, v6, 4, v5")
    for i in range(8):
        a(f"v_cvt_pk_bf16_f32 v{16+i}, v{ACC+16+2*i}, v{ACC+16+2*i+1}")
    a("buffer_store_dwordx4 v[16:19], v4, s[44:47], s58 offen")
    a("buffer_store_dwordx4 v[20:23], v4, s[44:47], s59 offen")
    for i in range(8):
        a(f"v_cvt_pk_bf16_f32 v{96+i}, v{ACC+32+2*i}, v{ACC+32+2*i+1}")
    a("buffer_store_dwordx4 v[96:99], v6, s[44:47], s62 offen")
    a("buffer_store_dwordx4 v[100:103], v6, s[44:47], s62 offen offset:512")
    wait(S_NONCE, 1, out=52)
    for i in range(16):
        a(f"v_mul_f32 v{ACC+i}, s63, v{ACC+i}")
    a("s_lshl_b32 s60, s55, 12")
    a("s_lshl_b32 s61, s54, 10")
    a("s_add_u32 s60, s60, s61")
    a(f"s_add_u32 s60, s60, {L_Q}")
    a("v_add_u32 v5, s60, v4")
    for i in range(8):
        a(f"v_cvt_pk_bf16_f32 v{32+i}, v{ACC+2*i}, v{ACC+2*i+1}")
    a("ds_write_b128 v5, v[32:35]")
    a("ds_write_b128 v5, v[36:39] offset:2048")
    sig(S_QRDY)
    mktag(512)
    a("s_lshl_b32 s60, s48, 7")
    a("s_lshl_b32 s61, s50, 2")
    a("s_add_u32 s60, s60, s61")
    a("v_mov_b32 v156, s60")
    a("s_waitcnt vmcnt(0)")
    publish()
    a.stamp(3)
    a("s_branch KA_ATT")

    import ka_aux
    ka_aux.gen_aux(a, sig, wait, wait4, lbl, X, gettag, mktag, publish, collect, dsig)
    a("KA_END:")
    a("s_endpgm")
    return a.text(), 168
```

```python
from common import *
from ka import *

def gen_aux(a, sig, wait, wait4, lbl, X, gettag, mktag, publish, collect, dsig):
    import ka
    cmul = ka.cmul if "nopk" in X else ka.cmul_pk
    a("KA_AUX:")
    a("s_and_b32 s61, s54, 1")
    a("s_lshr_b32 s62, s54, 1")
    a("s_mov_b32 s52, 0")
    srd(a, 44, 34, 35, W2_END)
    a("s_lshl_b32 s63, s2, 2")
    a("s_add_u32 s63, s63, s54")
    a("s_cmp_lg_u32 s63, 3")
    a("s_cbranch_scc1 KA_NOPUB")
    a("s_memrealtime s[64:65]")
    a("s_waitcnt lgkmcnt(0)")
    a("s_or_b32 s64, s64, 1")
    a("v_mov_b32 v160, 0")
    a("v_mov_b32 v161, s64")
    a("s_mov_b64 exec, 1")
    a("global_store_dword v160, v161, s[32:33] sc1")
    a("s_mov_b64 exec, -1")
    a("KA_NOPUB:")
    a("v_and_b32 v7, 31, v1")
    a("s_lshl_b32 s63, s54, 11")
    a(f"s_add_u32 s63, s63, {L_XCH}")
    a("v_add_u32 v16, s63, v4")
    a(f"s_mul_i32 s63, s62, {KPROW}")
    a(f"s_add_u32 s63, s63, {L_KP}")
    a("v_lshl_add_u32 v19, v7, 4, s63")
    a("s_lshl_b32 s64, s62, 2")
    a(f"v_add_u32 v167, s64, v{VSY}")
    a("v_lshrrev_b32 v32, 2, v7")
    a("v_lshlrev_b32 v32, 3, v32")
    a("v_sub_u32 v33, 4120, v32")
    a("v_lshl_add_u32 v33, v3, 4, v33")
    a("v_not_b32 v32, v7")
    a("v_and_b32 v32, 3, v32")
    a(f"v_mul_u32_u24 v32, {KPC}, v32")
    a("s_lshl_b32 s64, s61, 6")
    a("s_add_u32 s64, s64, s63")
    a(f"s_sub_u32 s64, s64, {127*32}")
    a("v_add3_u32 v38, v32, v33, s64")
    a("v_mul_u32_u24 v39, 144, v7")
    a("v_lshl_add_u32 v39, v3, 4, v39")
    a("s_lshl_b32 s64, s62, 6")
    a("s_mul_i32 s65, s61, 144")
    a("s_add_u32 s64, s64, s65")
    a(f"s_add_u32 s64, s64, {L_U}")
    a("v_add_u32 v39, s64, v39")
    a("s_lshl_b32 s64, s54, 6")
    for k, r in enumerate((2, 5, 6)):
        a("v_add_u32 v32, s64, v1")
        if k: a(f"v_add_u32 v32, {256*k}, v32")
        a("v_mul_u32_u24 v33, 7282, v32")
        a("v_lshrrev_b32 v33, 16, v33")
        a("v_mul_u32_u24 v34, 9, v33")
        a("v_sub_u32 v34, v32, v34")
        a("v_min_u32 v34, 7, v34")
        a("v_lshlrev_b32 v34, 4, v34")
        a(f"v_lshl_add_u32 v{r}, v33, 7, v34")
    a("s_lshl_b32 s74, s50, 13")
    a("s_add_u32 s74, s74, s51")
    a(f"s_add_u32 s74, s74, {G_UT}")
    a("s_lshl_b32 s75, s54, 10")
    a(f"s_add_u32 s75, s75, {L_U+31*144}")
    a("s_lshl_b32 s60, s54, 2")
    a(f"s_add_u32 s60, s60, {L_SY+S_UA}")
    a("s_lshl_b32 s58, s61, 12")
    a("s_sub_u32 s58, 2048, s58")
    a(f"s_mov_b32 s63, {hex(LOG2E_HI)}")
    a("s_waitcnt vmcnt(7)")
    a("v_mul_f32 v17, s63, v14")
    a("v_fma_f32 v18, v14, s63, -v17")
    a(f"v_fmac_f32 v18, {hex(LOG2E_LO)}, v14")
    a("v_exp_f32 v17, v17")
    a(f"v_mul_f32 v18, {hex(LN2)}, v18")
    a("v_fma_f32 v17, v17, v18, v17")
    a("v_cvt_pk_bf16_f32 v17, v17, v17")
    a("v_and_b32 v17, 0xffff0000, v17")
    a("s_waitcnt vmcnt(0)")
    a.stamp(1)
    for r in (8, 9, 10, 11):
        a(f"v_mul_f32 v{r}, v17, v{r}")
    a("v_mul_f32 v8, s63, v8")
    a("v_mul_f32 v9, 0.15915494, v9")
    W1, W8, W256, W2, W4, W16 = 20, 22, 24, 26, 28, 30
    tmp = 32
    for k, mult in enumerate((1.0, 8.0, 256.0)):
        t = tmp + 2 * k
        a(f"v_mul_f32 v{t}, {hex(f2u(mult))}, v8")
        a(f"v_mul_f32 v{t+1}, {hex(f2u(mult))}, v9")
    for k in range(3):
        t = tmp + 2 * k
        a(f"v_exp_f32 v{t}, v{t}")
        a(f"v_fract_f32 v{t+1}, v{t+1}")
    for k, wr in enumerate((W1, W8, W256)):
        t = tmp + 2 * k
        a(f"v_cos_f32 v{wr}, v{t+1}")
        a(f"v_sin_f32 v{wr+1}, v{t+1}")
    U = {}
    nxt = [40]
    def newU(av):
        U[av] = nxt[0]; nxt[0] += 2
        return U[av]
    for l in cmul(newU(0), 12, 10): a(l)
    for k, wr in enumerate((W1, W8, W256)):
        t = tmp + 2 * k
        a(f"v_mul_f32 v{wr}, v{t}, v{wr}")
        a(f"v_mul_f32 v{wr+1}, v{t}, v{wr+1}")
    for l in interleave([cmul(W2, W1, W1), cmul(W16, W8, W8)]): a(l)
    for l in cmul(W4, W2, W2): a(l)
    WA, WB, WR, WI, UR, UI = 96, 100, 112, 128, 144, 96
    wops = [f"v_cvt_pk_bf16_f32 v{WR+15}, v{W8}, 1.0", f"v_cvt_pk_bf16_f32 v{WI+15}, v{W8+1}, 0"]
    ca, cb = W16, None
    wops += cmul(WB, W8, W16); cb = WB
    for k in range(1, 16):
        pk = [f"v_cvt_pk_bf16_f32 v{WR+15-k}, v{cb}, v{ca}", f"v_cvt_pk_bf16_f32 v{WI+15-k}, v{cb+1}, v{ca+1}"]
        if k < 15:
            na, nb = WA + 2 * (k & 1), WB + 2 * (k & 1)
            wops += interleave([cmul(na, ca, W16), cmul(nb, cb, W16), pk])
            ca, cb = na, nb
        else:
            wops += pk
    u1 = []; prev = 0
    for av in (256, 512, 768, 1024, 1280, 1536, 1792):
        u1 += cmul(newU(av), U[prev], W256); prev = av
    for av in (1024, 1280, 1536, 1792):
        u1 += cmul(newU(av + 8), U[av], W8)
    for av in (516, 520):
        u1 += cmul(newU(av), U[av - 4], W4)
    u2 = []
    for av in range(1, 9):
        u2 += cmul(newU(av), U[av - 1], W1)
    for av in (258, 260, 262, 264):
        u2 += cmul(newU(av), U[av - 2], W2)
    for av in (772, 776):
        u2 += cmul(newU(av), U[av - 4], W4)
    assert nxt[0] <= 96
    for l in interleave([wops, interleave([u1, u2])]): a(l)
    rows = [0,1,2,3,4,5,6,7, 256,258,260,4,260,262,264,8, 512,516,520,520,768,772,776,776,
            1024,1032,1280,1288,1536,1544,1792,1800]
    for p in range(16):
        x, y = U[rows[2*p]], U[rows[2*p+1]]
        a(f"v_cvt_pk_bf16_f32 v{UR+p}, v{x}, v{y}")
        a(f"v_cvt_pk_bf16_f32 v{UI+p}, -v{x+1}, -v{y+1}")
    TD, ES, Z, KD = 40, 72, 88, 20
    a("v_and_b32 v36, 1, v1")
    a("v_lshlrev_b32 v36, 4, v36")
    a("v_mov_b32 v37, 0x3f80")
    a("v_lshlrev_b32 v36, v36, v37")
    a("v_bfe_u32 v37, v1, 1, 2")
    for d in range(4):
        a(f"v_cmp_eq_u32 s[{64+2*d}:{65+2*d}], {d}, v37")
    a("s_nop 0")
    for d in range(4):
        a(f"v_cndmask_b32 v{Z+d}, 0, v36, s[{64+2*d}:{65+2*d}]")
    nb = [0]
    def bar(n=1):
        for _ in range(n):
            a("s_barrier"); nb[0] += 1
    first = True
    NPRE = 4 if "b4" in X else 3 if "b3" in X else 2
    a("s_load_dword s52, s[32:33], 0")
    blk = 0
    for st in range(2):
        for q in range(4):
            a(f"s_mov_b32 s{64+st}, {hex(0xff << (8*q))}")
            a(f"s_mov_b32 s{65-st}, 0")
            for d in range(4):
                a(f"v_cndmask_b32 v{ES+4*q+d}, 0, v{Z+d}, s[64:65]")
        for (XU, XW) in ((UR, WR), (UI, WI)):
            if blk == NPRE: a.stamp(2)
            if blk >= NPRE: bar()
            a("s_nop 1")
            for q in range(4):
                for t, Xm in enumerate((XU, XW)):
                    c = "0" if q == 0 else vr(TD+16*t, 16)
                    a(f"{MF} {vr(TD+16*t,16)}, {vr(Xm+4*q,4)}, {vr(ES+4*q,4)}, {c}")
            if blk >= NPRE: bar()
            a("s_nop 11")
            for t in range(2):
                for i in range(8):
                    a(f"v_cvt_pk_bf16_f32 v{TD+16*t+i}, v{TD+16*t+2*i}, v{TD+16*t+2*i+1}")
            a("s_nop 1")
            for i in range(2):
                c = "0" if first else vr(KD, 16); first = False
                a(f"{MF} {vr(KD,16)}, {vr(TD+4*i,4)}, {vr(TD+16+4*i,4)}, {c}")
            blk += 1
    if NPRE == 4: a.stamp(2)
    a("v_lshlrev_b32 v157, 2, v7")
    a("v_lshlrev_b32 v156, 2, s50")
    a("v_mov_b32 v154, 0x7ffffff0")
    bar(4 - nb[0])
    gettag()
    mktag(0)
    a("s_cmp_lg_u32 s54, 0")
    a("s_cbranch_scc1 KA_NPB")
    publish()
    a("v_mov_b32 v8, s52")
    a(f"ds_write_b32 v{VSY}, v8 offset:{S_NONCE}")
    a("KA_NPB:")
    bar()
    a("s_cmp_eq_u32 s61, 0")
    a("s_cbranch_scc1 KA_X0")
    for i in range(8): a(f"v_swap_b32 v{KD+i}, v{KD+8+i}")
    a("KA_X0:")
    a(f"ds_write_b128 v16, {vr(KD+8,4)}")
    a(f"ds_write_b128 v16, {vr(KD+12,4)} offset:1024")
    a("v_add_u32 v17, s58, v16")
    D0, D1, FA, FB, FC = 112, 128, 48, 64, 80
    for k in range(4):
        bar()
        for i in range(8): a(f"v_mov_b32 v{D0+8*k+i}, 0")
    a("s_waitcnt lgkmcnt(0)")
    bar()
    a("buffer_load_dword v158, v157, s[44:47], s67 offen sc1")
    a(f"ds_read_b128 {vr(KD+8,4)}, v17")
    a(f"ds_read_b128 {vr(KD+12,4)}, v17 offset:1024")
    bar()
    a("s_waitcnt lgkmcnt(0)")
    for i in range(8):
        a(f"v_add_f32 v{KD+i}, v{KD+i}, v{KD+8+i}")
    def uload():
        l = lbl("UL")
        a("s_mov_b32 m0, s75")
        a("s_cmp_lg_u32 s54, 0")
        a("buffer_load_dwordx4 v2, s[44:47], s74 offen lds")
        a(f"s_cbranch_scc1 {l}")
        a("s_add_u32 m0, s75, 8192")
        a("s_nop 0")
        a("buffer_load_dwordx4 v6, s[44:47], s74 offen lds")
        a(f"{l}:")
        a("s_add_u32 m0, s75, 4096")
        a("s_nop 0")
        a("buffer_load_dwordx4 v5, s[44:47], s74 offen lds")
        dsig("s_mov_b32 m0, s60")
    def tail(work):
        l = lbl("UE")
        n = (len(work) + 3) // 4
        parts = [work[i*n:(i+1)*n] for i in range(4)]
        a("s_barrier")
        for t in parts[0]: a(t)
        a("s_barrier")
        a("s_waitcnt vmcnt(0)")
        a("v_cmp_ne_u32 vcc, s66, v158")
        a("s_mov_b32 s59, 1")
        a(f"s_cbranch_vccnz {l}")
        a("s_mov_b32 s59, 0")
        uload()
        a(f"{l}:")
        a("s_barrier")
        for t in parts[1]: a(t)
        a("s_barrier")
        for t in parts[2]: a(t)
        a("s_barrier")
        a.stamp(3)
        for t in parts[3]: a(t)
    assert nb[0] == 11
    a("s_cmp_eq_u32 s61, 0")
    a("s_cbranch_scc0 KA_X1")
    tail(["v_cmp_eq_u32 s[72:73], 31, v1", "v_lshlrev_b32 v8, 3, v3", "v_xor_b32 v8, 8, v8",
          "v_cndmask_b32 v9, 0, v15, s[72:73]", "v_add_u32 v18, v19, v8", f"v_add_f32 v{KD}, v{KD}, v9",
          f"v_add_u32 v36, {KPC-4+3072}, v18", f"v_add_u32 v37, {2*KPC-4+3072}, v18",
          f"v_cvt_pk_bf16_f32 v40, v{KD+3}, v{KD+2}", f"v_cvt_pk_bf16_f32 v41, v{KD+1}, v{KD+0}",
          f"v_cvt_pk_bf16_f32 v42, v{KD+6}, v{KD+5}", f"v_cvt_pk_bf16_f32 v43, v{KD+4}, v{KD+4}",
          f"v_cvt_pk_bf16_f32 v44, v{KD+7}, v{KD+3}", f"v_cvt_pk_bf16_f32 v45, v{KD+2}, v{KD+1}",
          f"v_cvt_pk_bf16_f32 v46, v{KD+6}, v{KD+6}", f"v_cvt_pk_bf16_f32 v47, v{KD+5}, v{KD+4}",
          "v_lshrrev_b32 v9, 16, v41"])
    a("ds_write_b64 v18, v[40:41] offset:3584")
    a("ds_write_b64 v18, v[42:43] offset:3072")
    a("ds_write2_b32 v36, v44, v45 offset0:128 offset1:129")
    a("ds_write2_b32 v36, v46, v47 offset0:0 offset1:1")
    a("ds_write2_b32 v37, v40, v41 offset0:128 offset1:129")
    a("ds_write2_b32 v37, v42, v43 offset0:0 offset1:1")
    a(f"ds_write_b64 v18, v[44:45] offset:{3*KPC-8+3584}")
    a(f"ds_write_b64 v18, v[46:47] offset:{3*KPC-8+3072}")
    a("s_mov_b64 exec, s[72:73]")
    a("ds_write_b32 v36, v9 offset:520")
    a(f"ds_write_b32 v18, v9 offset:{3*KPC+3584}")
    a("s_mov_b64 exec, -1")
    a("s_branch KA_XD")
    a("KA_X1:")
    r8, r9, r10, r12, r13, r14, r15 = [KD + i for i in (0, 1, 2, 4, 5, 6, 7)]
    E = [(r10, r10), (r9, r9), (r9, r8), (r8, r8), (r13, r13), (r13, 36), (r12, r12), (r12, r12), (r15, r15), (r15, 37), (r14, r14), (r14, r14)]
    O = [(r10, r10), (r10, r9), (r9, r9), (r8, r8), (r13, r13), (r13, r13), (36, r12), (r12, r12), (r15, r15), (r15, r15), (37, r14), (r14, r14)]
    w = ["v_and_b32 v8, 1, v1", "v_cmp_eq_u32 s[72:73], 1, v8", "v_lshlrev_b32 v8, 9, v3", "v_sub_u32 v19, v19, v8", "v_sub_u32 v18, v19, v8",
         f"v_cndmask_b32 v36, v{r13}, v{r12}, s[72:73]", f"v_cndmask_b32 v37, v{r15}, v{r14}, s[72:73]"]
    for k, c in enumerate((1, 2)):
        w += [f"v_add_u32 v{64+2*k}, {c*KPC-4+2560}, v19", f"v_add_u32 v{65+2*k}, {c*KPC-4+1024}, v18"]
    w += [f"v_cvt_pk_bf16_f32 v{40+i}, v{x}, v{y}" for i, (x, y) in enumerate(E + O)]
    tail(w)
    a("ds_write_b128 v19, v[40:43] offset:2560")
    a("ds_write_b128 v18, v[44:47] offset:1536")
    a("ds_write_b128 v18, v[48:51] offset:1024")
    for k, R in enumerate((52, 40)):
        for hf in range(2):
            a(f"ds_write2_b32 v{64+2*k}, v{R+2*hf}, v{R+2*hf+1} offset0:{2*hf} offset1:{2*hf+1}")
            a(f"ds_write2_b32 v{65+2*k}, v{R+4+2*hf}, v{R+4+2*hf+1} offset0:{128+2*hf} offset1:{129+2*hf}")
            a(f"ds_write2_b32 v{65+2*k}, v{R+8+2*hf}, v{R+8+2*hf+1} offset0:{2*hf} offset1:{2*hf+1}")
    for hf in range(2):
        a(f"ds_write_b64 v19, {vr(52+2*hf,2)} offset:{3*KPC-8+2560+8*hf}")
        a(f"ds_write_b64 v18, {vr(56+2*hf,2)} offset:{3*KPC-8+1536+8*hf}")
        a(f"ds_write_b64 v18, {vr(60+2*hf,2)} offset:{3*KPC-8+1024+8*hf}")
    a("KA_XD:")
    sig(S_UDONE)
    a.stamp(4)
    a("s_cmp_eq_u32 s59, 0")
    a("s_cbranch_scc1 KA_UOK")
    collect(False, "s_cmp_eq_u32 s54, 0")
    uload()
    a("KA_UOK:")
    wait(S_UDONE, 5)
    a.stamp(5)
    wait4(S_UA)
    a.stamp(6)
    if "noaux" in X: a("s_branch KA_AUXEND")
    def rdA(slot, step):
        o = 128 * (step >> 1) + 32 * (step & 1)
        a(f"ds_read_b64 {vr(FA+4*slot,2)}, v38 offset:{o}")
        a(f"ds_read_b64 {vr(FA+4*slot+2,2)}, v38 offset:{o+8}")
    def rdB(R, slot, step, extra=0):
        a(f"ds_read_b128 {vr(R+4*slot,4)}, v39 offset:{288*(step>>1)+32*(step&1)+extra}")
    for s in range(4): rdA(s, s); rdB(FB, s, s)
    a("s_mov_b32 s63, 4")
    a("KA_CV1:")
    for s in range(8):
        a("s_waitcnt lgkmcnt(9)")
        a(f"{MF} {vr(D1,16)}, {vr(FA+4*(s&3),4)}, {vr(FB+4*(s&3),4)}, {vr(D1,16)}")
        rdA(s & 3, s + 4); rdB(FB, s & 3, s + 4)
    a("v_add_u32 v38, 512, v38")
    a(f"v_add_u32 v39, {288*4}, v39")
    a("s_sub_u32 s63, s63, 1")
    a("s_cmp_lg_u32 s63, 0")
    a("s_cbranch_scc1 KA_CV1")
    a(f"v_subrev_u32 v39, {32*144}, v39")
    a("s_waitcnt lgkmcnt(9)")
    for s in range(4): rdB(FC, s, s)
    a("s_waitcnt lgkmcnt(0)")
    a("s_mov_b32 s63, 4")
    a("KA_CV2:")
    for s in range(8):
        a("s_waitcnt lgkmcnt(11)")
        a(f"{MF} {vr(D1,16)}, {vr(FA+4*(s&3),4)}, {vr(FB+4*(s&3),4)}, {vr(D1,16)}")
        rdB(FB, s & 3, s + 4, 32 * 144)
        a(f"{MF} {vr(D0,16)}, {vr(FA+4*(s&3),4)}, {vr(FC+4*(s&3),4)}, {vr(D0,16)}")
        rdA(s & 3, s + 4); rdB(FC, s & 3, s + 4)
    a("v_add_u32 v38, 512, v38")
    a(f"v_add_u32 v39, {288*4}, v39")
    a("s_sub_u32 s63, s63, 1")
    a("s_cmp_lg_u32 s63, 0")
    a("s_cbranch_scc1 KA_CV2")
    a.stamp(7)
    a("s_lshl_b32 s63, s54, 12")
    a(f"s_add_u32 s63, s63, {L_CX}")
    a("v_add_u32 v13, s63, v4")
    a("v_xor_b32 v14, 4096, v13")
    wait(S_QRDY, 4)
    a("s_cmp_eq_u32 s61, 0")
    a("s_cbranch_scc0 KA_CVS")
    for i in range(4): a(f"ds_write_b128 v13, {vr(D1+4*i,4)} offset:{1024*i}")
    sig(S_CV, 167)
    wait(S_CV, 2, 167, nap=1)
    for i in range(4): a(f"ds_read_b128 {vr(D1+4*i,4)}, v14 offset:{1024*i}")
    a("s_branch KA_CVJ")
    a("KA_CVS:")
    for i in range(4): a(f"ds_write_b128 v13, {vr(D0+4*i,4)} offset:{1024*i}")
    sig(S_CV, 167)
    wait(S_CV, 2, 167, nap=1)
    for i in range(4): a(f"ds_read_b128 {vr(D0+4*i,4)}, v14 offset:{1024*i}")
    a("KA_CVJ:")
    a("s_lshl_b32 s63, s55, 1")
    a("s_add_u32 s63, s63, s62")
    a("s_lshr_b32 s64, s63, 5")
    a("s_lshl_b32 s64, s64, 11")
    a("s_and_b32 s63, s63, 31")
    a("s_lshl_b32 s63, s63, 4")
    a("s_add_u32 s63, s63, s64")
    a("s_lshl_b32 s64, s61, 20")
    a("s_add_u32 s63, s63, s64")
    a(f"s_add_u32 s63, s63, {W2_GA}")
    a("v_lshlrev_b32 v5, 15, v7")
    a("v_lshl_add_u32 v5, v3, 9, v5")
    a("s_waitcnt lgkmcnt(0)")
    for i in range(16): a(f"v_add_f32 v{D0+i}, v{D0+i}, v{D1+i}")
    for i in range(8): a(f"v_cvt_pk_bf16_f32 v{64+i}, v{D0+2*i}, v{D0+2*i+1}")
    a("buffer_store_dwordx4 v[64:67], v5, s[44:47], s63 offen")
    a("buffer_store_dwordx4 v[68:71], v5, s[44:47], s63 offen offset:1024")
    if "prewo" in X:
        a("s_lshl_b32 s63, s2, 2")
        a("s_add_u32 s63, s63, s54")
        a("s_lshl_b32 s63, s63, 9")
        a("s_add_u32 s64, s26, s63")
        a("s_addc_u32 s65, s27, 0")
        for i in range(4): a(f"s_load_dword s66, s[64:65], {128*i}")
    if "wb" in X:
        a("s_lshl_b32 s63, s50, 2")
        a("s_add_u32 s63, s63, s54")
        a("s_cmp_lg_u32 s63, 0")
        a("s_cbranch_scc1 KA_AUXEND")
        wait(S_WB, 1, nap=32)
        a("buffer_wbl2 sc1")
    a("KA_AUXEND:")
    a.end(0)
```

```python
DIAG = [False]
WS_DIAG = 32 << 20
class Asm:
    def __init__(self):
        self.lines = []
    def __call__(self, s=""):
        for l in s.split("\n"):
            l = l.strip()
            if not l:
                continue
            if l.endswith(":") or l.startswith("."):
                self.lines.append(l)
            else:
                self.lines.append("    " + l)
    def c(self, s):
        self.lines.append("    ; " + s)
    def stamp(self, i):
        if DIAG[0]:
            self(f"s_memtime s[{80+2*i}:{81+2*i}]")
    def start(self):
        if DIAG[0]:
            for i in range(11):
                self(f"s_mov_b64 s[{78+2*i}:{79+2*i}], 0")
            self("s_memrealtime s[78:79]")
            self.stamp(0)
    def end(self, kern):
        if DIAG[0]:
            self("s_mov_b64 exec, -1")
            self.stamp(8)
            self("s_waitcnt vmcnt(0)")
            self.stamp(9)
            self("s_memrealtime s[100:101]")
            self(f"s_load_dwordx2 s[4:5], s[0:1], {KA_WS}")
            self("s_waitcnt lgkmcnt(0)")
            self(f"s_and_b32 s5, s5, 0xffff\ns_mov_b32 s6, {WS_DIAG + (4<<20)}\ns_mov_b32 s7, 0x20000")
            self("v_lshrrev_b32 v2, 6, v0\nv_lshlrev_b32 v2, 6, v2")
            self(f"s_lshl_b32 s3, s2, 10\ns_add_u32 s3, s3, {WS_DIAG + kern*256*1024}")
            self("s_getreg_b32 s79, hwreg(HW_REG_XCC_ID)\ns_getreg_b32 s81, hwreg(HW_REG_HW_ID)")
            regs = [78, 100] + [80 + 2*i for i in range(10)] + [79, 81, 79, 79]
            for k, r in enumerate(regs):
                self(f"v_mov_b32 v{4+k}, s{r}")
            self("s_mov_b64 exec, 1")
            for k in range(4):
                self(f"buffer_store_dwordx4 v[{4+4*k}:{7+4*k}], v2, s[4:7], s3 offen offset:{16*k}")
        self("s_endpgm")
    def text(self):
        return "\n".join(self.lines) + "\n"

def vr(a, n=1):
    return f"v{a}" if n == 1 else f"v[{a}:{a+n-1}]"
def sr(a, n=1):
    return f"s{a}" if n == 1 else f"s[{a}:{a+n-1}]"

KA_U, KA_ARE, KA_AIM, KA_BRE, KA_BIM, KA_CRE, KA_CIM, KA_LDT, KA_DSK = 0, 8, 16, 24, 32, 40, 48, 56, 64
KA_WQKV, KA_WO, KA_GW, KA_OUT, KA_DBG, KA_WS = 80, 88, 96, 104, 112, 120

HS = 65536 + 66560 + 65536
OFF_K, OFF_V, OFF_Q = 0, 65536, 132096
WS_H = 0
WS_KP = 32 * HS
KPROW = 4160
WS_UT = WS_KP + 512 * KPROW + 4096
WS_G = WS_UT + 256 * 9216
WS_O = WS_G + 2048 * 8
WS_GA = WS_O + 64 * 32 * 1024
WS_END = WS_GA + 64 * 16 * 2 * 1024
WS_SIZE = 268435456

def srd(a, base, lo, hi, nbytes):
    a(f"s_mov_b32 s{base}, s{lo}")
    a(f"s_and_b32 s{base+1}, s{hi}, 0xffff")
    a(f"s_mov_b32 s{base+2}, {nbytes}")
    a(f"s_mov_b32 s{base+3}, 0x20000")

def kd(name, vgpr, sgpr=102):
    acc = (vgpr + 3) // 4 * 4
    return f""".amdhsa_kernel {name}
  .amdhsa_next_free_vgpr {vgpr}
  .amdhsa_next_free_sgpr {sgpr}
  .amdhsa_accum_offset {acc}
  .amdhsa_group_segment_fixed_size 0
  .amdhsa_kernarg_size 128
  .amdhsa_user_sgpr_count 2
  .amdhsa_user_sgpr_kernarg_segment_ptr 1
  .amdhsa_system_sgpr_workgroup_id_x 1
.end_amdhsa_kernel
"""
def f2u(x):
    import struct
    return struct.unpack("<I", struct.pack("<f", x))[0]

GRS = 0xD0000
G_HEAD = 131072
G_UT = 0x80000
G_FL = 0xC0000
W2_G = 8 * GRS
W2_FO = W2_G + 2048 * 8
W2_O = W2_FO + 32 * 2048
W2_GA = W2_O + 64 * 32 * 1024
W2_END = W2_GA + 512 * 4096
```

```python
from common import *
import math, struct
LOG2E = 1.4426950408889634
LOG2E_HI = f2u(LOG2E)
_hi = struct.unpack("<f", struct.pack("<I", LOG2E_HI))[0]
LOG2E_LO = f2u(LOG2E - _hi)
LN2 = f2u(math.log(2.0))
QSCALE = f2u(0.25 * LOG2E)
MF = "v_mfma_f32_32x32x16_bf16"

L_X, L_W = 0, 65536
NSLOT = 6
L_OX = 0
L_Q = 114688
L_WO, L_O = 24576, 90112
L_CX = 73728
L_KP, KPC = 18688, 8384
L_U = 139264
L_XCH = 153600
L_GW = 161792
L_SY = 162816
KA_LDS = 163840
S_UA, S_WA, S_OA = 0, 16, 32
S_WB, S_UDONE, S_QRDY, S_NONCE, S_CV, S_OX, S_CD, S_FIN, S_PO, S_PC, S_OD = 96, 100, 104, 108, 112, 128, 144, 148, 152, 156, 160
VSY, VONE, VTMP, VT4 = 164, 165, 166, 160
UNR = 4
PRIO1, PRIO0, WBIT, NEARLY = 6, 7, 4, 3
LDS_SPIN = 1 << 20
FAST_TRIES = 64
SLOW_TRIES = 20000

def interleave(chains):
    out = []
    chains = [list(c) for c in chains]
    while any(chains):
        for c in chains:
            if c: out.append(c.pop(0))
    return out

def cmul(d, x, w):
    return [f"v_mul_f32 v{d}, v{x}, v{w}", f"v_mul_f32 v{d+1}, v{x}, v{w+1}",
            f"v_fma_f32 v{d}, -v{x+1}, v{w+1}, v{d}", f"v_fmac_f32 v{d+1}, v{x+1}, v{w}"]
def cmul_pk(d, x, w):
    return [f"v_pk_mul_f32 {vr(d,2)}, {vr(x,2)}, {vr(w,2)} op_sel:[0,0] op_sel_hi:[0,1]",
            f"v_pk_fma_f32 {vr(d,2)}, {vr(x,2)}, {vr(w,2)}, {vr(d,2)} op_sel:[1,1,0] op_sel_hi:[1,0,1] neg_lo:[0,1,0]"]

def gen_ka(name, X=()):
    a = Asm()
    cnt = [0]
    def lbl(p):
        cnt[0] += 1
        return f"KA_{p}{cnt[0]}"
    def sig(off, addr=VSY, val=VONE):
        a("s_mov_b64 exec, 1")
        a(f"ds_add_u32 v{addr}, v{val} offset:{off}")
        a("s_mov_b64 exec, -1")
    def wait(off, n, addr=VSY, out=76, nap=0):
        l, e = lbl("W"), lbl("E")
        a(f"s_mov_b32 s77, {LDS_SPIN}")
        if nap:
            a(f"s_branch {l}F")
        a(f"{l}:")
        if nap:
            a(f"s_sleep {nap}")
            a(f"{l}F:")
        a(f"ds_read_b32 v{VTMP}, v{addr} offset:{off}")
        a("s_sub_u32 s77, s77, 1")
        a("s_cbranch_scc1 " + e)
        a("s_waitcnt lgkmcnt(0)")
        a(f"v_readfirstlane_b32 s{out}, v{VTMP}")
        a(f"s_cmp_lt_u32 s{out}, {n}")
        a("s_cbranch_scc1 " + l)
        a(f"{e}:")
    def wait4(off, addr=VSY, nap=0):
        l, e = lbl("W"), lbl("E")
        a(f"s_mov_b32 s77, {LDS_SPIN}")
        if nap:
            a(f"s_branch {l}F")
        a(f"{l}:")
        if nap:
            a(f"s_sleep {nap}")
            a(f"{l}F:")
        a(f"ds_read_b128 {vr(VT4,4)}, v{addr} offset:{off}")
        a("s_sub_u32 s77, s77, 1")
        a("s_cbranch_scc1 " + e)
        a("s_waitcnt lgkmcnt(0)")
        a(f"v_or3_b32 v{VT4}, v{VT4}, v{VT4+1}, v{VT4+2}")
        a(f"v_or_b32 v{VT4}, v{VT4}, v{VT4+3}")
        a(f"v_cmp_ne_u32 vcc, 0, v{VT4}")
        a("s_cbranch_vccnz " + l)
        a(f"{e}:")
    def gettag():
        l, ok = lbl("TL"), lbl("TK")
        a("s_waitcnt lgkmcnt(0)")
        a("s_cmp_lg_u32 s52, 0")
        a(f"s_cbranch_scc1 {ok}")
        a("v_mov_b32 v155, 0")
        a(f"s_mov_b32 s69, {SLOW_TRIES}")
        a(f"{l}:")
        a("global_load_dword v158, v155, s[32:33] sc1")
        a("s_waitcnt vmcnt(0)")
        a("v_readfirstlane_b32 s52, v158")
        a("s_cmp_lg_u32 s52, 0")
        a(f"s_cbranch_scc1 {ok}")
        a("s_sub_u32 s69, s69, 1")
        a(f"s_cbranch_scc0 {l}")
        a("s_mov_b32 s52, 1")
        a(f"{ok}:")
    def dsig(m0expr):
        a(m0expr)
        a("s_mov_b64 exec, 1")
        a("buffer_load_dword v154, s[44:47], 0 offen lds")
        a("s_mov_b64 exec, -1")
    def mktag(fl_off):
        a("s_getreg_b32 s66, hwreg(HW_REG_XCC_ID)")
        a("s_and_b32 s66, s66, 15")
        a("s_add_u32 s66, s66, 1")
        a("s_lshl_b32 s66, s66, 1")
        a("s_xor_b32 s66, s66, s52")
        a(f"s_add_u32 s67, s51, {G_FL + fl_off}")
    def publish():
        a("v_mov_b32 v155, s66")
        a("s_mov_b64 exec, 1")
        a("buffer_store_dword v155, v156, s[44:47], s67 offen")
        a("s_mov_b64 exec, -1")
    def collect(wide, own):
        lf, ls, done = lbl("GF"), lbl("GS"), lbl("GD")
        def ld(r, off):
            if wide: a(f"buffer_load_dwordx2 v[{r}:{r+1}], v157, s[44:47], s67 offen offset:{off} sc1")
            else: a(f"buffer_load_dword v{r}, v157, s[44:47], s67 offen offset:{off} sc1")
        a(f"s_mov_b32 s69, {FAST_TRIES}")
        a(f"{lf}:")
        ld(158, 0)
        a("s_waitcnt vmcnt(0)")
        a("v_cmp_ne_u32 vcc, s66, v158")
        if wide:
            a("v_cmp_ne_u32 s[70:71], s66, v159")
            a("s_or_b64 vcc, vcc, s[70:71]")
            a(f"s_cbranch_scc0 {done}")
        else:
            a(f"s_cbranch_vccz {done}")
        a("s_sub_u32 s69, s69, 1")
        a(f"s_cbranch_scc0 {lf}")
        a("buffer_wbl2 sc1")
        a("s_waitcnt vmcnt(0)")
        a("v_mov_b32 v155, s52")
        if own is not None:
            a(own)
            a(f"s_cbranch_scc0 {ls}N")
        a("s_mov_b64 exec, 1")
        a("buffer_store_dword v155, v156, s[44:47], s67 offen offset:1024 sc1")
        a("s_mov_b64 exec, -1")
        a(f"{ls}N:")
        a(f"s_mov_b32 s69, {SLOW_TRIES}")
        a(f"{ls}:")
        ld(158, 0)
        ld(160, 1024)
        a("s_waitcnt vmcnt(0)")
        a("v_cmp_ne_u32 vcc, s66, v158")
        a("v_cmp_ne_u32 s[70:71], s52, v160")
        a("s_and_b64 vcc, vcc, s[70:71]")
        if wide:
            a("v_cmp_ne_u32 s[70:71], s66, v159")
            a("v_cmp_ne_u32 s[72:73], s52, v161")
            a("s_and_b64 s[70:71], s[70:71], s[72:73]")
            a("s_or_b64 vcc, vcc, s[70:71]")
        a(f"s_cbranch_scc0 {done}A")
        a("s_sleep 8")
        a("s_sub_u32 s69, s69, 1")
        a(f"s_cbranch_scc0 {ls}")
        a(f"{done}A:")
        a("buffer_inv sc1")
        a("s_waitcnt vmcnt(0)")
        a(f"{done}:")

    a(f".globl {name}\n.p2align 8\n.type {name},@function\n{name}:")
    a("s_cmp_ge_u32 s2, 256")
    a("s_cbranch_scc1 KA_END")
    a.start()
    a("s_load_dwordx16 s[4:19], s[0:1], 0")
    a("s_load_dwordx16 s[20:35], s[0:1], 64")
    a("v_lshrrev_b32 v2, 6, v0")
    a("v_and_b32 v1, 63, v0")
    a(f"v_mov_b32 v{VSY}, {L_SY}")
    a("v_readfirstlane_b32 s48, v2")
    a(f"v_lshl_add_u32 v5, v1, 2, v{VSY}")
    a("v_cmp_gt_u32 vcc, 24, v1")
    a("v_mov_b32 v6, 0")
    a("v_addc_co_u32 v6, vcc, 0, v6, vcc")
    a("ds_write_b32 v5, v6")
    a("s_and_b32 s49, s2, 7")
    a("s_lshr_b32 s50, s2, 3")
    a(f"s_mul_i32 s51, s49, {GRS}")
    a("s_add_u32 s53, s49, s50")
    a("v_lshlrev_b32 v4, 4, v1")
    a("v_lshrrev_b32 v3, 5, v1")
    a(f"v_mov_b32 v{VONE}, 1")
    a("s_cmp_lt_u32 s48, 4")
    if "cpf" in X:
        a("s_cbranch_scc0 KA_NOPF")
        a("s_getpc_b64 s[56:57]")
        a("KA_PCB:")
        a("v_lshlrev_b32 v8, 7, v0")
        a("v_min_u32 v8, KA_END-KA_PCB, v8")
        a("v_mov_b32 v9, s57")
        a("v_add_co_u32 v8, vcc, s56, v8")
        a("v_addc_co_u32 v9, vcc, 0, v9, vcc")
        a("s_cmp_lt_u32 s48, (KA_END-KA_PCB+8191)/8192")
        a("s_cbranch_scc0 KA_CONS")
        a("global_load_dword v24, v[8:9], off")
        a("s_branch KA_CONS")
        a("KA_NOPF:")
    else:
        a("s_cbranch_scc1 KA_CONS")
    a("v_lshlrev_b32 v156, 2, s50")
    a("s_cmp_lt_u32 s48, 8")
    a("s_cbranch_scc1 KA_LOADER")
    a("s_sub_u32 s54, s48, 8")
    a("s_lshl_b32 s55, s49, 5")
    a("s_add_u32 s55, s55, s50")
    a("s_lshl_b32 s59, s55, 9")
    a("s_lshl_b32 s60, s54, 7")
    a("s_add_u32 s59, s59, s60")
    a("v_lshl_add_u32 v2, v1, 1, s59")
    a("s_lshr_b32 s59, s59, 8")
    a("s_lshl_b32 s59, s59, 1")
    a("v_mov_b32 v5, s59")
    for i in range(8):
        a(f"v_mov_b32 v{8+i}, 0")
    a("s_setprio 3")
    a("s_waitcnt lgkmcnt(0)")
    a("global_load_short_d16_hi v14, v5, s[18:19]")
    for i in range(6):
        a(f"global_load_short_d16_hi v{8+i}, v2, s[{6+2*i}:{7+2*i}]")
    a("global_load_short_d16_hi v15, v5, s[20:21]")
    if "kglow" in X: a("s_setprio 0")
    a("s_branch KA_AUX")
    a("KA_LOADER:")

    a("s_sub_u32 s54, s48, 4")
    a("v_lshrrev_b32 v5, 3, v1")
    a("v_and_b32 v6, 7, v1")
    a("v_lshrrev_b32 v7, 4, v1")
    a("v_xor_b32 v8, v6, v7")
    a("v_lshlrev_b32 v8, 4, v8")
    a("v_lshl_add_u32 v16, v5, 10, v8")
    a("s_and_b32 s73, s54, 1")
    a("s_lshl_b32 s58, s73, 6")
    a("s_lshl_b32 s55, s50, 16")
    a("s_lshl_b32 s60, s54, 13")
    a("s_add_u32 s60, s60, s55")
    a("v_xor_b32 v18, s58, v16")
    a("v_add_u32 v18, s60, v18")
    a("v_add_u32 v19, 32768, v18")
    a("v_and_b32 v7, 1, v7")
    a("v_lshlrev_b32 v7, 2, v7")
    a("v_xor_b32 v8, v6, v7")
    a("v_mul_u32_u24 v9, 3072, v5")
    a("v_lshl_add_u32 v9, v8, 4, v9")
    a("s_lshl_b32 s56, s49, 7")
    a("s_mul_i32 s62, s54, 3")
    for i in range(3):
        a(f"s_add_u32 s58, s62, {i}")
        a("s_and_b32 s59, s58, 3")
        a("s_mul_i32 s59, s59, 24576")
        a("s_lshr_b32 s58, s58, 2")
        a("s_lshl_b32 s58, s58, 10")
        a("s_add_u32 s58, s58, s59")
        a("s_add_u32 s58, s58, s56")
        if i: a(f"s_sub_u32 s58, s58, {1024*i}")
        a(f"v_add_u32 v{20+i}, s58, v9")
    a("s_lshl_b32 s61, s54, 10")
    a("s_lshl_b32 s62, s62, 10")
    a("s_and_b32 s64, s53, 7")
    a("s_lshl_b32 s65, s64, 7")
    a(f"s_mul_i32 s64, s64, {64*3072}")
    a("s_mov_b32 s38, %d\ns_mov_b32 s39, 0x20000\ns_mov_b32 s42, %d\ns_mov_b32 s43, 0x20000" % (2048*512*2, 512*1536*2))
    a("s_mov_b32 m0, s61")
    a("s_waitcnt lgkmcnt(0)")
    a("s_mov_b32 s36, s4\ns_and_b32 s37, s5, 0xffff\ns_mov_b32 s40, s24\ns_and_b32 s41, s25, 0xffff")
    a.stamp(1)
    ops = []
    def vm(t, tag):
        a(t); ops.append(tag)
    def need(tag, extra=""):
        last = max(i for i, t in enumerate(ops) if t == tag)
        a(f"s_waitcnt vmcnt({len(ops)-1-last}){extra}")
    def sub(j):
        hi = j + 1
        if hi < 16:
            a(f"s_add_u32 m0, s61, {4096*hi}")
            if hi % 2 == 0:
                a("s_add_u32 s65, s65, 128")
                a("s_and_b32 s65, s65, 1023")
            else:
                a("s_nop 0")
            vm(f"buffer_load_dwordx4 v{18+(hi&1)}, s[36:39], s65 offen lds", j)
        a(f"s_add_u32 m0, s62, {L_W+12288*(j%NSLOT)}")
        a(f"s_add_u32 s58, s64, {32*3072}")
        for i in range(3):
            vm(f"buffer_load_dwordx4 v{20+i}, s[40:43], s64 offen offset:{1024*i} lds", j)
        a(f"s_cmp_lt_u32 s58, {512*3072}")
        a("s_cselect_b32 s64, s58, 0")
    vm("buffer_load_dwordx4 v18, s[36:39], s65 offen lds", 0)
    sub(0)
    srd(a, 44, 34, 35, W2_END)
    a("v_xor_b32 v17, 64, v16")
    a("v_add_u32 v17, 7168, v17")
    a("s_sub_u32 s74, 0, s50")
    a("s_and_b32 s74, s74, 7")
    a("s_lshl_b32 s74, s74, 13")
    a("s_lshl_b32 s58, s54, 11")
    a("s_add_u32 s74, s74, s58")
    a("s_mov_b32 m0, s74")
    a("s_lshl_b32 s58, s54, 14")
    a("s_add_u32 s58, s58, s55")
    a("s_add_u32 s58, s58, s56")
    vm("buffer_load_dwordx4 v16, s[36:39], s58 offen lds", "xs")
    vm("buffer_load_dwordx4 v17, s[36:39], s58 offen offset:1024 lds", "xs")
    sub(1); sub(2)
    a("v_lshlrev_b32 v5, 7, v1")
    a(f"s_add_u32 s67, s51, {G_FL}")
    a(f"s_mov_b32 m0, {L_GW}")
    a("s_mov_b64 exec, 0xf1")
    vm("buffer_load_dword v26, v5, s[44:47], s67 offen sc1", "fl")
    a("s_mov_b64 exec, -1")
    vm("global_load_lds_dwordx4 v4, s[28:29]", "gw")
    sub(3)
    a("v_bfe_u32 v5, v1, 2, 2")
    a("v_lshrrev_b32 v6, 4, v1")
    a("v_bfe_u32 v7, v1, 1, 1")
    a("v_lshl_add_u32 v6, v6, 1, v7")
    a("v_lshrrev_b32 v7, 1, v5")
    a("v_xor_b32 v6, v6, v7")
    a("v_lshlrev_b32 v6, 4, v6")
    a("v_lshl_add_u32 v6, v5, 7, v6")
    a("v_and_b32 v7, 1, v1")
    a("v_lshl_add_u32 v6, v7, 3, v6")
    a("v_add_u32 v28, s74, v6")
    for i in range(1, 4):
        a(f"v_xor_b32 v{28+i}, {32*i}, v28")
    need("xs")
    a("s_setprio 3")
    for i in range(4):
        a(f"ds_read_b64_tr_b16 {vr(32+2*i,2)}, v{28+i} offset:{512*i}")
    a("v_lshrrev_b32 v5, 1, v1")
    a("v_lshlrev_b32 v5, 13, v5")
    a("v_lshl_add_u32 v27, v7, 6, v5")
    a("s_lshl_b32 s75, s50, 8")
    a("s_lshr_b32 s59, s54, 1")
    a("s_lshl_b32 s59, s59, 7")
    a("s_add_u32 s75, s75, s59")
    a("s_add_u32 s75, s75, s51")
    a(f"s_add_u32 s75, s75, {G_UT}")
    a("s_lshl_b32 s58, s73, 5")
    a("s_add_u32 s75, s75, s58")
    a("s_waitcnt lgkmcnt(0)")
    vm("buffer_store_dwordx4 v[32:35], v27, s[44:47], s75 offen", 3)
    vm("buffer_store_dwordx4 v[36:39], v27, s[44:47], s75 offen offset:16", 3)
    if "lst" in X: a.stamp(3)
    PRE = 6 if "p6" in X else 5 if "p5" in X else 4
    for j in range(4, PRE): sub(j)
    a("v_lshrrev_b32 v10, 3, v1")
    a("s_lshl_b32 s58, s49, 3")
    a("v_add_u32 v10, s58, v10")
    a("v_and_b32 v11, 7, v1")
    a("v_bfe_u32 v12, v10, 1, 3")
    a("v_xor_b32 v12, v12, v11")
    a("v_lshlrev_b32 v12, 4, v12")
    a("v_lshl_add_u32 v12, v10, 7, v12")
    a("s_and_b32 s58, s53, 7")
    a("s_lshl_b32 s58, s58, 7")
    a("v_lshl_add_u32 v11, v11, 4, s58")
    a("v_bfe_u32 v5, v1, 4, 1")
    a("v_lshlrev_b32 v5, 16, v5")
    a("v_and_b32 v6, 15, v1")
    a("v_lshl_add_u32 v13, v6, 7, v5")
    a(f"s_mul_i32 s71, s54, {G_HEAD}")
    a("s_lshl_b32 s58, s50, 11")
    a("s_add_u32 s71, s71, s58")
    a("s_add_u32 s71, s71, s51")
    a("s_and_b32 s58, s50, 15")
    a(f"s_cmp_lt_u32 s58, {NEARLY}")
    a("s_cselect_b32 s58, 0, 0x7ff00000")
    a("v_add_u32 v13, s58, v13")
    for c in range(8):
        a(f"v_add_u32 v{40+c}, {128*c}, v11")
        a(f"v_and_b32 v{40+c}, 1023, v{40+c}")
        a(f"v_add_u32 v{40+c}, {L_GW}, v{40+c}")
    for j in range(12):
        need(j)
        if "lst" in X and j in (0, 4, 8): a.stamp(4 + j // 4)
        a("s_barrier")
        if j + 4 >= PRE: sub(j + 4)
    if "tq" in X:
        a("s_mov_b32 exec_hi, 0")
        vm("buffer_load_dword v26, v13, s[44:47], s71 offen sc1", "tq")
        a("s_mov_b64 exec, -1")
    need(12)
    a("s_barrier")
    a("s_cmp_eq_u32 s54, 3")
    a("s_cbranch_scc1 KA_LG")
    for j in (13, 14, 15):
        need(j)
        a("s_barrier")
    a.stamp(2)
    a("s_cmp_eq_u32 s54, 2")
    a("s_cbranch_scc1 KA_LZ")

    a("KA_ATT:")
    QA, QB, P, OA, OB, SA, SB = 8, 12, 28, 36, 52, 68, 84
    KBUF = [100, 112, 124, 136]
    a("s_and_b32 s54, s48, 3")
    a("s_lshr_b32 s55, s48, 2")
    a(f"s_mul_i32 s57, s54, {G_HEAD}")
    a("s_add_u32 s57, s57, s51")
    a("s_lshl_b32 s58, s55, 15")
    a("s_add_u32 s58, s58, s57")
    a("s_add_u32 s59, s58, 65536")
    a("s_lshl_b32 s56, s50, 1")
    a("s_add_u32 s56, s56, s55")
    a("s_lshl_b32 s56, s56, 5")
    a("s_lshl_b32 s60, s49, 2")
    a("s_add_u32 s56, s56, s60")
    a("s_add_u32 s56, s56, s54")
    a("s_lshl_b32 s56, s56, 10")
    a(f"s_add_u32 s56, s56, {W2_O}")
    a("s_mov_b32 s62, 0xffff")
    a("s_mov_b32 s63, 0xffff")
    a("v_and_b32 v2, 31, v1")
    a("v_and_b32 v6, 15, v1")
    a("v_lshl_add_u32 v6, v3, 4, v6")
    a("v_lshlrev_b32 v6, 4, v6")
    a("v_cmp_eq_u32 vcc, 16, v2")
    a("v_mov_b32 v7, 0x3f803f80")
    a("v_lshlrev_b32 v157, 3, v1")
    a("v_cndmask_b32 v7, 0, v7, vcc")
    a("s_lshl_b32 s60, s54, 11")
    a(f"s_add_u32 s60, s60, {L_Q}")
    a("v_add_u32 v5, s60, v4")
    for B in KBUF:
        for i in range(8): a(f"v_mov_b32 v{B+4+i}, v7")
    for i in range(32): a(f"v_mov_b32 v{OA+i}, 0")
    for i in range(4): a(f"v_mov_b32 v{P+4+i}, 0")
    a(f"s_mov_b32 s64, {hex((1<<PRIO1)|(1<<PRIO0))}")
    a("s_mov_b32 s65, 0")
    a("s_cmp_eq_u32 s55, 0")
    a("s_cbranch_scc1 KA_AT1")
    wait(S_NONCE, 1, out=52)
    mktag(512)
    a("KA_AT1:")
    wait(S_QRDY, 4)
    a(f"ds_read_b128 {vr(QA,4)}, v5")
    a(f"ds_read_b128 {vr(QB,4)}, v5 offset:1024")
    if "lst" not in X: a.stamp(4)
    collect(True, "s_cmp_eq_u32 s55, 0")
    a("s_lshl_b32 s72, s50, 11")
    a(f"s_add_u32 s72, s72, {W2_FO}")
    a("v_mov_b32 v155, s52")
    a("s_cmp_lg_u32 s48, 7")
    a("s_cbranch_scc1 KA_NOGF")
    sig(S_CD)
    a("KA_NOGF:")
    a("v_lshlrev_b32 v156, 7, s49")
    def kvload(B, off):
        a(f"buffer_load_dwordx4 {vr(B,4)}, v4, s[44:47], s58 offen offset:{off}")
        a("s_mov_b64 exec, s[62:63]")
        a(f"buffer_load_dwordx4 {vr(B+4,4)}, v6, s[44:47], s59 offen offset:{off}")
        a(f"buffer_load_dwordx4 {vr(B+8,4)}, v6, s[44:47], s59 offen offset:{off+512}")
        a("s_mov_b64 exec, -1")
    for t in range(3): kvload(KBUF[t], 1024 * t)
    a("s_add_u32 s58, s58, 3072")
    a("s_add_u32 s59, s59, 3072")
    a("s_setprio 2")
    if "lst" not in X: a.stamp(7)
    a("s_waitcnt vmcnt(6) lgkmcnt(0)")
    a.stamp(7 if "lst" in X else 5)
    a(f"{MF} {vr(SA,16)}, {vr(KBUF[0],4)}, {vr(QA,4)}, 0")
    a("s_nop 11")
    a(".p2align 6")
    a("KA_LOOP:")
    if "ast" in X:
        for k, b in enumerate((1, 2, 3, 5)):
            a(f"s_cmp_lg_u32 s65, {b}\ns_cbranch_scc1 KA_Q{k}")
            a.stamp(1 + k)
            a(f"KA_Q{k}:")
    for u in range(4):
        B, Bn, Bp = KBUF[u], KBUF[(u+1) % 4], KBUF[(u+3) % 4]
        if u == 2:
            a("s_bitcmp1_b32 s64, s65")
            a("s_cbranch_scc1 KA_SPECIAL")
            a("KA_BODY:")
        for unit in range(2):
            Sc, Sn, Oc, Op, Qn = (SA, SB, OA, OB, QB) if unit == 0 else (SB, SA, OB, OA, QA)
            e = lambda i: a(f"v_exp_f32 v{Sc+i}, v{Sc+i}")
            c = lambda j: a(f"v_cvt_pk_bf16_f32 v{P+j}, v{Sc+2*j}, v{Sc+2*j+1}")
            e(0); e(1)
            a(f"{MF} {vr(Op,16)}, {vr((Bp if unit == 0 else B)+8,4)}, {vr(P+4,4)}, {vr(Op,16)}")
            if unit == 0: kvload(Bp, 1024 * u)
            e(2); e(3); c(0); e(4); c(1); e(5)
            if unit == 1: a("s_waitcnt vmcnt(6)")
            a(f"{MF} {vr(Sn,16)}, {vr(B if unit == 0 else Bn,4)}, {vr(Qn,4)}, 0")
            e(6); e(7); c(2); e(8); c(3); e(9); e(10)
            a(f"{MF} {vr(Oc,16)}, {vr(B+4,4)}, {vr(P,4)}, {vr(Oc,16)}")
            c(4); e(11); e(12); e(13); c(5); e(14); e(15); c(6)
            if u == 3 and unit == 1:
                a("s_add_u32 s58, s58, 4096")
                a("s_add_u32 s59, s59, 4096")
                a("s_add_u32 s65, s65, 1")
                a("s_cmp_lt_u32 s65, 8")
            c(7)
    a("s_cbranch_scc1 KA_LOOP")
    a("s_nop 0")
    a(f"{MF} {vr(OB,16)}, {vr(KBUF[3]+8,4)}, {vr(P+4,4)}, {vr(OB,16)}")
    if "lst" not in X: a.stamp(6)
    a("s_mul_i32 s59, s48, 2304")
    a(f"s_add_u32 s59, s59, {L_OX}")
    a("s_xor_b32 s60, s48, 4")
    a("s_mul_i32 s60, s60, 2304")
    a(f"s_add_u32 s60, s60, {L_OX}")
    a("v_add_u32 v16, s59, v4")
    a("v_add_u32 v17, s60, v4")
    a("v_lshl_add_u32 v18, v1, 2, s59")
    a("v_lshl_add_u32 v19, v1, 2, s60")
    a("s_lshl_b32 s59, s54, 2")
    a(f"v_add_u32 v20, s59, v{VSY}")
    a("s_cmp_eq_u32 s55, 0")
    a("s_cbranch_scc1 KA_KEEPA")
    for i in range(9):
        a(f"v_swap_b32 v{OA+i}, v{OB+i}")
    for i in range(4):
        a(f"v_mov_b32 v{QA+i}, v{QB+i}")
    a("KA_KEEPA:")
    a(f"ds_write_b128 v16, {vr(OB,4)}")
    a(f"ds_write_b128 v16, {vr(OB+4,4)} offset:1024")
    a(f"ds_write_b32 v18, v{OB+8} offset:2048")
    sig(S_OX, 20)
    sig(S_FIN)
    wait(S_OX, 2, 20, nap=1)
    a(f"ds_read_b32 v{OB+8}, v19 offset:2048")
    a(f"ds_read_b128 {vr(OB,4)}, v17")
    a(f"ds_read_b128 {vr(OB+4,4)}, v17 offset:1024")
    a(f"s_mov_b32 s60, {hex(f2u(2.0**-80))}")
    a(f"s_mov_b32 s61, {hex(f2u(2.0**80))}")
    a(f"s_mov_b32 s59, {hex(f2u(2.0**120))}")
    a("s_waitcnt lgkmcnt(2)")
    a(f"v_add_f32 v{SA}, v{OA+8}, v{OB+8}")
    a(f"v_add_f32 v{SA+1}, v{OA+8}, v{OB+8}")
    a("s_waitcnt lgkmcnt(0)")
    for i in range(8):
        a(f"v_add_f32 v{OA+i}, v{OA+i}, v{OB+i}")
    a(f"v_permlane32_swap_b32 v{SA}, v{SA+1}")
    a.c("safety check of the zero stand-in for the row max: l inside [2^-80, 2^80] and O finite")
    a(f"v_add_f32 v{SA+2}, |v{OA}|, |v{OA+1}|")
    for i in range(2, 8):
        a(f"v_add_f32 v{SA+2}, |v{OA+i}|, v{SA+2}")
    a(f"v_cmp_ge_f32 s[66:67], v{SA}, s60")
    a(f"v_cmp_le_f32 s[68:69], v{SA}, s61")
    a(f"v_cmp_le_f32 s[70:71], v{SA+2}, s59")
    a(f"v_rcp_f32 v{SA}, v{SA}")
    a("s_and_b64 s[66:67], s[66:67], s[68:69]")
    a("s_and_b64 s[66:67], s[66:67], s[70:71]")
    a("s_cmp_eq_u64 s[66:67], -1")
    a("s_cbranch_scc0 KA_SLOW")
    a("KA_FIN:")
    for i in range(8):
        a(f"v_mul_f32 v{OA+i}, v{OA+i}, v{SA}")
    for i in range(4):
        a(f"v_cvt_pk_bf16_f32 v{P+i}, v{OA+2*i}, v{OA+2*i+1}")
    a(f"buffer_store_dwordx4 {vr(P,4)}, v4, s[44:47], s56 offen sc1")
    a("s_waitcnt vmcnt(0)")
    a("s_mov_b64 exec, 1")
    a(f"ds_add_rtn_u32 v{VTMP}, v{VSY}, v{VONE} offset:{S_OD}")
    a("s_waitcnt lgkmcnt(0)")
    a(f"v_readfirstlane_b32 s76, v{VTMP}")
    a("s_cmp_lg_u32 s76, 7")
    a("s_cbranch_scc1 KA_NLAST")
    a("buffer_store_dword v155, v156, s[44:47], s72 offen sc1")
    a("KA_NLAST:")
    a.end(0)
    a("KA_SPECIAL:")
    if "wb" in X: sig(S_WB)
    a("s_setprio 1")
    a(f"s_cmp_eq_u32 s65, {PRIO1}")
    a("s_cbranch_scc1 KA_BODY")
    a("s_setprio 0")
    a("s_branch KA_BODY")
    a.c("fallback: true row max over all keys, then recompute this query tile")
    a("KA_SLOW:")
    B = KBUF[0]
    a("s_waitcnt vmcnt(0)")
    a(f"v_mov_b32 v{SB}, 0xff800000")
    a("s_mov_b32 s58, s57")
    a("s_mov_b32 s65, 0")
    a("KA_MAXL:")
    a(f"buffer_load_dwordx4 {vr(B,4)}, v4, s[44:47], s58 offen")
    a("s_add_u32 s58, s58, 1024")
    a("s_add_u32 s65, s65, 1")
    a("s_waitcnt vmcnt(0)")
    a(f"{MF} {vr(SA,16)}, {vr(B,4)}, {vr(QA,4)}, 0")
    a("s_nop 15")
    for i in range(8):
        a(f"v_max3_f32 v{SB}, v{SA+2*i}, v{SA+2*i+1}, v{SB}")
    a("s_cmp_lt_u32 s65, 64")
    a("s_cbranch_scc1 KA_MAXL")
    a(f"v_mov_b32 v{SB+1}, v{SB}")
    a("s_nop 1")
    a(f"v_permlane32_swap_b32 v{SB}, v{SB+1}")
    a(f"v_max_f32 v{SB}, v{SB}, v{SB+1}")
    for i in range(16):
        a(f"v_mov_b32 v{OA+i}, 0")
    a("s_mov_b32 s58, s57")
    a("s_add_u32 s59, s57, 65536")
    a("s_mov_b32 s65, 0")
    a("KA_SLOWL:")
    kvload(B, 0)
    a("s_add_u32 s58, s58, 1024")
    a("s_add_u32 s59, s59, 1024")
    a("s_add_u32 s65, s65, 1")
    a("s_waitcnt vmcnt(0)")
    a(f"{MF} {vr(SA,16)}, {vr(B,4)}, {vr(QA,4)}, 0")
    a("s_nop 15")
    for i in range(16):
        a(f"v_sub_f32 v{SA+i}, v{SA+i}, v{SB}")
    for i in range(16):
        a(f"v_exp_f32 v{SA+i}, v{SA+i}")
    a("s_nop 0")
    for j in range(8):
        a(f"v_cvt_pk_bf16_f32 v{P+j}, v{SA+2*j}, v{SA+2*j+1}")
    a("s_nop 1")
    a(f"{MF} {vr(OA,16)}, {vr(B+4,4)}, {vr(P,4)}, {vr(OA,16)}")
    a(f"{MF} {vr(OA,16)}, {vr(B+8,4)}, {vr(P+4,4)}, {vr(OA,16)}")
    a("s_nop 7")
    a("s_cmp_lt_u32 s65, 64")
    a("s_cbranch_scc1 KA_SLOWL")
    a("s_nop 15")
    a(f"v_mov_b32 v{SA}, v{OA+8}")
    a(f"v_mov_b32 v{SA+1}, v{OA+8}")
    a("s_nop 1")
    a(f"v_permlane32_swap_b32 v{SA}, v{SA+1}")
    a(f"v_rcp_f32 v{SA}, v{SA}")
    a("s_nop 0")
    a("s_branch KA_FIN")

    a("KA_LZ:")
    a("v_mov_b32 v8, 0")
    a("v_lshlrev_b32 v5, 2, v1")
    a(f"v_add_u32 v5, {L_KP+4092}, v5")
    a("s_mov_b64 exec, 0x7fff")
    for c in range(4):
        for ch in range(2): a(f"ds_write_b32 v5, v8 offset:{c*KPC+ch*KPROW+(4 if c < 2 else 0)}")
    a("s_mov_b64 exec, -1")
    sig(S_UDONE)
    a("s_branch KA_ATT")
    a("KA_LG:")
    def grd(c):
        a(f"ds_read_b128 {vr(64+4*c,4)}, v12 offset:{8192*c}")
        a(f"ds_read_b128 {vr(96+4*c,4)}, v{40+c}")
    grd(0); grd(1); grd(2)
    need(13)
    a("s_barrier")
    grd(3); grd(4); grd(5); grd(6)
    need(14)
    a("s_barrier")
    a("s_waitcnt lgkmcnt(6)")
    grd(7)
    need(15, " lgkmcnt(0)")
    a("s_barrier")
    a.stamp(2)
    a("v_mov_b32 v9, 0")
    a("s_lshl_b32 s58, s50, 9")
    a(f"s_add_u32 s58, s58, {W2_G}")
    a("v_lshlrev_b32 v5, 3, v10")
    for i in range(32): a(f"v_dot2_f32_bf16 v9, v{64+i}, v{96+i}, v9")
    a("s_nop 3")
    a("v_add_f32_dpp v9, v9, v9 quad_perm:[1,0,3,2] row_mask:0xf bank_mask:0xf")
    a("s_nop 1")
    a("v_add_f32_dpp v9, v9, v9 quad_perm:[2,3,0,1] row_mask:0xf bank_mask:0xf")
    a("s_nop 1")
    a("v_add_f32_dpp v9, v9, v9 row_half_mirror row_mask:0xf bank_mask:0xf")
    a("v_cvt_pk_bf16_f32 v9, v9, v9")
    a("v_and_b32 v9, 0xffff0000, v9")
    a(f"v_mul_f32 v9, {hex(f2u(-LOG2E))}, v9")
    a("v_exp_f32 v9, v9")
    a("s_nop 0")
    a("v_add_f32 v9, 1.0, v9")
    a("v_rcp_f32 v9, v9")
    a("s_nop 0")
    a("v_cvt_pk_bf16_f32 v10, v9, v9")
    a("v_and_b32 v10, 0xffff0000, v10")
    a("v_sub_f32 v11, 1.0, v10")
    a("v_cvt_pk_bf16_f32 v11, v11, v11")
    a("v_and_b32 v11, 0xffff0000, v11")
    a("s_mov_b32 exec_lo, 0x01010101")
    a("s_mov_b32 exec_hi, 0x01010101")
    a("buffer_store_dwordx2 v[10:11], v5, s[44:47], s58 offen sc1")
    a("s_mov_b64 exec, -1")
    a("s_branch KA_ATT")

    a("KA_CONS:")
    a("s_setprio 3")
    ACC, FB = 112, 32
    XA, WAD, FLA = 16, 20, 21
    a("s_and_b32 s54, s48, 1")
    a("s_lshr_b32 s55, s48, 1")
    a("v_and_b32 v5, 31, v1")
    a("s_lshl_b32 s56, s54, 12")
    a("v_lshl_add_u32 v6, v5, 7, s56")
    a("v_bfe_u32 v7, v5, 1, 3")
    a("v_xor_b32 v7, v7, v3")
    a(f"v_lshl_add_u32 v{XA}, v7, 4, v6")
    for ks in range(1, 4):
        a(f"v_xor_b32 v{XA+ks}, {ks<<5}, v{XA}")
    a("v_bfe_u32 v7, v1, 2, 2")
    a("v_lshl_add_u32 v6, v3, 3, v7")
    a("v_lshlrev_b32 v6, 7, v6")
    a("v_lshrrev_b32 v7, 1, v7")
    a("v_xor_b32 v7, s55, v7")
    a("v_lshl_add_u32 v6, v7, 6, v6")
    a("v_bfe_u32 v7, v1, 4, 1")
    a("v_lshl_add_u32 v6, v7, 5, v6")
    a("v_and_b32 v7, 3, v1")
    a("v_lshl_add_u32 v6, v7, 3, v6")
    a(f"v_add_u32 v{WAD}, {L_W}, v6")
    for i in range(48):
        a(f"v_mov_b32 v{ACC+i}, 0")
    a("s_lshl_b32 s58, s48, 10")
    a(f"s_add_u32 s58, s58, {L_U}")
    a("v_add_u32 v5, s58, v4")
    a(f"ds_write_b128 v5, {vr(ACC,4)}")
    a(f"v_add_u32 v5, {L_U+4096}, v4")
    a("s_mov_b64 exec, 0x7fffff")
    a(f"ds_write_b128 v5, {vr(ACC,4)}")
    a("s_mov_b64 exec, -1")
    a("s_waitcnt lgkmcnt(0)")
    srd(a, 44, 34, 35, W2_END)
    WB = 22
    a(f"v_mov_b32 v{WB}, v{WAD}")
    def reads(step):
        F = FB + 16 * (step & 3)
        xo = (step >> 2) * 8192
        wo = (step & 1) * 2048
        r = [f"ds_read_b128 {vr(F,4)}, v{XA+(step&3)} offset:{xo}"]
        for ct in range(3):
            for hh in range(2):
                r.append(f"ds_read_b64_tr_b16 {vr(F+4+4*ct+2*hh,2)}, v{WAD} offset:{wo+ct*4096+hh*512}")
        return r
    def mfmas(step):
        F = FB + 16 * (step & 3)
        r = []
        for ct in range(3):
            x, w = vr(F, 4), vr(F + 4 + 4 * ct, 4)
            A, B = (w, x) if ct < 2 else (x, w)
            r.append(f"{MF} {vr(ACC+16*ct,16)}, {A}, {B}, {vr(ACC+16*ct,16)}")
        return r
    a("s_mov_b32 s58, 0")
    a("s_mov_b32 s57, 3")
    a("s_barrier")
    a.stamp(1)
    for t in reads(0) + reads(1): a(t)
    a("KA_GEMM:")
    for st in range(8):
        m, r = mfmas(st), reads(st + 2)
        if st % 2 == 0:
            a("s_add_u32 s58, s58, 12288")
            a(f"s_cmp_eq_u32 s58, {NSLOT*12288}")
            a("s_cselect_b32 s58, 0, s58")
            a(f"v_add_u32 v{WAD}, s58, v{WB}")
            if st == 6: a("s_cmp_eq_u32 s57, 0")
        a("s_waitcnt lgkmcnt(7)")
        a(m[0])
        if st == 6: a("s_cbranch_scc1 KA_GEND")
        if st % 2 == 0: a("s_barrier")
        [a(t) for t in r[:3]]; a(m[1]); [a(t) for t in r[3:6]]; a(m[2]); a(r[6])
    for k in range(4):
        a(f"v_add_u32 v{XA+k}, 16384, v{XA+k}")
    a("s_sub_u32 s57, s57, 1")
    a("s_branch KA_GEMM")
    a("KA_GEND:")
    m = mfmas(6); a(m[1]); a(m[2])
    a("s_waitcnt lgkmcnt(0)")
    for t in mfmas(7): a(t)
    a.stamp(2)
    a("s_lshl_b32 s58, s50, 1")
    a("s_add_u32 s58, s58, s54")
    a("s_lshl_b32 s58, s58, 10")
    a(f"s_mul_i32 s59, s55, {2*G_HEAD}")
    a("s_add_u32 s58, s58, s59")
    a("s_add_u32 s58, s58, s51")
    a(f"s_add_u32 s59, s58, {G_HEAD}")
    a("s_add_u32 s62, s58, 65536")
    a(f"s_mov_b32 s63, {hex(QSCALE)}")
    a("v_bfe_u32 v5, v1, 4, 1")
    a(f"v_mul_u32_u24 v5, {G_HEAD}, v5")
    a("v_and_b32 v6, 15, v1")
    a("v_lshl_add_u32 v6, v3, 4, v6")
    a("v_lshl_add_u32 v6, v6, 4, v5")
    for i in range(8):
        a(f"v_cvt_pk_bf16_f32 v{16+i}, v{ACC+16+2*i}, v{ACC+16+2*i+1}")
    a("buffer_store_dwordx4 v[16:19], v4, s[44:47], s58 offen")
    a("buffer_store_dwordx4 v[20:23], v4, s[44:47], s59 offen")
    for i in range(8):
        a(f"v_cvt_pk_bf16_f32 v{96+i}, v{ACC+32+2*i}, v{ACC+32+2*i+1}")
    a("buffer_store_dwordx4 v[96:99], v6, s[44:47], s62 offen")
    a("buffer_store_dwordx4 v[100:103], v6, s[44:47], s62 offen offset:512")
    wait(S_NONCE, 1, out=52)
    for i in range(16):
        a(f"v_mul_f32 v{ACC+i}, s63, v{ACC+i}")
    a("s_lshl_b32 s60, s55, 12")
    a("s_lshl_b32 s61, s54, 10")
    a("s_add_u32 s60, s60, s61")
    a(f"s_add_u32 s60, s60, {L_Q}")
    a("v_add_u32 v5, s60, v4")
    for i in range(8):
        a(f"v_cvt_pk_bf16_f32 v{32+i}, v{ACC+2*i}, v{ACC+2*i+1}")
    a("ds_write_b128 v5, v[32:35]")
    a("ds_write_b128 v5, v[36:39] offset:2048")
    sig(S_QRDY)
    mktag(512)
    a("s_lshl_b32 s60, s48, 7")
    a("s_lshl_b32 s61, s50, 2")
    a("s_add_u32 s60, s60, s61")
    a("v_mov_b32 v156, s60")
    a("s_waitcnt vmcnt(0)")
    publish()
    a.stamp(3)
    a("s_branch KA_ATT")

    import ka_aux
    ka_aux.gen_aux(a, sig, wait, wait4, lbl, X, gettag, mktag, publish, collect, dsig)
    a("KA_END:")
    a("s_endpgm")
    return a.text(), 168
```

```python
from common import *
from ka import *

def gen_aux(a, sig, wait, wait4, lbl, X, gettag, mktag, publish, collect, dsig):
    import ka
    cmul = ka.cmul if "nopk" in X else ka.cmul_pk
    PSL = 1 if "ps1" in X else 16 if "ps16" in X else 6
    st = (lambda i: None) if "p3st" in X else a.stamp
    a("KA_AUX:")
    a("s_and_b32 s61, s54, 1")
    a("s_lshr_b32 s62, s54, 1")
    a("s_mov_b32 s52, 0")
    srd(a, 44, 34, 35, W2_END)
    a("s_lshl_b32 s63, s2, 2")
    a("s_add_u32 s63, s63, s54")
    a("s_cmp_lg_u32 s63, 3")
    a("s_cbranch_scc1 KA_NOPUB")
    a("s_memrealtime s[64:65]")
    a("s_waitcnt lgkmcnt(0)")
    a("s_or_b32 s64, s64, 1")
    a("v_mov_b32 v160, 0")
    a("v_mov_b32 v161, s64")
    a("s_mov_b64 exec, 1")
    a("global_store_dword v160, v161, s[32:33] sc1")
    a("s_mov_b64 exec, -1")
    a("KA_NOPUB:")
    a("v_and_b32 v7, 31, v1")
    a("s_lshl_b32 s63, s54, 11")
    a(f"s_add_u32 s63, s63, {L_XCH}")
    a("v_add_u32 v16, s63, v4")
    a(f"s_mul_i32 s63, s62, {KPROW}")
    a(f"s_add_u32 s63, s63, {L_KP}")
    a("v_lshl_add_u32 v19, v7, 4, s63")
    a("s_lshl_b32 s64, s62, 2")
    a(f"v_add_u32 v167, s64, v{VSY}")
    a("v_lshrrev_b32 v32, 2, v7")
    a("v_lshlrev_b32 v32, 3, v32")
    a("v_sub_u32 v33, 4120, v32")
    a("v_lshl_add_u32 v33, v3, 4, v33")
    a("v_not_b32 v32, v7")
    a("v_and_b32 v32, 3, v32")
    a(f"v_mul_u32_u24 v32, {KPC}, v32")
    a("s_lshl_b32 s64, s61, 6")
    a("s_add_u32 s64, s64, s63")
    a(f"s_sub_u32 s64, s64, {127*32}")
    a("v_add3_u32 v38, v32, v33, s64")
    a("v_mul_u32_u24 v39, 144, v7")
    a("v_lshl_add_u32 v39, v3, 4, v39")
    a("s_lshl_b32 s64, s62, 6")
    a("s_mul_i32 s65, s61, 144")
    a("s_add_u32 s64, s64, s65")
    a(f"s_add_u32 s64, s64, {L_U}")
    a("v_add_u32 v39, s64, v39")
    a("s_lshl_b32 s64, s54, 6")
    for k, r in enumerate((2, 5, 6)):
        a("v_add_u32 v32, s64, v1")
        if k: a(f"v_add_u32 v32, {256*k}, v32")
        a("v_mul_u32_u24 v33, 7282, v32")
        a("v_lshrrev_b32 v33, 16, v33")
        a("v_mul_u32_u24 v34, 9, v33")
        a("v_sub_u32 v34, v32, v34")
        a("v_min_u32 v34, 7, v34")
        a("v_lshlrev_b32 v34, 4, v34")
        a(f"v_lshl_add_u32 v{r}, v33, 7, v34")
    a("s_lshl_b32 s74, s50, 13")
    a("s_add_u32 s74, s74, s51")
    a(f"s_add_u32 s74, s74, {G_UT}")
    a("s_lshl_b32 s75, s54, 10")
    a(f"s_add_u32 s75, s75, {L_U+31*144}")
    a("s_lshl_b32 s60, s54, 2")
    a(f"s_add_u32 s60, s60, {L_SY+S_UA}")
    a("s_lshl_b32 s58, s61, 12")
    a("s_sub_u32 s58, 2048, s58")
    a(f"s_mov_b32 s63, {hex(LOG2E_HI)}")
    a("s_waitcnt vmcnt(7)")
    a("v_mul_f32 v17, s63, v14")
    a("v_fma_f32 v18, v14, s63, -v17")
    a(f"v_fmac_f32 v18, {hex(LOG2E_LO)}, v14")
    a("v_exp_f32 v17, v17")
    a(f"v_mul_f32 v18, {hex(LN2)}, v18")
    a("v_fma_f32 v17, v17, v18, v17")
    a("v_cvt_pk_bf16_f32 v17, v17, v17")
    a("v_and_b32 v17, 0xffff0000, v17")
    a("s_waitcnt vmcnt(0)")
    st(1)
    for r in (8, 9, 10, 11):
        a(f"v_mul_f32 v{r}, v17, v{r}")
    a("v_mul_f32 v8, s63, v8")
    a("v_mul_f32 v9, 0.15915494, v9")
    W1, W8, W256, W2, W4, W16 = 20, 22, 24, 26, 28, 30
    tmp = 32
    for k, mult in enumerate((1.0, 8.0, 256.0)):
        t = tmp + 2 * k
        a(f"v_mul_f32 v{t}, {hex(f2u(mult))}, v8")
        a(f"v_mul_f32 v{t+1}, {hex(f2u(mult))}, v9")
    for k in range(3):
        t = tmp + 2 * k
        a(f"v_exp_f32 v{t}, v{t}")
        a(f"v_fract_f32 v{t+1}, v{t+1}")
    for k, wr in enumerate((W1, W8, W256)):
        t = tmp + 2 * k
        a(f"v_cos_f32 v{wr}, v{t+1}")
        a(f"v_sin_f32 v{wr+1}, v{t+1}")
    U = {}
    nxt = [40]
    def newU(av):
        U[av] = nxt[0]; nxt[0] += 2
        return U[av]
    for l in cmul(newU(0), 12, 10): a(l)
    for k, wr in enumerate((W1, W8, W256)):
        t = tmp + 2 * k
        a(f"v_mul_f32 v{wr}, v{t}, v{wr}")
        a(f"v_mul_f32 v{wr+1}, v{t}, v{wr+1}")
    for l in interleave([cmul(W2, W1, W1), cmul(W16, W8, W8)]): a(l)
    for l in cmul(W4, W2, W2): a(l)
    WA, WB, WR, WI, UR, UI = 96, 100, 112, 128, 144, 96
    wops = [f"v_cvt_pk_bf16_f32 v{WR+15}, v{W8}, 1.0", f"v_cvt_pk_bf16_f32 v{WI+15}, v{W8+1}, 0"]
    ca, cb = W16, None
    wops += cmul(WB, W8, W16); cb = WB
    for k in range(1, 16):
        pk = [f"v_cvt_pk_bf16_f32 v{WR+15-k}, v{cb}, v{ca}", f"v_cvt_pk_bf16_f32 v{WI+15-k}, v{cb+1}, v{ca+1}"]
        if k < 15:
            na, nb = WA + 2 * (k & 1), WB + 2 * (k & 1)
            wops += interleave([cmul(na, ca, W16), cmul(nb, cb, W16), pk])
            ca, cb = na, nb
        else:
            wops += pk
    u1 = []; prev = 0
    for av in (256, 512, 768, 1024, 1280, 1536, 1792):
        u1 += cmul(newU(av), U[prev], W256); prev = av
    for av in (1024, 1280, 1536, 1792):
        u1 += cmul(newU(av + 8), U[av], W8)
    for av in (516, 520):
        u1 += cmul(newU(av), U[av - 4], W4)
    u2 = []
    for av in range(1, 9):
        u2 += cmul(newU(av), U[av - 1], W1)
    for av in (258, 260, 262, 264):
        u2 += cmul(newU(av), U[av - 2], W2)
    for av in (772, 776):
        u2 += cmul(newU(av), U[av - 4], W4)
    assert nxt[0] <= 96
    for l in interleave([wops, interleave([u1, u2])]): a(l)
    rows = [0,1,2,3,4,5,6,7, 256,258,260,4,260,262,264,8, 512,516,520,520,768,772,776,776,
            1024,1032,1280,1288,1536,1544,1792,1800]
    for p in range(16):
        x, y = U[rows[2*p]], U[rows[2*p+1]]
        a(f"v_cvt_pk_bf16_f32 v{UR+p}, v{x}, v{y}")
        a(f"v_cvt_pk_bf16_f32 v{UI+p}, -v{x+1}, -v{y+1}")
    TD, ES, Z, KD = 40, 72, 88, 20
    a("v_and_b32 v36, 1, v1")
    a("v_lshlrev_b32 v36, 4, v36")
    a("v_mov_b32 v37, 0x3f80")
    a("v_lshlrev_b32 v36, v36, v37")
    a("v_bfe_u32 v37, v1, 1, 2")
    for d in range(4):
        a(f"v_cmp_eq_u32 s[{64+2*d}:{65+2*d}], {d}, v37")
    a("s_nop 0")
    for d in range(4):
        a(f"v_cndmask_b32 v{Z+d}, 0, v36, s[{64+2*d}:{65+2*d}]")
    nb = [0]
    def bar(n=1):
        for _ in range(n):
            a("s_barrier"); nb[0] += 1
    first = True
    NPRE = 4 if "b4" in X else 3 if "b3" in X else 2
    a("s_load_dword s52, s[32:33], 0")
    blk = 0
    for sx in range(2):
        for q in range(4):
            a(f"s_mov_b32 s{64+sx}, {hex(0xff << (8*q))}")
            a(f"s_mov_b32 s{65-sx}, 0")
            for d in range(4):
                a(f"v_cndmask_b32 v{ES+4*q+d}, 0, v{Z+d}, s[64:65]")
        for (XU, XW) in ((UR, WR), (UI, WI)):
            if blk == NPRE: st(2)
            if blk >= NPRE: bar()
            a("s_nop 1")
            for q in range(4):
                for t, Xm in enumerate((XU, XW)):
                    c = "0" if q == 0 else vr(TD+16*t, 16)
                    a(f"{MF} {vr(TD+16*t,16)}, {vr(Xm+4*q,4)}, {vr(ES+4*q,4)}, {c}")
            if blk >= NPRE: bar()
            a("s_nop 11")
            for t in range(2):
                for i in range(8):
                    a(f"v_cvt_pk_bf16_f32 v{TD+16*t+i}, v{TD+16*t+2*i}, v{TD+16*t+2*i+1}")
            a("s_nop 1")
            for i in range(2):
                c = "0" if first else vr(KD, 16); first = False
                a(f"{MF} {vr(KD,16)}, {vr(TD+4*i,4)}, {vr(TD+16+4*i,4)}, {c}")
            blk += 1
    if NPRE == 4: st(2)
    a("v_lshlrev_b32 v157, 2, v7")
    a("v_lshlrev_b32 v156, 2, s50")
    a("v_mov_b32 v154, 0x7ffffff0")
    bar(4 - nb[0])
    gettag()
    mktag(0)
    a("s_cmp_lg_u32 s54, 0")
    a("s_cbranch_scc1 KA_NPB")
    publish()
    a("v_mov_b32 v8, s52")
    a(f"ds_write_b32 v{VSY}, v8 offset:{S_NONCE}")
    a("KA_NPB:")
    bar()
    a("s_cmp_eq_u32 s61, 0")
    a("s_cbranch_scc1 KA_X0")
    for i in range(8): a(f"v_swap_b32 v{KD+i}, v{KD+8+i}")
    a("KA_X0:")
    a(f"ds_write_b128 v16, {vr(KD+8,4)}")
    a(f"ds_write_b128 v16, {vr(KD+12,4)} offset:1024")
    a("v_add_u32 v17, s58, v16")
    D0, D1, FA, FB, FC = 112, 128, 48, 64, 80
    PW, PG, PA, PF, POF, PWF, POUT, PM = 144, 148, 149, 150, 151, 152, 153, 100
    w = ["v_lshrrev_b32 v8, 3, v1", "v_bfe_u32 v9, v1, 4, 1", "v_lshlrev_b32 v9, 2, v9", "v_and_b32 v10, 7, v1", "v_xor_b32 v9, v9, v10",
         "v_lshlrev_b32 v9, 4, v9", f"v_lshl_add_u32 v{PW}, v8, 10, v9"] + [f"v_add_u32 v{PW+q}, {7168*q}, v{PW}" for q in range(1, 4)]
    w += [f"v_lshlrev_b32 v{PF}, 7, v10", f"v_lshlrev_b32 v{PG}, 3, v7", f"v_lshlrev_b32 v{PA}, 12, v7", f"v_lshl_add_u32 v{PA}, v3, 9, v{PA}",
          f"v_lshlrev_b32 v{POUT}, 10, v7", f"v_lshl_add_u32 v{POUT}, v3, 4, v{POUT}",
          "s_lshl_b32 s63, s61, 15", f"s_add_u32 s63, s63, {L_O}", f"v_add_u32 v{POF}, s63, v4",
          "v_bfe_u32 v8, v1, 2, 2", f"v_lshl_add_u32 v{PWF}, v3, 2, v8", f"v_lshlrev_b32 v{PWF}, 7, v{PWF}", "v_lshrrev_b32 v8, 1, v8", "v_xor_b32 v8, s62, v8",
          f"v_lshl_add_u32 v{PWF}, v8, 6, v{PWF}", "v_bfe_u32 v8, v1, 4, 1", f"v_lshl_add_u32 v{PWF}, v8, 5, v{PWF}", "v_and_b32 v8, 3, v1",
          f"v_lshl_add_u32 v{PWF}, v8, 3, v{PWF}", f"v_add_u32 v{PWF}, {L_WO}, v{PWF}"]
    w += ["v_lshrrev_b32 v8, 3, v7", "v_bfe_u32 v9, v7, 1, 1", "v_lshl_add_u32 v8, v8, 1, v9", "v_bfe_u32 v9, v7, 2, 1", "v_xor_b32 v9, v9, v3",
          "v_lshl_add_u32 v8, v9, 3, v8", "v_and_b32 v9, 1, v7", "v_lshlrev_b32 v9, 4, v9", "v_mov_b32 v10, 0xffff", "v_lshlrev_b32 v9, v9, v10"]
    w += [f"v_cmp_eq_u32 s[{4+2*k}:{5+2*k}], {k}, v8" for k in range(8)] + ["s_nop 0"]
    w += [f"v_cndmask_b32 v{PM+k}, 0, v9, s[{4+2*k}:{5+2*k}]" for k in range(8)]
    n = (len(w) + 3) // 4
    for k in range(4):
        bar()
        for t in w[k*n:(k+1)*n]: a(t)
    a("s_waitcnt lgkmcnt(0)")
    bar()
    a("buffer_load_dword v158, v157, s[44:47], s67 offen sc1")
    a(f"ds_read_b128 {vr(KD+8,4)}, v17")
    a(f"ds_read_b128 {vr(KD+12,4)}, v17 offset:1024")
    bar()
    a("s_waitcnt lgkmcnt(0)")
    for i in range(8):
        a(f"v_add_f32 v{KD+i}, v{KD+i}, v{KD+8+i}")
    def uload():
        l = lbl("UL")
        a("s_mov_b32 m0, s75")
        a("s_cmp_lg_u32 s54, 0")
        a("buffer_load_dwordx4 v2, s[44:47], s74 offen lds")
        a(f"s_cbranch_scc1 {l}")
        a("s_add_u32 m0, s75, 8192")
        a("s_nop 0")
        a("buffer_load_dwordx4 v6, s[44:47], s74 offen lds")
        a(f"{l}:")
        a("s_add_u32 m0, s75, 4096")
        a("s_nop 0")
        a("buffer_load_dwordx4 v5, s[44:47], s74 offen lds")
        dsig("s_mov_b32 m0, s60")
    def tail(work):
        l = lbl("UE")
        n = (len(work) + 3) // 4
        parts = [work[i*n:(i+1)*n] for i in range(4)]
        a("s_barrier")
        for t in parts[0]: a(t)
        a("s_barrier")
        a("s_waitcnt vmcnt(0)")
        a("v_cmp_ne_u32 vcc, s66, v158")
        a("s_mov_b32 s59, 1")
        a(f"s_cbranch_vccnz {l}")
        a("s_mov_b32 s59, 0")
        uload()
        a(f"{l}:")
        a("s_barrier")
        for t in parts[1]: a(t)
        a("s_barrier")
        for t in parts[2]: a(t)
        a("s_barrier")
        st(3)
        for t in parts[3]: a(t)
    assert nb[0] == 11
    a("s_cmp_eq_u32 s61, 0")
    a("s_cbranch_scc0 KA_X1")
    tail(["v_cmp_eq_u32 s[72:73], 31, v1", "v_lshlrev_b32 v8, 3, v3", "v_xor_b32 v8, 8, v8",
          "v_cndmask_b32 v9, 0, v15, s[72:73]", "v_add_u32 v18, v19, v8", f"v_add_f32 v{KD}, v{KD}, v9",
          f"v_add_u32 v36, {KPC-4+3072}, v18", f"v_add_u32 v37, {2*KPC-4+3072}, v18",
          f"v_cvt_pk_bf16_f32 v40, v{KD+3}, v{KD+2}", f"v_cvt_pk_bf16_f32 v41, v{KD+1}, v{KD+0}",
          f"v_cvt_pk_bf16_f32 v42, v{KD+6}, v{KD+5}", f"v_cvt_pk_bf16_f32 v43, v{KD+4}, v{KD+4}",
          f"v_cvt_pk_bf16_f32 v44, v{KD+7}, v{KD+3}", f"v_cvt_pk_bf16_f32 v45, v{KD+2}, v{KD+1}",
          f"v_cvt_pk_bf16_f32 v46, v{KD+6}, v{KD+6}", f"v_cvt_pk_bf16_f32 v47, v{KD+5}, v{KD+4}",
          "v_lshrrev_b32 v9, 16, v41"])
    a("ds_write_b64 v18, v[40:41] offset:3584")
    a("ds_write_b64 v18, v[42:43] offset:3072")
    a("ds_write2_b32 v36, v44, v45 offset0:128 offset1:129")
    a("ds_write2_b32 v36, v46, v47 offset0:0 offset1:1")
    a("ds_write2_b32 v37, v40, v41 offset0:128 offset1:129")
    a("ds_write2_b32 v37, v42, v43 offset0:0 offset1:1")
    a(f"ds_write_b64 v18, v[44:45] offset:{3*KPC-8+3584}")
    a(f"ds_write_b64 v18, v[46:47] offset:{3*KPC-8+3072}")
    a("s_mov_b64 exec, s[72:73]")
    a("ds_write_b32 v36, v9 offset:520")
    a(f"ds_write_b32 v18, v9 offset:{3*KPC+3584}")
    a("s_mov_b64 exec, -1")
    a("s_branch KA_XD")
    a("KA_X1:")
    r8, r9, r10, r12, r13, r14, r15 = [KD + i for i in (0, 1, 2, 4, 5, 6, 7)]
    E = [(r10, r10), (r9, r9), (r9, r8), (r8, r8), (r13, r13), (r13, 36), (r12, r12), (r12, r12), (r15, r15), (r15, 37), (r14, r14), (r14, r14)]
    O = [(r10, r10), (r10, r9), (r9, r9), (r8, r8), (r13, r13), (r13, r13), (36, r12), (r12, r12), (r15, r15), (r15, r15), (37, r14), (r14, r14)]
    w = ["v_and_b32 v8, 1, v1", "v_cmp_eq_u32 s[72:73], 1, v8", "v_lshlrev_b32 v8, 9, v3", "v_sub_u32 v19, v19, v8", "v_sub_u32 v18, v19, v8",
         f"v_cndmask_b32 v36, v{r13}, v{r12}, s[72:73]", f"v_cndmask_b32 v37, v{r15}, v{r14}, s[72:73]"]
    for k, c in enumerate((1, 2)):
        w += [f"v_add_u32 v{64+2*k}, {c*KPC-4+2560}, v19", f"v_add_u32 v{65+2*k}, {c*KPC-4+1024}, v18"]
    w += [f"v_cvt_pk_bf16_f32 v{40+i}, v{x}, v{y}" for i, (x, y) in enumerate(E + O)]
    tail(w)
    a("ds_write_b128 v19, v[40:43] offset:2560")
    a("ds_write_b128 v18, v[44:47] offset:1536")
    a("ds_write_b128 v18, v[48:51] offset:1024")
    for k, R in enumerate((52, 40)):
        for hf in range(2):
            a(f"ds_write2_b32 v{64+2*k}, v{R+2*hf}, v{R+2*hf+1} offset0:{2*hf} offset1:{2*hf+1}")
            a(f"ds_write2_b32 v{65+2*k}, v{R+4+2*hf}, v{R+4+2*hf+1} offset0:{128+2*hf} offset1:{129+2*hf}")
            a(f"ds_write2_b32 v{65+2*k}, v{R+8+2*hf}, v{R+8+2*hf+1} offset0:{2*hf} offset1:{2*hf+1}")
    for hf in range(2):
        a(f"ds_write_b64 v19, {vr(52+2*hf,2)} offset:{3*KPC-8+2560+8*hf}")
        a(f"ds_write_b64 v18, {vr(56+2*hf,2)} offset:{3*KPC-8+1536+8*hf}")
        a(f"ds_write_b64 v18, {vr(60+2*hf,2)} offset:{3*KPC-8+1024+8*hf}")
    a("KA_XD:")
    sig(S_UDONE)
    for i in range(32): a(f"v_mov_b32 v{D0+i}, 0")
    st(4)
    a("s_cmp_eq_u32 s59, 0")
    a("s_cbranch_scc1 KA_UOK")
    collect(False, "s_cmp_eq_u32 s54, 0")
    uload()
    a("KA_UOK:")
    wait(S_UDONE, 5)
    st(5)
    wait4(S_UA)
    st(6)
    if "noaux" in X: a("s_branch KA_AUXEND")
    def rdA(slot, step):
        o = 128 * (step >> 1) + 32 * (step & 1)
        a(f"ds_read_b64 {vr(FA+4*slot,2)}, v38 offset:{o}")
        a(f"ds_read_b64 {vr(FA+4*slot+2,2)}, v38 offset:{o+8}")
    def rdB(R, slot, step, extra=0):
        a(f"ds_read_b128 {vr(R+4*slot,4)}, v39 offset:{288*(step>>1)+32*(step&1)+extra}")
    for s in range(4): rdA(s, s); rdB(FB, s, s)
    a("s_mov_b32 s63, 4")
    a("KA_CV1:")
    for s in range(8):
        a("s_waitcnt lgkmcnt(9)")
        a(f"{MF} {vr(D1,16)}, {vr(FA+4*(s&3),4)}, {vr(FB+4*(s&3),4)}, {vr(D1,16)}")
        rdA(s & 3, s + 4); rdB(FB, s & 3, s + 4)
    a("v_add_u32 v38, 512, v38")
    a(f"v_add_u32 v39, {288*4}, v39")
    a("s_sub_u32 s63, s63, 1")
    a("s_cmp_lg_u32 s63, 0")
    a("s_cbranch_scc1 KA_CV1")
    a(f"v_subrev_u32 v39, {32*144}, v39")
    a("s_waitcnt lgkmcnt(9)")
    for s in range(4): rdB(FC, s, s)
    a("s_waitcnt lgkmcnt(0)")
    a("s_mov_b32 s63, 4")
    a("KA_CV2:")
    for s in range(8):
        a("s_waitcnt lgkmcnt(11)")
        a(f"{MF} {vr(D1,16)}, {vr(FA+4*(s&3),4)}, {vr(FB+4*(s&3),4)}, {vr(D1,16)}")
        rdB(FB, s & 3, s + 4, 32 * 144)
        a(f"{MF} {vr(D0,16)}, {vr(FA+4*(s&3),4)}, {vr(FC+4*(s&3),4)}, {vr(D0,16)}")
        rdA(s & 3, s + 4); rdB(FC, s & 3, s + 4)
    a("v_add_u32 v38, 512, v38")
    a(f"v_add_u32 v39, {288*4}, v39")
    a("s_sub_u32 s63, s63, 1")
    a("s_cmp_lg_u32 s63, 0")
    a("s_cbranch_scc1 KA_CV2")
    st(7)
    a("s_lshl_b32 s63, s54, 12")
    a(f"s_add_u32 s63, s63, {L_CX}")
    a("v_add_u32 v13, s63, v4")
    a("v_xor_b32 v14, 4096, v13")
    wait(S_QRDY, 4)
    a("s_cmp_eq_u32 s61, 0")
    a("s_cbranch_scc0 KA_CVS")
    for i in range(4): a(f"ds_write_b128 v13, {vr(D1+4*i,4)} offset:{1024*i}")
    sig(S_CV, 167)
    wait(S_CV, 2, 167, nap=1)
    for i in range(4): a(f"ds_read_b128 {vr(D1+4*i,4)}, v14 offset:{1024*i}")
    a("s_branch KA_CVJ")
    a("KA_CVS:")
    for i in range(4): a(f"ds_write_b128 v13, {vr(D0+4*i,4)} offset:{1024*i}")
    sig(S_CV, 167)
    wait(S_CV, 2, 167, nap=1)
    for i in range(4): a(f"ds_read_b128 {vr(D0+4*i,4)}, v14 offset:{1024*i}")
    a("KA_CVJ:")
    a("s_lshl_b32 s56, s49, 2")
    a("s_and_b32 s57, s50, 3")
    a("s_add_u32 s56, s56, s57")
    a("s_lshr_b32 s57, s50, 2")
    a("s_lshl_b32 s72, s56, 11")
    a(f"s_add_u32 s72, s72, {W2_FO}")
    a("s_lshl_b32 s65, s56, 1")
    a("s_add_u32 s65, s65, s61")
    a("s_lshl_b32 s63, s57, 1")
    a("s_add_u32 s63, s63, s62")
    a("s_lshl_b32 s74, s63, 6")
    a("s_lshl_b32 s64, s65, 15")
    a("s_add_u32 s74, s74, s64")
    a("s_lshl_b32 s73, s63, 17")
    a("s_lshr_b32 s64, s65, 5")
    a("s_lshl_b32 s64, s64, 11")
    a("s_add_u32 s73, s73, s64")
    a("s_and_b32 s64, s65, 31")
    a("s_lshl_b32 s64, s64, 4")
    a("s_add_u32 s73, s73, s64")
    a(f"s_add_u32 s73, s73, {W2_GA}")
    a("s_lshl_b32 s75, s65, 8")
    a(f"s_add_u32 s75, s75, {W2_G}")
    a("v_mov_b32 v155, s52")
    a("s_lshl_b32 s63, s55, 13")
    a("s_lshl_b32 s64, s54, 11")
    a("s_add_u32 s63, s63, s64")
    a(f"s_add_u32 s63, s63, {W2_GA}")
    a("s_waitcnt lgkmcnt(0)")
    sig(S_CD)
    for i in range(16): a(f"v_add_f32 v{D0+i}, v{D0+i}, v{D1+i}")
    for i in range(8): a(f"v_cvt_pk_bf16_f32 v{64+i}, v{D0+2*i}, v{D0+2*i+1}")
    a("buffer_store_dwordx4 v[64:67], v4, s[44:47], s63 offen sc1")
    a("buffer_store_dwordx4 v[68:71], v4, s[44:47], s63 offen offset:1024 sc1")
    if "nop3" in X: a("s_branch KA_AUXEND")
    a("s_lshl_b32 s63, s50, 2")
    a("s_add_u32 s63, s63, s54")
    a("s_lshl_b32 s63, s63, 12")
    a("s_add_u32 s64, s26, s63")
    a("s_addc_u32 s65, s27, 0")
    def touch(off):
        a(f"s_load_dwordx2 s[68:69], s[64:65], {off+60}")
    for i in range(7): touch(128*i)
    a("s_waitcnt vmcnt(0)")
    a("s_mov_b64 exec, 1")
    a(f"ds_add_rtn_u32 v{VTMP}, v{VSY}, v{VONE} offset:{S_PC}")
    a("s_waitcnt lgkmcnt(0)")
    a(f"v_readfirstlane_b32 s76, v{VTMP}")
    a("s_cmp_lg_u32 s76, 3")
    a("s_cbranch_scc1 KA_NCL")
    a("buffer_store_dword v155, v156, s[44:47], s67 offen offset:2048 sc1")
    a("KA_NCL:")
    a("s_mov_b64 exec, -1")
    wait(S_CD, 5, nap=4)
    a("s_cmp_lg_u32 s54, 0")
    a("s_cbranch_scc1 KA_NOGP")
    a("s_lshl_b32 s63, s50, 11")
    a(f"s_add_u32 s63, s63, {W2_FO}")
    a("v_lshlrev_b32 v8, 2, s49")
    a("s_mov_b64 exec, 1")
    a("buffer_store_dword v155, v8, s[44:47], s63 offen offset:1024 sc1")
    a("s_mov_b64 exec, -1")
    a("KA_NOGP:")
    for i in range(7, 32): touch(128*i)
    a("s_lshl_b32 s63, s50, 16")
    a("s_lshl_b32 s64, s49, 12")
    a("s_add_u32 s63, s63, s64")
    a("s_lshl_b32 s64, s54, 10")
    a("s_add_u32 s63, s63, s64")
    a(f"s_add_u32 s63, s63, {W2_O}")
    a("s_add_u32 s64, s34, s63")
    a("s_addc_u32 s65, s35, 0")
    for i in range(16):
        if "o2" in X: touch((i>>3)*32768+(i&7)*128)
        else: a(f"s_load_dword s68, s[64:65], {(i>>3)*32768+(i&7)*128}")
    a("s_lshl_b32 s63, s50, 11")
    a("s_lshl_b32 s64, s49, 7")
    a("s_add_u32 s63, s63, s64")
    a(f"s_add_u32 s63, s63, {W2_FO}")
    a("s_load_dword s68, s[34:35], s63")
    srd(a, 36, 26, 27, 512 * 512 * 2)
    srd(a, 40, 30, 31, 2048 * 512 * 2)
    a(f"s_mul_i32 s63, s57, {GRS}")
    a(f"s_add_u32 s63, s63, {G_FL+2048}")
    a("s_add_u32 s64, s34, s63")
    a("s_addc_u32 s65, s35, 0")
    a("s_add_u32 s70, s72, 1024")
    a("s_waitcnt lgkmcnt(0)")
    if "p3st" in X: a.stamp(1)
    a("s_mov_b32 s71, 0")
    a("s_load_dwordx16 s[4:19], s[64:65], 0")
    a("s_load_dwordx8 s[20:27], s[34:35], s70")
    a("s_waitcnt lgkmcnt(0)")
    for r in range(4, 28):
        a(f"s_xor_b32 s{r}, s{r}, s52")
        a(f"s_or_b32 s71, s71, s{r}")
    a("s_load_dwordx16 s[4:19], s[64:65], 64")
    a("s_waitcnt lgkmcnt(0)")
    for r in range(4, 20):
        a(f"s_xor_b32 s{r}, s{r}, s52")
        a(f"s_or_b32 s71, s71, s{r}")
    a("s_cbranch_scc0 KA_PCD")
    a("v_and_b32 v9, 7, v1")
    a("v_lshlrev_b32 v9, 2, v9")
    a(f"s_mov_b32 s69, {SLOW_TRIES}")
    a("KA_PC:")
    a("s_sleep 32")
    a("buffer_load_dword v10, v157, s[44:47], s63 offen sc1")
    a("buffer_load_dword v11, v9, s[44:47], s70 offen sc1")
    a("s_waitcnt vmcnt(0)")
    a("v_cmp_ne_u32 vcc, s52, v10")
    a("v_cmp_ne_u32 s[4:5], s52, v11")
    a("s_or_b64 vcc, vcc, s[4:5]")
    a("s_cbranch_scc0 KA_PCD")
    a("s_sub_u32 s69, s69, 1")
    a("s_cbranch_scc0 KA_PC")
    a("KA_PCD:")
    if "p3st" in X: a.stamp(2)
    a("s_lshl_b32 s63, s50, 4")
    a("s_lshl_b32 s64, s54, 2")
    a("s_add_u32 s63, s63, s64")
    a("s_lshl_b32 s63, s63, 12")
    a("s_lshr_b32 s64, s49, 2")
    a("s_lshl_b32 s64, s64, 11")
    a("s_add_u32 s63, s63, s64")
    a("s_and_b32 s64, s49, 3")
    a("s_lshl_b32 s64, s64, 7")
    a("s_add_u32 s63, s63, s64")
    a(f"s_add_u32 s63, s63, {W2_GA}")
    a("s_add_u32 s64, s34, s63")
    a("s_addc_u32 s65, s35, 0")
    for i in range(16): touch((i>>2)*4096+(i&3)*512)
    a("s_lshl_b32 s63, s62, 7")
    a("s_add_u32 s63, s63, s75")
    a("s_add_u32 s63, s63, 60")
    a("s_load_dwordx2 s[68:69], s[34:35], s63")
    a("s_lshl_b32 s58, s54, 12")
    a(f"s_add_u32 s58, s58, {L_WO}")
    a("s_lshl_b32 s59, s54, 15")
    a("s_lshl_b32 s63, s57, 7")
    a("s_add_u32 s59, s59, s63")
    for c in range(4):
        a(f"s_add_u32 s63, s57, {c}")
        a("s_and_b32 s63, s63, 3")
        a("s_lshl_b32 s63, s63, 17")
        a(f"s_add_u32 m0, s58, {16384*c}")
        a("s_add_u32 s63, s63, s59")
        for q in range(4):
            a(f"buffer_load_dwordx4 v{PW+q}, s[36:39], s63 offen offset:{1024*q} lds")
            if q == 3 and c < 3: a("s_waitcnt vmcnt(0)")
    dsig(f"s_add_u32 m0, s60, {S_WA-S_UA}")
    D, DA, GA, DG = 112, 128, 32, 40
    a("s_lshl_b32 s58, s62, 15")
    a("s_lshl_b32 s59, s61, 12")
    a("s_add_u32 s58, s58, s59")
    a("s_lshl_b32 s59, s56, 16")
    a("s_add_u32 s59, s59, s58")
    a(f"s_add_u32 s59, s59, {W2_O}")
    a(f"s_add_u32 s58, s58, {L_O}")
    a("s_waitcnt lgkmcnt(0)")
    a(f"buffer_load_dwordx2 v[14:15], v{PG}, s[44:47], s75 offen sc1")
    a(f"buffer_load_dwordx4 {vr(GA,4)}, v{PA}, s[44:47], s73 offen sc1")
    a("s_waitcnt vmcnt(0)")
    a(f"buffer_load_dwordx4 {vr(GA+4,4)}, v{PA}, s[44:47], s73 offen offset:1024 sc1")
    a("v_lshrrev_b32 v13, 16, v14")
    a("v_or_b32 v13, v13, v14")
    for k in range(8):
        a(f"v_and_b32 v{DG+k}, v13, v{PM+k}")
    a("s_waitcnt vmcnt(0)")
    a("s_nop 0")
    a(f"{MF} {vr(DA,16)}, {vr(GA,4)}, {vr(DG,4)}, 0")
    a(f"{MF} {vr(DA,16)}, {vr(GA+4,4)}, {vr(DG+4,4)}, {vr(DA,16)}")
    wait4(S_WA, nap=4)
    if "p3st" in X: a.stamp(3)
    if "wb" in X:
        a("s_lshl_b32 s63, s50, 2")
        a("s_add_u32 s63, s63, s54")
        a("s_cmp_lg_u32 s63, 0")
        a("s_cbranch_scc1 KA_NOWB")
        wait(S_WB, 1, nap=32)
        a("buffer_wbl2 sc1")
        a("KA_NOWB:")
    a("s_cmp_lg_u32 s54, 1")
    a("s_cbranch_scc1 KA_POW")
    wait(S_FIN, 8, nap=8)
    if "p3st" in X: a.stamp(4)
    a(f"s_mov_b32 s69, {SLOW_TRIES}")
    a("KA_PO:")
    a(f"s_sleep {PSL}")
    a(f"buffer_load_dword v10, v{PF}, s[44:47], s72 offen sc1")
    a("s_waitcnt vmcnt(0)")
    a("v_cmp_ne_u32 vcc, s52, v10")
    a("s_cbranch_vccz KA_POD")
    a("s_sub_u32 s69, s69, 1")
    a("s_cbranch_scc0 KA_PO")
    a("KA_POD:")
    wait(S_OD, 8)
    sig(S_PO)
    a("s_branch KA_POE")
    a("KA_POW:")
    wait(S_FIN, 8, nap=16)
    wait(S_PO, 1)
    a("KA_POE:")
    if "p3st" in X: a.stamp(5)
    for c in range(4):
        a(f"s_add_u32 s63, s57, {c}")
        a("s_and_b32 s63, s63, 3")
        a("s_lshl_b32 s63, s63, 13")
        a(f"s_add_u32 m0, s58, {8192*c}")
        a("s_add_u32 s63, s63, s59")
        for q in range(4): a(f"buffer_load_dwordx4 v4, s[44:47], s63 offen offset:{1024*q} sc1 lds")
        dsig(f"s_add_u32 m0, s60, {S_OA-S_UA+16*c}")
    def rdw(slot, hd):
        a(f"ds_read_b64_tr_b16 {vr(FA+4*slot,2)}, v{PWF} offset:{2048*hd}")
        a(f"ds_read_b64_tr_b16 {vr(FA+4*slot+2,2)}, v{PWF} offset:{2048*hd+1024}")
    def rdo(slot, hd):
        a(f"ds_read_b128 {vr(FC+4*slot,4)}, v{POF} offset:{1024*hd}")
    for c in range(4):
        for s in range(7): rdw(s, 8*c + s)
        wait4(S_OA + 16*c)
        if c == 0 and "p3st" in X: a.stamp(6)
        rdw(7, 8*c + 7)
        for s in range(8): rdo(s, 8*c + s)
        for s in range(8):
            a(f"s_waitcnt lgkmcnt({7-s})")
            cc = "0" if c == 0 and s == 0 else vr(D, 16)
            a(f"{MF} {vr(D,16)}, {vr(FA+4*s,4)}, {vr(FC+4*s,4)}, {cc}")
    if "p3st" in X: a.stamp(7)
    a("s_nop 11")
    for i in range(16): a(f"v_fmac_f32 v{DA+i}, v15, v{D+i}")
    for i in range(8): a(f"v_cvt_pk_bf16_f32 v{GA+i}, v{DA+2*i}, v{DA+2*i+1}")
    a("s_nop 1")
    a(f"v_permlane32_swap_b32 v{GA}, v{GA+2}")
    a(f"v_permlane32_swap_b32 v{GA+1}, v{GA+3}")
    a(f"v_permlane32_swap_b32 v{GA+4}, v{GA+6}")
    a(f"v_permlane32_swap_b32 v{GA+5}, v{GA+7}")
    a(f"buffer_store_dwordx4 {vr(GA,4)}, v{POUT}, s[40:43], s74 offen")
    a(f"buffer_store_dwordx4 {vr(GA+4,4)}, v{POUT}, s[40:43], s74 offen offset:32")
    a("KA_AUXEND:")
    a.end(0)
```

```python
import sys
sys.path.insert(0, "gen")
from common import *
import ka
NAME = "gated_mix__ssm_conv_s4__softmax_full_mha__prompt_kernel"
def build(X=()):
    hdr = open("gated_mix__ssm_conv_s4__softmax_full_mha__prompt.s.ref").read().split("; Override launch")[0]
    t1, v1 = ka.gen_ka(NAME, X)
    L = f"; @launch kernel={NAME} grid=(256,1,1) block=(768,1,1) lds={ka.KA_LDS}" if "list" in X else f"; @launch grid=(256,1,1) block=(768,1,1) lds={ka.KA_LDS}"
    s = hdr + L + "\n"
    s += '.amdgcn_target "amdgcn-amd-amdhsa--gfx950"\n.text\n' + t1
    s += '.section .rodata,"a"\n.p2align 6\n' + kd(NAME, v1)
    return s
if __name__ == "__main__":
    out = sys.argv[1]
    if sys.argv[2] == "diag": DIAG[0] = True
    open(out, "w").write(build(tuple(sys.argv[3:])))
```

```python
from common import *
import math, struct
LOG2E = 1.4426950408889634
LOG2E_HI = f2u(LOG2E)
_hi = struct.unpack("<f", struct.pack("<I", LOG2E_HI))[0]
LOG2E_LO = f2u(LOG2E - _hi)
LN2 = f2u(math.log(2.0))
QSCALE = f2u(0.25 * LOG2E)
MF = "v_mfma_f32_32x32x16_bf16"

L_X, L_W = 0, 65536
NSLOT = 6
L_OX = 0
L_Q = 114688
L_WO, L_GA, L_GT = 24576, 90112, 98304
L_CX = 73728
L_KP, KPC = 18688, 8384
L_U = 139264
L_XCH = 153600
L_GW = 161792
L_SY = 162816
KA_LDS = 163840
S_UA, S_WA, S_OA = 0, 16, 32
S_WB, S_UDONE, S_QRDY, S_NONCE, S_CV, S_OX, S_CD, S_FIN, S_PO, S_PC, S_OD, S_GO, S_FX, S_DONE = 96, 100, 104, 108, 112, 128, 144, 148, 152, 156, 160, 164, 168, 176
VSY, VONE, VTMP, VT4 = 164, 165, 166, 160
UNR = 4
PRIO1, PRIO0, WBIT, NEARLY = 6, 7, 4, 3
LDS_SPIN = 1 << 20
FAST_TRIES = 64
SLOW_TRIES = 20000

def interleave(chains):
    out = []
    chains = [list(c) for c in chains]
    while any(chains):
        for c in chains:
            if c: out.append(c.pop(0))
    return out

def cmul(d, x, w):
    return [f"v_mul_f32 v{d}, v{x}, v{w}", f"v_mul_f32 v{d+1}, v{x}, v{w+1}",
            f"v_fma_f32 v{d}, -v{x+1}, v{w+1}, v{d}", f"v_fmac_f32 v{d+1}, v{x+1}, v{w}"]
def cmul_pk(d, x, w):
    return [f"v_pk_mul_f32 {vr(d,2)}, {vr(x,2)}, {vr(w,2)} op_sel:[0,0] op_sel_hi:[0,1]",
            f"v_pk_fma_f32 {vr(d,2)}, {vr(x,2)}, {vr(w,2)}, {vr(d,2)} op_sel:[1,1,0] op_sel_hi:[1,0,1] neg_lo:[0,1,0]"]

def gen_ka(name, X=()):
    a = Asm()
    NT = " nt" if "nt" in X else ""
    NW = " nt" if "ntw" in X else ""
    NX = " nt" if "ntx" in X else ""
    NP = " nt" if "ntp" in X else ""
    NK = " nt" if "ntk" in X else ""
    PSL = 2 if "ps2" in X else 8 if "ps8" in X else 5
    cnt = [0]
    def lbl(p):
        cnt[0] += 1
        return f"KA_{p}{cnt[0]}"
    def sig(off, addr=VSY, val=VONE):
        a("s_mov_b64 exec, 1")
        a(f"ds_add_u32 v{addr}, v{val} offset:{off}")
        a("s_mov_b64 exec, -1")
    def wait(off, n, addr=VSY, out=76, nap=0):
        l, e = lbl("W"), lbl("E")
        a(f"s_mov_b32 s77, {LDS_SPIN}")
        if nap:
            a(f"s_branch {l}F")
        a(f"{l}:")
        if nap:
            a(f"s_sleep {nap}")
            a(f"{l}F:")
        a(f"ds_read_b32 v{VTMP}, v{addr} offset:{off}")
        a("s_sub_u32 s77, s77, 1")
        a("s_cbranch_scc1 " + e)
        a("s_waitcnt lgkmcnt(0)")
        a(f"v_readfirstlane_b32 s{out}, v{VTMP}")
        a(f"s_cmp_lt_u32 s{out}, {n}")
        a("s_cbranch_scc1 " + l)
        a(f"{e}:")
    def wait4(off, addr=VSY, nap=0):
        l, e = lbl("W"), lbl("E")
        a(f"s_mov_b32 s77, {LDS_SPIN}")
        if nap:
            a(f"s_branch {l}F")
        a(f"{l}:")
        if nap:
            a(f"s_sleep {nap}")
            a(f"{l}F:")
        a(f"ds_read_b128 {vr(VT4,4)}, v{addr} offset:{off}")
        a("s_sub_u32 s77, s77, 1")
        a("s_cbranch_scc1 " + e)
        a("s_waitcnt lgkmcnt(0)")
        a(f"v_or3_b32 v{VT4}, v{VT4}, v{VT4+1}, v{VT4+2}")
        a(f"v_or_b32 v{VT4}, v{VT4}, v{VT4+3}")
        a(f"v_cmp_ne_u32 vcc, 0, v{VT4}")
        a("s_cbranch_vccnz " + l)
        a(f"{e}:")
    def gettag():
        l, ok = lbl("TL"), lbl("TK")
        a("s_waitcnt lgkmcnt(0)")
        a("s_cmp_lg_u32 s52, 0")
        a(f"s_cbranch_scc1 {ok}")
        a("v_mov_b32 v155, 0")
        a(f"s_mov_b32 s69, {SLOW_TRIES}")
        a(f"{l}:")
        a("global_load_dword v158, v155, s[32:33] sc1")
        a("s_waitcnt vmcnt(0)")
        a("v_readfirstlane_b32 s52, v158")
        a("s_cmp_lg_u32 s52, 0")
        a(f"s_cbranch_scc1 {ok}")
        a("s_sub_u32 s69, s69, 1")
        a(f"s_cbranch_scc0 {l}")
        a("s_mov_b32 s52, 1")
        a(f"{ok}:")
    def dsig(m0expr):
        a(m0expr)
        a("s_mov_b64 exec, 1")
        a("buffer_load_dword v154, s[44:47], 0 offen lds")
        a("s_mov_b64 exec, -1")
    def mktag(fl_off):
        a("s_getreg_b32 s66, hwreg(HW_REG_XCC_ID)")
        a("s_and_b32 s66, s66, 15")
        a("s_add_u32 s66, s66, 1")
        a("s_lshl_b32 s66, s66, 1")
        a("s_xor_b32 s66, s66, s52")
        a(f"s_add_u32 s67, s51, {G_FL + fl_off}")
    def publish():
        a("v_mov_b32 v155, s66")
        a("s_mov_b64 exec, 1")
        a("buffer_store_dword v155, v156, s[44:47], s67 offen")
        a("s_mov_b64 exec, -1")
    def collect(wide, own, lanes=1):
        lf, ls, done = lbl("GF"), lbl("GS"), lbl("GD")
        def ld(r, off):
            if wide: a(f"buffer_load_dwordx2 v[{r}:{r+1}], v157, s[44:47], s67 offen offset:{off} sc1")
            else: a(f"buffer_load_dword v{r}, v157, s[44:47], s67 offen offset:{off} sc1")
        a(f"s_mov_b32 s69, {FAST_TRIES}")
        a(f"{lf}:")
        ld(158, 0)
        a("s_waitcnt vmcnt(0)")
        a("v_cmp_ne_u32 vcc, s66, v158")
        if wide:
            a("v_cmp_ne_u32 s[70:71], s66, v159")
            a("s_or_b64 vcc, vcc, s[70:71]")
            a(f"s_cbranch_scc0 {done}")
        else:
            a(f"s_cbranch_vccz {done}")
        a("s_sub_u32 s69, s69, 1")
        a(f"s_cbranch_scc0 {lf}")
        a("buffer_wbl2 sc1")
        a("s_waitcnt vmcnt(0)")
        a("v_mov_b32 v155, s52")
        if own is not None:
            a(own)
            a(f"s_cbranch_scc0 {ls}N")
        a(f"s_mov_b64 exec, {lanes}")
        a("buffer_store_dword v155, v156, s[44:47], s67 offen offset:1024 sc1")
        a("s_mov_b64 exec, -1")
        a(f"{ls}N:")
        a(f"s_mov_b32 s69, {SLOW_TRIES}")
        a(f"{ls}:")
        ld(158, 0)
        ld(160, 1024)
        a("s_waitcnt vmcnt(0)")
        a("v_cmp_ne_u32 vcc, s66, v158")
        a("v_cmp_ne_u32 s[70:71], s52, v160")
        a("s_and_b64 vcc, vcc, s[70:71]")
        if wide:
            a("v_cmp_ne_u32 s[70:71], s66, v159")
            a("v_cmp_ne_u32 s[72:73], s52, v161")
            a("s_and_b64 s[70:71], s[70:71], s[72:73]")
            a("s_or_b64 vcc, vcc, s[70:71]")
        a(f"s_cbranch_scc0 {done}A")
        a("s_sleep 8")
        a("s_sub_u32 s69, s69, 1")
        a(f"s_cbranch_scc0 {ls}")
        a(f"{done}A:")
        a("buffer_inv sc1")
        a("s_waitcnt vmcnt(0)")
        a(f"{done}:")

    a(f".globl {name}\n.p2align 8\n.type {name},@function\n{name}:")
    a("s_cmp_ge_u32 s2, 256")
    a("s_cbranch_scc1 KA_END")
    a.start()
    a("s_load_dwordx16 s[4:19], s[0:1], 0")
    a("s_load_dwordx16 s[20:35], s[0:1], 64")
    a("v_lshrrev_b32 v2, 6, v0")
    a("v_and_b32 v1, 63, v0")
    a(f"v_mov_b32 v{VSY}, {L_SY}")
    a("v_readfirstlane_b32 s48, v2")
    a(f"v_lshl_add_u32 v5, v1, 2, v{VSY}")
    a("v_cmp_gt_u32 vcc, 24, v1")
    a("v_mov_b32 v6, 0")
    a("v_addc_co_u32 v6, vcc, 0, v6, vcc")
    a("ds_write_b32 v5, v6")
    if "gsh" in X:
        a("s_add_u32 s49, s2, 2")
        a("s_and_b32 s49, s49, 7")
    else:
        a("s_and_b32 s49, s2, 7")
    a("s_lshr_b32 s50, s2, 3")
    a(f"s_mul_i32 s51, s49, {GRS}")
    a("s_add_u32 s53, s49, s50")
    a("v_lshlrev_b32 v4, 4, v1")
    a("v_lshrrev_b32 v3, 5, v1")
    a(f"v_mov_b32 v{VONE}, 1")
    a("s_cmp_lt_u32 s48, 4")
    if "cpf" in X:
        a("s_cbranch_scc0 KA_NOPF")
        a("s_cmp_lg_u32 s48, 0")
        a("s_cbranch_scc1 KA_CONS")
        a("s_getpc_b64 s[56:57]")
        a("KA_PCB:")
        a("v_lshl_add_u32 v8, v1, 5, s50")
        a("v_lshlrev_b32 v8, 6, v8")
        a("v_cmp_gt_u32 vcc, KA_END-KA_PCB, v8")
        a("s_mov_b64 exec, vcc")
        a("v_mov_b32 v9, s57")
        a("v_add_co_u32 v8, vcc, s56, v8")
        a("v_addc_co_u32 v9, vcc, 0, v9, vcc")
        a("global_load_dword v24, v[8:9], off")
        a("s_mov_b64 exec, -1")
        a("s_branch KA_CONS")
        a("KA_NOPF:")
    else:
        a("s_cbranch_scc1 KA_CONS")
    a("v_lshlrev_b32 v156, 2, s50")
    a("s_cmp_lt_u32 s48, 8")
    a("s_cbranch_scc1 KA_LOADER")
    a("s_sub_u32 s54, s48, 8")
    a("s_xor_b32 s55, s49, 4")
    a("s_lshl_b32 s55, s55, 5")
    a("s_add_u32 s55, s55, s50")
    a("s_lshl_b32 s59, s55, 9")
    a("s_lshl_b32 s60, s54, 7")
    a("s_add_u32 s59, s59, s60")
    a("v_lshl_add_u32 v2, v1, 1, s59")
    a("s_lshr_b32 s59, s59, 8")
    a("s_lshl_b32 s59, s59, 1")
    a("v_mov_b32 v5, s59")
    for i in range(8):
        a(f"v_mov_b32 v{8+i}, 0")
    a("s_setprio 3")
    a("s_waitcnt lgkmcnt(0)")
    a("global_load_short_d16_hi v14, v5, s[18:19]")
    for i in range(6):
        a(f"global_load_short_d16_hi v{8+i}, v2, s[{6+2*i}:{7+2*i}]{NP}")
    a("global_load_short_d16_hi v15, v5, s[20:21]")
    if "kglow" in X: a("s_setprio 0")
    a("s_branch KA_AUX")
    a("KA_LOADER:")

    a("s_sub_u32 s54, s48, 4")
    a("v_lshrrev_b32 v5, 3, v1")
    a("v_and_b32 v6, 7, v1")
    a("v_lshrrev_b32 v7, 4, v1")
    a("v_xor_b32 v8, v6, v7")
    a("v_lshlrev_b32 v8, 4, v8")
    a("v_lshl_add_u32 v16, v5, 10, v8")
    a("s_and_b32 s73, s54, 1")
    a("s_lshl_b32 s58, s73, 6")
    a("s_lshl_b32 s55, s50, 16")
    a("s_lshl_b32 s60, s54, 13")
    a("s_add_u32 s60, s60, s55")
    a("v_xor_b32 v18, s58, v16")
    a("v_add_u32 v18, s60, v18")
    a("v_add_u32 v19, 32768, v18")
    a("v_and_b32 v7, 1, v7")
    a("v_lshlrev_b32 v7, 2, v7")
    a("v_xor_b32 v8, v6, v7")
    a("v_mul_u32_u24 v9, 3072, v5")
    a("v_lshl_add_u32 v9, v8, 4, v9")
    a("s_lshl_b32 s56, s49, 7")
    a("s_mul_i32 s62, s54, 3")
    for i in range(3):
        a(f"s_add_u32 s58, s62, {i}")
        a("s_and_b32 s59, s58, 3")
        a("s_mul_i32 s59, s59, 24576")
        a("s_lshr_b32 s58, s58, 2")
        a("s_lshl_b32 s58, s58, 10")
        a("s_add_u32 s58, s58, s59")
        a("s_add_u32 s58, s58, s56")
        if i: a(f"s_sub_u32 s58, s58, {1024*i}")
        a(f"v_add_u32 v{20+i}, s58, v9")
    a("s_lshl_b32 s61, s54, 10")
    a("s_lshl_b32 s62, s62, 10")
    a("s_and_b32 s64, s53, 7")
    a("s_lshl_b32 s65, s64, 7")
    a(f"s_mul_i32 s64, s64, {64*3072}")
    a("s_mov_b32 s38, %d\ns_mov_b32 s39, 0x20000\ns_mov_b32 s42, %d\ns_mov_b32 s43, 0x20000" % (2048*512*2, 512*1536*2))
    a("s_mov_b32 m0, s61")
    a("s_waitcnt lgkmcnt(0)")
    a("s_mov_b32 s36, s4\ns_and_b32 s37, s5, 0xffff\ns_mov_b32 s40, s24\ns_and_b32 s41, s25, 0xffff")
    a.stamp(1)
    ops = []
    def vm(t, tag):
        a(t); ops.append(tag)
    def need(tag, extra=""):
        last = max(i for i, t in enumerate(ops) if t == tag)
        a(f"s_waitcnt vmcnt({len(ops)-1-last}){extra}")
    def sub(j):
        hi = j + 1
        if hi < 16:
            a(f"s_add_u32 m0, s61, {4096*hi}")
            if hi % 2 == 0:
                a("s_add_u32 s65, s65, 128")
                a("s_and_b32 s65, s65, 1023")
            else:
                a("s_nop 0")
            vm(f"buffer_load_dwordx4 v{18+(hi&1)}, s[36:39], s65 offen{NX} lds", j)
        a(f"s_add_u32 m0, s62, {L_W+12288*(j%NSLOT)}")
        a(f"s_add_u32 s58, s64, {32*3072}")
        for i in range(3):
            vm(f"buffer_load_dwordx4 v{20+i}, s[40:43], s64 offen offset:{1024*i}{NW} lds", j)
        a(f"s_cmp_lt_u32 s58, {512*3072}")
        a("s_cselect_b32 s64, s58, 0")
    vm(f"buffer_load_dwordx4 v18, s[36:39], s65 offen{NX} lds", 0)
    sub(0)
    srd(a, 44, 34, 35, W2_END)
    a("v_xor_b32 v17, 64, v16")
    a("v_add_u32 v17, 7168, v17")
    a("s_sub_u32 s74, 4, s50")
    a("s_and_b32 s74, s74, 7")
    a("s_lshl_b32 s74, s74, 13")
    a("s_lshl_b32 s58, s54, 11")
    a("s_add_u32 s74, s74, s58")
    a("s_mov_b32 m0, s74")
    a("s_lshl_b32 s58, s54, 14")
    a("s_add_u32 s58, s58, s55")
    a("s_xor_b32 s59, s56, 512")
    a("s_add_u32 s58, s58, s59")
    vm("buffer_load_dwordx4 v16, s[36:39], s58 offen lds", "xs")
    vm("buffer_load_dwordx4 v17, s[36:39], s58 offen offset:1024 lds", "xs")
    sub(1); sub(2)
    a("v_lshlrev_b32 v5, 7, v1")
    a(f"s_add_u32 s67, s51, {G_FL}")
    a(f"s_mov_b32 m0, {L_GW}")
    a("s_lshl_b32 s58, 16, s54")
    a("s_or_b32 exec_lo, s58, 1")
    a("s_mov_b32 exec_hi, 0")
    vm("buffer_load_dword v26, v5, s[44:47], s67 offen " + ("nt" if "ntu" in X else "sc1"), "fl")
    a("s_lshl_b32 s58, s54, 4")
    a("s_lshl_b64 exec, 0xffff, s58")
    vm("global_load_lds_dwordx4 v4, s[28:29]", "gw")
    a("s_mov_b64 exec, -1")
    sub(3)
    a("v_bfe_u32 v5, v1, 2, 2")
    a("v_lshrrev_b32 v6, 4, v1")
    a("v_bfe_u32 v7, v1, 1, 1")
    a("v_lshl_add_u32 v6, v6, 1, v7")
    a("v_lshrrev_b32 v7, 1, v5")
    a("v_xor_b32 v6, v6, v7")
    a("v_lshlrev_b32 v6, 4, v6")
    a("v_lshl_add_u32 v6, v5, 7, v6")
    a("v_and_b32 v7, 1, v1")
    a("v_lshl_add_u32 v6, v7, 3, v6")
    a("v_add_u32 v28, s74, v6")
    for i in range(1, 4):
        a(f"v_xor_b32 v{28+i}, {32*i}, v28")
    need("xs")
    a("s_setprio 3")
    for i in range(4):
        a(f"ds_read_b64_tr_b16 {vr(32+2*i,2)}, v{28+i} offset:{512*i}")
    a("v_lshrrev_b32 v5, 1, v1")
    a("v_lshlrev_b32 v5, 13, v5")
    a("v_lshl_add_u32 v27, v7, 6, v5")
    a("s_lshl_b32 s75, s50, 8")
    a("s_lshr_b32 s59, s54, 1")
    a("s_lshl_b32 s59, s59, 7")
    a("s_add_u32 s75, s75, s59")
    a("s_add_u32 s75, s75, s51")
    a(f"s_add_u32 s75, s75, {G_UT}")
    a("s_lshl_b32 s58, s73, 5")
    a("s_add_u32 s75, s75, s58")
    a("s_waitcnt lgkmcnt(0)")
    vm("buffer_store_dwordx4 v[32:35], v27, s[44:47], s75 offen" + NT, 3)
    vm("buffer_store_dwordx4 v[36:39], v27, s[44:47], s75 offen offset:16" + NT, 3)
    if "lst" in X: a.stamp(3)
    PRE = 6 if "p6" in X else 5 if "p5" in X else 4
    for j in range(4, PRE): sub(j)
    a("v_lshrrev_b32 v10, 3, v1")
    a("s_lshl_b32 s58, s49, 3")
    a("v_add_u32 v10, s58, v10")
    a("v_and_b32 v11, 7, v1")
    a("v_bfe_u32 v12, v10, 1, 3")
    a("v_xor_b32 v12, v12, v11")
    a("v_lshlrev_b32 v12, 4, v12")
    a("v_lshl_add_u32 v12, v10, 7, v12")
    a("s_and_b32 s58, s53, 7")
    a("s_lshl_b32 s58, s58, 7")
    a("v_lshl_add_u32 v11, v11, 4, s58")
    a("v_bfe_u32 v5, v1, 4, 1")
    a("v_lshlrev_b32 v5, 16, v5")
    a("v_and_b32 v6, 15, v1")
    a("v_lshl_add_u32 v13, v6, 7, v5")
    a(f"s_mul_i32 s71, s54, {G_HEAD}")
    a("s_lshl_b32 s58, s50, 11")
    a("s_add_u32 s71, s71, s58")
    a("s_add_u32 s71, s71, s51")
    a("s_and_b32 s58, s50, 15")
    a(f"s_cmp_lt_u32 s58, {NEARLY}")
    a("s_cselect_b32 s58, 0, 0x7ff00000")
    a("v_add_u32 v13, s58, v13")
    for c in range(8):
        a(f"v_add_u32 v{40+c}, {128*c}, v11")
        a(f"v_and_b32 v{40+c}, 1023, v{40+c}")
        a(f"v_add_u32 v{40+c}, {L_GW}, v{40+c}")
    for j in range(12):
        need(j)
        if "lst" in X and j in (0, 4, 8): a.stamp(4 + j // 4)
        a("s_barrier")
        if j + 4 >= PRE: sub(j + 4)
    if "tq" in X:
        a("s_mov_b32 exec_hi, 0")
        vm("buffer_load_dword v26, v13, s[44:47], s71 offen " + ("nt" if "ntu" in X else "sc1"), "tq")
        a("s_mov_b64 exec, -1")
    need(12)
    a("s_barrier")
    a("s_cmp_eq_u32 s54, 3")
    a("s_cbranch_scc1 KA_LG")
    for j in (13, 14, 15):
        need(j)
        a("s_barrier")
    a.stamp(2)
    a("s_cmp_eq_u32 s54, 2")
    a("s_cbranch_scc1 KA_LZ")

    a("KA_ATT:")
    QA, QB, P, OA, OB, SA, SB = 8, 12, 28, 36, 52, 68, 84
    KBUF = [100, 112, 124, 136]
    a("s_and_b32 s54, s48, 3")
    a("s_lshr_b32 s55, s48, 2")
    a(f"s_mul_i32 s57, s54, {G_HEAD}")
    a("s_add_u32 s57, s57, s51")
    a("s_lshl_b32 s58, s55, 15")
    a("s_add_u32 s58, s58, s57")
    a("s_add_u32 s59, s58, 65536")
    a("s_lshl_b32 s56, s50, 1")
    a("s_add_u32 s56, s56, s55")
    a("s_lshl_b32 s56, s56, 5")
    a("s_lshl_b32 s60, s49, 2")
    a("s_add_u32 s56, s56, s60")
    a("s_add_u32 s56, s56, s54")
    a("s_lshl_b32 s56, s56, 10")
    a(f"s_add_u32 s56, s56, {W2_O}")
    a("s_mov_b32 s62, 0xffff")
    a("s_mov_b32 s63, 0xffff")
    a("v_and_b32 v2, 31, v1")
    a("v_and_b32 v6, 15, v1")
    a("v_lshl_add_u32 v6, v3, 4, v6")
    a("v_lshlrev_b32 v6, 4, v6")
    a("v_cmp_eq_u32 vcc, 16, v2")
    a("v_mov_b32 v7, 0x3f803f80")
    a("v_lshlrev_b32 v157, 3, v1")
    a("v_cndmask_b32 v7, 0, v7, vcc")
    a("s_lshl_b32 s60, s54, 11")
    a(f"s_add_u32 s60, s60, {L_Q}")
    a("v_add_u32 v5, s60, v4")
    for B in KBUF:
        for i in range(8): a(f"v_mov_b32 v{B+4+i}, v7")
    a(f"s_mov_b32 s64, {hex((1<<PRIO1)|(1<<PRIO0))}")
    for i in range(32): a(f"v_mov_b32 v{OA+i}, 0")
    for i in range(4): a(f"v_mov_b32 v{P+4+i}, 0")
    a("s_mul_i32 s60, s48, 2304")
    a(f"s_add_u32 s60, s60, {L_OX}")
    a("s_xor_b32 s61, s48, 4")
    a("s_mul_i32 s61, s61, 2304")
    a(f"s_add_u32 s61, s61, {L_OX}")
    a("v_add_u32 v16, s60, v4")
    a("v_add_u32 v17, s61, v4")
    a("v_lshl_add_u32 v18, v1, 2, s60")
    a("v_lshl_add_u32 v19, v1, 2, s61")
    a("s_lshl_b32 s60, s54, 2")
    a(f"v_add_u32 v20, s60, v{VSY}")
    a(f"v_mov_b32 v21, {hex(f2u(2.0**-80))}")
    a(f"v_mov_b32 v22, {hex(f2u(2.0**80))}")
    a(f"v_mov_b32 v23, 0x7f7fffff")
    a("s_lshl_b32 s74, s50, 11")
    a(f"s_add_u32 s74, s74, {W2_FO}")
    a("v_lshlrev_b32 v154, 7, s49")
    a("s_mov_b32 s65, 0")
    a("s_cmp_eq_u32 s55, 0")
    a("s_cbranch_scc1 KA_AT1")
    wait(S_NONCE, 1, out=52)
    a("KA_AT1:")
    a("v_mov_b32 v153, s52")
    wait(S_QRDY, 4)
    a(f"ds_read_b128 {vr(QA,4)}, v5")
    a(f"ds_read_b128 {vr(QB,4)}, v5 offset:1024")
    if "lst" not in X: a.stamp(4)
    a("s_cmp_lg_u32 s48, 4")
    a("s_cbranch_scc1 KA_AT2")
    mktag(512)
    a("v_lshlrev_b32 v156, 7, v1")
    a("s_lshl_b32 s60, s50, 2")
    a("v_add_u32 v156, s60, v156")
    wait(S_DONE, 4)
    collect(True, None, 15)
    sig(S_GO)
    a("s_branch KA_AT3")
    a("KA_AT2:")
    a("s_waitcnt vmcnt(0)")
    a("s_cmp_lg_u32 s48, 7")
    a("s_cbranch_scc1 KA_NOGF")
    sig(S_CD)
    a("KA_NOGF:")
    wait(S_GO, 1)
    a("KA_AT3:")
    def kvload(B, off):
        a(f"buffer_load_dwordx4 {vr(B,4)}, v4, s[44:47], s58 offen offset:{off}{NK}")
        a("s_mov_b64 exec, s[62:63]")
        a(f"buffer_load_dwordx4 {vr(B+4,4)}, v6, s[44:47], s59 offen offset:{off}{NK}")
        a(f"buffer_load_dwordx4 {vr(B+8,4)}, v6, s[44:47], s59 offen offset:{off+512}{NK}")
        a("s_mov_b64 exec, -1")
    for t in range(3): kvload(KBUF[t], 1024 * t)
    a("s_add_u32 s58, s58, 3072")
    a("s_add_u32 s59, s59, 3072")
    a("s_setprio 2")
    if "lst" not in X: a.stamp(7)
    a("s_waitcnt vmcnt(6) lgkmcnt(0)")
    a.stamp(7 if "lst" in X else 5)
    a(f"{MF} {vr(SA,16)}, {vr(KBUF[0],4)}, {vr(QA,4)}, 0")
    a("s_nop 11")
    a(".p2align 6")
    a("KA_LOOP:")
    if "ast" in X:
        for k, b in enumerate((1, 2, 3, 5)):
            a(f"s_cmp_lg_u32 s65, {b}\ns_cbranch_scc1 KA_Q{k}")
            a.stamp(1 + k)
            a(f"KA_Q{k}:")
    for u in range(4):
        B, Bn, Bp = KBUF[u], KBUF[(u+1) % 4], KBUF[(u+3) % 4]
        if u == 2:
            a("s_bitcmp1_b32 s64, s65")
            a("s_cbranch_scc1 KA_SPECIAL")
            a("KA_BODY:")
        for unit in range(2):
            Sc, Sn, Oc, Op, Qn = (SA, SB, OA, OB, QB) if unit == 0 else (SB, SA, OB, OA, QA)
            e = lambda i: a(f"v_exp_f32 v{Sc+i}, v{Sc+i}")
            c = lambda j: a(f"v_cvt_pk_bf16_f32 v{P+j}, v{Sc+2*j}, v{Sc+2*j+1}")
            e(0); e(1)
            a(f"{MF} {vr(Op,16)}, {vr((Bp if unit == 0 else B)+8,4)}, {vr(P+4,4)}, {vr(Op,16)}")
            if unit == 0: kvload(Bp, 1024 * u)
            e(2); e(3); c(0); e(4); c(1); e(5)
            if unit == 1: a("s_waitcnt vmcnt(6)")
            a(f"{MF} {vr(Sn,16)}, {vr(B if unit == 0 else Bn,4)}, {vr(Qn,4)}, 0")
            e(6); e(7); c(2); e(8); c(3); e(9); e(10)
            a(f"{MF} {vr(Oc,16)}, {vr(B+4,4)}, {vr(P,4)}, {vr(Oc,16)}")
            c(4); e(11); e(12); e(13); c(5); e(14); e(15); c(6)
            if u == 3 and unit == 1:
                a("s_add_u32 s58, s58, 4096")
                a("s_add_u32 s59, s59, 4096")
                a("s_add_u32 s65, s65, 1")
                a("s_cmp_lt_u32 s65, 8")
            c(7)
    a("s_cbranch_scc1 KA_LOOP")
    a("s_nop 0")
    a(f"{MF} {vr(OB,16)}, {vr(KBUF[3]+8,4)}, {vr(P+4,4)}, {vr(OB,16)}")
    if "lst" not in X: a.stamp(6)
    a("s_cmp_eq_u32 s55, 0")
    a("s_cbranch_scc1 KA_XA")
    for keep, send, lab in ((OB, OA, None), (OA, OB, "KA_XA")):
        if lab:
            a(f"{lab}:")
            a("s_nop 9")
        a(f"ds_write_b128 v16, {vr(send,4)}")
        a(f"ds_write_b128 v16, {vr(send+4,4)} offset:1024")
        a(f"ds_write_b32 v18, v{send+8} offset:2048")
        a("s_mov_b64 exec, 1")
        a(f"ds_add_u32 v20, v{VONE} offset:{S_OX}")
        a(f"ds_add_u32 v{VSY}, v{VONE} offset:{S_FIN}")
        a("s_mov_b64 exec, -1")
        wait(S_OX, 2, 20)
        a(f"ds_read_b32 v{send+8}, v19 offset:2048")
        a(f"ds_read_b128 {vr(send,4)}, v17")
        a(f"ds_read_b128 {vr(send+4,4)}, v17 offset:1024")
        if not lab: a("s_branch KA_XJ")
    a("KA_XJ:")
    a("s_waitcnt lgkmcnt(2)")
    a(f"v_add_f32 v{SA}, v{OA+8}, v{OB+8}")
    a(f"v_add_f32 v{SA+1}, v{OA+8}, v{OB+8}")
    a("s_waitcnt lgkmcnt(0)")
    a(f"v_add_f32 v{OA}, v{OA}, v{OB}")
    a(f"v_permlane32_swap_b32 v{SA}, v{SA+1}")
    for i in range(1, 8):
        a(f"v_add_f32 v{OA+i}, v{OA+i}, v{OB+i}")
    a(f"v_rcp_f32 v{SA+1}, v{SA}")
    a.c("safety check of the zero stand-in for the row max: l inside [2^-80, 2^80] and O finite")
    a(f"v_cmp_nge_f32 vcc, v{SA}, v21")
    a(f"v_cmp_nle_f32 s[68:69], v{SA}, v22")
    for i in range(8):
        a(f"v_mul_f32 v{OA+i}, v{OA+i}, v{SA+1}")
    a(f"v_add_f32 v{SA+2}, |v{OA}|, |v{OA+1}|")
    a(f"v_add_f32 v{SA+3}, |v{OA+2}|, |v{OA+3}|")
    a(f"v_add_f32 v{SA+4}, |v{OA+4}|, |v{OA+5}|")
    a(f"v_add_f32 v{SA+5}, |v{OA+6}|, |v{OA+7}|")
    a(f"v_add_f32 v{SA+2}, v{SA+2}, v{SA+3}")
    a(f"v_add_f32 v{SA+4}, v{SA+4}, v{SA+5}")
    a(f"v_add_f32 v{SA+2}, v{SA+2}, v{SA+4}")
    a("s_or_b64 vcc, vcc, s[68:69]")
    a(f"v_cmp_nle_f32 s[68:69], v{SA+2}, v23")
    for i in range(4):
        a(f"v_cvt_pk_bf16_f32 v{P+i}, v{OA+2*i}, v{OA+2*i+1}")
    a("s_or_b64 vcc, vcc, s[68:69]")
    a("s_cbranch_scc1 KA_SLOW")
    a("KA_FIN:")
    a(f"buffer_store_dwordx4 {vr(P,4)}, v4, s[44:47], s56 offen sc1")
    a("s_waitcnt vmcnt(0)")
    a("s_mov_b64 exec, 1")
    a(f"ds_add_rtn_u32 v{VTMP}, v{VSY}, v{VONE} offset:{S_OD}")
    a("s_waitcnt lgkmcnt(0)")
    a(f"v_readfirstlane_b32 s76, v{VTMP}")
    a("s_cmp_lg_u32 s76, 7")
    a("s_cbranch_scc1 KA_NLAST")
    a("buffer_store_dword v153, v154, s[44:47], s74 offen sc1")
    a("KA_NLAST:")
    a("s_cmp_lg_u32 s76, 0")
    a("s_cbranch_scc1 KA_NFIRST")
    a("s_mov_b64 exec, 0xff")
    a("s_lshl_b32 s72, s49, 2")
    a("s_and_b32 s73, s50, 3")
    a("s_add_u32 s72, s72, s73")
    a("s_lshl_b32 s72, s72, 11")
    a(f"s_add_u32 s72, s72, {W2_FO}")
    a("v_lshlrev_b32 v16, 7, v1")
    a(f"s_mov_b32 s69, {SLOW_TRIES}")
    a("buffer_load_dword v17, v16, s[44:47], s72 offen sc1")
    a("KA_WP:")
    for cur, nxt in ((17, 18), (18, 17)):
        a(f"s_sleep {PSL}")
        a(f"buffer_load_dword v{nxt}, v16, s[44:47], s72 offen sc1")
        a("s_waitcnt vmcnt(1)")
        a(f"v_cmp_eq_u32 vcc, s52, v{cur}")
        a("s_nop 1")
        a("v_mov_b32 v19, vcc_lo")
        a(f"ds_or_b32 v{VSY}, v19 offset:{S_PO}")
        a("s_cmp_eq_u32 vcc_lo, 0xff")
        a("s_cbranch_scc1 KA_NFIRST")
    a("s_sub_u32 s69, s69, 1")
    a("s_cbranch_scc0 KA_WP")
    a("KA_NFIRST:")
    a.end(0)
    a("KA_SPECIAL:")
    if "wb" in X: sig(S_WB)
    a("s_setprio 1")
    a(f"s_cmp_eq_u32 s65, {PRIO1}")
    a("s_cbranch_scc1 KA_BODY")
    a("s_setprio 0")
    a("s_branch KA_BODY")
    a.c("fallback: true row max over all keys, then recompute this query tile")
    a("KA_SLOW:")
    B = KBUF[0]
    a("s_cmp_eq_u32 s55, 0")
    a("s_cbranch_scc1 KA_SLQ")
    for i in range(4): a(f"v_mov_b32 v{QA+i}, v{QB+i}")
    a("KA_SLQ:")
    a("s_waitcnt vmcnt(0)")
    a(f"v_mov_b32 v{SB}, 0xff800000")
    a("s_mov_b32 s58, s57")
    a("s_mov_b32 s65, 0")
    a("KA_MAXL:")
    a(f"buffer_load_dwordx4 {vr(B,4)}, v4, s[44:47], s58 offen")
    a("s_add_u32 s58, s58, 1024")
    a("s_add_u32 s65, s65, 1")
    a("s_waitcnt vmcnt(0)")
    a(f"{MF} {vr(SA,16)}, {vr(B,4)}, {vr(QA,4)}, 0")
    a("s_nop 15")
    for i in range(8):
        a(f"v_max3_f32 v{SB}, v{SA+2*i}, v{SA+2*i+1}, v{SB}")
    a("s_cmp_lt_u32 s65, 64")
    a("s_cbranch_scc1 KA_MAXL")
    a(f"v_mov_b32 v{SB+1}, v{SB}")
    a("s_nop 1")
    a(f"v_permlane32_swap_b32 v{SB}, v{SB+1}")
    a(f"v_max_f32 v{SB}, v{SB}, v{SB+1}")
    for i in range(16):
        a(f"v_mov_b32 v{OA+i}, 0")
    a("s_mov_b32 s58, s57")
    a("s_add_u32 s59, s57, 65536")
    a("s_mov_b32 s65, 0")
    a("KA_SLOWL:")
    kvload(B, 0)
    a("s_add_u32 s58, s58, 1024")
    a("s_add_u32 s59, s59, 1024")
    a("s_add_u32 s65, s65, 1")
    a("s_waitcnt vmcnt(0)")
    a(f"{MF} {vr(SA,16)}, {vr(B,4)}, {vr(QA,4)}, 0")
    a("s_nop 15")
    for i in range(16):
        a(f"v_sub_f32 v{SA+i}, v{SA+i}, v{SB}")
    for i in range(16):
        a(f"v_exp_f32 v{SA+i}, v{SA+i}")
    a("s_nop 0")
    for j in range(8):
        a(f"v_cvt_pk_bf16_f32 v{P+j}, v{SA+2*j}, v{SA+2*j+1}")
    a("s_nop 1")
    a(f"{MF} {vr(OA,16)}, {vr(B+4,4)}, {vr(P,4)}, {vr(OA,16)}")
    a(f"{MF} {vr(OA,16)}, {vr(B+8,4)}, {vr(P+4,4)}, {vr(OA,16)}")
    a("s_nop 7")
    a("s_cmp_lt_u32 s65, 64")
    a("s_cbranch_scc1 KA_SLOWL")
    a("s_nop 15")
    a(f"v_mov_b32 v{SA}, v{OA+8}")
    a(f"v_mov_b32 v{SA+1}, v{OA+8}")
    a("s_nop 1")
    a(f"v_permlane32_swap_b32 v{SA}, v{SA+1}")
    a(f"v_rcp_f32 v{SA}, v{SA}")
    a("s_nop 0")
    for i in range(8):
        a(f"v_mul_f32 v{OA+i}, v{OA+i}, v{SA}")
    for i in range(4):
        a(f"v_cvt_pk_bf16_f32 v{P+i}, v{OA+2*i}, v{OA+2*i+1}")
    a("s_branch KA_FIN")

    a("KA_LZ:")
    a("v_mov_b32 v8, 0")
    a("v_lshlrev_b32 v5, 2, v1")
    a(f"v_add_u32 v5, {L_KP+4100}, v5")
    for c in range(4):
        if c % 2 == 0: a("s_mov_b64 exec, %s" % ("0x7fff" if c == 0 else "0x7ffe"))
        for ch in range(2): a(f"ds_write_b32 v5, v8 offset:{c*KPC+ch*KPROW}")
    a("s_mov_b64 exec, -1")
    sig(S_UDONE)
    a("s_branch KA_ATT")
    a("KA_LG:")
    def grd(c):
        a(f"ds_read_b128 {vr(64+4*c,4)}, v12 offset:{8192*c}")
        a(f"ds_read_b128 {vr(96+4*c,4)}, v{40+c}")
    grd(0); grd(1); grd(2)
    need(13)
    a("s_barrier")
    grd(3); grd(4); grd(5); grd(6)
    need(14)
    a("s_barrier")
    a("s_waitcnt lgkmcnt(6)")
    grd(7)
    need(15, " lgkmcnt(0)")
    a("s_barrier")
    a.stamp(2)
    a("v_mov_b32 v9, 0")
    a("s_lshl_b32 s58, s50, 9")
    a(f"s_add_u32 s58, s58, {W2_G}")
    a("v_lshlrev_b32 v5, 3, v10")
    for i in range(32): a(f"v_dot2_f32_bf16 v9, v{64+i}, v{96+i}, v9")
    a("s_nop 3")
    a("v_add_f32_dpp v9, v9, v9 quad_perm:[1,0,3,2] row_mask:0xf bank_mask:0xf")
    a("s_nop 1")
    a("v_add_f32_dpp v9, v9, v9 quad_perm:[2,3,0,1] row_mask:0xf bank_mask:0xf")
    a("s_nop 1")
    a("v_add_f32_dpp v9, v9, v9 row_half_mirror row_mask:0xf bank_mask:0xf")
    a("v_cvt_pk_bf16_f32 v9, v9, v9")
    a("v_and_b32 v9, 0xffff0000, v9")
    a(f"v_mul_f32 v9, {hex(f2u(-LOG2E))}, v9")
    a("v_exp_f32 v9, v9")
    a("s_nop 0")
    a("v_add_f32 v9, 1.0, v9")
    a("v_rcp_f32 v9, v9")
    a("s_nop 0")
    a("v_cvt_pk_bf16_f32 v10, v9, v9")
    a("v_and_b32 v10, 0xffff0000, v10")
    a("v_sub_f32 v11, 1.0, v10")
    a("v_cvt_pk_bf16_f32 v11, v11, v11")
    a("v_and_b32 v11, 0xffff0000, v11")
    a("s_mov_b32 exec_lo, 0x01010101")
    a("s_mov_b32 exec_hi, 0x01010101")
    a("buffer_store_dwordx2 v[10:11], v5, s[44:47], s58 offen sc1")
    a("s_mov_b64 exec, -1")
    a("s_branch KA_ATT")

    a("KA_CONS:")
    a("s_setprio 3")
    ACC, FB = 112, 32
    XA, WAD, FLA = 16, 20, 21
    a("s_and_b32 s54, s48, 1")
    a("s_lshr_b32 s55, s48, 1")
    a("v_and_b32 v5, 31, v1")
    a("s_lshl_b32 s56, s54, 12")
    a("v_lshl_add_u32 v6, v5, 7, s56")
    a("v_bfe_u32 v7, v5, 1, 3")
    a("v_xor_b32 v7, v7, v3")
    a(f"v_lshl_add_u32 v{XA}, v7, 4, v6")
    for ks in range(1, 4):
        a(f"v_xor_b32 v{XA+ks}, {ks<<5}, v{XA}")
    a("v_bfe_u32 v7, v1, 2, 2")
    a("v_lshl_add_u32 v6, v3, 3, v7")
    a("v_lshlrev_b32 v6, 7, v6")
    a("v_lshrrev_b32 v7, 1, v7")
    a("v_xor_b32 v7, s55, v7")
    a("v_lshl_add_u32 v6, v7, 6, v6")
    a("v_bfe_u32 v7, v1, 4, 1")
    a("v_lshl_add_u32 v6, v7, 5, v6")
    a("v_and_b32 v7, 3, v1")
    a("v_lshl_add_u32 v6, v7, 3, v6")
    a(f"v_add_u32 v{WAD}, {L_W}, v6")
    for i in range(48):
        a(f"v_mov_b32 v{ACC+i}, 0")
    a("s_lshl_b32 s58, s48, 10")
    a(f"s_add_u32 s58, s58, {L_U}")
    a("v_add_u32 v5, s58, v4")
    a(f"ds_write_b128 v5, {vr(ACC,4)}")
    a(f"v_add_u32 v5, {L_U+4096}, v4")
    a("s_mov_b64 exec, 0x7fffff")
    a(f"ds_write_b128 v5, {vr(ACC,4)}")
    a("s_mov_b64 exec, -1")
    a("s_waitcnt lgkmcnt(0)")
    srd(a, 44, 34, 35, W2_END)
    WB = 22
    a(f"v_mov_b32 v{WB}, v{WAD}")
    def reads(step):
        F = FB + 16 * (step & 3)
        xo = (step >> 2) * 8192
        wo = (step & 1) * 2048
        r = [f"ds_read_b128 {vr(F,4)}, v{XA+(step&3)} offset:{xo}"]
        for ct in range(3):
            for hh in range(2):
                r.append(f"ds_read_b64_tr_b16 {vr(F+4+4*ct+2*hh,2)}, v{WAD} offset:{wo+ct*4096+hh*512}")
        return r
    def mfmas(step):
        F = FB + 16 * (step & 3)
        r = []
        for ct in range(3):
            x, w = vr(F, 4), vr(F + 4 + 4 * ct, 4)
            A, B = (w, x) if ct < 2 else (x, w)
            r.append(f"{MF} {vr(ACC+16*ct,16)}, {A}, {B}, {vr(ACC+16*ct,16)}")
        return r
    a("s_mov_b32 s58, 0")
    a("s_mov_b32 s57, 3")
    a("s_barrier")
    a.stamp(1)
    for t in reads(0) + reads(1): a(t)
    a("KA_GEMM:")
    for st in range(8):
        m, r = mfmas(st), reads(st + 2)
        if st % 2 == 0:
            a("s_add_u32 s58, s58, 12288")
            a(f"s_cmp_eq_u32 s58, {NSLOT*12288}")
            a("s_cselect_b32 s58, 0, s58")
            a(f"v_add_u32 v{WAD}, s58, v{WB}")
            if st == 6: a("s_cmp_eq_u32 s57, 0")
        a("s_waitcnt lgkmcnt(7)")
        a(m[0])
        if st == 6: a("s_cbranch_scc1 KA_GEND")
        if st % 2 == 0: a("s_barrier")
        [a(t) for t in r[:3]]; a(m[1]); [a(t) for t in r[3:6]]; a(m[2]); a(r[6])
    for k in range(4):
        a(f"v_add_u32 v{XA+k}, 16384, v{XA+k}")
    a("s_sub_u32 s57, s57, 1")
    a("s_branch KA_GEMM")
    a("KA_GEND:")
    m = mfmas(6); a(m[1]); a(m[2])
    a("s_waitcnt lgkmcnt(0)")
    for t in mfmas(7): a(t)
    a.stamp(2)
    a("s_lshl_b32 s58, s50, 1")
    a("s_add_u32 s58, s58, s54")
    a("s_lshl_b32 s58, s58, 10")
    a(f"s_mul_i32 s59, s55, {2*G_HEAD}")
    a("s_add_u32 s58, s58, s59")
    a("s_add_u32 s58, s58, s51")
    a(f"s_add_u32 s59, s58, {G_HEAD}")
    a("s_add_u32 s62, s58, 65536")
    a(f"s_mov_b32 s63, {hex(QSCALE)}")
    a("v_bfe_u32 v5, v1, 4, 1")
    a(f"v_mul_u32_u24 v5, {G_HEAD}, v5")
    a("v_and_b32 v6, 15, v1")
    a("v_lshl_add_u32 v6, v3, 4, v6")
    a("v_lshl_add_u32 v6, v6, 4, v5")
    for i in range(8):
        a(f"v_cvt_pk_bf16_f32 v{16+i}, v{ACC+16+2*i}, v{ACC+16+2*i+1}")
    a("buffer_store_dwordx4 v[16:19], v4, s[44:47], s58 offen" + NT)
    a("buffer_store_dwordx4 v[20:23], v4, s[44:47], s59 offen" + NT)
    for i in range(8):
        a(f"v_cvt_pk_bf16_f32 v{96+i}, v{ACC+32+2*i}, v{ACC+32+2*i+1}")
    a("buffer_store_dwordx4 v[96:99], v6, s[44:47], s62 offen" + NT)
    a("buffer_store_dwordx4 v[100:103], v6, s[44:47], s62 offen offset:512" + NT)
    wait(S_NONCE, 1, out=52)
    for i in range(16):
        a(f"v_mul_f32 v{ACC+i}, s63, v{ACC+i}")
    a("s_lshl_b32 s60, s55, 12")
    a("s_lshl_b32 s61, s54, 10")
    a("s_add_u32 s60, s60, s61")
    a(f"s_add_u32 s60, s60, {L_Q}")
    a("v_add_u32 v5, s60, v4")
    for i in range(8):
        a(f"v_cvt_pk_bf16_f32 v{32+i}, v{ACC+2*i}, v{ACC+2*i+1}")
    a("ds_write_b128 v5, v[32:35]")
    a("ds_write_b128 v5, v[36:39] offset:2048")
    sig(S_QRDY)
    mktag(512)
    a("s_lshl_b32 s60, s48, 7")
    a("s_lshl_b32 s61, s50, 2")
    a("s_add_u32 s60, s60, s61")
    a("v_mov_b32 v156, s60")
    a("s_waitcnt vmcnt(0)")
    publish()
    sig(S_DONE)
    a.stamp(3)
    a("s_branch KA_ATT")

    import ka_aux
    ka_aux.gen_aux(a, sig, wait, wait4, lbl, X, gettag, mktag, publish, collect, dsig)
    a("KA_END:")
    a("s_endpgm")
    return a.text(), 168
```

```python
from common import *
from ka import *

def gen_aux(a, sig, wait, wait4, lbl, X, gettag, mktag, publish, collect, dsig):
    import ka
    cmul = ka.cmul if "nopk" in X else ka.cmul_pk
    PSL = 1 if "ps1" in X else 8 if "ps8" in X else 3
    FINN = 4 if "f4" in X else 1 if "f1" in X else 8
    DATA_TRIES = 0 if "dt0" in X else 200
    st = (lambda i: None) if "p3st" in X else a.stamp
    a("KA_AUX:")
    a("s_and_b32 s61, s54, 1")
    a("s_lshr_b32 s62, s54, 1")
    a("s_mov_b32 s52, 0")
    srd(a, 44, 34, 35, W2_END)
    a("s_lshl_b32 s63, s2, 2")
    a("s_add_u32 s63, s63, s54")
    a("s_cmp_lg_u32 s63, 3")
    a("s_cbranch_scc1 KA_NOPUB")
    a("s_memrealtime s[64:65]")
    a("s_waitcnt lgkmcnt(0)")
    a("s_or_b32 s64, s64, 1")
    a("v_mov_b32 v158, 0")
    a("v_mov_b32 v159, s64")
    a("s_mov_b64 exec, 1")
    a("global_store_dword v158, v159, s[32:33] sc1")
    a("s_mov_b64 exec, -1")
    a("KA_NOPUB:")
    a("v_and_b32 v7, 31, v1")
    Z = 160
    a("v_and_b32 v36, 1, v1")
    a("v_lshlrev_b32 v36, 4, v36")
    a("v_mov_b32 v37, 0x3f80")
    a("v_lshlrev_b32 v36, v36, v37")
    a("v_bfe_u32 v37, v1, 1, 2")
    for d in range(4):
        a(f"v_cmp_eq_u32 s[{64+2*d}:{65+2*d}], {d}, v37")
    a("s_nop 0")
    for d in range(4):
        a(f"v_cndmask_b32 v{Z+d}, 0, v36, s[{64+2*d}:{65+2*d}]")
    a("s_lshl_b32 s63, s54, 11")
    a(f"s_add_u32 s63, s63, {L_XCH}")
    a("v_add_u32 v16, s63, v4")
    a(f"s_mul_i32 s63, s62, {KPROW}")
    a(f"s_add_u32 s63, s63, {L_KP}")
    a("v_lshl_add_u32 v19, v7, 4, s63")
    a("s_lshl_b32 s64, s62, 2")
    a(f"v_add_u32 v167, s64, v{VSY}")
    a("v_lshrrev_b32 v32, 2, v7")
    a("v_lshlrev_b32 v32, 3, v32")
    a("v_sub_u32 v33, 4128, v32")
    a("v_lshl_add_u32 v33, v3, 4, v33")
    a("v_and_b32 v32, 3, v7")
    a(f"v_mul_u32_u24 v32, {KPC}, v32")
    a("s_lshl_b32 s64, s61, 6")
    a("s_add_u32 s64, s64, s63")
    a(f"s_sub_u32 s64, s64, {127*32}")
    a("v_add3_u32 v38, v32, v33, s64")
    a("v_mul_u32_u24 v39, 144, v7")
    a("v_lshl_add_u32 v39, v3, 4, v39")
    a("s_lshl_b32 s64, s62, 6")
    a("s_mul_i32 s65, s61, 144")
    a("s_add_u32 s64, s64, s65")
    a(f"s_add_u32 s64, s64, {L_U}")
    a("v_add_u32 v39, s64, v39")
    a("s_lshl_b32 s64, s54, 6")
    for k, r in enumerate((2, 5, 6)):
        a("v_add_u32 v32, s64, v1")
        if k: a(f"v_add_u32 v32, {256*k}, v32")
        a("v_mul_u32_u24 v33, 7282, v32")
        a("v_lshrrev_b32 v33, 16, v33")
        a("v_mul_u32_u24 v34, 9, v33")
        a("v_sub_u32 v34, v32, v34")
        a("v_min_u32 v34, 7, v34")
        a("v_lshlrev_b32 v34, 4, v34")
        a(f"v_lshl_add_u32 v{r}, v33, 7, v34")
    a("s_lshl_b32 s74, s50, 13")
    a("s_add_u32 s74, s74, s51")
    a(f"s_add_u32 s74, s74, {G_UT}")
    a("s_lshl_b32 s75, s54, 10")
    a(f"s_add_u32 s75, s75, {L_U+31*144}")
    a("s_lshl_b32 s60, s54, 2")
    a(f"s_add_u32 s60, s60, {L_SY+S_UA}")
    a("s_lshl_b32 s58, s61, 12")
    a("s_sub_u32 s58, 2048, s58")
    a(f"s_mov_b32 s63, {hex(LOG2E_HI)}")
    a("s_waitcnt vmcnt(7)")
    a("v_mul_f32 v17, s63, v14")
    a("v_fma_f32 v18, v14, s63, -v17")
    a(f"v_fmac_f32 v18, {hex(LOG2E_LO)}, v14")
    a("v_exp_f32 v17, v17")
    a(f"v_mul_f32 v18, {hex(LN2)}, v18")
    a("v_fma_f32 v17, v17, v18, v17")
    a("v_cvt_pk_bf16_f32 v17, v17, v17")
    a("v_and_b32 v17, 0xffff0000, v17")
    a("s_waitcnt vmcnt(0)")
    st(1)
    for r in (8, 9, 10, 11):
        a(f"v_mul_f32 v{r}, v17, v{r}")
    a("v_mul_f32 v8, s63, v8")
    a("v_mul_f32 v9, 0.15915494, v9")
    W1, W8, W256, W2, W4, W16 = 20, 22, 24, 26, 28, 30
    tmp = 32
    for k, mult in enumerate((1.0, 8.0, 256.0)):
        t = tmp + 2 * k
        a(f"v_mul_f32 v{t}, {hex(f2u(mult))}, v8")
        a(f"v_mul_f32 v{t+1}, {hex(f2u(mult))}, v9")
    for k in range(3):
        t = tmp + 2 * k
        a(f"v_exp_f32 v{t}, v{t}")
        a(f"v_fract_f32 v{t+1}, v{t+1}")
    for k, wr in enumerate((W1, W8, W256)):
        t = tmp + 2 * k
        a(f"v_cos_f32 v{wr}, v{t+1}")
        a(f"v_sin_f32 v{wr+1}, v{t+1}")
    U = {}
    nxt = [40]
    def newU(av):
        U[av] = {524: 8, 780: 10}.get(av) or nxt[0]
        if U[av] == nxt[0]: nxt[0] += 2
        return U[av]
    for l in cmul(newU(0), 12, 10): a(l)
    for k, wr in enumerate((W1, W8, W256)):
        t = tmp + 2 * k
        a(f"v_mul_f32 v{wr}, v{t}, v{wr}")
        a(f"v_mul_f32 v{wr+1}, v{t}, v{wr+1}")
    for l in interleave([cmul(W2, W1, W1), cmul(W16, W8, W8)]): a(l)
    for l in cmul(W4, W2, W2): a(l)
    WA, WB, WR, WI, UR, UI = 96, 100, 112, 128, 144, 96
    wops = [f"v_cvt_pk_bf16_f32 v{WR+15}, v{W8}, 1.0", f"v_cvt_pk_bf16_f32 v{WI+15}, v{W8+1}, 0"]
    ca, cb = W16, None
    wops += cmul(WB, W8, W16); cb = WB
    for k in range(1, 16):
        pk = [f"v_cvt_pk_bf16_f32 v{WR+15-k}, v{cb}, v{ca}", f"v_cvt_pk_bf16_f32 v{WI+15-k}, v{cb+1}, v{ca+1}"]
        if k < 15:
            na, nb = WA + 2 * (k & 1), WB + 2 * (k & 1)
            wops += interleave([cmul(na, ca, W16), cmul(nb, cb, W16), pk])
            ca, cb = na, nb
        else:
            wops += pk
    u1 = []; prev = 0
    for av in (256, 512, 768, 1024, 1280, 1536, 1792):
        u1 += cmul(newU(av), U[prev], W256); prev = av
    for av in (1024, 1280, 1536, 1792):
        u1 += cmul(newU(av + 8), U[av], W8)
    for av in (516, 520, 524):
        u1 += cmul(newU(av), U[av - 4], W4)
    u2 = []
    for av in range(1, 9):
        u2 += cmul(newU(av), U[av - 1], W1)
    for av in (258, 260, 262, 264):
        u2 += cmul(newU(av), U[av - 2], W2)
    for av in (772, 776, 780):
        u2 += cmul(newU(av), U[av - 4], W4)
    assert nxt[0] <= 96
    for l in interleave([wops, interleave([u1, u2])]): a(l)
    rows = [0,1,2,3,4,5,6,7, 256,258,260,4,260,262,264,8, 512,516,520,524,768,772,776,780,
            1024,1032,1280,1288,1536,1544,1792,1800]
    for p in range(16):
        x, y = U[rows[2*p]], U[rows[2*p+1]]
        a(f"v_cvt_pk_bf16_f32 v{UR+p}, v{x}, v{y}")
        a(f"v_cvt_pk_bf16_f32 v{UI+p}, -v{x+1}, -v{y+1}")
    TD, ES, KD = 40, 88, 20
    nb = [0]
    def bar(n=1):
        for _ in range(n):
            a("s_barrier"); nb[0] += 1
    for q in range(2):
        a(f"s_mov_b32 s64, {hex(0xff << (8*q))}")
        a(f"s_mov_b32 s65, {hex(0xff0000 << (8*q))}")
        for d in range(4):
            a(f"v_cndmask_b32 v{ES+4*q+d}, 0, v{Z+d}, s[64:65]")
    a("s_load_dword s52, s[32:33], 0")
    halves = [Xm + 8 * hf for Xm in (WR, UR, WI, UI) for hf in range(2)]
    def tm(i):
        T = TD + 16 * (i % 3)
        return [f"{MF} {vr(T,16)}, {vr(halves[i],4)}, {vr(ES,4)}, 0", f"{MF} {vr(T,16)}, {vr(halves[i]+4,4)}, {vr(ES+4,4)}, {vr(T,16)}"]
    def tc(i):
        T = TD + 16 * (i % 3)
        return [f"v_cvt_pk_bf16_f32 v{halves[i]+k}, v{T+2*k}, v{T+2*k+1}" for k in range(8)]
    def ts(Xm): return [f"v_permlane16_swap_b32 v{Xm+k}, v{Xm+8+k}" for k in range(8)]
    def fin(XU, XW, first): return [f"{MF} {vr(KD,16)}, {vr(XU+4*i,4)}, {vr(XW+4*i,4)}, " + ("0" if first and i == 0 else vr(KD,16)) for i in range(4)]
    def mixm(m, v):
        n = (len(v) + len(m) - 1) // len(m)
        for i, t in enumerate(m):
            a(t)
            for u in v[i*n:(i+1)*n]: a(u)
    a("s_nop 0")
    for t in tm(0) + tm(1) + tm(2): a(t)
    a("s_nop 7")
    for t in tc(0): a(t)
    mixm(tm(3), ["s_nop 0"] + tc(1))
    mixm(tm(4), tc(2) + ts(WR))
    mixm(tm(5), tc(3))
    mixm(tm(6), tc(4) + ts(UR))
    mixm(tm(7), tc(5))
    mixm(fin(UR, WR, True), tc(6) + ts(WI) + tc(7))
    a("s_nop 1")
    for t in ts(UI): a(t)
    a("s_nop 1")
    for t in fin(UI, WI, False): a(t)
    NPRE = 4
    a("v_lshlrev_b32 v157, 2, v7")
    a("v_lshlrev_b32 v156, 2, s50")
    a("v_mov_b32 v154, 0x7ffffff0")
    a("v_add_u32 v17, s58, v16")
    a("s_cmp_eq_u32 s61, s62")
    a("s_nop 6")
    a("s_cbranch_scc1 KA_X0")
    for i in range(8): a(f"v_swap_b32 v{KD+i}, v{KD+8+i}")
    a("KA_X0:")
    a(f"ds_write_b128 v16, {vr(KD+8,4)}")
    a(f"ds_write_b128 v16, {vr(KD+12,4)} offset:1024")
    if "xw" in X: a("s_waitcnt lgkmcnt(0)")
    if NPRE == 4: st(2)
    bar(4 - nb[0])
    gettag()
    mktag(0)
    a("s_cmp_lg_u32 s54, 0")
    a("s_cbranch_scc1 KA_NPB")
    publish()
    a("KA_NPB:")
    bar()
    D0, D1, FA, FB, FC = 112, 128, 48, 64, 80
    PW, PG, PA, PF, POF, PWF, POUT, PM, PS, PD = 144, 148, 149, 150, 151, 152, 153, 100, 108, 109
    w = ["v_lshrrev_b32 v8, 3, v1", "v_bfe_u32 v9, v1, 4, 1", "v_lshlrev_b32 v9, 2, v9", "v_and_b32 v10, 7, v1", "v_xor_b32 v9, v9, v10",
         "v_lshlrev_b32 v9, 4, v9", f"v_lshl_add_u32 v{PW}, v8, 10, v9"] + [f"v_add_u32 v{PW+q}, {7168*q}, v{PW}" for q in range(1, 4)]
    w += [f"v_lshlrev_b32 v{PF}, 7, v10", f"v_lshlrev_b32 v{PG}, 3, v7", f"v_lshlrev_b32 v{PD}, 12, v8", f"v_lshl_add_u32 v{PD}, v10, 4, v{PD}",
          "s_lshl_b32 s63, s62, 12", "s_lshl_b32 s64, s61, 4", "s_add_u32 s63, s63, s64", f"s_add_u32 s63, s63, {L_GA}",
          f"v_lshl_add_u32 v{PA}, v7, 7, s63", f"v_lshl_add_u32 v{PA}, v3, 5, v{PA}",
          f"v_lshlrev_b32 v{POUT}, 10, v7", f"v_lshl_add_u32 v{POUT}, v3, 4, v{POUT}",
          "s_lshl_b32 s63, s54, 11", f"s_add_u32 s63, s63, {L_GT}", f"v_add_u32 v{POF}, s63, v4",
          "v_lshrrev_b32 v8, 1, v7", f"v_lshl_add_u32 v{PS}, v8, 7, s63", f"v_lshl_add_u32 v{PS}, v3, 5, v{PS}", "v_and_b32 v8, 1, v7", f"v_lshl_add_u32 v{PS}, v8, 4, v{PS}",
          "v_bfe_u32 v8, v1, 2, 2", f"v_lshl_add_u32 v{PWF}, v3, 2, v8", f"v_lshlrev_b32 v{PWF}, 7, v{PWF}", "v_lshrrev_b32 v8, 1, v8", "v_xor_b32 v8, s62, v8",
          f"v_lshl_add_u32 v{PWF}, v8, 6, v{PWF}", "v_bfe_u32 v8, v1, 4, 1", f"v_lshl_add_u32 v{PWF}, v8, 5, v{PWF}", "v_and_b32 v8, 3, v1",
          f"v_lshl_add_u32 v{PWF}, v8, 3, v{PWF}", f"v_add_u32 v{PWF}, {L_WO}, v{PWF}"]
    w += ["v_lshrrev_b32 v8, 3, v7", "v_bfe_u32 v9, v7, 1, 1", "v_lshl_add_u32 v8, v8, 1, v9", "v_bfe_u32 v9, v7, 2, 1", "v_xor_b32 v9, v9, v3",
          "v_lshl_add_u32 v8, v9, 3, v8", "v_and_b32 v9, 1, v7", "v_lshlrev_b32 v9, 4, v9", "v_mov_b32 v10, 0xffff", "v_lshlrev_b32 v9, v9, v10"]
    w += [f"v_cmp_eq_u32 s[{4+2*k}:{5+2*k}], {k}, v8" for k in range(8)] + ["s_nop 0"]
    w += [f"v_cndmask_b32 v{PM+k}, 0, v9, s[{4+2*k}:{5+2*k}]" for k in range(8)]
    n = (len(w) + 3) // 4
    for k in range(3):
        bar()
        for t in w[k*n:(k+1)*n]: a(t)
    a("s_waitcnt lgkmcnt(0)")
    bar()
    a(f"ds_read_b128 {vr(KD+8,4)}, v17")
    a(f"ds_read_b128 {vr(KD+12,4)}, v17 offset:1024")
    for t in w[3*n:]: a(t)
    bar()
    a("buffer_load_dword v158, v157, s[44:47], s67 offen sc1")
    a("s_waitcnt lgkmcnt(0)")
    for i in range(8):
        a(f"v_add_f32 v{KD+i}, v{KD+i}, v{KD+8+i}")
    def uload():
        l = lbl("UL")
        a("s_mov_b32 m0, s75")
        a("s_cmp_lg_u32 s54, 0")
        a("buffer_load_dwordx4 v2, s[44:47], s74 offen" + (" nt" if "ntu" in X else "") + " lds")
        a(f"s_cbranch_scc1 {l}")
        a("s_add_u32 m0, s75, 8192")
        a("s_nop 0")
        a("buffer_load_dwordx4 v6, s[44:47], s74 offen" + (" nt" if "ntu" in X else "") + " lds")
        a(f"{l}:")
        a("s_add_u32 m0, s75, 4096")
        a("s_nop 0")
        a("buffer_load_dwordx4 v5, s[44:47], s74 offen" + (" nt" if "ntu" in X else "") + " lds")
        dsig("s_mov_b32 m0, s60")
    def tail(work):
        l = lbl("UE")
        n = (len(work) + 4) // 5
        parts = [work[i*n:(i+1)*n] for i in range(5)]
        a("s_barrier")
        for t in parts[0]: a(t)
        a("s_barrier")
        for t in parts[1]: a(t)
        a("s_barrier")
        a("s_waitcnt vmcnt(0)")
        a("v_cmp_ne_u32 vcc, s66, v158")
        a("s_mov_b32 s59, 1")
        a(f"s_cbranch_vccnz {l}")
        a("s_mov_b32 s59, 0")
        uload()
        a(f"{l}:")
        a("s_barrier")
        for t in parts[2]: a(t)
        a("s_barrier")
        for t in parts[3]: a(t)
        a("v_mov_b32 v12, s52")
        a("s_barrier")
        a(f"ds_write_b32 v{VSY}, v12 offset:{S_NONCE}")
        st(3)
        return parts[4]
    assert nb[0] == 10
    a("s_cmp_eq_u32 s61, s62")
    a("s_cbranch_scc0 KA_X1")
    rest = tail(["v_cmp_eq_u32 s[72:73], 31, v1", "v_lshlrev_b32 v8, 3, v3", "v_xor_b32 v8, 8, v8",
          "v_cndmask_b32 v9, 0, v15, s[72:73]", "v_add_u32 v18, v19, v8", f"v_add_f32 v{KD}, v{KD}, v9",
          f"v_add_u32 v36, {KPC+4+3072}, v18", f"v_add_u32 v37, {2*KPC+4+3072}, v18",
          f"v_cvt_pk_bf16_f32 v40, v{KD+3}, v{KD+2}", f"v_cvt_pk_bf16_f32 v41, v{KD+1}, v{KD+0}",
          f"v_cvt_pk_bf16_f32 v42, v{KD+6}, v{KD+5}", f"v_cvt_pk_bf16_f32 v43, v{KD+4}, v{KD+4}",
          f"v_cvt_pk_bf16_f32 v44, v{KD+7}, v{KD+3}", f"v_cvt_pk_bf16_f32 v45, v{KD+2}, v{KD+1}",
          f"v_cvt_pk_bf16_f32 v46, v{KD+6}, v{KD+6}", f"v_cvt_pk_bf16_f32 v47, v{KD+5}, v{KD+4}",
          "v_lshrrev_b32 v9, 16, v41"])
    for t in rest: a(t)
    a("ds_write_b64 v18, v[44:45] offset:3584")
    a("ds_write_b64 v18, v[46:47] offset:3072")
    a("ds_write2_b32 v36, v40, v41 offset0:128 offset1:129")
    a("ds_write2_b32 v36, v42, v43 offset0:0 offset1:1")
    a("ds_write2_b32 v37, v44, v45 offset0:128 offset1:129")
    a("ds_write2_b32 v37, v46, v47 offset0:0 offset1:1")
    a(f"ds_write_b64 v18, v[40:41] offset:{3*KPC+8+3584}")
    a(f"ds_write_b64 v18, v[42:43] offset:{3*KPC+8+3072}")
    a("s_mov_b64 exec, s[72:73]")
    a("ds_write_b32 v18, v9 offset:3592")
    a("ds_write_b32 v37, v9 offset:520")
    a("s_mov_b64 exec, -1")
    a("s_branch KA_XD")
    a("KA_X1:")
    r8, r9, r10, r11, r12, r13, r14, r15 = [KD + i for i in range(8)]
    V4 = [r8]*3 + [r9]*3 + [r10]*5 + [r11]
    V8a = [r12]*4 + [36] + [r13]*7
    V8b = [r14]*4 + [37] + [r15]*7
    w = ["v_and_b32 v8, 1, v1", "v_cmp_eq_u32 s[72:73], 1, v8", "v_cmp_eq_u32 s[70:71], 32, v1", "v_lshlrev_b32 v8, 9, v3", "v_sub_u32 v19, v19, v8", "v_sub_u32 v18, v19, v8",
         f"v_cndmask_b32 v36, v{r13}, v{r12}, s[72:73]", f"v_cndmask_b32 v37, v{r15}, v{r14}, s[72:73]", f"v_cndmask_b32 v{r11}, v{r11}, v{r10}, s[70:71]",
         f"v_cvt_pk_bf16_f32 v8, v{r9}, v{r8}", f"v_cvt_pk_bf16_f32 v9, v{r8}, v{r8}"]
    wr = []
    for c in range(4):
        for gi, (V, ad, off) in enumerate(((V8b, 18, 1024), (V8a, 18, 1536), (V4, 19, 2560))):
            R = 40 + 12 * c + 4 * gi
            w += [f"v_cvt_pk_bf16_f32 v{R+d}, v{V[8+c-2*d]}, v{V[7+c-2*d]}" for d in range(4)]
            wr.append(f"ds_write_b128 v{ad}, {vr(R,4)} offset:{c*KPC+off}")
    rest = tail(w)
    for t in interleave([wr[:9], rest]) + wr[9:]: a(t)
    a("s_mov_b32 exec_lo, 0x80000000\ns_mov_b32 exec_hi, 0")
    a(f"ds_write_b32 v19, v9 offset:{KPC+2560+16}")
    a(f"ds_write_b32 v19, v9 offset:{2*KPC+2560+16}")
    a(f"ds_write_b64 v19, v[8:9] offset:{3*KPC+2560+16}")
    a("s_mov_b64 exec, -1")
    a("KA_XD:")
    sig(S_UDONE)
    for i in range(32): a(f"v_mov_b32 v{D0+i}, 0")
    st(4)
    a("s_cmp_eq_u32 s59, 0")
    a("s_cbranch_scc1 KA_UOK")
    collect(False, "s_cmp_eq_u32 s54, 0")
    uload()
    a("KA_UOK:")
    wait(S_UDONE, 5)
    st(5)
    wait4(S_UA)
    st(6)
    if "noaux" in X: a("s_branch KA_AUXEND")
    def rdA(slot, step):
        o = 128 * (step >> 1) + 32 * (step & 1)
        a(f"ds_read_b64 {vr(FA+4*slot,2)}, v38 offset:{o}")
        a(f"ds_read_b64 {vr(FA+4*slot+2,2)}, v38 offset:{o+8}")
    def rdB(R, slot, step, extra=0):
        a(f"ds_read_b128 {vr(R+4*slot,4)}, v39 offset:{288*(step>>1)+32*(step&1)+extra}")
    for s in range(4): rdA(s, s); rdB(FB, s, s)
    a("s_mov_b32 s63, 4")
    a("KA_CV1:")
    for s in range(8):
        a("s_waitcnt lgkmcnt(9)")
        a(f"{MF} {vr(D1,16)}, {vr(FA+4*(s&3),4)}, {vr(FB+4*(s&3),4)}, {vr(D1,16)}")
        rdA(s & 3, s + 4); rdB(FB, s & 3, s + 4)
    a("v_add_u32 v38, 512, v38")
    a(f"v_add_u32 v39, {288*4}, v39")
    a("s_sub_u32 s63, s63, 1")
    a("s_cmp_lg_u32 s63, 0")
    a("s_cbranch_scc1 KA_CV1")
    a(f"v_subrev_u32 v39, {32*144}, v39")
    a("s_waitcnt lgkmcnt(9)")
    for s in range(4): rdB(FC, s, s)
    a("s_waitcnt lgkmcnt(0)")
    a("s_mov_b32 s63, 4")
    def near(lab, paced):
        a(f"{lab}:")
        if "pace" in X and not paced: a(f"ds_read_b32 v{VTMP}, v{VSY} offset:{S_GO}")
        for s in range(8):
            a("s_waitcnt lgkmcnt(%d)" % (0 if paced else 10 if s == 0 else 11))
            a(f"{MF} {vr(D1,16)}, {vr(FA+4*(s&3),4)}, {vr(FB+4*(s&3),4)}, {vr(D1,16)}")
            rdB(FB, s & 3, s + 4, 32 * 144)
            if paced: a("s_waitcnt lgkmcnt(0)")
            a(f"{MF} {vr(D0,16)}, {vr(FA+4*(s&3),4)}, {vr(FC+4*(s&3),4)}, {vr(D0,16)}")
            rdA(s & 3, s + 4); rdB(FC, s & 3, s + 4)
        a("v_add_u32 v38, 512, v38")
        a(f"v_add_u32 v39, {288*4}, v39")
        if "pace" in X and not paced: a(f"v_readfirstlane_b32 s76, v{VTMP}")
        a("s_sub_u32 s63, s63, 1")
        a("s_cmp_lg_u32 s63, 0")
        if "pace" in X and not paced:
            a("s_cbranch_scc0 KA_CVE")
            a("s_cmp_eq_u32 s76, 0")
        a(f"s_cbranch_scc1 {lab}")
    near("KA_CV2", False)
    if "pace" in X: near("KA_CV3", True)
    a("KA_CVE:")
    st(7)
    a("s_lshl_b32 s63, s54, 12")
    a(f"s_add_u32 s63, s63, {L_CX}")
    a("v_add_u32 v13, s63, v4")
    a("v_xor_b32 v14, 4096, v13")
    wait(S_QRDY, 4)
    a("s_cmp_eq_u32 s61, 0")
    a("s_cbranch_scc0 KA_CVS")
    for i in range(4): a(f"ds_write_b128 v13, {vr(D1+4*i,4)} offset:{1024*i}")
    sig(S_CV, 167)
    wait(S_CV, 2, 167, nap=1)
    for i in range(4): a(f"ds_read_b128 {vr(D1+4*i,4)}, v14 offset:{1024*i}")
    a("s_branch KA_CVJ")
    a("KA_CVS:")
    for i in range(4): a(f"ds_write_b128 v13, {vr(D0+4*i,4)} offset:{1024*i}")
    sig(S_CV, 167)
    wait(S_CV, 2, 167, nap=1)
    for i in range(4): a(f"ds_read_b128 {vr(D0+4*i,4)}, v14 offset:{1024*i}")
    a("KA_CVJ:")
    a("s_lshl_b32 s56, s49, 2")
    a("s_and_b32 s57, s50, 3")
    a("s_add_u32 s56, s56, s57")
    a("s_lshr_b32 s57, s50, 2")
    a("s_lshl_b32 s72, s56, 11")
    a(f"s_add_u32 s72, s72, {W2_FO}")
    a("s_lshl_b32 s65, s56, 1")
    a("s_add_u32 s65, s65, s61")
    a("s_lshl_b32 s63, s57, 1")
    a("s_add_u32 s63, s63, s62")
    a("s_lshl_b32 s74, s63, 6")
    a("s_lshl_b32 s64, s65, 15")
    a("s_add_u32 s74, s74, s64")
    a("s_lshl_b32 s73, s57, 18")
    a("s_lshl_b32 s64, s54, 16")
    a("s_add_u32 s73, s73, s64")
    a("s_lshl_b32 s64, s56, 7")
    a("s_add_u32 s73, s73, s64")
    a(f"s_add_u32 s73, s73, {W2_GA}")
    a("s_lshl_b32 s75, s65, 8")
    a(f"s_add_u32 s75, s75, {W2_G}")
    a("v_mov_b32 v155, s52")
    a("s_lshl_b32 s63, s55, 13")
    a("s_lshl_b32 s64, s54, 11")
    a("s_add_u32 s63, s63, s64")
    a(f"s_add_u32 s63, s63, {W2_GA}")
    a("s_waitcnt lgkmcnt(0)")
    sig(S_CD)
    for i in range(16): a(f"v_add_f32 v{D0+i}, v{D0+i}, v{D1+i}")
    for i in range(8): a(f"v_cvt_pk_bf16_f32 v{64+i}, v{D0+2*i}, v{D0+2*i+1}")
    a(f"ds_write_b128 v{PS}, v[64:67]")
    a(f"ds_write_b128 v{PS}, v[68:71] offset:64")
    a(f"ds_read_b128 v[64:67], v{POF}")
    a(f"ds_read_b128 v[68:71], v{POF} offset:1024")
    a("s_waitcnt lgkmcnt(0)")
    a("buffer_store_dwordx4 v[64:67], v4, s[44:47], s63 offen sc1")
    a("buffer_store_dwordx4 v[68:71], v4, s[44:47], s63 offen offset:1024 sc1")
    if "nop3" in X: a("s_branch KA_AUXEND")
    def touch(off):
        if "xsm" not in X: a(f"s_load_dwordx2 s[68:69], s[64:65], {off+60}")
    a("s_lshl_b32 s63, s50, 16")
    a("s_lshl_b32 s64, s49, 12")
    a("s_add_u32 s63, s63, s64")
    a("s_lshl_b32 s64, s54, 10")
    a("s_add_u32 s63, s63, s64")
    a(f"s_add_u32 s63, s63, {W2_O}")
    a("s_add_u32 s64, s34, s63")
    a("s_addc_u32 s65, s35, 0")
    if "noot" not in X:
        for i in range(16): touch((i>>3)*32768+(i&7)*128)
    a("s_lshl_b32 s63, s50, 11")
    a("s_lshl_b32 s70, s49, 7")
    a("s_add_u32 s63, s63, s70")
    a(f"s_add_u32 s63, s63, {W2_FO}")
    a("s_load_dword s68, s[34:35], s63")
    wait(S_CD, 5, nap=4)
    a("s_lshl_b32 s63, s50, 2")
    a("s_add_u32 s63, s63, s54")
    a("s_lshl_b32 s63, s63, 12")
    a("s_add_u32 s64, s26, s63")
    a("s_addc_u32 s65, s27, 0")
    for i in range(7): touch(128*i)
    a("s_lshl_b32 s63, s50, 11")
    a(f"s_add_u32 s63, s63, {W2_FO}")
    a("v_lshlrev_b32 v12, 2, s49")
    a("s_waitcnt vmcnt(0)")
    a("s_mov_b64 exec, 1")
    a(f"ds_add_rtn_u32 v{VTMP}, v{VSY}, v{VONE} offset:{S_PC}")
    a("s_waitcnt lgkmcnt(0)")
    a(f"v_readfirstlane_b32 s76, v{VTMP}")
    a("s_cmp_lg_u32 s76, 3")
    a("s_cbranch_scc1 KA_NCL")
    a("buffer_store_dword v155, v156, s[44:47], s67 offen offset:2048 sc1")
    a("buffer_store_dword v155, v12, s[44:47], s63 offen offset:1024 sc1")
    a("KA_NCL:")
    a("s_mov_b64 exec, -1")
    for i in range(7, 32): touch(128*i)
    srd(a, 36, 26, 27, 512 * 512 * 2)
    srd(a, 40, 30, 31, 2048 * 512 * 2)
    a("s_xor_b32 s63, s57, 4")
    a(f"s_mul_i32 s63, s63, {GRS}")
    a(f"s_add_u32 s63, s63, {G_FL+2048}")
    a("s_add_u32 s64, s34, s63")
    a("s_addc_u32 s65, s35, 0")
    a("s_add_u32 s70, s72, 1024")
    a("s_waitcnt lgkmcnt(0)")
    if "p3st" in X: a.stamp(1)
    a("s_mov_b32 s71, 0")
    a("s_load_dwordx16 s[4:19], s[64:65], 0")
    a("s_load_dwordx8 s[20:27], s[34:35], s70")
    a("s_waitcnt lgkmcnt(0)")
    for r in range(4, 28):
        a(f"s_xor_b32 s{r}, s{r}, s52")
        a(f"s_or_b32 s71, s71, s{r}")
    a("s_load_dwordx16 s[4:19], s[64:65], 64")
    a("s_waitcnt lgkmcnt(0)")
    for r in range(4, 20):
        a(f"s_xor_b32 s{r}, s{r}, s52")
        a(f"s_or_b32 s71, s71, s{r}")
    a("s_cbranch_scc0 KA_PCD")
    if "xpc" in X: a("s_branch KA_PCD")
    a("v_and_b32 v9, 7, v1")
    a("v_lshlrev_b32 v9, 2, v9")
    a(f"s_mov_b32 s69, {SLOW_TRIES}")
    a("KA_PC:")
    a("s_sleep 32")
    a("buffer_load_dword v10, v157, s[44:47], s63 offen sc1")
    a("buffer_load_dword v11, v9, s[44:47], s70 offen sc1")
    a("s_waitcnt vmcnt(0)")
    a("v_cmp_ne_u32 vcc, s52, v10")
    a("v_cmp_ne_u32 s[4:5], s52, v11")
    a("s_or_b64 vcc, vcc, s[4:5]")
    a("s_cbranch_scc0 KA_PCD")
    a("s_sub_u32 s69, s69, 1")
    a("s_cbranch_scc0 KA_PC")
    a("KA_PCD:")
    if "p3st" in X: a.stamp(2)
    a("s_add_u32 s64, s34, s73")
    a("s_addc_u32 s65, s35, 0")
    for i in range(16): touch(4096*i)
    a("s_lshl_b32 s63, s62, 7")
    a("s_add_u32 s63, s63, s75")
    a("s_add_u32 s63, s63, 60")
    a("s_load_dwordx2 s[68:69], s[34:35], s63")
    a("s_lshl_b32 s58, s54, 12")
    a(f"s_add_u32 s58, s58, {L_WO}")
    a("s_lshl_b32 s59, s54, 15")
    a("s_lshl_b32 s63, s57, 7")
    a("s_add_u32 s59, s59, s63")
    for c in range(4):
        a(f"s_add_u32 m0, s58, {16384*c}")
        a(f"s_add_u32 s63, s59, {131072*c}")
        for q in range(4):
            if "xwo" not in X: a(f"buffer_load_dwordx4 v{PW+q}, s[36:39], s63 offen offset:{1024*q} lds")
            if q == 3 and c < 3: a("s_waitcnt vmcnt(0)")
    D, DA, GA, DG = 112, 128, 32, 40
    a("s_lshl_b32 s58, s54, 11")
    a(f"s_add_u32 m0, s58, {L_GA}")
    a("s_add_u32 s63, s73, 31744")
    a("s_waitcnt vmcnt(0) lgkmcnt(0)")
    a(f"buffer_load_dwordx4 v{PD}, s[44:47], s73 offen sc1 lds")
    a(f"buffer_load_dwordx4 v{PD}, s[44:47], s63 offen offset:1024 sc1 lds")
    a(f"buffer_load_dwordx2 v[14:15], v{PG}, s[44:47], s75 offen sc1")
    dsig(f"s_add_u32 m0, s60, {S_WA-S_UA}")
    a("s_lshl_b32 s58, s61, 15")
    a("s_lshl_b32 s59, s56, 16")
    a("s_add_u32 s59, s59, s58")
    a(f"s_add_u32 s59, s59, {W2_O}")
    a("s_waitcnt vmcnt(0)")
    wait4(S_WA, nap=4)
    a(f"ds_read_b128 {vr(GA,4)}, v{PA}")
    a(f"ds_read_b128 {vr(GA+4,4)}, v{PA} offset:64")
    a("v_lshrrev_b32 v13, 16, v14")
    a("v_or_b32 v13, v13, v14")
    for k in range(8):
        a(f"v_and_b32 v{DG+k}, v13, v{PM+k}")
    a("s_waitcnt lgkmcnt(0)")
    a("s_nop 0")
    a(f"{MF} {vr(DA,16)}, {vr(GA,4)}, {vr(DG,4)}, 0")
    a(f"{MF} {vr(DA,16)}, {vr(GA+4,4)}, {vr(DG+4,4)}, {vr(DA,16)}")
    if "p3st" in X: a.stamp(3)
    if "wb" in X:
        a("s_lshl_b32 s63, s50, 2")
        a("s_add_u32 s63, s63, s54")
        a("s_cmp_lg_u32 s63, 0")
        a("s_cbranch_scc1 KA_NOWB")
        if "wbl" in X: wait(S_FIN, 4, nap=8)
        else: wait(S_WB, 12 if "wbm" in X else 1, nap=32)
        a("buffer_wbl2 sc1")
        a("KA_NOWB:")
    OB4, W0, W1, D2 = 48, 16, 32, 144
    a(f"v_mov_b32 v2, v{POUT}")
    a(f"v_mov_b32 v5, v{PWF}")
    a("s_lshl_b32 s63, s54, 12")
    a(f"s_add_u32 s64, s63, {L_GT}")
    a("v_add_u32 v6, s64, v4")
    a("s_xor_b32 s63, s63, 8192")
    a(f"s_add_u32 s64, s63, {L_GT}")
    a("v_add_u32 v11, s64, v4")
    a("s_lshl_b32 s63, s61, 2")
    a(f"v_add_u32 v14, s63, v{VSY}")
    for i in range(16):
        a(f"v_mov_b32 v{D+i}, 0")
        a(f"v_mov_b32 v{D2+i}, 0")
    a("s_lshl_b32 s4, 0x55, s62")
    a(f"s_mov_b32 s7, {LDS_SPIN}")
    wait(S_FIN, FINN, nap=8)
    if "p3st" in X: a.stamp(4)
    a("KA_OL:")
    a(f"ds_read_b32 v10, v{VSY} offset:{S_PO}")
    a("s_sub_u32 s7, s7, 1")
    a("s_cselect_b32 s6, 0xff, 0")
    a("s_waitcnt lgkmcnt(0)")
    a("v_readfirstlane_b32 s5, v10")
    a("s_or_b32 s5, s5, s6")
    a("s_and_b32 s5, s5, s4")
    a("s_cbranch_scc0 KA_OL")
    for k in range(4):
        a(f"s_ff1_i32_b32 s{8+k}, s5")
        a(f"s_lshl_b32 s63, s{8+k}, 12")
        a("s_add_u32 s63, s63, s59")
        for q in range(4): a(f"buffer_load_dwordx4 {vr(OB4+16*k+4*q,4)}, v4, s[44:47], s63 offen offset:{1024*q} sc1")
        a(f"s_bitset0_b32 s4, s{8+k}")
        a(f"s_bitset0_b32 s5, s{8+k}")
        if k < 3:
            a("s_cmp_eq_u32 s5, 0")
            a(f"s_cbranch_scc1 KA_OP{k+1}")
    def wadr(k):
        a(f"s_lshl_b32 s63, s{8+k}, 13")
        a("v_add_u32 v12, s63, v5")
        a("v_xor_b32 v13, 64, v12")
    def rdw(W, ad, q):
        a(f"ds_read_b64_tr_b16 {vr(W+4*q,2)}, v{ad} offset:{2048*q}")
        a(f"ds_read_b64_tr_b16 {vr(W+4*q+2,2)}, v{ad} offset:{2048*q+1024}")
    for n in (4, 3, 2, 1):
        a(f"KA_OP{n}:")
        wadr(0)
        for q in range(4): rdw(W1, 13, q)
        a("s_waitcnt lgkmcnt(4)")
        for q in range(4): rdw(W0, 12, q)
        for k in range(n):
            B = OB4 + 16 * k
            a(f"s_waitcnt vmcnt({4*(n-1-k)}) lgkmcnt(7)")
            if k + 1 < n: wadr(k + 1)
            for q in range(4):
                a(f"{MF} {vr(D2,16)}, {vr(W1+4*q,4)}, {vr(B+4*q,4)}, {vr(D2,16)}")
                if k + 1 < n: rdw(W1, 13, q)
            a("s_waitcnt lgkmcnt(%d)" % (7 if k + 1 < n else 0))
            for q in range(4):
                a(f"{MF} {vr(D,16)}, {vr(W0+4*q,4)}, {vr(B+4*q,4)}, {vr(D,16)}")
                if k + 1 < n: rdw(W0, 12, q)
        a("s_cmp_lg_u32 s4, 0")
        a("s_cbranch_scc1 KA_OL")
        if n > 1: a("s_branch KA_OD")
    a("KA_OD:")
    if "p3st" in X: a.stamp(6)
    a("s_nop 4")
    for i in range(4): a(f"ds_write_b128 v6, {vr(D2+4*i,4)} offset:{1024*i}")
    sig(S_FX, 14)
    for i in range(16): a(f"v_fmac_f32 v{DA+i}, v15, v{D+i}")
    wait(S_FX, 2, 14)
    for i in range(4): a(f"ds_read_b128 {vr(D2+4*i,4)}, v11 offset:{1024*i}")
    if "p3st" in X: a.stamp(7)
    for i in range(4):
        a(f"s_waitcnt lgkmcnt({3-i})")
        for j in range(4): a(f"v_fmac_f32 v{DA+4*i+j}, v15, v{D2+4*i+j}")
    for i in range(8): a(f"v_cvt_pk_bf16_f32 v{GA+i}, v{DA+2*i}, v{DA+2*i+1}")
    a("s_nop 1")
    a(f"v_permlane32_swap_b32 v{GA}, v{GA+2}")
    a(f"v_permlane32_swap_b32 v{GA+1}, v{GA+3}")
    a(f"v_permlane32_swap_b32 v{GA+4}, v{GA+6}")
    a(f"v_permlane32_swap_b32 v{GA+5}, v{GA+7}")
    a(f"buffer_store_dwordx4 {vr(GA,4)}, v2, s[40:43], s74 offen")
    a(f"buffer_store_dwordx4 {vr(GA+4,4)}, v2, s[40:43], s74 offen offset:32")
    a("KA_AUXEND:")
    a.end(0)
```

```python
from common import *
import math, struct
LOG2E = 1.4426950408889634
LOG2E_HI = f2u(LOG2E)
_hi = struct.unpack("<f", struct.pack("<I", LOG2E_HI))[0]
LOG2E_LO = f2u(LOG2E - _hi)
LN2 = f2u(math.log(2.0))
QSCALE = f2u(0.25 * LOG2E)
MF = "v_mfma_f32_32x32x16_bf16"

L_X, L_W = 0, 65536
NSLOT = 6
L_OX = 0
L_Q = 114688
L_WO, L_GA, L_GT = 24576, 90112, 98304
L_CX = 73728
L_KP, KPC = 18688, 8384
L_U = 139264
L_XCH = 153600
L_GW = 161792
L_SY = 162816
KA_LDS = 163840
S_UA, S_WA, S_OA = 0, 16, 32
S_WB, S_UDONE, S_QRDY, S_NONCE, S_CV, S_OX, S_CD, S_FIN, S_PO, S_PC, S_OD, S_GO, S_FX, S_DONE = 96, 100, 104, 108, 112, 128, 144, 148, 152, 156, 160, 164, 168, 176
VSY, VONE, VTMP, VT4 = 164, 165, 166, 160
UNR = 4
PRIO1, PRIO0, WBIT, NEARLY = 6, 7, 4, 3
LDS_SPIN = 1 << 20
FAST_TRIES = 64
SLOW_TRIES = 20000

def interleave(chains):
    out = []
    chains = [list(c) for c in chains]
    while any(chains):
        for c in chains:
            if c: out.append(c.pop(0))
    return out

def cmul(d, x, w):
    return [f"v_mul_f32 v{d}, v{x}, v{w}", f"v_mul_f32 v{d+1}, v{x}, v{w+1}",
            f"v_fma_f32 v{d}, -v{x+1}, v{w+1}, v{d}", f"v_fmac_f32 v{d+1}, v{x+1}, v{w}"]
def cmul_pk(d, x, w):
    return [f"v_pk_mul_f32 {vr(d,2)}, {vr(x,2)}, {vr(w,2)} op_sel:[0,0] op_sel_hi:[0,1]",
            f"v_pk_fma_f32 {vr(d,2)}, {vr(x,2)}, {vr(w,2)}, {vr(d,2)} op_sel:[1,1,0] op_sel_hi:[1,0,1] neg_lo:[0,1,0]"]

def gen_ka(name, X=()):
    a = Asm()
    NT = " nt" if "nt" in X else ""
    NW = " nt" if "ntw" in X else ""
    NX = " nt" if "ntx" in X else ""
    NP = " nt" if "ntp" in X else ""
    NK = " nt" if "ntk" in X else ""
    PSL = 2 if "ps2" in X else 8 if "ps8" in X else 5
    cnt = [0]
    def lbl(p):
        cnt[0] += 1
        return f"KA_{p}{cnt[0]}"
    def sig(off, addr=VSY, val=VONE):
        a("s_mov_b64 exec, 1")
        a(f"ds_add_u32 v{addr}, v{val} offset:{off}")
        a("s_mov_b64 exec, -1")
    def wait(off, n, addr=VSY, out=76, nap=0):
        l, e = lbl("W"), lbl("E")
        a(f"s_mov_b32 s77, {LDS_SPIN}")
        if nap:
            a(f"s_branch {l}F")
        a(f"{l}:")
        if nap:
            a(f"s_sleep {nap}")
            a(f"{l}F:")
        a(f"ds_read_b32 v{VTMP}, v{addr} offset:{off}")
        a("s_sub_u32 s77, s77, 1")
        a("s_cbranch_scc1 " + e)
        a("s_waitcnt lgkmcnt(0)")
        a(f"v_readfirstlane_b32 s{out}, v{VTMP}")
        a(f"s_cmp_lt_u32 s{out}, {n}")
        a("s_cbranch_scc1 " + l)
        a(f"{e}:")
    def wait4(off, addr=VSY, nap=0):
        l, e = lbl("W"), lbl("E")
        a(f"s_mov_b32 s77, {LDS_SPIN}")
        if nap:
            a(f"s_branch {l}F")
        a(f"{l}:")
        if nap:
            a(f"s_sleep {nap}")
            a(f"{l}F:")
        a(f"ds_read_b128 {vr(VT4,4)}, v{addr} offset:{off}")
        a("s_sub_u32 s77, s77, 1")
        a("s_cbranch_scc1 " + e)
        a("s_waitcnt lgkmcnt(0)")
        a(f"v_or3_b32 v{VT4}, v{VT4}, v{VT4+1}, v{VT4+2}")
        a(f"v_or_b32 v{VT4}, v{VT4}, v{VT4+3}")
        a(f"v_cmp_ne_u32 vcc, 0, v{VT4}")
        a("s_cbranch_vccnz " + l)
        a(f"{e}:")
    def gettag():
        l, ok = lbl("TL"), lbl("TK")
        a("s_waitcnt lgkmcnt(0)")
        a("s_cmp_lg_u32 s52, 0")
        a(f"s_cbranch_scc1 {ok}")
        a("v_mov_b32 v155, 0")
        a(f"s_mov_b32 s69, {SLOW_TRIES}")
        a(f"{l}:")
        a("global_load_dword v158, v155, s[32:33] sc1")
        a("s_waitcnt vmcnt(0)")
        a("v_readfirstlane_b32 s52, v158")
        a("s_cmp_lg_u32 s52, 0")
        a(f"s_cbranch_scc1 {ok}")
        a("s_sub_u32 s69, s69, 1")
        a(f"s_cbranch_scc0 {l}")
        a("s_mov_b32 s52, 1")
        a(f"{ok}:")
    def dsig(m0expr):
        a(m0expr)
        a("s_mov_b64 exec, 1")
        a("buffer_load_dword v154, s[44:47], 0 offen lds")
        a("s_mov_b64 exec, -1")
    def mktag(fl_off):
        a("s_getreg_b32 s66, hwreg(HW_REG_XCC_ID)")
        a("s_and_b32 s66, s66, 15")
        a("s_add_u32 s66, s66, 1")
        a("s_lshl_b32 s66, s66, 1")
        a("s_xor_b32 s66, s66, s52")
        a(f"s_add_u32 s67, s51, {G_FL + fl_off}")
    def publish():
        a("v_mov_b32 v155, s66")
        a("s_mov_b64 exec, 1")
        a("buffer_store_dword v155, v156, s[44:47], s67 offen")
        a("s_mov_b64 exec, -1")
    def collect(wide, own, lanes=1):
        lf, ls, done = lbl("GF"), lbl("GS"), lbl("GD")
        def ld(r, off):
            if wide: a(f"buffer_load_dwordx2 v[{r}:{r+1}], v157, s[44:47], s67 offen offset:{off} sc1")
            else: a(f"buffer_load_dword v{r}, v157, s[44:47], s67 offen offset:{off} sc1")
        a(f"s_mov_b32 s69, {FAST_TRIES}")
        a(f"{lf}:")
        ld(158, 0)
        a("s_waitcnt vmcnt(0)")
        a("v_cmp_ne_u32 vcc, s66, v158")
        if wide:
            a("v_cmp_ne_u32 s[70:71], s66, v159")
            a("s_or_b64 vcc, vcc, s[70:71]")
            a(f"s_cbranch_scc0 {done}")
        else:
            a(f"s_cbranch_vccz {done}")
        a("s_sub_u32 s69, s69, 1")
        a(f"s_cbranch_scc0 {lf}")
        a("buffer_wbl2 sc1")
        a("s_waitcnt vmcnt(0)")
        a("v_mov_b32 v155, s52")
        if own is not None:
            a(own)
            a(f"s_cbranch_scc0 {ls}N")
        a(f"s_mov_b64 exec, {lanes}")
        a("buffer_store_dword v155, v156, s[44:47], s67 offen offset:1024 sc1")
        a("s_mov_b64 exec, -1")
        a(f"{ls}N:")
        a(f"s_mov_b32 s69, {SLOW_TRIES}")
        a(f"{ls}:")
        ld(158, 0)
        ld(160, 1024)
        a("s_waitcnt vmcnt(0)")
        a("v_cmp_ne_u32 vcc, s66, v158")
        a("v_cmp_ne_u32 s[70:71], s52, v160")
        a("s_and_b64 vcc, vcc, s[70:71]")
        if wide:
            a("v_cmp_ne_u32 s[70:71], s66, v159")
            a("v_cmp_ne_u32 s[72:73], s52, v161")
            a("s_and_b64 s[70:71], s[70:71], s[72:73]")
            a("s_or_b64 vcc, vcc, s[70:71]")
        a(f"s_cbranch_scc0 {done}A")
        a("s_sleep 8")
        a("s_sub_u32 s69, s69, 1")
        a(f"s_cbranch_scc0 {ls}")
        a(f"{done}A:")
        a("buffer_inv sc1")
        a("s_waitcnt vmcnt(0)")
        a(f"{done}:")

    a(f".globl {name}\n.p2align 8\n.type {name},@function\n{name}:")
    a("s_cmp_ge_u32 s2, 256")
    a("s_cbranch_scc1 KA_END")
    a.start()
    a("s_load_dwordx16 s[4:19], s[0:1], 0")
    a("s_load_dwordx16 s[20:35], s[0:1], 64")
    a("v_lshrrev_b32 v2, 6, v0")
    a("v_and_b32 v1, 63, v0")
    a(f"v_mov_b32 v{VSY}, {L_SY}")
    a("v_readfirstlane_b32 s48, v2")
    a(f"v_lshl_add_u32 v5, v1, 2, v{VSY}")
    a("v_cmp_gt_u32 vcc, 24, v1")
    a("v_mov_b32 v6, 0")
    a("v_addc_co_u32 v6, vcc, 0, v6, vcc")
    a("ds_write_b32 v5, v6")
    if "gsh" in X:
        a("s_add_u32 s49, s2, 2")
        a("s_and_b32 s49, s49, 7")
    else:
        a("s_and_b32 s49, s2, 7")
    a("s_lshr_b32 s50, s2, 3")
    a(f"s_mul_i32 s51, s49, {GRS}")
    a("s_add_u32 s53, s49, s50")
    a("v_lshlrev_b32 v4, 4, v1")
    a("v_lshrrev_b32 v3, 5, v1")
    a(f"v_mov_b32 v{VONE}, 1")
    a("s_cmp_lt_u32 s48, 4")
    if "cpf" in X:
        a("s_cbranch_scc0 KA_NOPF")
        a("s_cmp_lg_u32 s48, 0")
        a("s_cbranch_scc1 KA_CONS")
        a("s_getpc_b64 s[56:57]")
        a("KA_PCB:")
        a("v_lshl_add_u32 v8, v1, 5, s50")
        a("v_lshlrev_b32 v8, 6, v8")
        a("v_cmp_gt_u32 vcc, KA_END-KA_PCB, v8")
        a("s_mov_b64 exec, vcc")
        a("v_mov_b32 v9, s57")
        a("v_add_co_u32 v8, vcc, s56, v8")
        a("v_addc_co_u32 v9, vcc, 0, v9, vcc")
        a("global_load_dword v24, v[8:9], off")
        a("s_mov_b64 exec, -1")
        a("s_branch KA_CONS")
        a("KA_NOPF:")
    else:
        a("s_cbranch_scc1 KA_CONS")
    a("v_lshlrev_b32 v156, 2, s50")
    a("s_cmp_lt_u32 s48, 8")
    a("s_cbranch_scc1 KA_LOADER")
    a("s_sub_u32 s54, s48, 8")
    a("s_xor_b32 s55, s49, 4")
    a("s_lshl_b32 s55, s55, 5")
    a("s_add_u32 s55, s55, s50")
    a("s_lshl_b32 s59, s55, 9")
    a("s_lshl_b32 s60, s54, 7")
    a("s_add_u32 s59, s59, s60")
    a("v_lshl_add_u32 v2, v1, 1, s59")
    a("s_lshr_b32 s59, s59, 8")
    a("s_lshl_b32 s59, s59, 1")
    a("v_mov_b32 v5, s59")
    for i in range(8):
        a(f"v_mov_b32 v{8+i}, 0")
    a("s_setprio 3")
    a("s_waitcnt lgkmcnt(0)")
    a("global_load_short_d16_hi v14, v5, s[18:19]")
    for i in range(6):
        a(f"global_load_short_d16_hi v{8+i}, v2, s[{6+2*i}:{7+2*i}]{NP}")
    a("global_load_short_d16_hi v15, v5, s[20:21]")
    if "kglow" in X: a("s_setprio 0")
    a("s_branch KA_AUX")
    a("KA_LOADER:")

    a("s_sub_u32 s54, s48, 4")
    a("v_lshrrev_b32 v5, 3, v1")
    a("v_and_b32 v6, 7, v1")
    a("v_lshrrev_b32 v7, 4, v1")
    a("v_xor_b32 v8, v6, v7")
    a("v_lshlrev_b32 v8, 4, v8")
    a("v_lshl_add_u32 v16, v5, 10, v8")
    a("s_and_b32 s73, s54, 1")
    a("s_lshl_b32 s58, s73, 6")
    a("s_lshl_b32 s55, s50, 16")
    a("s_lshl_b32 s60, s54, 13")
    a("s_add_u32 s60, s60, s55")
    a("v_xor_b32 v18, s58, v16")
    a("v_add_u32 v18, s60, v18")
    a("v_add_u32 v19, 32768, v18")
    a("v_and_b32 v7, 1, v7")
    a("v_lshlrev_b32 v7, 2, v7")
    a("v_xor_b32 v8, v6, v7")
    a("v_mul_u32_u24 v9, 3072, v5")
    a("v_lshl_add_u32 v9, v8, 4, v9")
    a("s_lshl_b32 s56, s49, 7")
    a("s_mul_i32 s62, s54, 3")
    for i in range(3):
        a(f"s_add_u32 s58, s62, {i}")
        a("s_and_b32 s59, s58, 3")
        a("s_mul_i32 s59, s59, 24576")
        a("s_lshr_b32 s58, s58, 2")
        a("s_lshl_b32 s58, s58, 10")
        a("s_add_u32 s58, s58, s59")
        a("s_add_u32 s58, s58, s56")
        if i: a(f"s_sub_u32 s58, s58, {1024*i}")
        a(f"v_add_u32 v{20+i}, s58, v9")
    a("s_lshl_b32 s61, s54, 10")
    a("s_lshl_b32 s62, s62, 10")
    a("s_and_b32 s64, s53, 7")
    a("s_lshl_b32 s65, s64, 7")
    a(f"s_mul_i32 s64, s64, {64*3072}")
    a("s_mov_b32 s38, %d\ns_mov_b32 s39, 0x20000\ns_mov_b32 s42, %d\ns_mov_b32 s43, 0x20000" % (2048*512*2, 512*1536*2))
    a("s_mov_b32 m0, s61")
    a("s_waitcnt lgkmcnt(0)")
    a("s_mov_b32 s36, s4\ns_and_b32 s37, s5, 0xffff\ns_mov_b32 s40, s24\ns_and_b32 s41, s25, 0xffff")
    a.stamp(1)
    ops = []
    def vm(t, tag):
        a(t); ops.append(tag)
    def need(tag, extra=""):
        last = max(i for i, t in enumerate(ops) if t == tag)
        a(f"s_waitcnt vmcnt({len(ops)-1-last}){extra}")
    def sub(j):
        hi = j + 1
        if hi < 16:
            a(f"s_add_u32 m0, s61, {4096*hi}")
            if hi % 2 == 0:
                a("s_add_u32 s65, s65, 128")
                a("s_and_b32 s65, s65, 1023")
            else:
                a("s_nop 0")
            vm(f"buffer_load_dwordx4 v{18+(hi&1)}, s[36:39], s65 offen{NX} lds", j)
        a(f"s_add_u32 m0, s62, {L_W+12288*(j%NSLOT)}")
        a(f"s_add_u32 s58, s64, {32*3072}")
        for i in range(3):
            vm(f"buffer_load_dwordx4 v{20+i}, s[40:43], s64 offen offset:{1024*i}{NW} lds", j)
        a(f"s_cmp_lt_u32 s58, {512*3072}")
        a("s_cselect_b32 s64, s58, 0")
    vm(f"buffer_load_dwordx4 v18, s[36:39], s65 offen{NX} lds", 0)
    sub(0)
    srd(a, 44, 34, 35, W2_END)
    a("v_xor_b32 v17, 64, v16")
    a("v_add_u32 v17, 7168, v17")
    a("s_sub_u32 s74, 4, s50")
    a("s_and_b32 s74, s74, 7")
    a("s_lshl_b32 s74, s74, 13")
    a("s_lshl_b32 s58, s54, 11")
    a("s_add_u32 s74, s74, s58")
    a("s_mov_b32 m0, s74")
    a("s_lshl_b32 s58, s54, 14")
    a("s_add_u32 s58, s58, s55")
    a("s_xor_b32 s59, s56, 512")
    a("s_add_u32 s58, s58, s59")
    vm("buffer_load_dwordx4 v16, s[36:39], s58 offen lds", "xs")
    vm("buffer_load_dwordx4 v17, s[36:39], s58 offen offset:1024 lds", "xs")
    sub(1); sub(2)
    a("v_lshlrev_b32 v5, 7, v1")
    a(f"s_add_u32 s67, s51, {G_FL}")
    a(f"s_mov_b32 m0, {L_GW}")
    a("s_lshl_b32 s58, 16, s54")
    a("s_or_b32 exec_lo, s58, 1")
    a("s_mov_b32 exec_hi, 0")
    vm("buffer_load_dword v163, v5, s[44:47], s67 offen " + ("nt" if "ntu" in X else "sc1"), "fl")
    a("s_lshl_b32 s58, s54, 4")
    a("s_lshl_b64 exec, 0xffff, s58")
    vm("global_load_lds_dwordx4 v4, s[28:29]", "gw")
    a("s_mov_b64 exec, -1")
    sub(3)
    a("v_bfe_u32 v5, v1, 2, 2")
    a("v_lshrrev_b32 v6, 4, v1")
    a("v_bfe_u32 v7, v1, 1, 1")
    a("v_lshl_add_u32 v6, v6, 1, v7")
    a("v_lshrrev_b32 v7, 1, v5")
    a("v_xor_b32 v6, v6, v7")
    a("v_lshlrev_b32 v6, 4, v6")
    a("v_lshl_add_u32 v6, v5, 7, v6")
    a("v_and_b32 v7, 1, v1")
    a("v_lshl_add_u32 v6, v7, 3, v6")
    a("v_add_u32 v28, s74, v6")
    for i in range(1, 4):
        a(f"v_xor_b32 v{28+i}, {32*i}, v28")
    need("xs")
    a("s_setprio 3")
    for i in range(4):
        a(f"ds_read_b64_tr_b16 {vr(32+2*i,2)}, v{28+i} offset:{512*i}")
    a("v_lshrrev_b32 v5, 1, v1")
    a("v_lshlrev_b32 v5, 13, v5")
    a("v_lshl_add_u32 v27, v7, 6, v5")
    a("s_lshl_b32 s75, s50, 8")
    a("s_lshr_b32 s59, s54, 1")
    a("s_lshl_b32 s59, s59, 7")
    a("s_add_u32 s75, s75, s59")
    a("s_add_u32 s75, s75, s51")
    a(f"s_add_u32 s75, s75, {G_UT}")
    a("s_lshl_b32 s58, s73, 5")
    a("s_add_u32 s75, s75, s58")
    a("s_waitcnt lgkmcnt(0)")
    vm("buffer_store_dwordx4 v[32:35], v27, s[44:47], s75 offen" + NT, 3)
    vm("buffer_store_dwordx4 v[36:39], v27, s[44:47], s75 offen offset:16" + NT, 3)
    if "lst" in X: a.stamp(3)
    PRE = 6 if "p6" in X else 5 if "p5" in X else 4
    for j in range(4, PRE): sub(j)
    a("v_lshrrev_b32 v10, 3, v1")
    a("s_lshl_b32 s58, s49, 3")
    a("v_add_u32 v10, s58, v10")
    a("v_and_b32 v11, 7, v1")
    a("v_bfe_u32 v12, v10, 1, 3")
    a("v_xor_b32 v12, v12, v11")
    a("v_lshlrev_b32 v12, 4, v12")
    a("v_lshl_add_u32 v12, v10, 7, v12")
    a("s_and_b32 s58, s53, 7")
    a("s_lshl_b32 s58, s58, 7")
    a("v_lshl_add_u32 v11, v11, 4, s58")
    a("v_bfe_u32 v5, v1, 4, 1")
    a("v_lshlrev_b32 v5, 16, v5")
    a("v_and_b32 v6, 15, v1")
    a("v_lshl_add_u32 v13, v6, 7, v5")
    a(f"s_mul_i32 s71, s54, {G_HEAD}")
    a("s_lshl_b32 s58, s50, 11")
    a("s_add_u32 s71, s71, s58")
    a("s_add_u32 s71, s71, s51")
    a("s_and_b32 s58, s50, 15")
    a(f"s_cmp_lt_u32 s58, {NEARLY}")
    a("s_cselect_b32 s58, 0, 0x7ff00000")
    a("v_add_u32 v13, s58, v13")
    for c in range(8):
        a(f"v_add_u32 v{40+c}, {128*c}, v11")
        a(f"v_and_b32 v{40+c}, 1023, v{40+c}")
        a(f"v_add_u32 v{40+c}, {L_GW}, v{40+c}")
    for j in range(12):
        need(j)
        if "lst" in X and j in (0, 4, 8): a.stamp(4 + j // 4)
        a("s_barrier")
        if j + 4 >= PRE: sub(j + 4)
    if "tq" in X:
        a("s_mov_b32 exec_hi, 0")
        vm("buffer_load_dword v163, v13, s[44:47], s71 offen " + ("nt" if "ntu" in X else "sc1"), "tq")
        a("s_mov_b64 exec, -1")
    need(12)
    a("s_barrier")
    a("s_cmp_eq_u32 s54, 3")
    a("s_cbranch_scc1 KA_LG")
    for j in (13, 14, 15):
        need(j)
        a("s_barrier")
    a.stamp(2)
    a("s_cmp_eq_u32 s54, 2")
    a("s_cbranch_scc1 KA_LZ")

    a("KA_ATT:")
    QA, QB, P, OA, OB, SA, SB = 8, 12, 28, 36, 52, 68, 84
    KBUF = [100, 108, 116, 124]
    PB, LA, LB, ONE, IXV, IXL = 132, 140, 144, 24, 6, 7
    SM32, SM16 = "v_smfmac_f32_32x32x32_bf16", "v_smfmac_f32_16x16x64_bf16"
    a("s_and_b32 s54, s48, 3")
    a("s_lshr_b32 s55, s48, 2")
    a(f"s_mul_i32 s57, s54, {G_HEAD}")
    a("s_add_u32 s57, s57, s51")
    a("s_lshl_b32 s58, s55, 15")
    a("s_add_u32 s58, s58, s57")
    a("s_add_u32 s59, s58, 65536")
    a("s_lshl_b32 s56, s50, 1")
    a("s_add_u32 s56, s56, s55")
    a("s_lshl_b32 s56, s56, 5")
    a("s_lshl_b32 s60, s49, 2")
    a("s_add_u32 s56, s56, s60")
    a("s_add_u32 s56, s56, s54")
    a("s_lshl_b32 s56, s56, 10")
    a(f"s_add_u32 s56, s56, {W2_O}")
    a("v_bfe_u32 v2, v1, 4, 1")
    a("v_mul_u32_u24 v2, 0xaaaa, v2")
    a(f"v_add_u32 v{IXV}, 0x4444, v2")
    a("v_and_b32 v2, 1, v1")
    a("v_mul_u32_u24 v2, 0xaaaa, v2")
    a(f"v_add_u32 v{IXL}, 0x4444, v2")
    a("v_and_b32 v2, 6, v1")
    a("v_cmp_eq_u32 vcc, 0, v2")
    a("v_cmp_eq_u32 s[62:63], 4, v2")
    a("v_mov_b32 v2, 0x3f803f80")
    a("v_lshlrev_b32 v157, 3, v1")
    a(f"v_cndmask_b32 v{ONE}, 0, v2, vcc")
    a(f"v_cndmask_b32 v{ONE+2}, 0, v2, s[62:63]")
    a(f"v_mov_b32 v{ONE+1}, v{ONE}")
    a(f"v_mov_b32 v{ONE+3}, v{ONE+2}")
    a("s_lshl_b32 s60, s54, 11")
    a(f"s_add_u32 s60, s60, {L_Q}")
    a("v_add_u32 v5, s60, v4")
    a(f"s_mov_b32 s64, {hex((1<<PRIO1)|(1<<PRIO0))}")
    for i in range(32): a(f"v_mov_b32 v{OA+i}, 0")
    for i in range(20): a(f"v_mov_b32 v{KBUF[3]+4+i}, 0")
    a("s_mul_i32 s60, s48, 2304")
    a(f"s_add_u32 s60, s60, {L_OX}")
    a("s_xor_b32 s61, s48, 4")
    a("s_mul_i32 s61, s61, 2304")
    a(f"s_add_u32 s61, s61, {L_OX}")
    a("v_add_u32 v16, s60, v4")
    a("v_add_u32 v17, s61, v4")
    a("v_lshl_add_u32 v18, v1, 2, s60")
    a("v_lshl_add_u32 v19, v1, 2, s61")
    a("s_lshl_b32 s60, s54, 2")
    a(f"v_add_u32 v20, s60, v{VSY}")
    a(f"v_mov_b32 v21, {hex(f2u(2.0**-80))}")
    a(f"v_mov_b32 v22, {hex(f2u(2.0**80))}")
    a(f"v_mov_b32 v23, 0x7f7fffff")
    a("s_lshl_b32 s74, s50, 11")
    a(f"s_add_u32 s74, s74, {W2_FO}")
    a("v_lshlrev_b32 v154, 7, s49")
    a("s_mov_b32 s65, 0")
    a("s_cmp_eq_u32 s55, 0")
    a("s_cbranch_scc1 KA_AT1")
    wait(S_NONCE, 1, out=52)
    a("KA_AT1:")
    a("v_mov_b32 v153, s52")
    wait(S_QRDY, 4)
    a(f"ds_read_b128 {vr(QA,4)}, v5")
    a(f"ds_read_b128 {vr(QB,4)}, v5 offset:1024")
    if "lst" not in X: a.stamp(4)
    a("s_cmp_lg_u32 s48, 4")
    a("s_cbranch_scc1 KA_AT2")
    mktag(512)
    a("v_lshlrev_b32 v156, 7, v1")
    a("s_lshl_b32 s60, s50, 2")
    a("v_add_u32 v156, s60, v156")
    wait(S_DONE, 4)
    collect(True, None, 15)
    sig(S_GO)
    a("s_branch KA_AT3")
    a("KA_AT2:")
    a("s_waitcnt vmcnt(0)")
    a("s_cmp_lg_u32 s48, 7")
    a("s_cbranch_scc1 KA_NOGF")
    sig(S_CD)
    a("KA_NOGF:")
    wait(S_GO, 1)
    a("KA_AT3:")
    def kload(B, off): a(f"buffer_load_dwordx4 {vr(B,4)}, v4, s[44:47], s58 offen offset:{off}{NK}")
    def vload(B, off): a(f"buffer_load_dwordx4 {vr(B+4,4)}, v4, s[44:47], s59 offen offset:{off}{NK}")
    kload(KBUF[0], 0)
    for t in range(3):
        vload(KBUF[t], 1024 * t); kload(KBUF[t+1], 1024 * (t + 1))
    a("s_add_u32 s58, s58, 4096")
    a("s_add_u32 s59, s59, 3072")
    a("s_setprio 2")
    if "lst" not in X: a.stamp(7)
    a("s_waitcnt vmcnt(6) lgkmcnt(0)")
    a.stamp(7 if "lst" in X else 5)
    a(f"{MF} {vr(SA,16)}, {vr(KBUF[0],4)}, {vr(QA,4)}, 0")
    a("s_nop 11")
    a(".p2align 6")
    a("KA_LOOP:")
    if "ast" in X:
        for k, b in enumerate((1, 2, 3, 5)):
            a(f"s_cmp_lg_u32 s65, {b}\ns_cbranch_scc1 KA_Q{k}")
            a.stamp(1 + k)
            a(f"KA_Q{k}:")
    for u in range(4):
        B, Bn, Bp = KBUF[u], KBUF[(u+1) % 4], KBUF[(u+3) % 4]
        if u == (3 if "h3" in X else 2):
            a("s_bitcmp1_b32 s64, s65")
            a("s_cbranch_scc1 KA_SPECIAL")
            a("KA_BODY:")
        for unit in range(2):
            Sc, Sn, Pc, Pp, Op, Lp, Qn = (SA, SB, P, PB, OB, LB, QB) if unit == 0 else (SB, SA, PB, P, OA, LA, QA)
            e = lambda i: a(f"v_exp_f32 v{Sc+i}, v{Sc+i}")
            c = lambda j: a(f"v_cvt_pk_bf16_f32 v{Pc+j}, v{Sc+2*j}, v{Sc+2*j+1}")
            e(0); e(1)
            if unit == 1: a("s_waitcnt vmcnt(6)")
            a(f"{SM32} {vr(Op,16)}, {vr((Bp if unit == 0 else B)+4,4)}, {vr(Pp,8)}, v{IXV}")
            if unit == 0: vload(Bp, 1024 * u)
            e(2); e(3); c(0); e(4); c(1); e(5)
            a(f"{MF} {vr(Sn,16)}, {vr(B if unit == 0 else Bn,4)}, {vr(Qn,4)}, 0")
            if unit == 0: kload(B, 1024 * u)
            e(6); e(7); c(2); e(8); c(3); e(9); e(10)
            a(f"{SM16} {vr(Lp,4)}, {vr(ONE,4)}, {vr(Pp,8)}, v{IXL}")
            c(4); e(11); e(12); e(13); c(5); e(14); e(15); c(6)
            if u == 3 and unit == 1:
                a("s_add_u32 s58, s58, 4096")
                a("s_add_u32 s59, s59, 4096")
                a("s_add_u32 s65, s65, 1")
                a("s_cmp_lt_u32 s65, 8")
            c(7)
    a("s_cbranch_scc1 KA_LOOP")
    a("s_nop 0")
    a(f"{SM32} {vr(OB,16)}, {vr(KBUF[3]+4,4)}, {vr(PB,8)}, v{IXV}")
    a(f"{SM16} {vr(LB,4)}, {vr(ONE,4)}, {vr(PB,8)}, v{IXL}")
    if "lst" not in X: a.stamp(6)
    def fold(O, L):
        for i in range(8): a(f"v_add_f32 v{O+i}, v{O+i}, v{O+8+i}")
        a(f"v_add_f32 v{O+8}, v{L}, v{L+1}")
    fold(OA, LA)
    a("s_cmp_eq_u32 s55, 0")
    a("s_cbranch_scc1 KA_XA")
    for keep, send, lab in ((OB, OA, None), (OA, OB, "KA_XA")):
        if lab:
            a(f"{lab}:")
            fold(OB, LB)
        a(f"ds_write_b128 v16, {vr(send,4)}")
        a(f"ds_write_b128 v16, {vr(send+4,4)} offset:1024")
        a(f"ds_write_b32 v18, v{send+8} offset:2048")
        a("s_mov_b64 exec, 1")
        a(f"ds_add_u32 v20, v{VONE} offset:{S_OX}")
        a(f"ds_add_u32 v{VSY}, v{VONE} offset:{S_FIN}")
        a("s_mov_b64 exec, -1")
        if not lab: fold(OB, LB)
        wait(S_OX, 2, 20, nap=(1 if "oxn" in X else 0))
        a(f"ds_read_b32 v{send+8}, v19 offset:2048")
        a(f"ds_read_b128 {vr(send,4)}, v17")
        a(f"ds_read_b128 {vr(send+4,4)}, v17 offset:1024")
        if not lab: a("s_branch KA_XJ")
    a("KA_XJ:")
    a("s_waitcnt lgkmcnt(2)")
    a(f"v_add_f32 v{SA}, v{OA+8}, v{OB+8}")
    a("s_waitcnt lgkmcnt(0)")
    a(f"v_rcp_f32 v{SA+1}, v{SA}")
    for i in range(8):
        a(f"v_add_f32 v{OA+i}, v{OA+i}, v{OB+i}")
    a.c("safety check of the zero stand-in for the row max: l inside [2^-80, 2^80] and O finite")
    a(f"v_cmp_nge_f32 vcc, v{SA}, v21")
    a(f"v_cmp_nle_f32 s[68:69], v{SA}, v22")
    for i in range(8):
        a(f"v_mul_f32 v{OA+i}, v{OA+i}, v{SA+1}")
    a(f"v_add_f32 v{SA+2}, |v{OA}|, |v{OA+1}|")
    a(f"v_add_f32 v{SA+3}, |v{OA+2}|, |v{OA+3}|")
    a(f"v_add_f32 v{SA+4}, |v{OA+4}|, |v{OA+5}|")
    a(f"v_add_f32 v{SA+5}, |v{OA+6}|, |v{OA+7}|")
    a(f"v_add_f32 v{SA+2}, v{SA+2}, v{SA+3}")
    a(f"v_add_f32 v{SA+4}, v{SA+4}, v{SA+5}")
    a(f"v_add_f32 v{SA+2}, v{SA+2}, v{SA+4}")
    a("s_or_b64 vcc, vcc, s[68:69]")
    a(f"v_cmp_nle_f32 s[68:69], v{SA+2}, v23")
    for i in range(4):
        a(f"v_cvt_pk_bf16_f32 v{P+i}, v{OA+2*i}, v{OA+2*i+1}")
    a("s_or_b64 vcc, vcc, s[68:69]")
    a("s_cbranch_scc1 KA_SLOW")
    a("KA_FIN:")
    a(f"buffer_store_dwordx4 {vr(P,4)}, v4, s[44:47], s56 offen sc1")
    a("s_waitcnt vmcnt(0)")
    a("s_mov_b64 exec, 1")
    a(f"ds_add_rtn_u32 v{VTMP}, v{VSY}, v{VONE} offset:{S_OD}")
    a("s_waitcnt lgkmcnt(0)")
    a(f"v_readfirstlane_b32 s76, v{VTMP}")
    a("s_cmp_lg_u32 s76, 7")
    a("s_cbranch_scc1 KA_NLAST")
    a("buffer_store_dword v153, v154, s[44:47], s74 offen sc1")
    a("KA_NLAST:")
    a("s_cmp_lg_u32 s76, 0")
    a("s_cbranch_scc1 KA_NFIRST")
    a("s_mov_b64 exec, 0xff")
    a("s_lshl_b32 s72, s49, 2")
    a("s_and_b32 s73, s50, 3")
    a("s_add_u32 s72, s72, s73")
    a("s_lshl_b32 s72, s72, 11")
    a(f"s_add_u32 s72, s72, {W2_FO}")
    a("v_lshlrev_b32 v16, 7, v1")
    a(f"s_mov_b32 s69, {SLOW_TRIES}")
    a("buffer_load_dword v17, v16, s[44:47], s72 offen sc1")
    a("KA_WP:")
    for cur, nxt in ((17, 18), (18, 17)):
        a(f"s_sleep {PSL}")
        a(f"buffer_load_dword v{nxt}, v16, s[44:47], s72 offen sc1")
        a("s_waitcnt vmcnt(1)")
        a(f"v_cmp_eq_u32 vcc, s52, v{cur}")
        a("s_nop 1")
        a("v_mov_b32 v19, vcc_lo")
        a(f"ds_or_b32 v{VSY}, v19 offset:{S_PO}")
        a("s_cmp_eq_u32 vcc_lo, 0xff")
        a("s_cbranch_scc1 KA_NFIRST")
    a("s_sub_u32 s69, s69, 1")
    a("s_cbranch_scc0 KA_WP")
    a("KA_NFIRST:")
    a.end(0)
    a("KA_SPECIAL:")
    if "wb" in X: sig(S_WB)
    a("s_setprio 1")
    a(f"s_cmp_eq_u32 s65, {PRIO1}")
    a("s_cbranch_scc1 KA_BODY")
    a("s_setprio 0")
    a("s_branch KA_BODY")
    a.c("fallback: true row max over all keys, then recompute this query tile")
    a("KA_SLOW:")
    B = KBUF[0]
    a("s_cmp_eq_u32 s55, 0")
    a("s_cbranch_scc1 KA_SLQ")
    for i in range(4): a(f"v_mov_b32 v{QA+i}, v{QB+i}")
    a("KA_SLQ:")
    a("s_waitcnt vmcnt(0)")
    a(f"v_mov_b32 v{SB}, 0xff800000")
    a("s_mov_b32 s58, s57")
    a("s_mov_b32 s65, 0")
    a("KA_MAXL:")
    a(f"buffer_load_dwordx4 {vr(B,4)}, v4, s[44:47], s58 offen")
    a("s_add_u32 s58, s58, 1024")
    a("s_add_u32 s65, s65, 1")
    a("s_waitcnt vmcnt(0)")
    a(f"{MF} {vr(SA,16)}, {vr(B,4)}, {vr(QA,4)}, 0")
    a("s_nop 15")
    for i in range(8):
        a(f"v_max3_f32 v{SB}, v{SA+2*i}, v{SA+2*i+1}, v{SB}")
    a("s_cmp_lt_u32 s65, 64")
    a("s_cbranch_scc1 KA_MAXL")
    a(f"v_mov_b32 v{SB+1}, v{SB}")
    a("s_nop 1")
    a(f"v_permlane32_swap_b32 v{SB}, v{SB+1}")
    a(f"v_max_f32 v{SB}, v{SB}, v{SB+1}")
    for i in range(16):
        a(f"v_mov_b32 v{OA+i}, 0")
    for i in range(4):
        a(f"v_mov_b32 v{LA+i}, 0")
    a("s_mov_b32 s58, s57")
    a("s_add_u32 s59, s57, 65536")
    a("s_mov_b32 s65, 0")
    a("KA_SLOWL:")
    kload(B, 0); vload(B, 0)
    a("s_add_u32 s58, s58, 1024")
    a("s_add_u32 s59, s59, 1024")
    a("s_add_u32 s65, s65, 1")
    a("s_waitcnt vmcnt(0)")
    a(f"{MF} {vr(SA,16)}, {vr(B,4)}, {vr(QA,4)}, 0")
    a("s_nop 15")
    for i in range(16):
        a(f"v_sub_f32 v{SA+i}, v{SA+i}, v{SB}")
    for i in range(16):
        a(f"v_exp_f32 v{SA+i}, v{SA+i}")
    a("s_nop 0")
    for j in range(8):
        a(f"v_cvt_pk_bf16_f32 v{P+j}, v{SA+2*j}, v{SA+2*j+1}")
    a("s_nop 1")
    a(f"{SM32} {vr(OA,16)}, {vr(B+4,4)}, {vr(P,8)}, v{IXV}")
    a(f"{SM16} {vr(LA,4)}, {vr(ONE,4)}, {vr(P,8)}, v{IXL}")
    a("s_nop 7")
    a("s_cmp_lt_u32 s65, 64")
    a("s_cbranch_scc1 KA_SLOWL")
    a("s_nop 15")
    fold(OA, LA)
    a(f"v_rcp_f32 v{SA}, v{OA+8}")
    a("s_nop 0")
    for i in range(8):
        a(f"v_mul_f32 v{OA+i}, v{OA+i}, v{SA}")
    for i in range(4):
        a(f"v_cvt_pk_bf16_f32 v{P+i}, v{OA+2*i}, v{OA+2*i+1}")
    a("s_branch KA_FIN")

    a("KA_LZ:")
    a("v_mov_b32 v8, 0")
    a("v_lshlrev_b32 v5, 2, v1")
    a(f"v_add_u32 v5, {L_KP+4100}, v5")
    for c in range(4):
        if c % 2 == 0: a("s_mov_b64 exec, %s" % ("0x7fff" if c == 0 else "0x7ffe"))
        for ch in range(2): a(f"ds_write_b32 v5, v8 offset:{c*KPC+ch*KPROW}")
    a("s_mov_b64 exec, -1")
    sig(S_UDONE)
    a("s_branch KA_ATT")
    a("KA_LG:")
    def grd(c):
        a(f"ds_read_b128 {vr(64+4*c,4)}, v12 offset:{8192*c}")
        a(f"ds_read_b128 {vr(96+4*c,4)}, v{40+c}")
    grd(0); grd(1); grd(2)
    need(13)
    a("s_barrier")
    grd(3); grd(4); grd(5); grd(6)
    need(14)
    a("s_barrier")
    a("s_waitcnt lgkmcnt(6)")
    grd(7)
    need(15, " lgkmcnt(0)")
    a("s_barrier")
    a.stamp(2)
    a("v_mov_b32 v9, 0")
    a("s_lshl_b32 s58, s50, 9")
    a(f"s_add_u32 s58, s58, {W2_G}")
    a("v_lshlrev_b32 v5, 3, v10")
    for i in range(32): a(f"v_dot2_f32_bf16 v9, v{64+i}, v{96+i}, v9")
    a("s_nop 3")
    a("v_add_f32_dpp v9, v9, v9 quad_perm:[1,0,3,2] row_mask:0xf bank_mask:0xf")
    a("s_nop 1")
    a("v_add_f32_dpp v9, v9, v9 quad_perm:[2,3,0,1] row_mask:0xf bank_mask:0xf")
    a("s_nop 1")
    a("v_add_f32_dpp v9, v9, v9 row_half_mirror row_mask:0xf bank_mask:0xf")
    a("v_cvt_pk_bf16_f32 v9, v9, v9")
    a("v_and_b32 v9, 0xffff0000, v9")
    a(f"v_mul_f32 v9, {hex(f2u(-LOG2E))}, v9")
    a("v_exp_f32 v9, v9")
    a("s_nop 0")
    a("v_add_f32 v9, 1.0, v9")
    a("v_rcp_f32 v9, v9")
    a("s_nop 0")
    a("v_cvt_pk_bf16_f32 v10, v9, v9")
    a("v_and_b32 v10, 0xffff0000, v10")
    a("v_sub_f32 v11, 1.0, v10")
    a("v_cvt_pk_bf16_f32 v11, v11, v11")
    a("v_and_b32 v11, 0xffff0000, v11")
    a("s_mov_b32 exec_lo, 0x01010101")
    a("s_mov_b32 exec_hi, 0x01010101")
    a("buffer_store_dwordx2 v[10:11], v5, s[44:47], s58 offen sc1")
    a("s_mov_b64 exec, -1")
    a("s_branch KA_ATT")

    a("KA_CONS:")
    a("s_setprio 3")
    ACC, FB = 112, 32
    XA, WAD, FLA = 16, 20, 21
    a("s_and_b32 s54, s48, 1")
    a("s_lshr_b32 s55, s48, 1")
    a("v_and_b32 v5, 31, v1")
    a("s_lshl_b32 s56, s54, 12")
    a("v_lshl_add_u32 v6, v5, 7, s56")
    a("v_bfe_u32 v7, v5, 1, 3")
    a("v_xor_b32 v7, v7, v3")
    a(f"v_lshl_add_u32 v{XA}, v7, 4, v6")
    for ks in range(1, 4):
        a(f"v_xor_b32 v{XA+ks}, {ks<<5}, v{XA}")
    a("v_bfe_u32 v7, v1, 2, 2")
    a("v_lshl_add_u32 v6, v3, 3, v7")
    a("v_lshlrev_b32 v6, 7, v6")
    a("v_lshrrev_b32 v7, 1, v7")
    a("v_xor_b32 v7, s55, v7")
    a("v_lshl_add_u32 v6, v7, 6, v6")
    a("v_bfe_u32 v7, v1, 4, 1")
    a("v_lshl_add_u32 v6, v7, 5, v6")
    a("v_and_b32 v7, 3, v1")
    a("v_lshl_add_u32 v6, v7, 3, v6")
    a(f"v_add_u32 v{WAD}, {L_W}, v6")
    for i in range(48):
        a(f"v_mov_b32 v{ACC+i}, 0")
    a("s_lshl_b32 s58, s48, 10")
    a(f"s_add_u32 s58, s58, {L_U}")
    a("v_add_u32 v5, s58, v4")
    a(f"ds_write_b128 v5, {vr(ACC,4)}")
    a(f"v_add_u32 v5, {L_U+4096}, v4")
    a("s_mov_b64 exec, 0x7fffff")
    a(f"ds_write_b128 v5, {vr(ACC,4)}")
    a("s_mov_b64 exec, -1")
    a("s_waitcnt lgkmcnt(0)")
    srd(a, 44, 34, 35, W2_END)
    WB = 22
    a("v_lshrrev_b32 v25, 2, v1")
    a("v_xor_b32 v25, v25, v1")
    a("v_and_b32 v25, 4, v25")
    a("v_mul_u32_u24 v25, 5, v25")
    a("v_xor_b32 v25, v25, v1")
    a("v_lshlrev_b32 v25, 4, v25")
    a(f"v_mov_b32 v{WB}, v{WAD}")
    def reads(step):
        F = FB + 16 * (step & 3)
        xo = (step >> 2) * 8192
        wo = (step & 1) * 2048
        r = [f"ds_read_b128 {vr(F,4)}, v{XA+(step&3)} offset:{xo}"]
        for ct in range(3):
            for hh in range(2):
                r.append(f"ds_read_b64_tr_b16 {vr(F+4+4*ct+2*hh,2)}, v{WAD} offset:{wo+ct*4096+hh*512}")
        return r
    def mfmas(step):
        F = FB + 16 * (step & 3)
        r = []
        for ct in range(3):
            x, w = vr(F, 4), vr(F + 4 + 4 * ct, 4)
            A, B = (w, x) if ct < 2 else (x, w)
            r.append(f"{MF} {vr(ACC+16*ct,16)}, {A}, {B}, {vr(ACC+16*ct,16)}")
        return r
    a("s_mov_b32 s58, 0")
    a("s_mov_b32 s57, 3")
    a("s_barrier")
    a.stamp(1)
    for t in reads(0) + reads(1): a(t)
    a("KA_GEMM:")
    for st in range(8):
        m, r = mfmas(st), reads(st + 2)
        if st % 2 == 0:
            a("s_add_u32 s58, s58, 12288")
            a(f"s_cmp_eq_u32 s58, {NSLOT*12288}")
            a("s_cselect_b32 s58, 0, s58")
            a(f"v_add_u32 v{WAD}, s58, v{WB}")
            if st == 6: a("s_cmp_eq_u32 s57, 0")
        a("s_waitcnt lgkmcnt(7)")
        a(m[0])
        if st == 6: a("s_cbranch_scc1 KA_GEND")
        if st % 2 == 0: a("s_barrier")
        [a(t) for t in r[:3]]; a(m[1]); [a(t) for t in r[3:6]]; a(m[2]); a(r[6])
    for k in range(4):
        a(f"v_add_u32 v{XA+k}, 16384, v{XA+k}")
    a("s_sub_u32 s57, s57, 1")
    a("s_branch KA_GEMM")
    a("KA_GEND:")
    m = mfmas(6); a(m[1]); a(m[2])
    a("s_waitcnt lgkmcnt(0)")
    for t in mfmas(7): a(t)
    a.stamp(2)
    a("s_lshl_b32 s58, s50, 1")
    a("s_add_u32 s58, s58, s54")
    a("s_lshl_b32 s58, s58, 10")
    a(f"s_mul_i32 s59, s55, {2*G_HEAD}")
    a("s_add_u32 s58, s58, s59")
    a("s_add_u32 s58, s58, s51")
    a(f"s_add_u32 s59, s58, {G_HEAD}")
    a("s_add_u32 s62, s58, 65536")
    a(f"s_mov_b32 s63, {hex(QSCALE)}")
    a("v_bfe_u32 v5, v1, 4, 1")
    a(f"v_mul_u32_u24 v5, {G_HEAD}, v5")
    a("v_and_b32 v6, 15, v1")
    a("v_lshl_add_u32 v6, v3, 5, v6")
    a("v_lshl_add_u32 v6, v6, 4, v5")
    for i in range(8):
        a(f"v_cvt_pk_bf16_f32 v{16+i}, v{ACC+16+2*i}, v{ACC+16+2*i+1}")
    a("buffer_store_dwordx4 v[16:19], v25, s[44:47], s58 offen" + NT)
    a("buffer_store_dwordx4 v[20:23], v25, s[44:47], s59 offen" + NT)
    for i in range(8):
        a(f"v_cvt_pk_bf16_f32 v{96+4*(i&1)+(i>>1)}, v{ACC+32+2*i}, v{ACC+32+2*i+1}")
    a("buffer_store_dwordx4 v[96:99], v6, s[44:47], s62 offen" + NT)
    a("buffer_store_dwordx4 v[100:103], v6, s[44:47], s62 offen offset:256" + NT)
    wait(S_NONCE, 1, out=52)
    for i in range(16):
        a(f"v_mul_f32 v{ACC+i}, s63, v{ACC+i}")
    a("s_lshl_b32 s60, s55, 12")
    a("s_lshl_b32 s61, s54, 10")
    a("s_add_u32 s60, s60, s61")
    a(f"s_add_u32 s60, s60, {L_Q}")
    a("v_add_u32 v5, s60, v4")
    for i in range(8):
        a(f"v_cvt_pk_bf16_f32 v{32+i}, v{ACC+2*i}, v{ACC+2*i+1}")
    a("ds_write_b128 v5, v[32:35]")
    a("ds_write_b128 v5, v[36:39] offset:2048")
    sig(S_QRDY)
    mktag(512)
    a("s_lshl_b32 s60, s48, 7")
    a("s_lshl_b32 s61, s50, 2")
    a("s_add_u32 s60, s60, s61")
    a("v_mov_b32 v156, s60")
    a("s_waitcnt vmcnt(0)")
    publish()
    sig(S_DONE)
    a.stamp(3)
    a("s_branch KA_ATT")

    import ka_aux
    ka_aux.gen_aux(a, sig, wait, wait4, lbl, X, gettag, mktag, publish, collect, dsig)
    a("KA_END:")
    a("s_endpgm")
    return a.text(), 168
```

```python
from common import *
from ka import *

def gen_aux(a, sig, wait, wait4, lbl, X, gettag, mktag, publish, collect, dsig):
    import ka
    cmul = ka.cmul if "nopk" in X else ka.cmul_pk
    PSL = 1 if "ps1" in X else 8 if "ps8" in X else 3
    FINN = 4 if "f4" in X else 1 if "f1" in X else 8
    DATA_TRIES = 0 if "dt0" in X else 200
    st = (lambda i: None) if "p3st" in X else a.stamp
    a("KA_AUX:")
    a("s_and_b32 s61, s54, 1")
    a("s_lshr_b32 s62, s54, 1")
    a("s_mov_b32 s52, 0")
    srd(a, 44, 34, 35, W2_END)
    a("s_lshl_b32 s63, s2, 2")
    a("s_add_u32 s63, s63, s54")
    a("s_cmp_lg_u32 s63, 3")
    a("s_cbranch_scc1 KA_NOPUB")
    a("s_memrealtime s[64:65]")
    a("s_waitcnt lgkmcnt(0)")
    a("s_or_b32 s64, s64, 1")
    a("v_mov_b32 v158, 0")
    a("v_mov_b32 v159, s64")
    a("s_mov_b64 exec, 1")
    a("global_store_dword v158, v159, s[32:33] sc1")
    a("s_mov_b64 exec, -1")
    a("KA_NOPUB:")
    a("v_and_b32 v7, 31, v1")
    Z = 160
    a("v_and_b32 v36, 1, v1")
    a("v_lshlrev_b32 v36, 4, v36")
    a("v_mov_b32 v37, 0x3f80")
    a("v_lshlrev_b32 v36, v36, v37")
    a("v_bfe_u32 v37, v1, 1, 2")
    for d in range(4):
        a(f"v_cmp_eq_u32 s[{64+2*d}:{65+2*d}], {d}, v37")
    a("s_nop 0")
    for d in range(4):
        a(f"v_cndmask_b32 v{Z+d}, 0, v36, s[{64+2*d}:{65+2*d}]")
    a("s_lshl_b32 s63, s54, 11")
    a(f"s_add_u32 s63, s63, {L_XCH}")
    a("v_add_u32 v16, s63, v4")
    a(f"s_mul_i32 s63, s62, {KPROW}")
    a(f"s_add_u32 s63, s63, {L_KP}")
    a("v_lshl_add_u32 v19, v7, 4, s63")
    a("s_lshl_b32 s64, s62, 2")
    a(f"v_add_u32 v167, s64, v{VSY}")
    a("v_lshrrev_b32 v32, 2, v7")
    a("v_lshlrev_b32 v32, 3, v32")
    a("v_sub_u32 v33, 4128, v32")
    a("v_lshl_add_u32 v33, v3, 4, v33")
    a("v_and_b32 v32, 3, v7")
    a(f"v_mul_u32_u24 v32, {KPC}, v32")
    a("s_lshl_b32 s64, s61, 6")
    a("s_add_u32 s64, s64, s63")
    a(f"s_sub_u32 s64, s64, {127*32}")
    a("v_add3_u32 v38, v32, v33, s64")
    a("v_mul_u32_u24 v39, 144, v7")
    a("v_lshl_add_u32 v39, v3, 4, v39")
    a("s_lshl_b32 s64, s62, 6")
    a("s_mul_i32 s65, s61, 144")
    a("s_add_u32 s64, s64, s65")
    a(f"s_add_u32 s64, s64, {L_U}")
    a("v_add_u32 v39, s64, v39")
    a("s_lshl_b32 s64, s54, 6")
    for k, r in enumerate((2, 5, 6)):
        a("v_add_u32 v32, s64, v1")
        if k: a(f"v_add_u32 v32, {256*k}, v32")
        a("v_mul_u32_u24 v33, 7282, v32")
        a("v_lshrrev_b32 v33, 16, v33")
        a("v_mul_u32_u24 v34, 9, v33")
        a("v_sub_u32 v34, v32, v34")
        a("v_min_u32 v34, 7, v34")
        a("v_lshlrev_b32 v34, 4, v34")
        a(f"v_lshl_add_u32 v{r}, v33, 7, v34")
    a("s_lshl_b32 s74, s50, 13")
    a("s_add_u32 s74, s74, s51")
    a(f"s_add_u32 s74, s74, {G_UT}")
    a("s_lshl_b32 s75, s54, 10")
    a(f"s_add_u32 s75, s75, {L_U+31*144}")
    a("s_lshl_b32 s60, s54, 2")
    a(f"s_add_u32 s60, s60, {L_SY+S_UA}")
    a("s_lshl_b32 s58, s61, 12")
    a("s_sub_u32 s58, 2048, s58")
    a(f"s_mov_b32 s63, {hex(LOG2E_HI)}")
    a("s_waitcnt vmcnt(7)")
    a("v_mul_f32 v17, s63, v14")
    a("v_fma_f32 v18, v14, s63, -v17")
    a(f"v_fmac_f32 v18, {hex(LOG2E_LO)}, v14")
    a("v_exp_f32 v17, v17")
    a(f"v_mul_f32 v18, {hex(LN2)}, v18")
    a("v_fma_f32 v17, v17, v18, v17")
    a("v_cvt_pk_bf16_f32 v17, v17, v17")
    a("v_and_b32 v17, 0xffff0000, v17")
    a("s_waitcnt vmcnt(0)")
    st(1)
    for r in (8, 9, 10, 11):
        a(f"v_mul_f32 v{r}, v17, v{r}")
    a("v_mul_f32 v8, s63, v8")
    a("v_mul_f32 v9, 0.15915494, v9")
    W1, W8, W256, W2, W4, W16 = 20, 22, 24, 26, 28, 30
    tmp = 32
    for k, mult in enumerate((1.0, 8.0, 256.0)):
        t = tmp + 2 * k
        a(f"v_mul_f32 v{t}, {hex(f2u(mult))}, v8")
        a(f"v_mul_f32 v{t+1}, {hex(f2u(mult))}, v9")
    for k in range(3):
        t = tmp + 2 * k
        a(f"v_exp_f32 v{t}, v{t}")
        a(f"v_fract_f32 v{t+1}, v{t+1}")
    for k, wr in enumerate((W1, W8, W256)):
        t = tmp + 2 * k
        a(f"v_cos_f32 v{wr}, v{t+1}")
        a(f"v_sin_f32 v{wr+1}, v{t+1}")
    U = {}
    nxt = [40]
    def newU(av):
        U[av] = {524: 8, 780: 10}.get(av) or nxt[0]
        if U[av] == nxt[0]: nxt[0] += 2
        return U[av]
    for l in cmul(newU(0), 12, 10): a(l)
    for k, wr in enumerate((W1, W8, W256)):
        t = tmp + 2 * k
        a(f"v_mul_f32 v{wr}, v{t}, v{wr}")
        a(f"v_mul_f32 v{wr+1}, v{t}, v{wr+1}")
    for l in interleave([cmul(W2, W1, W1), cmul(W16, W8, W8)]): a(l)
    for l in cmul(W4, W2, W2): a(l)
    WA, WB, WR, WI, UR, UI = 96, 100, 112, 128, 144, 96
    wops = [f"v_cvt_pk_bf16_f32 v{WR+15}, v{W8}, 1.0", f"v_cvt_pk_bf16_f32 v{WI+15}, v{W8+1}, 0"]
    ca, cb = W16, None
    wops += cmul(WB, W8, W16); cb = WB
    for k in range(1, 16):
        pk = [f"v_cvt_pk_bf16_f32 v{WR+15-k}, v{cb}, v{ca}", f"v_cvt_pk_bf16_f32 v{WI+15-k}, v{cb+1}, v{ca+1}"]
        if k < 15:
            na, nb = WA + 2 * (k & 1), WB + 2 * (k & 1)
            wops += interleave([cmul(na, ca, W16), cmul(nb, cb, W16), pk])
            ca, cb = na, nb
        else:
            wops += pk
    u1 = []; prev = 0
    for av in (256, 512, 768, 1024, 1280, 1536, 1792):
        u1 += cmul(newU(av), U[prev], W256); prev = av
    for av in (1024, 1280, 1536, 1792):
        u1 += cmul(newU(av + 8), U[av], W8)
    for av in (516, 520, 524):
        u1 += cmul(newU(av), U[av - 4], W4)
    u2 = []
    for av in range(1, 9):
        u2 += cmul(newU(av), U[av - 1], W1)
    for av in (258, 260, 262, 264):
        u2 += cmul(newU(av), U[av - 2], W2)
    for av in (772, 776, 780):
        u2 += cmul(newU(av), U[av - 4], W4)
    assert nxt[0] <= 96
    for l in interleave([wops, interleave([u1, u2])]): a(l)
    rows = [0,1,2,3,4,5,6,7, 256,258,260,4,260,262,264,8, 512,516,520,524,768,772,776,780,
            1024,1032,1280,1288,1536,1544,1792,1800]
    for p in range(16):
        x, y = U[rows[2*p]], U[rows[2*p+1]]
        a(f"v_cvt_pk_bf16_f32 v{UR+p}, v{x}, v{y}")
        a(f"v_cvt_pk_bf16_f32 v{UI+p}, -v{x+1}, -v{y+1}")
    TD, ES, KD = 40, 88, 20
    nb = [0]
    def bar(n=1):
        for _ in range(n):
            a("s_barrier"); nb[0] += 1
    for q in range(2):
        a(f"s_mov_b32 s64, {hex(0xff << (8*q))}")
        a(f"s_mov_b32 s65, {hex(0xff0000 << (8*q))}")
        for d in range(4):
            a(f"v_cndmask_b32 v{ES+4*q+d}, 0, v{Z+d}, s[64:65]")
    a("s_load_dword s52, s[32:33], 0")
    halves = [Xm + 8 * hf for Xm in (WR, UR, WI, UI) for hf in range(2)]
    def tm(i):
        T = TD + 16 * (i % 3)
        return [f"{MF} {vr(T,16)}, {vr(halves[i],4)}, {vr(ES,4)}, 0", f"{MF} {vr(T,16)}, {vr(halves[i]+4,4)}, {vr(ES+4,4)}, {vr(T,16)}"]
    def tc(i):
        T = TD + 16 * (i % 3)
        return [f"v_cvt_pk_bf16_f32 v{halves[i]+k}, v{T+2*k}, v{T+2*k+1}" for k in range(8)]
    def ts(Xm): return [f"v_permlane16_swap_b32 v{Xm+k}, v{Xm+8+k}" for k in range(8)]
    def fin(XU, XW, first): return [f"{MF} {vr(KD,16)}, {vr(XU+4*i,4)}, {vr(XW+4*i,4)}, " + ("0" if first and i == 0 else vr(KD,16)) for i in range(4)]
    def mixm(m, v):
        n = (len(v) + len(m) - 1) // len(m)
        for i, t in enumerate(m):
            a(t)
            for u in v[i*n:(i+1)*n]: a(u)
    a("s_nop 0")
    for t in tm(0) + tm(1) + tm(2): a(t)
    a("s_nop 7")
    for t in tc(0): a(t)
    mixm(tm(3), ["s_nop 0"] + tc(1))
    mixm(tm(4), tc(2) + ts(WR))
    mixm(tm(5), tc(3))
    mixm(tm(6), tc(4) + ts(UR))
    mixm(tm(7), tc(5))
    mixm(fin(UR, WR, True), tc(6) + ts(WI) + tc(7))
    a("s_nop 1")
    for t in ts(UI): a(t)
    a("s_nop 1")
    for t in fin(UI, WI, False): a(t)
    NPRE = 4
    a("v_lshlrev_b32 v157, 2, v7")
    a("v_lshlrev_b32 v156, 2, s50")
    a("v_mov_b32 v154, 0x7ffffff0")
    a("v_add_u32 v17, s58, v16")
    a("s_cmp_eq_u32 s61, s62")
    a("s_nop 6")
    a("s_cbranch_scc1 KA_X0")
    for i in range(8): a(f"v_swap_b32 v{KD+i}, v{KD+8+i}")
    a("KA_X0:")
    a(f"ds_write_b128 v16, {vr(KD+8,4)}")
    a(f"ds_write_b128 v16, {vr(KD+12,4)} offset:1024")
    if "xw" in X: a("s_waitcnt lgkmcnt(0)")
    if NPRE == 4: st(2)
    bar(4 - nb[0])
    gettag()
    mktag(0)
    a("s_cmp_lg_u32 s54, 0")
    a("s_cbranch_scc1 KA_NPB")
    publish()
    a("KA_NPB:")
    bar()
    D0, D1, FA, FB, FC = 112, 128, 48, 64, 80
    PW, PG, PA, PF, POF, PWF, POUT, PM, PS, PD = 144, 148, 149, 150, 151, 152, 153, 100, 108, 109
    w = ["v_lshrrev_b32 v8, 3, v1", "v_bfe_u32 v9, v1, 4, 1", "v_lshlrev_b32 v9, 2, v9", "v_and_b32 v10, 7, v1", "v_xor_b32 v9, v9, v10",
         "v_lshlrev_b32 v9, 4, v9", f"v_lshl_add_u32 v{PW}, v8, 10, v9"] + [f"v_add_u32 v{PW+q}, {7168*q}, v{PW}" for q in range(1, 4)]
    w += [f"v_lshlrev_b32 v{PF}, 7, v10", f"v_lshlrev_b32 v{PG}, 3, v7", f"v_lshlrev_b32 v{PD}, 12, v8", f"v_lshl_add_u32 v{PD}, v10, 4, v{PD}",
          "s_lshl_b32 s63, s62, 12", "s_lshl_b32 s64, s61, 4", "s_add_u32 s63, s63, s64", f"s_add_u32 s63, s63, {L_GA}",
          f"v_lshl_add_u32 v{PA}, v7, 7, s63", f"v_lshl_add_u32 v{PA}, v3, 5, v{PA}",
          f"v_lshlrev_b32 v{POUT}, 10, v7", f"v_lshl_add_u32 v{POUT}, v3, 4, v{POUT}",
          "s_lshl_b32 s63, s54, 11", f"s_add_u32 s63, s63, {L_GT}", f"v_add_u32 v{POF}, s63, v4",
          "v_lshrrev_b32 v8, 1, v7", f"v_lshl_add_u32 v{PS}, v8, 7, s63", f"v_lshl_add_u32 v{PS}, v3, 5, v{PS}", "v_and_b32 v8, 1, v7", f"v_lshl_add_u32 v{PS}, v8, 4, v{PS}",
          "v_bfe_u32 v8, v1, 2, 2", f"v_lshl_add_u32 v{PWF}, v3, 2, v8", f"v_lshlrev_b32 v{PWF}, 7, v{PWF}", "v_lshrrev_b32 v8, 1, v8", "v_xor_b32 v8, s62, v8",
          f"v_lshl_add_u32 v{PWF}, v8, 6, v{PWF}", "v_bfe_u32 v8, v1, 4, 1", f"v_lshl_add_u32 v{PWF}, v8, 5, v{PWF}", "v_and_b32 v8, 3, v1",
          f"v_lshl_add_u32 v{PWF}, v8, 3, v{PWF}", f"v_add_u32 v{PWF}, {L_WO}, v{PWF}"]
    w += ["v_lshrrev_b32 v8, 3, v7", "v_bfe_u32 v9, v7, 1, 1", "v_lshl_add_u32 v8, v8, 1, v9", "v_bfe_u32 v9, v7, 2, 1", "v_xor_b32 v9, v9, v3",
          "v_lshl_add_u32 v8, v9, 3, v8", "v_and_b32 v9, 1, v7", "v_lshlrev_b32 v9, 4, v9", "v_mov_b32 v10, 0xffff", "v_lshlrev_b32 v9, v9, v10"]
    w += [f"v_cmp_eq_u32 s[{4+2*k}:{5+2*k}], {k}, v8" for k in range(8)] + ["s_nop 0"]
    w += [f"v_cndmask_b32 v{PM+k}, 0, v9, s[{4+2*k}:{5+2*k}]" for k in range(8)]
    n = (len(w) + 3) // 4
    for k in range(3):
        bar()
        for t in w[k*n:(k+1)*n]: a(t)
    a("s_waitcnt lgkmcnt(0)")
    bar()
    a(f"ds_read_b128 {vr(KD+8,4)}, v17")
    a(f"ds_read_b128 {vr(KD+12,4)}, v17 offset:1024")
    for t in w[3*n:]: a(t)
    bar()
    a("buffer_load_dword v158, v157, s[44:47], s67 offen sc1")
    a("s_waitcnt lgkmcnt(0)")
    for i in range(8):
        a(f"v_add_f32 v{KD+i}, v{KD+i}, v{KD+8+i}")
    def uload():
        l = lbl("UL")
        a("s_mov_b32 m0, s75")
        a("s_cmp_lg_u32 s54, 0")
        a("buffer_load_dwordx4 v2, s[44:47], s74 offen" + (" nt" if "ntu" in X else "") + " lds")
        a(f"s_cbranch_scc1 {l}")
        a("s_add_u32 m0, s75, 8192")
        a("s_nop 0")
        a("buffer_load_dwordx4 v6, s[44:47], s74 offen" + (" nt" if "ntu" in X else "") + " lds")
        a(f"{l}:")
        a("s_add_u32 m0, s75, 4096")
        a("s_nop 0")
        a("buffer_load_dwordx4 v5, s[44:47], s74 offen" + (" nt" if "ntu" in X else "") + " lds")
        dsig("s_mov_b32 m0, s60")
    def tail(work):
        l = lbl("UE")
        n = (len(work) + 4) // 5
        parts = [work[i*n:(i+1)*n] for i in range(5)]
        a("s_barrier")
        for t in parts[0]: a(t)
        a("s_barrier")
        for t in parts[1]: a(t)
        a("s_barrier")
        a("s_waitcnt vmcnt(0)")
        a("v_cmp_ne_u32 vcc, s66, v158")
        a("s_mov_b32 s59, 1")
        a(f"s_cbranch_vccnz {l}")
        a("s_mov_b32 s59, 0")
        uload()
        a(f"{l}:")
        a("s_barrier")
        for t in parts[2]: a(t)
        a("s_barrier")
        for t in parts[3]: a(t)
        a("v_mov_b32 v12, s52")
        a("s_barrier")
        a(f"ds_write_b32 v{VSY}, v12 offset:{S_NONCE}")
        st(3)
        return parts[4]
    assert nb[0] == 10
    a("s_cmp_eq_u32 s61, s62")
    a("s_cbranch_scc0 KA_X1")
    rest = tail(["v_cmp_eq_u32 s[72:73], 31, v1", "v_lshlrev_b32 v8, 3, v3", "v_xor_b32 v8, 8, v8",
          "v_cndmask_b32 v9, 0, v15, s[72:73]", "v_add_u32 v18, v19, v8", f"v_add_f32 v{KD}, v{KD}, v9",
          f"v_add_u32 v36, {KPC+4+3072}, v18", f"v_add_u32 v37, {2*KPC+4+3072}, v18",
          f"v_cvt_pk_bf16_f32 v40, v{KD+3}, v{KD+2}", f"v_cvt_pk_bf16_f32 v41, v{KD+1}, v{KD+0}",
          f"v_cvt_pk_bf16_f32 v42, v{KD+6}, v{KD+5}", f"v_cvt_pk_bf16_f32 v43, v{KD+4}, v{KD+4}",
          f"v_cvt_pk_bf16_f32 v44, v{KD+7}, v{KD+3}", f"v_cvt_pk_bf16_f32 v45, v{KD+2}, v{KD+1}",
          f"v_cvt_pk_bf16_f32 v46, v{KD+6}, v{KD+6}", f"v_cvt_pk_bf16_f32 v47, v{KD+5}, v{KD+4}",
          "v_lshrrev_b32 v9, 16, v41"])
    for t in rest: a(t)
    a("ds_write_b64 v18, v[44:45] offset:3584")
    a("ds_write_b64 v18, v[46:47] offset:3072")
    a("ds_write2_b32 v36, v40, v41 offset0:128 offset1:129")
    a("ds_write2_b32 v36, v42, v43 offset0:0 offset1:1")
    a("ds_write2_b32 v37, v44, v45 offset0:128 offset1:129")
    a("ds_write2_b32 v37, v46, v47 offset0:0 offset1:1")
    a(f"ds_write_b64 v18, v[40:41] offset:{3*KPC+8+3584}")
    a(f"ds_write_b64 v18, v[42:43] offset:{3*KPC+8+3072}")
    a("s_mov_b64 exec, s[72:73]")
    a("ds_write_b32 v18, v9 offset:3592")
    a("ds_write_b32 v37, v9 offset:520")
    a("s_mov_b64 exec, -1")
    a("s_branch KA_XD")
    a("KA_X1:")
    r8, r9, r10, r11, r12, r13, r14, r15 = [KD + i for i in range(8)]
    V4 = [r8]*3 + [r9]*3 + [r10]*5 + [r11]
    V8a = [r12]*4 + [36] + [r13]*7
    V8b = [r14]*4 + [37] + [r15]*7
    w = ["v_and_b32 v8, 1, v1", "v_cmp_eq_u32 s[72:73], 1, v8", "v_cmp_eq_u32 s[70:71], 32, v1", "v_lshlrev_b32 v8, 9, v3", "v_sub_u32 v19, v19, v8", "v_sub_u32 v18, v19, v8",
         f"v_cndmask_b32 v36, v{r13}, v{r12}, s[72:73]", f"v_cndmask_b32 v37, v{r15}, v{r14}, s[72:73]", f"v_cndmask_b32 v{r11}, v{r11}, v{r10}, s[70:71]",
         f"v_cvt_pk_bf16_f32 v8, v{r9}, v{r8}", f"v_cvt_pk_bf16_f32 v9, v{r8}, v{r8}"]
    wr = []
    for c in range(4):
        for gi, (V, ad, off) in enumerate(((V8b, 18, 1024), (V8a, 18, 1536), (V4, 19, 2560))):
            R = 40 + 12 * c + 4 * gi
            w += [f"v_cvt_pk_bf16_f32 v{R+d}, v{V[8+c-2*d]}, v{V[7+c-2*d]}" for d in range(4)]
            wr.append(f"ds_write_b128 v{ad}, {vr(R,4)} offset:{c*KPC+off}")
    rest = tail(w)
    for t in interleave([wr[:9], rest]) + wr[9:]: a(t)
    a("s_mov_b32 exec_lo, 0x80000000\ns_mov_b32 exec_hi, 0")
    a(f"ds_write_b32 v19, v9 offset:{KPC+2560+16}")
    a(f"ds_write_b32 v19, v9 offset:{2*KPC+2560+16}")
    a(f"ds_write_b64 v19, v[8:9] offset:{3*KPC+2560+16}")
    a("s_mov_b64 exec, -1")
    a("KA_XD:")
    sig(S_UDONE)
    for i in range(32): a(f"v_mov_b32 v{D0+i}, 0")
    st(4)
    a("s_cmp_eq_u32 s59, 0")
    a("s_cbranch_scc1 KA_UOK")
    collect(False, "s_cmp_eq_u32 s54, 0")
    uload()
    a("KA_UOK:")
    wait(S_UDONE, 5)
    st(5)
    wait4(S_UA)
    st(6)
    if "noaux" in X: a("s_branch KA_AUXEND")
    def rdA(slot, step):
        o = 128 * (step >> 1) + 32 * (step & 1)
        a(f"ds_read_b64 {vr(FA+4*slot,2)}, v38 offset:{o}")
        a(f"ds_read_b64 {vr(FA+4*slot+2,2)}, v38 offset:{o+8}")
    def rdB(R, slot, step, extra=0):
        a(f"ds_read_b128 {vr(R+4*slot,4)}, v39 offset:{288*(step>>1)+32*(step&1)+extra}")
    def loop(lab, nxt, near, paced):
        a(f"{lab}:")
        if not paced: a(f"ds_read_b32 v{VTMP}, v{VSY} offset:{S_GO}")
        for s in range(4):
            n = (11 if near else 9) - (1 if near and s == 0 else 0)
            a("s_waitcnt lgkmcnt(%d)" % (0 if paced else n))
            a(f"{MF} {vr(D1,16)}, {vr(FA+4*s,4)}, {vr(FB+4*s,4)}, {vr(D1,16)}")
            if near:
                rdB(FB, s, s + 4, 32 * 144)
                if paced: a("s_waitcnt lgkmcnt(0)")
                a(f"{MF} {vr(D0,16)}, {vr(FA+4*s,4)}, {vr(FC+4*s,4)}, {vr(D0,16)}")
                rdA(s, s + 4)
                if paced and "slow" in X: a("s_waitcnt lgkmcnt(0)")
                rdB(FC, s, s + 4)
            else:
                rdA(s, s + 4); rdB(FB, s, s + 4)
        a("v_add_u32 v38, 256, v38")
        a(f"v_add_u32 v39, {288*2}, v39")
        if not paced: a(f"v_readfirstlane_b32 s76, v{VTMP}")
        a("s_sub_u32 s63, s63, 1")
        a("s_cmp_lg_u32 s63, 0")
        if not paced:
            a(f"s_cbranch_scc0 {nxt}")
            a("s_cmp_eq_u32 s76, 0")
        a(f"s_cbranch_scc1 {lab}")
    for s in range(4): rdA(s, s); rdB(FB, s, s)
    a("s_mov_b32 s63, 8")
    loop("KA_CV1", "KA_CVM", False, False)
    loop("KA_CV1P", None, False, True)
    a("KA_CVM:")
    a(f"v_subrev_u32 v39, {32*144}, v39")
    a("s_waitcnt lgkmcnt(9)")
    for s in range(4): rdB(FC, s, s)
    a("s_waitcnt lgkmcnt(0)")
    a("s_mov_b32 s63, 8")
    a("s_cmp_lg_u32 s76, 0")
    a("s_cbranch_scc1 KA_CV2P")
    loop("KA_CV2", "KA_CVE", True, False)
    loop("KA_CV2P", None, True, True)
    a("KA_CVE:")
    st(7)
    a("s_lshl_b32 s63, s54, 12")
    a(f"s_add_u32 s63, s63, {L_CX}")
    a("v_add_u32 v13, s63, v4")
    a("v_xor_b32 v14, 4096, v13")
    wait(S_QRDY, 4)
    a("s_cmp_eq_u32 s61, 0")
    a("s_cbranch_scc0 KA_CVS")
    for i in range(4): a(f"ds_write_b128 v13, {vr(D1+4*i,4)} offset:{1024*i}")
    sig(S_CV, 167)
    wait(S_CV, 2, 167, nap=1)
    for i in range(4): a(f"ds_read_b128 {vr(D1+4*i,4)}, v14 offset:{1024*i}")
    a("s_branch KA_CVJ")
    a("KA_CVS:")
    for i in range(4): a(f"ds_write_b128 v13, {vr(D0+4*i,4)} offset:{1024*i}")
    sig(S_CV, 167)
    wait(S_CV, 2, 167, nap=1)
    for i in range(4): a(f"ds_read_b128 {vr(D0+4*i,4)}, v14 offset:{1024*i}")
    a("KA_CVJ:")
    a("s_lshl_b32 s56, s49, 2")
    a("s_and_b32 s57, s50, 3")
    a("s_add_u32 s56, s56, s57")
    a("s_lshr_b32 s57, s50, 2")
    a("s_lshl_b32 s72, s56, 11")
    a(f"s_add_u32 s72, s72, {W2_FO}")
    a("s_lshl_b32 s65, s56, 1")
    a("s_add_u32 s65, s65, s61")
    a("s_lshl_b32 s63, s57, 1")
    a("s_add_u32 s63, s63, s62")
    a("s_lshl_b32 s74, s63, 6")
    a("s_lshl_b32 s64, s65, 15")
    a("s_add_u32 s74, s74, s64")
    a("s_lshl_b32 s73, s57, 18")
    a("s_lshl_b32 s64, s54, 16")
    a("s_add_u32 s73, s73, s64")
    a("s_lshl_b32 s64, s56, 7")
    a("s_add_u32 s73, s73, s64")
    a(f"s_add_u32 s73, s73, {W2_GA}")
    a("s_lshl_b32 s75, s65, 8")
    a(f"s_add_u32 s75, s75, {W2_G}")
    a("v_mov_b32 v155, s52")
    a("s_lshl_b32 s63, s55, 13")
    a("s_lshl_b32 s64, s54, 11")
    a("s_add_u32 s63, s63, s64")
    a(f"s_add_u32 s63, s63, {W2_GA}")
    a("s_waitcnt lgkmcnt(0)")
    sig(S_CD)
    for i in range(16): a(f"v_add_f32 v{D0+i}, v{D0+i}, v{D1+i}")
    for i in range(8): a(f"v_cvt_pk_bf16_f32 v{64+i}, v{D0+2*i}, v{D0+2*i+1}")
    a(f"ds_write_b128 v{PS}, v[64:67]")
    a(f"ds_write_b128 v{PS}, v[68:71] offset:64")
    a(f"ds_read_b128 v[64:67], v{POF}")
    a(f"ds_read_b128 v[68:71], v{POF} offset:1024")
    a("s_waitcnt lgkmcnt(0)")
    a("buffer_store_dwordx4 v[64:67], v4, s[44:47], s63 offen sc1")
    a("buffer_store_dwordx4 v[68:71], v4, s[44:47], s63 offen offset:1024 sc1")
    if "nop3" in X: a("s_branch KA_AUXEND")
    def touch(off):
        if "xsm" not in X: a(f"s_load_dwordx2 s[68:69], s[64:65], {off+60}")
    a("s_lshl_b32 s63, s50, 16")
    a("s_lshl_b32 s64, s49, 12")
    a("s_add_u32 s63, s63, s64")
    a("s_lshl_b32 s64, s54, 10")
    a("s_add_u32 s63, s63, s64")
    a(f"s_add_u32 s63, s63, {W2_O}")
    a("s_add_u32 s64, s34, s63")
    a("s_addc_u32 s65, s35, 0")
    if "noot" not in X:
        for i in range(16): touch((i>>3)*32768+(i&7)*128)
    a("s_lshl_b32 s63, s50, 11")
    a("s_lshl_b32 s70, s49, 7")
    a("s_add_u32 s63, s63, s70")
    a(f"s_add_u32 s63, s63, {W2_FO}")
    a("s_load_dword s68, s[34:35], s63")
    wait(S_CD, 5, nap=4)
    a("s_lshl_b32 s63, s50, 2")
    a("s_add_u32 s63, s63, s54")
    a("s_lshl_b32 s63, s63, 12")
    a("s_add_u32 s64, s26, s63")
    a("s_addc_u32 s65, s27, 0")
    for i in range(7): touch(128*i)
    a("s_lshl_b32 s63, s50, 11")
    a(f"s_add_u32 s63, s63, {W2_FO}")
    a("v_lshlrev_b32 v12, 2, s49")
    a("s_waitcnt vmcnt(0)")
    a("s_mov_b64 exec, 1")
    a(f"ds_add_rtn_u32 v{VTMP}, v{VSY}, v{VONE} offset:{S_PC}")
    a("s_waitcnt lgkmcnt(0)")
    a(f"v_readfirstlane_b32 s76, v{VTMP}")
    a("s_cmp_lg_u32 s76, 3")
    a("s_cbranch_scc1 KA_NCL")
    a("buffer_store_dword v155, v156, s[44:47], s67 offen offset:2048 sc1")
    a("buffer_store_dword v155, v12, s[44:47], s63 offen offset:1024 sc1")
    a("KA_NCL:")
    a("s_mov_b64 exec, -1")
    for i in range(7, 32): touch(128*i)
    srd(a, 36, 26, 27, 512 * 512 * 2)
    srd(a, 40, 30, 31, 2048 * 512 * 2)
    a("s_xor_b32 s63, s57, 4")
    a(f"s_mul_i32 s63, s63, {GRS}")
    a(f"s_add_u32 s63, s63, {G_FL+2048}")
    a("s_add_u32 s64, s34, s63")
    a("s_addc_u32 s65, s35, 0")
    a("s_add_u32 s70, s72, 1024")
    a("s_waitcnt lgkmcnt(0)")
    if "p3st" in X: a.stamp(1)
    a("s_mov_b32 s71, 0")
    a("s_load_dwordx16 s[4:19], s[64:65], 0")
    a("s_load_dwordx8 s[20:27], s[34:35], s70")
    a("s_waitcnt lgkmcnt(0)")
    for r in range(4, 28):
        a(f"s_xor_b32 s{r}, s{r}, s52")
        a(f"s_or_b32 s71, s71, s{r}")
    a("s_load_dwordx16 s[4:19], s[64:65], 64")
    a("s_waitcnt lgkmcnt(0)")
    for r in range(4, 20):
        a(f"s_xor_b32 s{r}, s{r}, s52")
        a(f"s_or_b32 s71, s71, s{r}")
    a("s_cbranch_scc0 KA_PCD")
    if "xpc" in X: a("s_branch KA_PCD")
    a("v_and_b32 v9, 7, v1")
    a("v_lshlrev_b32 v9, 2, v9")
    a(f"s_mov_b32 s69, {SLOW_TRIES}")
    a("KA_PC:")
    a("s_sleep 32")
    a("buffer_load_dword v10, v157, s[44:47], s63 offen sc1")
    a("buffer_load_dword v11, v9, s[44:47], s70 offen sc1")
    a("s_waitcnt vmcnt(0)")
    a("v_cmp_ne_u32 vcc, s52, v10")
    a("v_cmp_ne_u32 s[4:5], s52, v11")
    a("s_or_b64 vcc, vcc, s[4:5]")
    a("s_cbranch_scc0 KA_PCD")
    a("s_sub_u32 s69, s69, 1")
    a("s_cbranch_scc0 KA_PC")
    a("KA_PCD:")
    if "p3st" in X: a.stamp(2)
    a("s_add_u32 s64, s34, s73")
    a("s_addc_u32 s65, s35, 0")
    for i in range(16): touch(4096*i)
    a("s_lshl_b32 s63, s62, 7")
    a("s_add_u32 s63, s63, s75")
    a("s_add_u32 s63, s63, 60")
    a("s_load_dwordx2 s[68:69], s[34:35], s63")
    a("s_lshl_b32 s58, s54, 12")
    a(f"s_add_u32 s58, s58, {L_WO}")
    a("s_lshl_b32 s59, s54, 15")
    a("s_lshl_b32 s63, s57, 7")
    a("s_add_u32 s59, s59, s63")
    for c in range(4):
        a(f"s_add_u32 m0, s58, {16384*c}")
        a(f"s_add_u32 s63, s59, {131072*c}")
        for q in range(4):
            if "xwo" not in X: a(f"buffer_load_dwordx4 v{PW+q}, s[36:39], s63 offen offset:{1024*q} lds")
            if q == 3 and c < 3: a("s_waitcnt vmcnt(0)")
    D, DA, GA, DG = 112, 128, 32, 40
    a("s_lshl_b32 s58, s54, 11")
    a(f"s_add_u32 m0, s58, {L_GA}")
    a("s_add_u32 s63, s73, 31744")
    a("s_waitcnt vmcnt(0) lgkmcnt(0)")
    a(f"buffer_load_dwordx4 v{PD}, s[44:47], s73 offen sc1 lds")
    a(f"buffer_load_dwordx4 v{PD}, s[44:47], s63 offen offset:1024 sc1 lds")
    a(f"buffer_load_dwordx2 v[14:15], v{PG}, s[44:47], s75 offen sc1")
    dsig(f"s_add_u32 m0, s60, {S_WA-S_UA}")
    a("s_lshl_b32 s58, s61, 15")
    a("s_lshl_b32 s59, s56, 16")
    a("s_add_u32 s59, s59, s58")
    a(f"s_add_u32 s59, s59, {W2_O}")
    a("s_waitcnt vmcnt(0)")
    wait4(S_WA, nap=4)
    a(f"ds_read_b128 {vr(GA,4)}, v{PA}")
    a(f"ds_read_b128 {vr(GA+4,4)}, v{PA} offset:64")
    a("v_lshrrev_b32 v13, 16, v14")
    a("v_or_b32 v13, v13, v14")
    for k in range(8):
        a(f"v_and_b32 v{DG+k}, v13, v{PM+k}")
    a("s_waitcnt lgkmcnt(0)")
    a("s_nop 0")
    a(f"{MF} {vr(DA,16)}, {vr(GA,4)}, {vr(DG,4)}, 0")
    a(f"{MF} {vr(DA,16)}, {vr(GA+4,4)}, {vr(DG+4,4)}, {vr(DA,16)}")
    if "p3st" in X: a.stamp(3)
    if "wb" in X:
        a("s_lshl_b32 s63, s50, 2")
        a("s_add_u32 s63, s63, s54")
        a("s_cmp_lg_u32 s63, 0")
        a("s_cbranch_scc1 KA_NOWB")
        if "wbl" in X: wait(S_FIN, 4, nap=8)
        else: wait(S_WB, 12 if "wbm" in X else 1, nap=32)
        a("buffer_wbl2 sc1")
        a("KA_NOWB:")
    OB4, W0, W1, D2 = 48, 16, 32, 144
    a(f"v_mov_b32 v2, v{POUT}")
    a(f"v_mov_b32 v5, v{PWF}")
    a("s_lshl_b32 s63, s54, 12")
    a(f"s_add_u32 s64, s63, {L_GT}")
    a("v_add_u32 v6, s64, v4")
    a("s_xor_b32 s63, s63, 8192")
    a(f"s_add_u32 s64, s63, {L_GT}")
    a("v_add_u32 v11, s64, v4")
    a("s_lshl_b32 s63, s61, 2")
    a(f"v_add_u32 v14, s63, v{VSY}")
    for i in range(16):
        a(f"v_mov_b32 v{D+i}, 0")
        a(f"v_mov_b32 v{D2+i}, 0")
    a("s_lshl_b32 s4, 0x55, s62")
    a(f"s_mov_b32 s7, {LDS_SPIN}")
    wait(S_FIN, FINN, nap=8)
    if "p3st" in X: a.stamp(4)
    a("KA_OL:")
    a(f"ds_read_b32 v10, v{VSY} offset:{S_PO}")
    a("s_sub_u32 s7, s7, 1")
    a("s_cselect_b32 s6, 0xff, 0")
    a("s_waitcnt lgkmcnt(0)")
    a("v_readfirstlane_b32 s5, v10")
    a("s_or_b32 s5, s5, s6")
    a("s_and_b32 s5, s5, s4")
    a("s_cbranch_scc0 KA_OL")
    for k in range(4):
        a(f"s_ff1_i32_b32 s{8+k}, s5")
        a(f"s_lshl_b32 s63, s{8+k}, 12")
        a("s_add_u32 s63, s63, s59")
        for q in range(4): a(f"buffer_load_dwordx4 {vr(OB4+16*k+4*q,4)}, v4, s[44:47], s63 offen offset:{1024*q} sc1")
        a(f"s_bitset0_b32 s4, s{8+k}")
        a(f"s_bitset0_b32 s5, s{8+k}")
        if k < 3:
            a("s_cmp_eq_u32 s5, 0")
            a(f"s_cbranch_scc1 KA_OP{k+1}")
    def wadr(k):
        a(f"s_lshl_b32 s63, s{8+k}, 13")
        a("v_add_u32 v12, s63, v5")
        a("v_xor_b32 v13, 64, v12")
    def rdw(W, ad, q):
        a(f"ds_read_b64_tr_b16 {vr(W+4*q,2)}, v{ad} offset:{2048*q}")
        a(f"ds_read_b64_tr_b16 {vr(W+4*q+2,2)}, v{ad} offset:{2048*q+1024}")
    for n in (4, 3, 2, 1):
        a(f"KA_OP{n}:")
        wadr(0)
        for q in range(4): rdw(W1, 13, q)
        a("s_waitcnt lgkmcnt(4)")
        for q in range(4): rdw(W0, 12, q)
        for k in range(n):
            B = OB4 + 16 * k
            a(f"s_waitcnt vmcnt({4*(n-1-k)}) lgkmcnt(7)")
            if k + 1 < n: wadr(k + 1)
            for q in range(4):
                a(f"{MF} {vr(D2,16)}, {vr(W1+4*q,4)}, {vr(B+4*q,4)}, {vr(D2,16)}")
                if k + 1 < n: rdw(W1, 13, q)
            a("s_waitcnt lgkmcnt(%d)" % (7 if k + 1 < n else 0))
            for q in range(4):
                a(f"{MF} {vr(D,16)}, {vr(W0+4*q,4)}, {vr(B+4*q,4)}, {vr(D,16)}")
                if k + 1 < n: rdw(W0, 12, q)
        a("s_cmp_lg_u32 s4, 0")
        a("s_cbranch_scc1 KA_OL")
        if n > 1: a("s_branch KA_OD")
    a("KA_OD:")
    if "p3st" in X: a.stamp(6)
    a("s_nop 4")
    for i in range(4): a(f"ds_write_b128 v6, {vr(D2+4*i,4)} offset:{1024*i}")
    sig(S_FX, 14)
    for i in range(16): a(f"v_fmac_f32 v{DA+i}, v15, v{D+i}")
    wait(S_FX, 2, 14)
    for i in range(4): a(f"ds_read_b128 {vr(D2+4*i,4)}, v11 offset:{1024*i}")
    if "p3st" in X: a.stamp(7)
    for i in range(4):
        a(f"s_waitcnt lgkmcnt({3-i})")
        for j in range(4): a(f"v_fmac_f32 v{DA+4*i+j}, v15, v{D2+4*i+j}")
    for i in range(8): a(f"v_cvt_pk_bf16_f32 v{GA+i}, v{DA+2*i}, v{DA+2*i+1}")
    a("s_nop 1")
    a(f"v_permlane32_swap_b32 v{GA}, v{GA+2}")
    a(f"v_permlane32_swap_b32 v{GA+1}, v{GA+3}")
    a(f"v_permlane32_swap_b32 v{GA+4}, v{GA+6}")
    a(f"v_permlane32_swap_b32 v{GA+5}, v{GA+7}")
    a(f"buffer_store_dwordx4 {vr(GA,4)}, v2, s[40:43], s74 offen")
    a(f"buffer_store_dwordx4 {vr(GA+4,4)}, v2, s[40:43], s74 offen offset:32")
    a("KA_AUXEND:")
    a.end(0)
```

```python
from common import *
import math, struct
LOG2E = 1.4426950408889634
LOG2E_HI = f2u(LOG2E)
_hi = struct.unpack("<f", struct.pack("<I", LOG2E_HI))[0]
LOG2E_LO = f2u(LOG2E - _hi)
LN2 = f2u(math.log(2.0))
QSCALE = f2u(0.25 * LOG2E)
MF = "v_mfma_f32_32x32x16_bf16"

L_X, L_W = 0, 65536
NSLOT = 6
L_OX = 0
L_Q = 114688
L_WO, L_GA, L_GT = 24576, 90112, 98304
L_CX = 73728
L_KP, KPC = 18688, 8384
L_U = 139264
L_XCH = 153600
L_GW = 161792
L_SY = 162816
KA_LDS = 163840
S_UA, S_WA, S_OA = 0, 16, 32
S_WB, S_UDONE, S_QRDY, S_NONCE, S_CV, S_OX, S_CD, S_FIN, S_PO, S_PC, S_OD, S_GO, S_FX, S_DONE = 96, 100, 104, 108, 112, 128, 144, 148, 152, 156, 160, 164, 168, 176
VSY, VONE, VTMP, VT4 = 164, 165, 166, 160
UNR = 4
PRIO1, PRIO0, WBIT, NEARLY = 6, 7, 4, 3
LDS_SPIN = 1 << 20
FAST_TRIES = 64
SLOW_TRIES = 20000

def interleave(chains):
    out = []
    chains = [list(c) for c in chains]
    while any(chains):
        for c in chains:
            if c: out.append(c.pop(0))
    return out

def cmul(d, x, w):
    return [f"v_mul_f32 v{d}, v{x}, v{w}", f"v_mul_f32 v{d+1}, v{x}, v{w+1}",
            f"v_fma_f32 v{d}, -v{x+1}, v{w+1}, v{d}", f"v_fmac_f32 v{d+1}, v{x+1}, v{w}"]
def cmul_pk(d, x, w):
    return [f"v_pk_mul_f32 {vr(d,2)}, {vr(x,2)}, {vr(w,2)} op_sel:[0,0] op_sel_hi:[0,1]",
            f"v_pk_fma_f32 {vr(d,2)}, {vr(x,2)}, {vr(w,2)}, {vr(d,2)} op_sel:[1,1,0] op_sel_hi:[1,0,1] neg_lo:[0,1,0]"]

def gen_ka(name, X=()):
    a = Asm()
    NSLOT = 7 if "s7" in X else 6
    DD = NSLOT - 2
    NT = " nt" if "nt" in X else ""
    NW = " nt" if "ntw" in X else ""
    NX = " nt" if "ntx" in X else ""
    NP = " nt" if "ntp" in X else ""
    NK = " nt" if "ntk" in X else ""
    PSL = 2 if "ps2" in X else 8 if "ps8" in X else 5
    cnt = [0]
    def lbl(p):
        cnt[0] += 1
        return f"KA_{p}{cnt[0]}"
    def sig(off, addr=VSY, val=VONE):
        a("s_mov_b64 exec, 1")
        a(f"ds_add_u32 v{addr}, v{val} offset:{off}")
        a("s_mov_b64 exec, -1")
    def wait(off, n, addr=VSY, out=76, nap=0):
        l, e = lbl("W"), lbl("E")
        a(f"s_mov_b32 s77, {LDS_SPIN}")
        if nap:
            a(f"s_branch {l}F")
        a(f"{l}:")
        if nap:
            a(f"s_sleep {nap}")
            a(f"{l}F:")
        a(f"ds_read_b32 v{VTMP}, v{addr} offset:{off}")
        a("s_sub_u32 s77, s77, 1")
        a("s_cbranch_scc1 " + e)
        a("s_waitcnt lgkmcnt(0)")
        a(f"v_readfirstlane_b32 s{out}, v{VTMP}")
        a(f"s_cmp_lt_u32 s{out}, {n}")
        a("s_cbranch_scc1 " + l)
        a(f"{e}:")
    def wait4(off, addr=VSY, nap=0):
        l, e = lbl("W"), lbl("E")
        a(f"s_mov_b32 s77, {LDS_SPIN}")
        if nap:
            a(f"s_branch {l}F")
        a(f"{l}:")
        if nap:
            a(f"s_sleep {nap}")
            a(f"{l}F:")
        a(f"ds_read_b128 {vr(VT4,4)}, v{addr} offset:{off}")
        a("s_sub_u32 s77, s77, 1")
        a("s_cbranch_scc1 " + e)
        a("s_waitcnt lgkmcnt(0)")
        a(f"v_or3_b32 v{VT4}, v{VT4}, v{VT4+1}, v{VT4+2}")
        a(f"v_or_b32 v{VT4}, v{VT4}, v{VT4+3}")
        a(f"v_cmp_ne_u32 vcc, 0, v{VT4}")
        a("s_cbranch_vccnz " + l)
        a(f"{e}:")
    def gettag():
        l, ok = lbl("TL"), lbl("TK")
        a("s_waitcnt lgkmcnt(0)")
        a("s_cmp_lg_u32 s52, 0")
        a(f"s_cbranch_scc1 {ok}")
        a("v_mov_b32 v155, 0")
        a(f"s_mov_b32 s69, {SLOW_TRIES}")
        a(f"{l}:")
        a("global_load_dword v158, v155, s[32:33] sc1")
        a("s_waitcnt vmcnt(0)")
        a("v_readfirstlane_b32 s52, v158")
        a("s_cmp_lg_u32 s52, 0")
        a(f"s_cbranch_scc1 {ok}")
        a("s_sub_u32 s69, s69, 1")
        a(f"s_cbranch_scc0 {l}")
        a("s_mov_b32 s52, 1")
        a(f"{ok}:")
    def dsig(m0expr):
        a(m0expr)
        a("s_mov_b64 exec, 1")
        a("buffer_load_dword v154, s[44:47], 0 offen lds")
        a("s_mov_b64 exec, -1")
    def mktag(fl_off):
        a("s_getreg_b32 s66, hwreg(HW_REG_XCC_ID)")
        a("s_and_b32 s66, s66, 15")
        a("s_add_u32 s66, s66, 1")
        a("s_lshl_b32 s66, s66, 1")
        a("s_xor_b32 s66, s66, s52")
        a(f"s_add_u32 s67, s51, {G_FL + fl_off}")
    def publish():
        a("v_mov_b32 v155, s66")
        a("s_mov_b64 exec, 1")
        a("buffer_store_dword v155, v156, s[44:47], s67 offen")
        a("s_mov_b64 exec, -1")
    def collect(wide, own, lanes=1):
        lf, ls, done = lbl("GF"), lbl("GS"), lbl("GD")
        def ld(r, off):
            if wide: a(f"buffer_load_dwordx2 v[{r}:{r+1}], v157, s[44:47], s67 offen offset:{off} sc1")
            else: a(f"buffer_load_dword v{r}, v157, s[44:47], s67 offen offset:{off} sc1")
        a(f"s_mov_b32 s69, {FAST_TRIES}")
        a(f"{lf}:")
        ld(158, 0)
        a("s_waitcnt vmcnt(0)")
        a("v_cmp_ne_u32 vcc, s66, v158")
        if wide:
            a("v_cmp_ne_u32 s[70:71], s66, v159")
            a("s_or_b64 vcc, vcc, s[70:71]")
            a(f"s_cbranch_scc0 {done}")
        else:
            a(f"s_cbranch_vccz {done}")
        a("s_sub_u32 s69, s69, 1")
        a(f"s_cbranch_scc0 {lf}")
        a("buffer_wbl2 sc1")
        a("s_waitcnt vmcnt(0)")
        a("v_mov_b32 v155, s52")
        if own is not None:
            a(own)
            a(f"s_cbranch_scc0 {ls}N")
        a(f"s_mov_b64 exec, {lanes}")
        a("buffer_store_dword v155, v156, s[44:47], s67 offen offset:1024 sc1")
        a("s_mov_b64 exec, -1")
        a(f"{ls}N:")
        a(f"s_mov_b32 s69, {SLOW_TRIES}")
        a(f"{ls}:")
        ld(158, 0)
        ld(160, 1024)
        a("s_waitcnt vmcnt(0)")
        a("v_cmp_ne_u32 vcc, s66, v158")
        a("v_cmp_ne_u32 s[70:71], s52, v160")
        a("s_and_b64 vcc, vcc, s[70:71]")
        if wide:
            a("v_cmp_ne_u32 s[70:71], s66, v159")
            a("v_cmp_ne_u32 s[72:73], s52, v161")
            a("s_and_b64 s[70:71], s[70:71], s[72:73]")
            a("s_or_b64 vcc, vcc, s[70:71]")
        a(f"s_cbranch_scc0 {done}A")
        a("s_sleep 8")
        a("s_sub_u32 s69, s69, 1")
        a(f"s_cbranch_scc0 {ls}")
        a(f"{done}A:")
        a("buffer_inv sc1")
        a("s_waitcnt vmcnt(0)")
        a(f"{done}:")

    a(f".globl {name}\n.p2align 8\n.type {name},@function\n{name}:")
    a("s_cmp_ge_u32 s2, 256")
    a("s_cbranch_scc1 KA_END")
    a.start()
    a("s_load_dwordx16 s[4:19], s[0:1], 0")
    a("s_load_dwordx16 s[20:35], s[0:1], 64")
    a("v_lshrrev_b32 v2, 6, v0")
    a("v_and_b32 v1, 63, v0")
    a(f"v_mov_b32 v{VSY}, {L_SY}")
    a("v_readfirstlane_b32 s48, v2")
    a(f"v_lshl_add_u32 v5, v1, 2, v{VSY}")
    a("v_cmp_gt_u32 vcc, 24, v1")
    a("v_mov_b32 v6, 0")
    a("v_addc_co_u32 v6, vcc, 0, v6, vcc")
    a("ds_write_b32 v5, v6")
    if "gsh" in X:
        a("s_add_u32 s49, s2, 2")
        a("s_and_b32 s49, s49, 7")
    else:
        a("s_and_b32 s49, s2, 7")
    a("s_lshr_b32 s50, s2, 3")
    a(f"s_mul_i32 s51, s49, {GRS}")
    a("s_add_u32 s53, s49, s50")
    a("v_lshlrev_b32 v4, 4, v1")
    a("v_lshrrev_b32 v3, 5, v1")
    a(f"v_mov_b32 v{VONE}, 1")
    a("s_cmp_lt_u32 s48, 4")
    if "cpf" in X:
        a("s_cbranch_scc0 KA_NOPF")
        a("s_cmp_lg_u32 s48, 0")
        a("s_cbranch_scc1 KA_CONS")
        a("s_getpc_b64 s[56:57]")
        a("KA_PCB:")
        a("v_lshl_add_u32 v8, v1, 5, s50")
        a("v_lshlrev_b32 v8, 6, v8")
        a("v_cmp_gt_u32 vcc, KA_END-KA_PCB, v8")
        a("s_mov_b64 exec, vcc")
        a("v_mov_b32 v9, s57")
        a("v_add_co_u32 v8, vcc, s56, v8")
        a("v_addc_co_u32 v9, vcc, 0, v9, vcc")
        a("global_load_dword v24, v[8:9], off")
        a("s_mov_b64 exec, -1")
        a("s_branch KA_CONS")
        a("KA_NOPF:")
    else:
        a("s_cbranch_scc1 KA_CONS")
    a("v_lshlrev_b32 v156, 2, s50")
    a("s_cmp_lt_u32 s48, 8")
    a("s_cbranch_scc1 KA_LOADER")
    a("s_sub_u32 s54, s48, 8")
    a("s_xor_b32 s55, s49, 4")
    a("s_lshl_b32 s55, s55, 5")
    a("s_add_u32 s55, s55, s50")
    a("s_lshl_b32 s59, s55, 9")
    a("s_lshl_b32 s60, s54, 7")
    a("s_add_u32 s59, s59, s60")
    a("v_lshl_add_u32 v2, v1, 1, s59")
    a("s_lshr_b32 s59, s59, 8")
    a("s_lshl_b32 s59, s59, 1")
    a("v_mov_b32 v5, s59")
    for i in range(8):
        a(f"v_mov_b32 v{8+i}, 0")
    a("s_setprio 3")
    a("s_waitcnt lgkmcnt(0)")
    a("global_load_short_d16_hi v14, v5, s[18:19]")
    for i in range(6):
        a(f"global_load_short_d16_hi v{8+i}, v2, s[{6+2*i}:{7+2*i}]{NP}")
    a("global_load_short_d16_hi v15, v5, s[20:21]")
    if "kglow" in X: a("s_setprio 0")
    a("s_branch KA_AUX")
    a("KA_LOADER:")

    a("s_sub_u32 s54, s48, 4")
    a("v_lshrrev_b32 v5, 3, v1")
    a("v_and_b32 v6, 7, v1")
    a("v_lshrrev_b32 v7, 4, v1")
    a("v_xor_b32 v8, v6, v7")
    a("v_lshlrev_b32 v8, 4, v8")
    a("v_lshl_add_u32 v16, v5, 10, v8")
    a("s_and_b32 s73, s54, 1")
    a("s_lshl_b32 s58, s73, 6")
    a("s_lshl_b32 s55, s50, 16")
    a("s_lshl_b32 s60, s54, 13")
    a("s_add_u32 s60, s60, s55")
    a("v_xor_b32 v18, s58, v16")
    a("v_add_u32 v18, s60, v18")
    a("v_add_u32 v19, 32768, v18")
    a("v_and_b32 v7, 1, v7")
    a("v_lshlrev_b32 v7, 2, v7")
    a("v_xor_b32 v8, v6, v7")
    a("v_mul_u32_u24 v9, 3072, v5")
    a("v_lshl_add_u32 v9, v8, 4, v9")
    a("s_lshl_b32 s56, s49, 7")
    a("s_mul_i32 s62, s54, 3")
    for i in range(3):
        a(f"s_add_u32 s58, s62, {i}")
        a("s_and_b32 s59, s58, 3")
        a("s_mul_i32 s59, s59, 24576")
        a("s_lshr_b32 s58, s58, 2")
        a("s_lshl_b32 s58, s58, 10")
        a("s_add_u32 s58, s58, s59")
        a("s_add_u32 s58, s58, s56")
        if i: a(f"s_sub_u32 s58, s58, {1024*i}")
        a(f"v_add_u32 v{20+i}, s58, v9")
    a("s_lshl_b32 s61, s54, 10")
    a("s_lshl_b32 s62, s62, 10")
    a("s_and_b32 s64, s53, 7")
    a("s_lshl_b32 s65, s64, 7")
    a(f"s_mul_i32 s64, s64, {64*3072}")
    a("s_mov_b32 s38, %d\ns_mov_b32 s39, 0x20000\ns_mov_b32 s42, %d\ns_mov_b32 s43, 0x20000" % (2048*512*2, 512*1536*2))
    a("s_mov_b32 m0, s61")
    a("s_waitcnt lgkmcnt(0)")
    a("s_mov_b32 s36, s4\ns_and_b32 s37, s5, 0xffff\ns_mov_b32 s40, s24\ns_and_b32 s41, s25, 0xffff")
    a.stamp(1)
    ops = []
    def vm(t, tag):
        a(t); ops.append(tag)
    def need(tag, extra=""):
        last = max(i for i, t in enumerate(ops) if t == tag)
        a(f"s_waitcnt vmcnt({len(ops)-1-last}){extra}")
    def sub(j):
        hi = j + 1
        if hi < 16:
            a(f"s_add_u32 m0, s61, {4096*hi}")
            if hi % 2 == 0:
                a("s_add_u32 s65, s65, 128")
                a("s_and_b32 s65, s65, 1023")
            else:
                a("s_nop 0")
            if "nox3" in X:
                a("s_cmp_eq_u32 s65, 384\ns_cselect_b32 s59, 256, s65")
                vm(f"buffer_load_dwordx4 v{18+(hi&1)}, s[36:39], s59 offen{NX} lds", j)
            else:
                vm(f"buffer_load_dwordx4 v{18+(hi&1)}, s[36:39], s65 offen{NX} lds", j)
        a(f"s_add_u32 m0, s62, {L_W+12288*(j%NSLOT)}")
        a(f"s_add_u32 s58, s64, {32*3072}")
        for i in range(3):
            vm(f"buffer_load_dwordx4 v{20+i}, s[40:43], s64 offen offset:{1024*i}{NW} lds", j)
        a(f"s_cmp_lt_u32 s58, {512*3072}")
        a("s_cselect_b32 s64, s58, 0")
    vm(f"buffer_load_dwordx4 v18, s[36:39], s65 offen{NX} lds", 0)
    sub(0)
    srd(a, 44, 34, 35, W2_END)
    a("v_xor_b32 v17, 64, v16")
    a("v_add_u32 v17, 7168, v17")
    a("s_sub_u32 s74, 4, s50")
    a("s_and_b32 s74, s74, 7")
    a("s_lshl_b32 s74, s74, 13")
    a("s_lshl_b32 s58, s54, 11")
    a("s_add_u32 s74, s74, s58")
    a("s_mov_b32 m0, s74")
    a("s_lshl_b32 s58, s54, 14")
    a("s_add_u32 s58, s58, s55")
    a("s_xor_b32 s59, s56, 512")
    a("s_add_u32 s58, s58, s59")
    vm("buffer_load_dwordx4 v16, s[36:39], s58 offen lds", "xs")
    vm("buffer_load_dwordx4 v17, s[36:39], s58 offen offset:1024 lds", "xs")
    sub(1); sub(2)
    a("v_lshlrev_b32 v5, 7, v1")
    a(f"s_add_u32 s67, s51, {G_FL}")
    a(f"s_mov_b32 m0, {L_GW}")
    a("s_lshl_b32 s58, 16, s54")
    a("s_or_b32 exec_lo, s58, 1")
    a("s_mov_b32 exec_hi, 0")
    vm("buffer_load_dword v163, v5, s[44:47], s67 offen " + ("nt" if "ntu" in X else "sc1"), "fl")
    a("s_lshl_b32 s58, s54, 4")
    a("s_lshl_b64 exec, 0xffff, s58")
    vm("global_load_lds_dwordx4 v4, s[28:29]", "gw")
    a("s_mov_b64 exec, -1")
    sub(3)
    a("v_bfe_u32 v5, v1, 2, 2")
    a("v_lshrrev_b32 v6, 4, v1")
    a("v_bfe_u32 v7, v1, 1, 1")
    a("v_lshl_add_u32 v6, v6, 1, v7")
    a("v_lshrrev_b32 v7, 1, v5")
    a("v_xor_b32 v6, v6, v7")
    a("v_lshlrev_b32 v6, 4, v6")
    a("v_lshl_add_u32 v6, v5, 7, v6")
    a("v_and_b32 v7, 1, v1")
    a("v_lshl_add_u32 v6, v7, 3, v6")
    a("v_add_u32 v28, s74, v6")
    for i in range(1, 4):
        a(f"v_xor_b32 v{28+i}, {32*i}, v28")
    need("xs")
    a("s_setprio 3")
    for i in range(4):
        a(f"ds_read_b64_tr_b16 {vr(32+2*i,2)}, v{28+i} offset:{512*i}")
    a("v_lshrrev_b32 v5, 1, v1")
    a("v_lshlrev_b32 v5, 13, v5")
    a("v_lshl_add_u32 v27, v7, 6, v5")
    a("s_lshl_b32 s75, s50, 8")
    a("s_lshr_b32 s59, s54, 1")
    a("s_lshl_b32 s59, s59, 7")
    a("s_add_u32 s75, s75, s59")
    a("s_add_u32 s75, s75, s51")
    a(f"s_add_u32 s75, s75, {G_UT}")
    a("s_lshl_b32 s58, s73, 5")
    a("s_add_u32 s75, s75, s58")
    a("s_waitcnt lgkmcnt(0)")
    vm("buffer_store_dwordx4 v[32:35], v27, s[44:47], s75 offen" + NT, 3)
    vm("buffer_store_dwordx4 v[36:39], v27, s[44:47], s75 offen offset:16" + NT, 3)
    if "lst" in X: a.stamp(3)
    PRE = 7 if "p7" in X else 6 if "p6" in X else 5 if "p5" in X else 4
    for j in range(4, PRE): sub(j)
    a("v_lshrrev_b32 v10, 3, v1")
    a("s_lshl_b32 s58, s49, 3")
    a("v_add_u32 v10, s58, v10")
    a("v_and_b32 v11, 7, v1")
    a("v_bfe_u32 v12, v10, 1, 3")
    a("v_xor_b32 v12, v12, v11")
    a("v_lshlrev_b32 v12, 4, v12")
    a("v_lshl_add_u32 v12, v10, 7, v12")
    a("s_and_b32 s58, s53, 7")
    a("s_lshl_b32 s58, s58, 7")
    a("v_lshl_add_u32 v11, v11, 4, s58")
    a("v_bfe_u32 v5, v1, 4, 1")
    a("v_lshlrev_b32 v5, 16, v5")
    a("v_and_b32 v6, 15, v1")
    a("v_lshl_add_u32 v13, v6, 7, v5")
    a(f"s_mul_i32 s71, s54, {G_HEAD}")
    a("s_lshl_b32 s58, s50, 11")
    a("s_add_u32 s71, s71, s58")
    a("s_add_u32 s71, s71, s51")
    a("s_and_b32 s58, s50, 15")
    a(f"s_cmp_lt_u32 s58, {NEARLY}")
    a("s_cselect_b32 s58, 0, 0x7ff00000")
    a("v_add_u32 v13, s58, v13")
    for c in range(8):
        a(f"v_add_u32 v{40+c}, {128*c}, v11")
        a(f"v_and_b32 v{40+c}, 1023, v{40+c}")
        a(f"v_add_u32 v{40+c}, {L_GW}, v{40+c}")
    for j in range(12):
        need(j)
        if "lst" in X and j in (0, 4, 8): a.stamp(4 + j // 4)
        a("s_barrier")
        if PRE <= j + DD < 16: sub(j + DD)
    if "tq" in X:
        a("s_mov_b32 exec_hi, 0")
        vm("buffer_load_dword v163, v13, s[44:47], s71 offen " + ("nt" if "ntu" in X else "sc1"), "tq")
        a("s_mov_b64 exec, -1")
    need(12)
    a("s_barrier")
    a("s_cmp_eq_u32 s54, 3")
    a("s_cbranch_scc1 KA_LG")
    for j in (13, 14, 15):
        need(j)
        a("s_barrier")
    a.stamp(2)
    a("s_cmp_eq_u32 s54, 2")
    a("s_cbranch_scc1 KA_LZ")

    a("KA_ATT:")
    QA, QB, P, OA, OB, SA, SB = 8, 12, 28, 36, 52, 68, 84
    KBUF = [100, 112, 124, 136]
    IXV = 24
    SM32 = "v_smfmac_f32_32x32x32_bf16"
    a("s_and_b32 s54, s48, 3")
    a("s_lshr_b32 s55, s48, 2")
    a(f"s_mul_i32 s57, s54, {G_HEAD}")
    a("s_add_u32 s57, s57, s51")
    a("s_lshl_b32 s58, s55, 15")
    a("s_add_u32 s58, s58, s57")
    a("s_add_u32 s59, s58, 65536")
    a("s_lshl_b32 s56, s50, 16")
    a("s_lshl_b32 s60, s49, 13")
    a("s_add_u32 s56, s56, s60")
    a(f"s_add_u32 s56, s56, {W2_O}")
    a("s_lshl_b32 s60, s54, 11")
    a("s_add_u32 s60, s60, s56")
    a("s_add_u32 s36, s34, s60")
    a("s_addc_u32 s37, s35, 0")
    a("s_lshl_b32 s60, s50, 2")
    a("s_add_u32 s60, s60, s54")
    a("s_lshl_b32 s60, s60, 12")
    a("s_add_u32 s38, s26, s60")
    a("s_addc_u32 s39, s27, 0")
    a("s_cmp_eq_u32 s55, 0")
    a("s_cselect_b64 s[36:37], s[38:39], s[36:37]")
    a("s_cselect_b32 s40, 25, 9")
    a("s_cselect_b32 s42, 15, 3")
    a("s_lshl_b32 s40, s40, 7")
    a("s_mov_b32 s41, 0")
    a("s_lshl_b32 s60, s48, 10")
    a("s_add_u32 s56, s56, s60")
    a(f"v_mov_b32 v{IXV}, 0xdddd")
    a("s_mov_b32 s62, 0xffff")
    a("s_mov_b32 s63, 0xffff")
    a("v_and_b32 v2, 27, v1")
    a("v_and_b32 v6, 15, v1")
    a("v_lshl_add_u32 v6, v3, 4, v6")
    a("v_lshlrev_b32 v6, 4, v6")
    a("v_cmp_eq_u32 vcc, 16, v2")
    a("v_mov_b32 v7, 0x3f803f80")
    a("v_lshlrev_b32 v157, 3, v1")
    a("v_cndmask_b32 v7, 0, v7, vcc")
    a("s_lshl_b32 s60, s54, 11")
    a(f"s_add_u32 s60, s60, {L_Q}")
    a("v_add_u32 v5, s60, v4")
    a(f"s_or_b32 s64, s42, {hex((1<<PRIO1)|(1<<PRIO0))}")
    for B in KBUF:
        for i in range(8): a(f"v_mov_b32 v{B+4+i}, v7")
    for i in range(32): a(f"v_mov_b32 v{OA+i}, 0")
    for i in range(8): a(f"v_mov_b32 v{SB+8+i}, 0")
    a("s_mul_i32 s60, s48, 2304")
    a(f"s_add_u32 s60, s60, {L_OX}")
    a("s_xor_b32 s61, s48, 4")
    a("s_mul_i32 s61, s61, 2304")
    a(f"s_add_u32 s61, s61, {L_OX}")
    a("v_add_u32 v16, s60, v4")
    a("v_add_u32 v17, s61, v4")
    a("v_lshl_add_u32 v18, v1, 2, s60")
    a("v_lshl_add_u32 v19, v1, 2, s61")
    a("s_lshl_b32 s60, s54, 2")
    a(f"v_add_u32 v20, s60, v{VSY}")
    a(f"v_mov_b32 v21, {hex(f2u(2.0**-80))}")
    a(f"v_mov_b32 v22, {hex(f2u(2.0**80))}")
    a(f"v_mov_b32 v23, 0x7f7fffff")
    a("s_lshl_b32 s74, s50, 11")
    a(f"s_add_u32 s74, s74, {W2_FO}")
    a("v_lshlrev_b32 v154, 7, s49")
    a("s_mov_b32 s65, 0")
    a("s_cmp_eq_u32 s55, 0")
    a("s_cbranch_scc1 KA_AT1")
    wait(S_NONCE, 1, out=52)
    a("KA_AT1:")
    a("v_mov_b32 v153, s52")
    wait(S_QRDY, 4)
    a(f"ds_read_b128 {vr(QA,4)}, v5")
    a(f"ds_read_b128 {vr(QB,4)}, v5 offset:1024")
    if "lst" not in X: a.stamp(4)
    a("s_cmp_lg_u32 s48, 4")
    a("s_cbranch_scc1 KA_AT2")
    mktag(512)
    a("v_lshlrev_b32 v156, 7, v1")
    a("s_lshl_b32 s60, s50, 2")
    a("v_add_u32 v156, s60, v156")
    wait(S_DONE, 4)
    collect(True, None, 15)
    sig(S_GO)
    a("s_branch KA_AT3")
    a("KA_AT2:")
    a("s_waitcnt vmcnt(0)")
    a("s_cmp_lg_u32 s48, 7")
    a("s_cbranch_scc1 KA_NOGF")
    sig(S_CD)
    a("KA_NOGF:")
    wait(S_GO, 1)
    a("KA_AT3:")
    def kload(B, off): a(f"buffer_load_dwordx4 {vr(B,4)}, v4, s[44:47], s58 offen offset:{off}{NK}")
    def vload(B, off):
        a("s_mov_b64 exec, s[62:63]")
        a(f"buffer_load_dwordx4 {vr(B+4,4)}, v6, s[44:47], s59 offen offset:{off}{NK}")
        a(f"buffer_load_dwordx4 {vr(B+8,4)}, v6, s[44:47], s59 offen offset:{off+512}{NK}")
        a("s_mov_b64 exec, -1")
    kload(KBUF[0], 0)
    for t in range(3):
        vload(KBUF[t], 1024 * t); kload(KBUF[t+1], 1024 * (t + 1))
    a("s_add_u32 s58, s58, 4096")
    a("s_add_u32 s59, s59, 3072")
    a("s_setprio 2")
    if "lst" not in X: a.stamp(7)
    a("s_waitcnt vmcnt(9) lgkmcnt(0)")
    a.stamp(7 if "lst" in X else 5)
    a(f"{MF} {vr(SA,16)}, {vr(KBUF[0],4)}, {vr(QA,4)}, 0")
    def batch():
        a("s_add_u32 s38, s36, s41")
        a("s_addc_u32 s39, s37, 0")
        for i in range(7): a(f"s_load_dwordx2 s[70:71], s[38:39], {128*i+60}" if "nobat" not in X else "s_nop 0")
        a(f"s_add_u32 s41, s41, {7*128}")
        a("s_min_u32 s41, s41, s40")
    batch()
    a("s_nop 0")
    a(".p2align 6")
    a("KA_LOOP:")
    if "ast" in X:
        for k, b in enumerate((1, 2, 3, 5)):
            a(f"s_cmp_lg_u32 s65, {b}\ns_cbranch_scc1 KA_Q{k}")
            a.stamp(1 + k)
            a(f"KA_Q{k}:")
    for u in range(4):
        B, Bn, Bp = KBUF[u], KBUF[(u+1) % 4], KBUF[(u+3) % 4]
        if u == (3 if "h3" in X else 2):
            a("s_bitcmp1_b32 s64, s65")
            a("s_cbranch_scc1 KA_SPECIAL")
            a("KA_BODY:")
        for unit in range(2):
            Sc, Sn, Oc, Op, Qn = (SA, SB, OA, OB, QB) if unit == 0 else (SB, SA, OB, OA, QA)
            for i in range(16):
                if i == 2:
                    a(f"{SM32} {vr(Op,16)}, {vr((Bp if unit == 0 else B)+8,4)}, {vr(Sn+8,8)}, v{IXV}")
                    if unit == 0: vload(Bp, 1024 * u)
                if i == 5:
                    a(f"{MF} {vr(Sn,16)}, {vr(B if unit == 0 else Bn,4)}, {vr(Qn,4)}, 0")
                    if unit == 0: kload(B, 1024 * u)
                if i == 11:
                    if unit == 0: a("s_waitcnt vmcnt(9)")
                    a(f"{SM32} {vr(Oc,16)}, {vr(B+4,4)}, {vr(Sc,8)}, v{IXV}")
                if i == 13 and u == 3 and unit == 1:
                    a("s_add_u32 s58, s58, 4096")
                    a("s_add_u32 s59, s59, 4096")
                    a("s_add_u32 s65, s65, 1")
                    a("s_cmp_lt_u32 s65, 8")
                a(f"v_exp_f32 v{Sc+i}, v{Sc+i}")
    a("s_cbranch_scc1 KA_LOOP")
    a("s_nop 0")
    a(f"{SM32} {vr(OB,16)}, {vr(KBUF[3]+8,4)}, {vr(SB+8,8)}, v{IXV}")
    if "lst" not in X: a.stamp(6)
    a("s_cmp_eq_u32 s55, 0")
    a("s_cbranch_scc1 KA_XA")
    for keep, send, lab in ((OB, OA, None), (OA, OB, "KA_XA")):
        if lab:
            a(f"{lab}:")
            a("s_nop 9")
        a(f"ds_write_b128 v16, {vr(send,4)}")
        a(f"ds_write_b128 v16, {vr(send+4,4)} offset:1024")
        a(f"ds_write_b32 v18, v{send+8} offset:2048")
        a("s_mov_b64 exec, 1")
        a(f"ds_add_u32 v20, v{VONE} offset:{S_OX}")
        a(f"ds_add_u32 v{VSY}, v{VONE} offset:{S_FIN}")
        a("s_mov_b64 exec, -1")
        wait(S_OX, 2, 20, nap=(1 if "oxn" in X else 0))
        a(f"ds_read_b32 v{send+8}, v19 offset:2048")
        a(f"ds_read_b128 {vr(send,4)}, v17")
        a(f"ds_read_b128 {vr(send+4,4)}, v17 offset:1024")
        if not lab: a("s_branch KA_XJ")
    a("KA_XJ:")
    a("s_waitcnt lgkmcnt(2)")
    a(f"v_add_f32 v{SA}, v{OA+8}, v{OB+8}")
    a("s_waitcnt lgkmcnt(0)")
    a(f"v_rcp_f32 v{SA+1}, v{SA}")
    for i in range(8):
        a(f"v_add_f32 v{OA+i}, v{OA+i}, v{OB+i}")
    a.c("safety check of the zero stand-in for the row max: l inside [2^-80, 2^80] and O finite")
    a(f"v_cmp_nge_f32 vcc, v{SA}, v21")
    a(f"v_cmp_nle_f32 s[68:69], v{SA}, v22")
    for i in range(8):
        a(f"v_mul_f32 v{OA+i}, v{OA+i}, v{SA+1}")
    a(f"v_add_f32 v{SA+2}, |v{OA}|, |v{OA+1}|")
    a(f"v_add_f32 v{SA+3}, |v{OA+2}|, |v{OA+3}|")
    a(f"v_add_f32 v{SA+4}, |v{OA+4}|, |v{OA+5}|")
    a(f"v_add_f32 v{SA+5}, |v{OA+6}|, |v{OA+7}|")
    a(f"v_add_f32 v{SA+2}, v{SA+2}, v{SA+3}")
    a(f"v_add_f32 v{SA+4}, v{SA+4}, v{SA+5}")
    a(f"v_add_f32 v{SA+2}, v{SA+2}, v{SA+4}")
    a("s_or_b64 vcc, vcc, s[68:69]")
    a(f"v_cmp_nle_f32 s[68:69], v{SA+2}, v23")
    for i in range(4):
        a(f"v_cvt_pk_bf16_f32 v{P+i}, v{OA+2*i}, v{OA+2*i+1}")
    a("s_or_b64 vcc, vcc, s[68:69]")
    a("s_cbranch_scc1 KA_SLOW")
    a("KA_FIN:")
    a(f"buffer_store_dwordx4 {vr(P,4)}, v4, s[44:47], s56 offen sc1")
    a("s_waitcnt vmcnt(0)")
    a("s_mov_b64 exec, 1")
    a(f"ds_add_rtn_u32 v{VTMP}, v{VSY}, v{VONE} offset:{S_OD}")
    a("s_waitcnt lgkmcnt(0)")
    a(f"v_readfirstlane_b32 s76, v{VTMP}")
    a("s_cmp_lg_u32 s76, 7")
    a("s_cbranch_scc1 KA_NLAST")
    a("buffer_store_dword v153, v154, s[44:47], s74 offen sc1")
    a("KA_NLAST:")
    a("s_cmp_lg_u32 s76, 0")
    a("s_cbranch_scc1 KA_NFIRST")
    a("s_mov_b64 exec, 0xff")
    a("s_lshl_b32 s72, s49, 2")
    a("s_and_b32 s73, s50, 3")
    a("s_add_u32 s72, s72, s73")
    a("s_lshl_b32 s72, s72, 11")
    a(f"s_add_u32 s72, s72, {W2_FO}")
    a("v_lshlrev_b32 v16, 7, v1")
    a(f"s_mov_b32 s69, {SLOW_TRIES}")
    a("buffer_load_dword v17, v16, s[44:47], s72 offen sc1")
    a("KA_WP:")
    for cur, nxt in ((17, 18), (18, 17)):
        a(f"s_sleep {PSL}")
        a(f"buffer_load_dword v{nxt}, v16, s[44:47], s72 offen sc1")
        a("s_waitcnt vmcnt(1)")
        a(f"v_cmp_eq_u32 vcc, s52, v{cur}")
        a("s_nop 1")
        a("v_mov_b32 v19, vcc_lo")
        a(f"ds_or_b32 v{VSY}, v19 offset:{S_PO}")
        a("s_cmp_eq_u32 vcc_lo, 0xff")
        a("s_cbranch_scc1 KA_NFIRST")
    a("s_sub_u32 s69, s69, 1")
    a("s_cbranch_scc0 KA_WP")
    a("KA_NFIRST:")
    a.end(0)
    a("KA_SPECIAL:")
    a(f"s_cmp_ge_u32 s65, {PRIO1}")
    a("s_cbranch_scc1 KA_SP1")
    batch()
    a("s_branch KA_BODY")
    a("KA_SP1:")
    a("s_setprio 1")
    a(f"s_cmp_eq_u32 s65, {PRIO1}")
    a("s_cbranch_scc1 KA_BODY")
    a("s_setprio 0")
    a("s_branch KA_BODY")
    a.c("fallback: true row max over all keys, then recompute this query tile")
    a("KA_SLOW:")
    B = KBUF[0]
    a("s_cmp_eq_u32 s55, 0")
    a("s_cbranch_scc1 KA_SLQ")
    for i in range(4): a(f"v_mov_b32 v{QA+i}, v{QB+i}")
    a("KA_SLQ:")
    a("s_waitcnt vmcnt(0)")
    a(f"v_mov_b32 v{SB}, 0xff800000")
    a("s_mov_b32 s58, s57")
    a("s_mov_b32 s65, 0")
    a("KA_MAXL:")
    a(f"buffer_load_dwordx4 {vr(B,4)}, v4, s[44:47], s58 offen")
    a("s_add_u32 s58, s58, 1024")
    a("s_add_u32 s65, s65, 1")
    a("s_waitcnt vmcnt(0)")
    a(f"{MF} {vr(SA,16)}, {vr(B,4)}, {vr(QA,4)}, 0")
    a("s_nop 15")
    for i in range(8):
        a(f"v_max3_f32 v{SB}, v{SA+2*i}, v{SA+2*i+1}, v{SB}")
    a("s_cmp_lt_u32 s65, 64")
    a("s_cbranch_scc1 KA_MAXL")
    a(f"v_mov_b32 v{SB+1}, v{SB}")
    a("s_nop 1")
    a(f"v_permlane32_swap_b32 v{SB}, v{SB+1}")
    a(f"v_max_f32 v{SB}, v{SB}, v{SB+1}")
    for i in range(16):
        a(f"v_mov_b32 v{OA+i}, 0")
    a("s_mov_b32 s58, s57")
    a("s_add_u32 s59, s57, 65536")
    a("s_mov_b32 s65, 0")
    a("KA_SLOWL:")
    kload(B, 0); vload(B, 0)
    a("s_add_u32 s58, s58, 1024")
    a("s_add_u32 s59, s59, 1024")
    a("s_add_u32 s65, s65, 1")
    a("s_waitcnt vmcnt(0)")
    a(f"{MF} {vr(SA,16)}, {vr(B,4)}, {vr(QA,4)}, 0")
    a("s_nop 15")
    for i in range(16):
        a(f"v_sub_f32 v{SA+i}, v{SA+i}, v{SB}")
    for i in range(16):
        a(f"v_exp_f32 v{SA+i}, v{SA+i}")
    a("s_nop 1")
    a(f"{SM32} {vr(OA,16)}, {vr(B+4,4)}, {vr(SA,8)}, v{IXV}")
    a(f"{SM32} {vr(OA,16)}, {vr(B+8,4)}, {vr(SA+8,8)}, v{IXV}")
    a("s_nop 7")
    a("s_cmp_lt_u32 s65, 64")
    a("s_cbranch_scc1 KA_SLOWL")
    a("s_nop 15")
    a(f"v_rcp_f32 v{SA}, v{OA+8}")
    a("s_nop 0")
    for i in range(8):
        a(f"v_mul_f32 v{OA+i}, v{OA+i}, v{SA}")
    for i in range(4):
        a(f"v_cvt_pk_bf16_f32 v{P+i}, v{OA+2*i}, v{OA+2*i+1}")
    a("s_branch KA_FIN")

    a("KA_LZ:")
    a("v_mov_b32 v8, 0")
    a("v_lshlrev_b32 v5, 2, v1")
    a(f"v_add_u32 v5, {L_KP+4100}, v5")
    for c in range(4):
        if c % 2 == 0: a("s_mov_b64 exec, %s" % ("0x7fff" if c == 0 else "0x7ffe"))
        for ch in range(2): a(f"ds_write_b32 v5, v8 offset:{c*KPC+ch*KPROW}")
    a("s_mov_b64 exec, -1")
    sig(S_UDONE)
    a("s_branch KA_ATT")
    a("KA_LG:")
    def grd(c):
        a(f"ds_read_b128 {vr(64+4*c,4)}, v12 offset:{8192*c}")
        a(f"ds_read_b128 {vr(96+4*c,4)}, v{40+c}")
    grd(0); grd(1); grd(2)
    need(13)
    a("s_barrier")
    grd(3); grd(4); grd(5); grd(6)
    need(14)
    a("s_barrier")
    a("s_waitcnt lgkmcnt(6)")
    grd(7)
    need(15, " lgkmcnt(0)")
    a("s_barrier")
    a.stamp(2)
    a("v_mov_b32 v9, 0")
    a("s_lshl_b32 s58, s50, 9")
    a(f"s_add_u32 s58, s58, {W2_G}")
    a("v_lshlrev_b32 v5, 3, v10")
    for i in range(32): a(f"v_dot2_f32_bf16 v9, v{64+i}, v{96+i}, v9")
    a("s_nop 3")
    a("v_add_f32_dpp v9, v9, v9 quad_perm:[1,0,3,2] row_mask:0xf bank_mask:0xf")
    a("s_nop 1")
    a("v_add_f32_dpp v9, v9, v9 quad_perm:[2,3,0,1] row_mask:0xf bank_mask:0xf")
    a("s_nop 1")
    a("v_add_f32_dpp v9, v9, v9 row_half_mirror row_mask:0xf bank_mask:0xf")
    a("v_cvt_pk_bf16_f32 v9, v9, v9")
    a("v_and_b32 v9, 0xffff0000, v9")
    a(f"v_mul_f32 v9, {hex(f2u(-LOG2E))}, v9")
    a("v_exp_f32 v9, v9")
    a("s_nop 0")
    a("v_add_f32 v9, 1.0, v9")
    a("v_rcp_f32 v9, v9")
    a("s_nop 0")
    a("v_cvt_pk_bf16_f32 v10, v9, v9")
    a("v_and_b32 v10, 0xffff0000, v10")
    a("v_sub_f32 v11, 1.0, v10")
    a("v_cvt_pk_bf16_f32 v11, v11, v11")
    a("v_and_b32 v11, 0xffff0000, v11")
    a("s_mov_b32 exec_lo, 0x01010101")
    a("s_mov_b32 exec_hi, 0x01010101")
    a("buffer_store_dwordx2 v[10:11], v5, s[44:47], s58 offen sc1")
    a("s_mov_b64 exec, -1")
    a("s_branch KA_ATT")

    a("KA_CONS:")
    a("s_setprio 3")
    ACC, FB = 112, 32
    XA, WAD, FLA = 16, 20, 21
    a("s_and_b32 s54, s48, 1")
    a("s_lshr_b32 s55, s48, 1")
    a("v_and_b32 v5, 31, v1")
    a("s_lshl_b32 s56, s54, 12")
    a("v_lshl_add_u32 v6, v5, 7, s56")
    a("v_bfe_u32 v7, v5, 1, 3")
    a("v_xor_b32 v7, v7, v3")
    a(f"v_lshl_add_u32 v{XA}, v7, 4, v6")
    for ks in range(1, 4):
        a(f"v_xor_b32 v{XA+ks}, {ks<<5}, v{XA}")
    a("v_bfe_u32 v7, v1, 2, 2")
    a("v_lshl_add_u32 v6, v3, 3, v7")
    a("v_lshlrev_b32 v6, 7, v6")
    a("v_lshrrev_b32 v7, 1, v7")
    a("v_xor_b32 v7, s55, v7")
    a("v_lshl_add_u32 v6, v7, 6, v6")
    a("v_bfe_u32 v7, v1, 4, 1")
    a("v_lshl_add_u32 v6, v7, 5, v6")
    a("v_and_b32 v7, 3, v1")
    a("v_lshl_add_u32 v6, v7, 3, v6")
    a(f"v_add_u32 v{WAD}, {L_W}, v6")
    for i in range(48):
        a(f"v_mov_b32 v{ACC+i}, 0")
    a("s_lshl_b32 s58, s48, 10")
    a(f"s_add_u32 s58, s58, {L_U}")
    a("v_add_u32 v5, s58, v4")
    a(f"ds_write_b128 v5, {vr(ACC,4)}")
    a(f"v_add_u32 v5, {L_U+4096}, v4")
    a("s_mov_b64 exec, 0x7fffff")
    a(f"ds_write_b128 v5, {vr(ACC,4)}")
    a("s_mov_b64 exec, -1")
    a("s_waitcnt lgkmcnt(0)")
    srd(a, 44, 34, 35, W2_END)
    WB = 22
    a("v_lshrrev_b32 v25, 1, v1")
    a("v_xor_b32 v25, v25, v1")
    a("v_and_b32 v25, 4, v25")
    a("v_mul_u32_u24 v25, 3, v25")
    a("v_xor_b32 v25, v25, v1")
    a("v_lshlrev_b32 v25, 4, v25")
    a(f"v_mov_b32 v{WB}, v{WAD}")
    def reads(step):
        F = FB + 16 * (step & 3)
        xo = (step >> 2) * 8192
        wo = (step & 1) * 2048
        r = [f"ds_read_b128 {vr(F,4)}, v{XA+(step&3)} offset:{xo}"]
        for ct in range(3):
            for hh in range(2):
                r.append(f"ds_read_b64_tr_b16 {vr(F+4+4*ct+2*hh,2)}, v{WAD} offset:{wo+ct*4096+hh*512}")
        return r
    def mfmas(step):
        F = FB + 16 * (step & 3)
        r = []
        for ct in range(3):
            x, w = vr(F, 4), vr(F + 4 + 4 * ct, 4)
            A, B = (w, x) if ct < 2 else (x, w)
            r.append(f"{MF} {vr(ACC+16*ct,16)}, {A}, {B}, {vr(ACC+16*ct,16)}")
        return r
    a("s_mov_b32 s58, 0")
    a("s_mov_b32 s57, 3")
    a("s_barrier")
    a.stamp(1)
    for t in reads(0) + reads(1): a(t)
    a("KA_GEMM:")
    for st in range(8):
        m, r = mfmas(st), reads(st + 2)
        if st % 2 == 0:
            a("s_add_u32 s58, s58, 12288")
            a(f"s_cmp_eq_u32 s58, {NSLOT*12288}")
            a("s_cselect_b32 s58, 0, s58")
            a(f"v_add_u32 v{WAD}, s58, v{WB}")
            if st == 6: a("s_cmp_eq_u32 s57, 0")
        a("s_waitcnt lgkmcnt(7)")
        a(m[0])
        if st == 6: a("s_cbranch_scc1 KA_GEND")
        if st % 2 == 0: a("s_barrier")
        [a(t) for t in r[:3]]; a(m[1]); [a(t) for t in r[3:6]]; a(m[2]); a(r[6])
    for k in range(4):
        a(f"v_add_u32 v{XA+k}, 16384, v{XA+k}")
    a("s_sub_u32 s57, s57, 1")
    a("s_branch KA_GEMM")
    a("KA_GEND:")
    m = mfmas(6); a(m[1]); a(m[2])
    a("s_waitcnt lgkmcnt(0)")
    for t in mfmas(7): a(t)
    a.stamp(2)
    a("s_lshl_b32 s58, s50, 1")
    a("s_add_u32 s58, s58, s54")
    a("s_lshl_b32 s58, s58, 10")
    a(f"s_mul_i32 s59, s55, {2*G_HEAD}")
    a("s_add_u32 s58, s58, s59")
    a("s_add_u32 s58, s58, s51")
    a(f"s_add_u32 s59, s58, {G_HEAD}")
    a("s_add_u32 s62, s58, 65536")
    a(f"s_mov_b32 s63, {hex(QSCALE)}")
    a("v_bfe_u32 v5, v1, 4, 1")
    a(f"v_mul_u32_u24 v5, {G_HEAD}, v5")
    a("v_and_b32 v6, 15, v1")
    a("v_lshl_add_u32 v6, v3, 4, v6")
    a("v_lshl_add_u32 v6, v6, 4, v5")
    for i in range(8):
        a(f"v_cvt_pk_bf16_f32 v{16+i}, v{ACC+16+2*i}, v{ACC+16+2*i+1}")
    a("buffer_store_dwordx4 v[16:19], v25, s[44:47], s58 offen" + NT)
    a("buffer_store_dwordx4 v[20:23], v25, s[44:47], s59 offen" + NT)
    for i in range(8):
        a(f"v_cvt_pk_bf16_f32 v{96+i}, v{ACC+32+2*i}, v{ACC+32+2*i+1}")
    a("buffer_store_dwordx4 v[96:99], v6, s[44:47], s62 offen" + NT)
    a("buffer_store_dwordx4 v[100:103], v6, s[44:47], s62 offen offset:512" + NT)
    wait(S_NONCE, 1, out=52)
    for i in range(16):
        a(f"v_mul_f32 v{ACC+i}, s63, v{ACC+i}")
    a("s_lshl_b32 s60, s55, 12")
    a("s_lshl_b32 s61, s54, 10")
    a("s_add_u32 s60, s60, s61")
    a(f"s_add_u32 s60, s60, {L_Q}")
    a("v_add_u32 v5, s60, v4")
    for i in range(8):
        a(f"v_cvt_pk_bf16_f32 v{32+i}, v{ACC+2*i}, v{ACC+2*i+1}")
    a("ds_write_b128 v5, v[32:35]")
    a("ds_write_b128 v5, v[36:39] offset:2048")
    sig(S_QRDY)
    mktag(512)
    a("s_lshl_b32 s60, s48, 7")
    a("s_lshl_b32 s61, s50, 2")
    a("s_add_u32 s60, s60, s61")
    a("v_mov_b32 v156, s60")
    a("s_waitcnt vmcnt(0)")
    publish()
    sig(S_DONE)
    a.stamp(3)
    a("s_branch KA_ATT")

    import ka_aux
    ka_aux.gen_aux(a, sig, wait, wait4, lbl, X, gettag, mktag, publish, collect, dsig)
    a("KA_END:")
    a("s_endpgm")
    return a.text(), 168
```

```python
from common import *
from ka import *

def gen_aux(a, sig, wait, wait4, lbl, X, gettag, mktag, publish, collect, dsig):
    import ka
    cmul = ka.cmul if "nopk" in X else ka.cmul_pk
    PSL = 1 if "ps1" in X else 8 if "ps8" in X else 3
    FINN = 4 if "f4" in X else 1 if "f1" in X else 8
    DATA_TRIES = 0 if "dt0" in X else 200
    st = (lambda i: None) if "p3st" in X else a.stamp
    a("KA_AUX:")
    a("s_and_b32 s61, s54, 1")
    a("s_lshr_b32 s62, s54, 1")
    a("s_mov_b32 s52, 0")
    srd(a, 44, 34, 35, W2_END)
    a("s_lshl_b32 s63, s2, 2")
    a("s_add_u32 s63, s63, s54")
    a("s_cmp_lg_u32 s63, 3")
    a("s_cbranch_scc1 KA_NOPUB")
    a("s_memrealtime s[64:65]")
    a("s_waitcnt lgkmcnt(0)")
    a("s_or_b32 s64, s64, 1")
    a("v_mov_b32 v158, 0")
    a("v_mov_b32 v159, s64")
    a("s_mov_b64 exec, 1")
    a("global_store_dword v158, v159, s[32:33] sc1")
    a("s_mov_b64 exec, -1")
    a("KA_NOPUB:")
    a("v_and_b32 v7, 31, v1")
    Z = 160
    a("v_and_b32 v36, 1, v1")
    a("v_lshlrev_b32 v36, 4, v36")
    a("v_mov_b32 v37, 0x3f80")
    a("v_lshlrev_b32 v36, v36, v37")
    a("v_bfe_u32 v37, v1, 1, 2")
    for d in range(4):
        a(f"v_cmp_eq_u32 s[{64+2*d}:{65+2*d}], {d}, v37")
    a("s_nop 0")
    for d in range(4):
        a(f"v_cndmask_b32 v{Z+d}, 0, v36, s[{64+2*d}:{65+2*d}]")
    a("s_lshl_b32 s63, s54, 11")
    a(f"s_add_u32 s63, s63, {L_XCH}")
    a("v_add_u32 v16, s63, v4")
    a(f"s_mul_i32 s63, s62, {KPROW}")
    a(f"s_add_u32 s63, s63, {L_KP}")
    a("v_lshl_add_u32 v19, v7, 4, s63")
    a("s_lshl_b32 s64, s62, 2")
    a(f"v_add_u32 v167, s64, v{VSY}")
    a("v_lshrrev_b32 v32, 2, v7")
    a("v_lshlrev_b32 v32, 3, v32")
    a("v_sub_u32 v33, 4128, v32")
    a("v_lshl_add_u32 v33, v3, 4, v33")
    a("v_and_b32 v32, 3, v7")
    a(f"v_mul_u32_u24 v32, {KPC}, v32")
    a("s_lshl_b32 s64, s61, 6")
    a("s_add_u32 s64, s64, s63")
    a(f"s_sub_u32 s64, s64, {127*32}")
    a("v_add3_u32 v38, v32, v33, s64")
    a("v_mul_u32_u24 v39, 144, v7")
    a("v_lshl_add_u32 v39, v3, 4, v39")
    a("s_lshl_b32 s64, s62, 6")
    a("s_mul_i32 s65, s61, 144")
    a("s_add_u32 s64, s64, s65")
    a(f"s_add_u32 s64, s64, {L_U}")
    a("v_add_u32 v39, s64, v39")
    a("s_lshl_b32 s64, s54, 6")
    for k, r in enumerate((2, 5, 6)):
        a("v_add_u32 v32, s64, v1")
        if k: a(f"v_add_u32 v32, {256*k}, v32")
        a("v_mul_u32_u24 v33, 7282, v32")
        a("v_lshrrev_b32 v33, 16, v33")
        a("v_mul_u32_u24 v34, 9, v33")
        a("v_sub_u32 v34, v32, v34")
        a("v_min_u32 v34, 7, v34")
        a("v_lshlrev_b32 v34, 4, v34")
        a(f"v_lshl_add_u32 v{r}, v33, 7, v34")
    a("s_lshl_b32 s74, s50, 13")
    a("s_add_u32 s74, s74, s51")
    a(f"s_add_u32 s74, s74, {G_UT}")
    a("s_lshl_b32 s75, s54, 10")
    a(f"s_add_u32 s75, s75, {L_U+31*144}")
    a("s_lshl_b32 s60, s54, 2")
    a(f"s_add_u32 s60, s60, {L_SY+S_UA}")
    a("s_lshl_b32 s58, s61, 12")
    a("s_sub_u32 s58, 2048, s58")
    a(f"s_mov_b32 s63, {hex(LOG2E_HI)}")
    a("s_waitcnt vmcnt(7)")
    a("v_mul_f32 v17, s63, v14")
    a("v_fma_f32 v18, v14, s63, -v17")
    a(f"v_fmac_f32 v18, {hex(LOG2E_LO)}, v14")
    a("v_exp_f32 v17, v17")
    a(f"v_mul_f32 v18, {hex(LN2)}, v18")
    a("v_fma_f32 v17, v17, v18, v17")
    a("v_cvt_pk_bf16_f32 v17, v17, v17")
    a("v_and_b32 v17, 0xffff0000, v17")
    a("s_waitcnt vmcnt(0)")
    st(1)
    for r in (8, 9, 10, 11):
        a(f"v_mul_f32 v{r}, v17, v{r}")
    a("v_mul_f32 v8, s63, v8")
    a("v_mul_f32 v9, 0.15915494, v9")
    W1, W8, W256, W2, W4, W16 = 20, 22, 24, 26, 28, 30
    tmp = 32
    for k, mult in enumerate((1.0, 8.0, 256.0)):
        t = tmp + 2 * k
        a(f"v_mul_f32 v{t}, {hex(f2u(mult))}, v8")
        a(f"v_mul_f32 v{t+1}, {hex(f2u(mult))}, v9")
    for k in range(3):
        t = tmp + 2 * k
        a(f"v_exp_f32 v{t}, v{t}")
        a(f"v_fract_f32 v{t+1}, v{t+1}")
    for k, wr in enumerate((W1, W8, W256)):
        t = tmp + 2 * k
        a(f"v_cos_f32 v{wr}, v{t+1}")
        a(f"v_sin_f32 v{wr+1}, v{t+1}")
    U = {}
    nxt = [40]
    def newU(av):
        U[av] = {524: 8, 780: 10}.get(av) or nxt[0]
        if U[av] == nxt[0]: nxt[0] += 2
        return U[av]
    for l in cmul(newU(0), 12, 10): a(l)
    for k, wr in enumerate((W1, W8, W256)):
        t = tmp + 2 * k
        a(f"v_mul_f32 v{wr}, v{t}, v{wr}")
        a(f"v_mul_f32 v{wr+1}, v{t}, v{wr+1}")
    for l in interleave([cmul(W2, W1, W1), cmul(W16, W8, W8)]): a(l)
    for l in cmul(W4, W2, W2): a(l)
    WA, WB, WR, WI, UR, UI = 96, 100, 112, 128, 144, 96
    wops = [f"v_cvt_pk_bf16_f32 v{WR+15}, v{W8}, 1.0", f"v_cvt_pk_bf16_f32 v{WI+15}, v{W8+1}, 0"]
    ca, cb = W16, None
    wops += cmul(WB, W8, W16); cb = WB
    for k in range(1, 16):
        pk = [f"v_cvt_pk_bf16_f32 v{WR+15-k}, v{cb}, v{ca}", f"v_cvt_pk_bf16_f32 v{WI+15-k}, v{cb+1}, v{ca+1}"]
        if k < 15:
            na, nb = WA + 2 * (k & 1), WB + 2 * (k & 1)
            wops += interleave([cmul(na, ca, W16), cmul(nb, cb, W16), pk])
            ca, cb = na, nb
        else:
            wops += pk
    u1 = []; prev = 0
    for av in (256, 512, 768, 1024, 1280, 1536, 1792):
        u1 += cmul(newU(av), U[prev], W256); prev = av
    for av in (1024, 1280, 1536, 1792):
        u1 += cmul(newU(av + 8), U[av], W8)
    for av in (516, 520, 524):
        u1 += cmul(newU(av), U[av - 4], W4)
    u2 = []
    for av in range(1, 9):
        u2 += cmul(newU(av), U[av - 1], W1)
    for av in (258, 260, 262, 264):
        u2 += cmul(newU(av), U[av - 2], W2)
    for av in (772, 776, 780):
        u2 += cmul(newU(av), U[av - 4], W4)
    assert nxt[0] <= 96
    for l in interleave([wops, interleave([u1, u2])]): a(l)
    rows = [0,1,2,3,4,5,6,7, 256,258,260,4,260,262,264,8, 512,516,520,524,768,772,776,780,
            1024,1032,1280,1288,1536,1544,1792,1800]
    for p in range(16):
        x, y = U[rows[2*p]], U[rows[2*p+1]]
        a(f"v_cvt_pk_bf16_f32 v{UR+p}, v{x}, v{y}")
        a(f"v_cvt_pk_bf16_f32 v{UI+p}, -v{x+1}, -v{y+1}")
    TD, ES, KD = 40, 88, 20
    nb = [0]
    def bar(n=1):
        for _ in range(n):
            a("s_barrier"); nb[0] += 1
    for q in range(2):
        a(f"s_mov_b32 s64, {hex(0xff << (8*q))}")
        a(f"s_mov_b32 s65, {hex(0xff0000 << (8*q))}")
        for d in range(4):
            a(f"v_cndmask_b32 v{ES+4*q+d}, 0, v{Z+d}, s[64:65]")
    a("s_load_dword s52, s[32:33], 0")
    halves = [Xm + 8 * hf for Xm in (WR, UR, WI, UI) for hf in range(2)]
    def tm(i):
        T = TD + 16 * (i % 3)
        return [f"{MF} {vr(T,16)}, {vr(halves[i],4)}, {vr(ES,4)}, 0", f"{MF} {vr(T,16)}, {vr(halves[i]+4,4)}, {vr(ES+4,4)}, {vr(T,16)}"]
    def tc(i):
        T = TD + 16 * (i % 3)
        return [f"v_cvt_pk_bf16_f32 v{halves[i]+k}, v{T+2*k}, v{T+2*k+1}" for k in range(8)]
    def ts(Xm): return [f"v_permlane16_swap_b32 v{Xm+k}, v{Xm+8+k}" for k in range(8)]
    def fin(XU, XW, first): return [f"{MF} {vr(KD,16)}, {vr(XU+4*i,4)}, {vr(XW+4*i,4)}, " + ("0" if first and i == 0 else vr(KD,16)) for i in range(4)]
    def mixm(m, v):
        n = (len(v) + len(m) - 1) // len(m)
        for i, t in enumerate(m):
            a(t)
            for u in v[i*n:(i+1)*n]: a(u)
    a("s_nop 0")
    for t in tm(0) + tm(1) + tm(2): a(t)
    a("s_nop 7")
    for t in tc(0): a(t)
    mixm(tm(3), ["s_nop 0"] + tc(1))
    mixm(tm(4), tc(2) + ts(WR))
    mixm(tm(5), tc(3))
    mixm(tm(6), tc(4) + ts(UR))
    mixm(tm(7), tc(5))
    mixm(fin(UR, WR, True), tc(6) + ts(WI) + tc(7))
    a("s_nop 1")
    for t in ts(UI): a(t)
    a("s_nop 1")
    for t in fin(UI, WI, False): a(t)
    NPRE = 4
    a("v_lshlrev_b32 v157, 2, v7")
    a("v_lshlrev_b32 v156, 2, s50")
    a("v_mov_b32 v154, 0x7ffffff0")
    a("v_add_u32 v17, s58, v16")
    a("s_cmp_eq_u32 s61, s62")
    a("s_nop 6")
    a("s_cbranch_scc1 KA_X0")
    for i in range(8): a(f"v_swap_b32 v{KD+i}, v{KD+8+i}")
    a("KA_X0:")
    a(f"ds_write_b128 v16, {vr(KD+8,4)}")
    a(f"ds_write_b128 v16, {vr(KD+12,4)} offset:1024")
    if "xw" in X: a("s_waitcnt lgkmcnt(0)")
    if NPRE == 4: st(2)
    bar(4 - nb[0])
    gettag()
    mktag(0)
    a("s_cmp_lg_u32 s54, 0")
    a("s_cbranch_scc1 KA_NPB")
    publish()
    a("KA_NPB:")
    bar()
    D0, D1, FA, FB, FC = 112, 128, 48, 64, 80
    PW, PG, PA, PF, POF, PWF, POUT, PM, PS, PD = 144, 148, 149, 150, 151, 152, 153, 100, 108, 109
    w = ["v_lshrrev_b32 v8, 3, v1", "v_bfe_u32 v9, v1, 4, 1", "v_lshlrev_b32 v9, 2, v9", "v_and_b32 v10, 7, v1", "v_xor_b32 v9, v9, v10",
         "v_lshlrev_b32 v9, 4, v9", f"v_lshl_add_u32 v{PW}, v8, 10, v9"] + [f"v_add_u32 v{PW+q}, {7168*q}, v{PW}" for q in range(1, 4)]
    w += [f"v_lshlrev_b32 v{PF}, 7, v10", f"v_lshlrev_b32 v{PG}, 3, v7", f"v_lshlrev_b32 v{PD}, 12, v8", f"v_lshl_add_u32 v{PD}, v10, 4, v{PD}",
          "s_lshl_b32 s63, s62, 12", "s_lshl_b32 s64, s61, 4", "s_add_u32 s63, s63, s64", f"s_add_u32 s63, s63, {L_GA}",
          f"v_lshl_add_u32 v{PA}, v7, 7, s63", f"v_lshl_add_u32 v{PA}, v3, 5, v{PA}",
          f"v_lshlrev_b32 v{POUT}, 10, v7", f"v_lshl_add_u32 v{POUT}, v3, 4, v{POUT}",
          "s_lshl_b32 s63, s54, 11", f"s_add_u32 s63, s63, {L_GT}", f"v_add_u32 v{POF}, s63, v4",
          "v_lshrrev_b32 v8, 1, v7", f"v_lshl_add_u32 v{PS}, v8, 7, s63", f"v_lshl_add_u32 v{PS}, v3, 5, v{PS}", "v_and_b32 v8, 1, v7", f"v_lshl_add_u32 v{PS}, v8, 4, v{PS}",
          "v_bfe_u32 v8, v1, 2, 2", f"v_lshl_add_u32 v{PWF}, v3, 2, v8", f"v_lshlrev_b32 v{PWF}, 7, v{PWF}", "v_lshrrev_b32 v8, 1, v8", "v_xor_b32 v8, s62, v8",
          f"v_lshl_add_u32 v{PWF}, v8, 6, v{PWF}", "v_bfe_u32 v8, v1, 4, 1", f"v_lshl_add_u32 v{PWF}, v8, 5, v{PWF}", "v_and_b32 v8, 3, v1",
          f"v_lshl_add_u32 v{PWF}, v8, 3, v{PWF}", f"v_add_u32 v{PWF}, {L_WO}, v{PWF}"]
    w += ["v_lshrrev_b32 v8, 3, v7", "v_bfe_u32 v9, v7, 1, 1", "v_lshl_add_u32 v8, v8, 1, v9", "v_bfe_u32 v9, v7, 2, 1", "v_xor_b32 v9, v9, v3",
          "v_lshl_add_u32 v8, v9, 3, v8", "v_and_b32 v9, 1, v7", "v_lshlrev_b32 v9, 4, v9", "v_mov_b32 v10, 0xffff", "v_lshlrev_b32 v9, v9, v10"]
    w += [f"v_cmp_eq_u32 s[{4+2*k}:{5+2*k}], {k}, v8" for k in range(8)] + ["s_nop 0"]
    w += [f"v_cndmask_b32 v{PM+k}, 0, v9, s[{4+2*k}:{5+2*k}]" for k in range(8)]
    n = (len(w) + 3) // 4
    for k in range(3):
        bar()
        for t in w[k*n:(k+1)*n]: a(t)
    a("s_waitcnt lgkmcnt(0)")
    bar()
    a(f"ds_read_b128 {vr(KD+8,4)}, v17")
    a(f"ds_read_b128 {vr(KD+12,4)}, v17 offset:1024")
    for t in w[3*n:]: a(t)
    bar()
    a("buffer_load_dword v158, v157, s[44:47], s67 offen sc1")
    a("s_waitcnt lgkmcnt(0)")
    for i in range(8):
        a(f"v_add_f32 v{KD+i}, v{KD+i}, v{KD+8+i}")
    def uload():
        l = lbl("UL")
        a("s_mov_b32 m0, s75")
        a("s_cmp_lg_u32 s54, 0")
        a("buffer_load_dwordx4 v2, s[44:47], s74 offen" + (" nt" if "ntu" in X else "") + " lds")
        a(f"s_cbranch_scc1 {l}")
        a("s_add_u32 m0, s75, 8192")
        a("s_nop 0")
        a("buffer_load_dwordx4 v6, s[44:47], s74 offen" + (" nt" if "ntu" in X else "") + " lds")
        a(f"{l}:")
        a("s_add_u32 m0, s75, 4096")
        a("s_nop 0")
        a("buffer_load_dwordx4 v5, s[44:47], s74 offen" + (" nt" if "ntu" in X else "") + " lds")
        dsig("s_mov_b32 m0, s60")
    def tail(work):
        l = lbl("UE")
        n = (len(work) + 4) // 5
        parts = [work[i*n:(i+1)*n] for i in range(5)]
        a("s_barrier")
        for t in parts[0]: a(t)
        a("s_barrier")
        for t in parts[1]: a(t)
        a("s_barrier")
        a("s_waitcnt vmcnt(0)")
        a("v_cmp_ne_u32 vcc, s66, v158")
        a("s_mov_b32 s59, 1")
        a(f"s_cbranch_vccnz {l}")
        a("s_mov_b32 s59, 0")
        uload()
        a(f"{l}:")
        a("s_barrier")
        for t in parts[2]: a(t)
        a("s_barrier")
        for t in parts[3]: a(t)
        a("v_mov_b32 v12, s52")
        a("s_barrier")
        a(f"ds_write_b32 v{VSY}, v12 offset:{S_NONCE}")
        st(3)
        return parts[4]
    assert nb[0] == 10
    a("s_cmp_eq_u32 s61, s62")
    a("s_cbranch_scc0 KA_X1")
    rest = tail(["v_cmp_eq_u32 s[72:73], 31, v1", "v_lshlrev_b32 v8, 3, v3", "v_xor_b32 v8, 8, v8",
          "v_cndmask_b32 v9, 0, v15, s[72:73]", "v_add_u32 v18, v19, v8", f"v_add_f32 v{KD}, v{KD}, v9",
          f"v_add_u32 v36, {KPC+4+3072}, v18", f"v_add_u32 v37, {2*KPC+4+3072}, v18",
          f"v_cvt_pk_bf16_f32 v40, v{KD+3}, v{KD+2}", f"v_cvt_pk_bf16_f32 v41, v{KD+1}, v{KD+0}",
          f"v_cvt_pk_bf16_f32 v42, v{KD+6}, v{KD+5}", f"v_cvt_pk_bf16_f32 v43, v{KD+4}, v{KD+4}",
          f"v_cvt_pk_bf16_f32 v44, v{KD+7}, v{KD+3}", f"v_cvt_pk_bf16_f32 v45, v{KD+2}, v{KD+1}",
          f"v_cvt_pk_bf16_f32 v46, v{KD+6}, v{KD+6}", f"v_cvt_pk_bf16_f32 v47, v{KD+5}, v{KD+4}",
          "v_lshrrev_b32 v9, 16, v41"])
    for t in rest: a(t)
    a("ds_write_b64 v18, v[44:45] offset:3584")
    a("ds_write_b64 v18, v[46:47] offset:3072")
    a("ds_write2_b32 v36, v40, v41 offset0:128 offset1:129")
    a("ds_write2_b32 v36, v42, v43 offset0:0 offset1:1")
    a("ds_write2_b32 v37, v44, v45 offset0:128 offset1:129")
    a("ds_write2_b32 v37, v46, v47 offset0:0 offset1:1")
    a(f"ds_write_b64 v18, v[40:41] offset:{3*KPC+8+3584}")
    a(f"ds_write_b64 v18, v[42:43] offset:{3*KPC+8+3072}")
    a("s_mov_b64 exec, s[72:73]")
    a("ds_write_b32 v18, v9 offset:3592")
    a("ds_write_b32 v37, v9 offset:520")
    a("s_mov_b64 exec, -1")
    a("s_branch KA_XD")
    a("KA_X1:")
    r8, r9, r10, r11, r12, r13, r14, r15 = [KD + i for i in range(8)]
    V4 = [r8]*3 + [r9]*3 + [r10]*5 + [r11]
    V8a = [r12]*4 + [36] + [r13]*7
    V8b = [r14]*4 + [37] + [r15]*7
    w = ["v_and_b32 v8, 1, v1", "v_cmp_eq_u32 s[72:73], 1, v8", "v_cmp_eq_u32 s[70:71], 32, v1", "v_lshlrev_b32 v8, 9, v3", "v_sub_u32 v19, v19, v8", "v_sub_u32 v18, v19, v8",
         f"v_cndmask_b32 v36, v{r13}, v{r12}, s[72:73]", f"v_cndmask_b32 v37, v{r15}, v{r14}, s[72:73]", f"v_cndmask_b32 v{r11}, v{r11}, v{r10}, s[70:71]",
         f"v_cvt_pk_bf16_f32 v8, v{r9}, v{r8}", f"v_cvt_pk_bf16_f32 v9, v{r8}, v{r8}"]
    wr = []
    for c in range(4):
        for gi, (V, ad, off) in enumerate(((V8b, 18, 1024), (V8a, 18, 1536), (V4, 19, 2560))):
            R = 40 + 12 * c + 4 * gi
            w += [f"v_cvt_pk_bf16_f32 v{R+d}, v{V[8+c-2*d]}, v{V[7+c-2*d]}" for d in range(4)]
            wr.append(f"ds_write_b128 v{ad}, {vr(R,4)} offset:{c*KPC+off}")
    rest = tail(w)
    for t in interleave([wr[:9], rest]) + wr[9:]: a(t)
    a("s_mov_b32 exec_lo, 0x80000000\ns_mov_b32 exec_hi, 0")
    a(f"ds_write_b32 v19, v9 offset:{KPC+2560+16}")
    a(f"ds_write_b32 v19, v9 offset:{2*KPC+2560+16}")
    a(f"ds_write_b64 v19, v[8:9] offset:{3*KPC+2560+16}")
    a("s_mov_b64 exec, -1")
    a("KA_XD:")
    sig(S_UDONE)
    for i in range(32): a(f"v_mov_b32 v{D0+i}, 0")
    st(4)
    a("s_cmp_eq_u32 s59, 0")
    a("s_cbranch_scc1 KA_UOK")
    collect(False, "s_cmp_eq_u32 s54, 0")
    uload()
    a("KA_UOK:")
    wait(S_UDONE, 5)
    st(5)
    wait4(S_UA)
    st(6)
    if "noaux" in X: a("s_branch KA_AUXEND")
    def rdA(slot, step):
        o = 128 * (step >> 1) + 32 * (step & 1)
        a(f"ds_read_b64 {vr(FA+4*slot,2)}, v38 offset:{o}")
        a(f"ds_read_b64 {vr(FA+4*slot+2,2)}, v38 offset:{o+8}")
    def rdB(R, slot, step, extra=0):
        a(f"ds_read_b128 {vr(R+4*slot,4)}, v39 offset:{288*(step>>1)+32*(step&1)+extra}")
    def loop(lab, nxt, near, paced):
        a(f"{lab}:")
        if not paced: a(f"ds_read_b32 v{VTMP}, v{VSY} offset:{S_GO}")
        for s in range(4):
            n = (11 if near else 9) - (1 if near and s == 0 else 0)
            a("s_waitcnt lgkmcnt(%d)" % (0 if paced else n))
            a(f"{MF} {vr(D1,16)}, {vr(FA+4*s,4)}, {vr(FB+4*s,4)}, {vr(D1,16)}")
            if near:
                rdB(FB, s, s + 4, 32 * 144)
                if paced: a("s_waitcnt lgkmcnt(0)")
                a(f"{MF} {vr(D0,16)}, {vr(FA+4*s,4)}, {vr(FC+4*s,4)}, {vr(D0,16)}")
                rdA(s, s + 4)
                if paced and "slow" in X: a("s_waitcnt lgkmcnt(0)")
                rdB(FC, s, s + 4)
            else:
                rdA(s, s + 4); rdB(FB, s, s + 4)
        a("v_add_u32 v38, 256, v38")
        a(f"v_add_u32 v39, {288*2}, v39")
        if not paced: a(f"v_readfirstlane_b32 s76, v{VTMP}")
        a("s_sub_u32 s63, s63, 1")
        a("s_cmp_lg_u32 s63, 0")
        if not paced:
            a(f"s_cbranch_scc0 {nxt}")
            a("s_cmp_eq_u32 s76, 0")
        a(f"s_cbranch_scc1 {lab}")
    for s in range(4): rdA(s, s); rdB(FB, s, s)
    a("s_mov_b32 s63, 8")
    loop("KA_CV1", "KA_CVM", False, False)
    loop("KA_CV1P", None, False, True)
    a("KA_CVM:")
    a(f"v_subrev_u32 v39, {32*144}, v39")
    a("s_waitcnt lgkmcnt(9)")
    for s in range(4): rdB(FC, s, s)
    a("s_waitcnt lgkmcnt(0)")
    a("s_mov_b32 s63, 8")
    a("s_cmp_lg_u32 s76, 0")
    a("s_cbranch_scc1 KA_CV2P")
    loop("KA_CV2", "KA_CVE", True, False)
    loop("KA_CV2P", None, True, True)
    a("KA_CVE:")
    st(7)
    a("s_lshl_b32 s63, s54, 12")
    a(f"s_add_u32 s63, s63, {L_CX}")
    a("v_add_u32 v13, s63, v4")
    a("v_xor_b32 v14, 4096, v13")
    wait(S_QRDY, 4)
    a("s_cmp_eq_u32 s61, 0")
    a("s_cbranch_scc0 KA_CVS")
    for i in range(4): a(f"ds_write_b128 v13, {vr(D1+4*i,4)} offset:{1024*i}")
    sig(S_CV, 167)
    wait(S_CV, 2, 167, nap=1)
    for i in range(4): a(f"ds_read_b128 {vr(D1+4*i,4)}, v14 offset:{1024*i}")
    a("s_branch KA_CVJ")
    a("KA_CVS:")
    for i in range(4): a(f"ds_write_b128 v13, {vr(D0+4*i,4)} offset:{1024*i}")
    sig(S_CV, 167)
    wait(S_CV, 2, 167, nap=1)
    for i in range(4): a(f"ds_read_b128 {vr(D0+4*i,4)}, v14 offset:{1024*i}")
    a("KA_CVJ:")
    a("s_lshl_b32 s56, s49, 2")
    a("s_and_b32 s57, s50, 3")
    a("s_add_u32 s56, s56, s57")
    a("s_lshr_b32 s57, s50, 2")
    a("s_lshl_b32 s72, s56, 11")
    a(f"s_add_u32 s72, s72, {W2_FO}")
    a("s_lshl_b32 s65, s56, 1")
    a("s_add_u32 s65, s65, s61")
    a("s_lshl_b32 s63, s57, 1")
    a("s_add_u32 s63, s63, s62")
    a("s_lshl_b32 s74, s63, 6")
    a("s_lshl_b32 s64, s65, 15")
    a("s_add_u32 s74, s74, s64")
    a("s_lshl_b32 s73, s57, 18")
    a("s_lshl_b32 s64, s54, 16")
    a("s_add_u32 s73, s73, s64")
    a("s_lshl_b32 s64, s56, 7")
    a("s_add_u32 s73, s73, s64")
    a(f"s_add_u32 s73, s73, {W2_GA}")
    a("s_lshl_b32 s75, s65, 8")
    a(f"s_add_u32 s75, s75, {W2_G}")
    a("v_mov_b32 v155, s52")
    a("s_lshl_b32 s63, s55, 13")
    a("s_lshl_b32 s64, s54, 11")
    a("s_add_u32 s63, s63, s64")
    a(f"s_add_u32 s63, s63, {W2_GA}")
    a("s_waitcnt lgkmcnt(0)")
    sig(S_CD)
    for i in range(16): a(f"v_add_f32 v{D0+i}, v{D0+i}, v{D1+i}")
    for i in range(8): a(f"v_cvt_pk_bf16_f32 v{64+i}, v{D0+2*i}, v{D0+2*i+1}")
    a(f"ds_write_b128 v{PS}, v[64:67]")
    a(f"ds_write_b128 v{PS}, v[68:71] offset:64")
    a(f"ds_read_b128 v[64:67], v{POF}")
    a(f"ds_read_b128 v[68:71], v{POF} offset:1024")
    a("s_waitcnt lgkmcnt(0)")
    a("buffer_store_dwordx4 v[64:67], v4, s[44:47], s63 offen sc1")
    a("buffer_store_dwordx4 v[68:71], v4, s[44:47], s63 offen offset:1024 sc1")
    if "nop3" in X: a("s_branch KA_AUXEND")
    a("s_lshl_b32 s63, s50, 11")
    a(f"s_add_u32 s71, s63, {W2_FO}")
    a("s_lshl_b32 s70, s49, 7")
    a("s_add_u32 s63, s71, s70")
    a("s_load_dword s68, s[34:35], s63")
    srd(a, 36, 26, 27, 512 * 512 * 2)
    srd(a, 40, 30, 31, 2048 * 512 * 2)
    a("v_lshlrev_b32 v12, 2, s49")
    wait(S_CD, 5, nap=4)
    a("s_waitcnt vmcnt(0)")
    a("s_mov_b64 exec, 1")
    a(f"ds_add_rtn_u32 v{VTMP}, v{VSY}, v{VONE} offset:{S_PC}")
    a("s_waitcnt lgkmcnt(0)")
    a(f"v_readfirstlane_b32 s76, v{VTMP}")
    a("s_cmp_lg_u32 s76, 3")
    a("s_cbranch_scc1 KA_NCL")
    a("buffer_store_dword v155, v156, s[44:47], s67 offen offset:2048 sc1")
    a("buffer_store_dword v155, v12, s[44:47], s71 offen offset:1024 sc1")
    a("KA_NCL:")
    a("s_mov_b64 exec, -1")
    a("s_lshl_b32 s58, s54, 12")
    a(f"s_add_u32 s58, s58, {L_WO}")
    a("s_lshl_b32 s59, s54, 15")
    a("s_lshl_b32 s63, s57, 7")
    a("s_add_u32 s59, s59, s63")
    for c in range(4):
        a(f"s_add_u32 m0, s58, {16384*c}")
        a(f"s_add_u32 s63, s59, {131072*c}")
        for q in range(4):
            a(f"buffer_load_dwordx4 v{PW+q}, s[36:39], s63 offen offset:{1024*q} lds")
        a("s_waitcnt vmcnt(0)")
    a("s_xor_b32 s63, s57, 4")
    a(f"s_mul_i32 s63, s63, {GRS}")
    a(f"s_add_u32 s63, s63, {G_FL+2048}")
    a("s_add_u32 s64, s34, s63")
    a("s_addc_u32 s65, s35, 0")
    a("s_add_u32 s70, s72, 1024")
    if "p3st" in X: a.stamp(1)
    a("s_mov_b32 s71, 0")
    a("s_load_dwordx16 s[4:19], s[64:65], 0")
    a("s_load_dwordx8 s[20:27], s[34:35], s70")
    a("s_load_dword s68, s[64:65], 64")
    a("s_waitcnt lgkmcnt(0)")
    for r in range(4, 28):
        a(f"s_xor_b32 s{r}, s{r}, s52")
        a(f"s_or_b32 s71, s71, s{r}")
    a("s_load_dwordx16 s[4:19], s[64:65], 64")
    a("s_waitcnt lgkmcnt(0)")
    for r in range(4, 20):
        a(f"s_xor_b32 s{r}, s{r}, s52")
        a(f"s_or_b32 s71, s71, s{r}")
    a("s_cbranch_scc0 KA_PCD")
    a("v_and_b32 v9, 7, v1")
    a("v_lshlrev_b32 v9, 2, v9")
    a(f"s_mov_b32 s69, {SLOW_TRIES}")
    a("KA_PC:")
    a("s_sleep 32")
    a("buffer_load_dword v10, v157, s[44:47], s63 offen sc1")
    a("buffer_load_dword v11, v9, s[44:47], s70 offen sc1")
    a("s_waitcnt vmcnt(0)")
    a("v_cmp_ne_u32 vcc, s52, v10")
    a("v_cmp_ne_u32 s[4:5], s52, v11")
    a("s_or_b64 vcc, vcc, s[4:5]")
    a("s_cbranch_scc0 KA_PCD")
    a("s_sub_u32 s69, s69, 1")
    a("s_cbranch_scc0 KA_PC")
    a("KA_PCD:")
    if "p3st" in X: a.stamp(2)
    if "gat" in X:
        a("s_add_u32 s64, s34, s73")
        a("s_addc_u32 s65, s35, 0")
        for i in range(16): a(f"s_load_dwordx2 s[68:69], s[64:65], {4096*i+60}")
    D, DA, GA, DG = 112, 128, 32, 40
    a("s_lshl_b32 s58, s54, 11")
    a(f"s_add_u32 m0, s58, {L_GA}")
    a("s_add_u32 s63, s73, 31744")
    a("s_waitcnt vmcnt(0) lgkmcnt(0)")
    a(f"buffer_load_dwordx4 v{PD}, s[44:47], s73 offen sc1 lds")
    a(f"buffer_load_dwordx4 v{PD}, s[44:47], s63 offen offset:1024 sc1 lds")
    a(f"buffer_load_dwordx2 v[14:15], v{PG}, s[44:47], s75 offen sc1")
    dsig(f"s_add_u32 m0, s60, {S_WA-S_UA}")
    a("s_lshl_b32 s58, s61, 12")
    a("s_lshl_b32 s59, s56, 16")
    a("s_add_u32 s59, s59, s58")
    a(f"s_add_u32 s59, s59, {W2_O}")
    a("s_waitcnt vmcnt(0)")
    wait4(S_WA, nap=4)
    a(f"ds_read_b128 {vr(GA,4)}, v{PA}")
    a(f"ds_read_b128 {vr(GA+4,4)}, v{PA} offset:64")
    a("v_lshrrev_b32 v13, 16, v14")
    a("v_or_b32 v13, v13, v14")
    for k in range(8):
        a(f"v_and_b32 v{DG+k}, v13, v{PM+k}")
    a("s_waitcnt lgkmcnt(0)")
    a("s_nop 0")
    a(f"{MF} {vr(DA,16)}, {vr(GA,4)}, {vr(DG,4)}, 0")
    a(f"{MF} {vr(DA,16)}, {vr(GA+4,4)}, {vr(DG+4,4)}, {vr(DA,16)}")
    if "p3st" in X: a.stamp(3)
    if "wb" in X:
        a("s_lshl_b32 s63, s50, 2")
        a("s_add_u32 s63, s63, s54")
        a("s_cmp_lg_u32 s63, 0")
        a("s_cbranch_scc1 KA_NOWB")
        a("buffer_wbl2 sc1")
        a("KA_NOWB:")
    OB4, W0, W1, D2 = 48, 16, 32, 144
    a(f"v_mov_b32 v2, v{POUT}")
    a(f"v_mov_b32 v5, v{PWF}")
    a("s_lshl_b32 s63, s54, 12")
    a(f"s_add_u32 s64, s63, {L_GT}")
    a("v_add_u32 v6, s64, v4")
    a("s_xor_b32 s63, s63, 8192")
    a(f"s_add_u32 s64, s63, {L_GT}")
    a("v_add_u32 v11, s64, v4")
    a("s_lshl_b32 s63, s61, 2")
    a(f"v_add_u32 v14, s63, v{VSY}")
    for i in range(16):
        a(f"v_mov_b32 v{D+i}, 0")
        a(f"v_mov_b32 v{D2+i}, 0")
    a("s_lshl_b32 s4, 0x55, s62")
    a(f"s_mov_b32 s7, {LDS_SPIN}")
    wait(S_FIN, FINN, nap=8)
    if "p3st" in X: a.stamp(4)
    a("KA_OL:")
    a(f"ds_read_b32 v10, v{VSY} offset:{S_PO}")
    a("s_sub_u32 s7, s7, 1")
    a("s_cselect_b32 s6, 0xff, 0")
    a("s_waitcnt lgkmcnt(0)")
    a("v_readfirstlane_b32 s5, v10")
    a("s_or_b32 s5, s5, s6")
    a("s_and_b32 s5, s5, s4")
    a("s_cbranch_scc0 KA_OL")
    for k in range(4):
        a(f"s_ff1_i32_b32 s{8+k}, s5")
        a(f"s_lshl_b32 s63, s{8+k}, 13")
        a("s_add_u32 s63, s63, s59")
        for q in range(4): a(f"buffer_load_dwordx4 {vr(OB4+16*k+4*q,4)}, v4, s[44:47], s63 offen offset:{1024*q} sc1")
        a(f"s_bitset0_b32 s4, s{8+k}")
        a(f"s_bitset0_b32 s5, s{8+k}")
        if k < 3:
            a("s_cmp_eq_u32 s5, 0")
            a(f"s_cbranch_scc1 KA_OP{k+1}")
    def wadr(k):
        a(f"s_lshl_b32 s63, s{8+k}, 13")
        a("v_add_u32 v12, s63, v5")
        a("v_xor_b32 v13, 64, v12")
    def rdw(W, ad, q):
        a(f"ds_read_b64_tr_b16 {vr(W+4*q,2)}, v{ad} offset:{2048*q}")
        a(f"ds_read_b64_tr_b16 {vr(W+4*q+2,2)}, v{ad} offset:{2048*q+1024}")
    for n in (4, 3, 2, 1):
        a(f"KA_OP{n}:")
        wadr(0)
        for q in range(4): rdw(W1, 13, q)
        a("s_waitcnt lgkmcnt(4)")
        for q in range(4): rdw(W0, 12, q)
        for k in range(n):
            B = OB4 + 16 * k
            a(f"s_waitcnt vmcnt({4*(n-1-k)}) lgkmcnt(7)")
            if k + 1 < n: wadr(k + 1)
            for q in range(4):
                a(f"{MF} {vr(D2,16)}, {vr(W1+4*q,4)}, {vr(B+4*q,4)}, {vr(D2,16)}")
                if k + 1 < n: rdw(W1, 13, q)
            a("s_waitcnt lgkmcnt(%d)" % (7 if k + 1 < n else 0))
            for q in range(4):
                a(f"{MF} {vr(D,16)}, {vr(W0+4*q,4)}, {vr(B+4*q,4)}, {vr(D,16)}")
                if k + 1 < n: rdw(W0, 12, q)
        a("s_cmp_lg_u32 s4, 0")
        a("s_cbranch_scc1 KA_OL")
        if n > 1: a("s_branch KA_OD")
    a("KA_OD:")
    if "p3st" in X: a.stamp(6)
    a("s_nop 4")
    for i in range(4): a(f"ds_write_b128 v6, {vr(D2+4*i,4)} offset:{1024*i}")
    sig(S_FX, 14)
    for i in range(16): a(f"v_fmac_f32 v{DA+i}, v15, v{D+i}")
    wait(S_FX, 2, 14)
    for i in range(4): a(f"ds_read_b128 {vr(D2+4*i,4)}, v11 offset:{1024*i}")
    if "p3st" in X: a.stamp(7)
    for i in range(4):
        a(f"s_waitcnt lgkmcnt({3-i})")
        for j in range(4): a(f"v_fmac_f32 v{DA+4*i+j}, v15, v{D2+4*i+j}")
    for i in range(8): a(f"v_cvt_pk_bf16_f32 v{GA+i}, v{DA+2*i}, v{DA+2*i+1}")
    a("s_nop 1")
    a(f"v_permlane32_swap_b32 v{GA}, v{GA+2}")
    a(f"v_permlane32_swap_b32 v{GA+1}, v{GA+3}")
    a(f"v_permlane32_swap_b32 v{GA+4}, v{GA+6}")
    a(f"v_permlane32_swap_b32 v{GA+5}, v{GA+7}")
    a(f"buffer_store_dwordx4 {vr(GA,4)}, v2, s[40:43], s74 offen")
    a(f"buffer_store_dwordx4 {vr(GA+4,4)}, v2, s[40:43], s74 offen offset:32")
    a("KA_AUXEND:")
    a.end(0)
```

```python
from common import *
from ka import *

def gen_aux(a, sig, wait, wait4, lbl, X, gettag, mktag, publish, collect, dsig):
    import ka
    cmul = ka.cmul if "nopk" in X else ka.cmul_pk
    PSL = 1 if "ps1" in X else 8 if "ps8" in X else 3
    FINN = 4 if "f4" in X else 1 if "f1" in X else 8
    DATA_TRIES = 0 if "dt0" in X else 200
    st = (lambda i: None) if "p3st" in X else a.stamp
    a("KA_AUX:")
    a("s_and_b32 s61, s54, 1")
    a("s_lshr_b32 s62, s54, 1")
    a("s_mov_b32 s52, 0")
    srd(a, 44, 34, 35, W2_END)
    a("s_lshl_b32 s63, s2, 2")
    a("s_add_u32 s63, s63, s54")
    a("s_cmp_lg_u32 s63, 3")
    a("s_cbranch_scc1 KA_NOPUB")
    a("s_memrealtime s[64:65]")
    a("s_waitcnt lgkmcnt(0)")
    a("s_or_b32 s64, s64, 1")
    a("v_mov_b32 v158, 0")
    a("v_mov_b32 v159, s64")
    a("s_mov_b64 exec, 1")
    a("global_store_dword v158, v159, s[32:33] sc1")
    a("s_mov_b64 exec, -1")
    a("KA_NOPUB:")
    a("v_and_b32 v7, 31, v1")
    Z = 160
    a("v_and_b32 v36, 1, v1")
    a("v_lshlrev_b32 v36, 4, v36")
    a("v_mov_b32 v37, 0x3f80")
    a("v_lshlrev_b32 v36, v36, v37")
    a("v_bfe_u32 v37, v1, 1, 2")
    for d in range(4):
        a(f"v_cmp_eq_u32 s[{64+2*d}:{65+2*d}], {d}, v37")
    a("s_nop 0")
    for d in range(4):
        a(f"v_cndmask_b32 v{Z+d}, 0, v36, s[{64+2*d}:{65+2*d}]")
    a("s_lshl_b32 s63, s54, 11")
    a(f"s_add_u32 s63, s63, {L_XCH}")
    a("v_add_u32 v16, s63, v4")
    a(f"s_mul_i32 s63, s62, {KPROW}")
    a(f"s_add_u32 s63, s63, {L_KP}")
    a("v_lshl_add_u32 v19, v7, 4, s63")
    a("s_lshl_b32 s64, s62, 2")
    a(f"v_add_u32 v167, s64, v{VSY}")
    a("v_lshrrev_b32 v32, 2, v7")
    a("v_lshlrev_b32 v32, 3, v32")
    a("v_sub_u32 v33, 4128, v32")
    a("v_lshl_add_u32 v33, v3, 4, v33")
    a("v_and_b32 v32, 3, v7")
    a(f"v_mul_u32_u24 v32, {KPC}, v32")
    a("s_lshl_b32 s64, s61, 6")
    a("s_add_u32 s64, s64, s63")
    a(f"s_sub_u32 s64, s64, {127*32}")
    a("v_add3_u32 v38, v32, v33, s64")
    a("v_mul_u32_u24 v39, 144, v7")
    a("v_lshl_add_u32 v39, v3, 4, v39")
    a("s_lshl_b32 s64, s62, 6")
    a("s_mul_i32 s65, s61, 144")
    a("s_add_u32 s64, s64, s65")
    a(f"s_add_u32 s64, s64, {L_U}")
    a("v_add_u32 v39, s64, v39")
    a("s_lshl_b32 s64, s54, 6")
    for k, r in enumerate((2, 5, 6)):
        a("v_add_u32 v32, s64, v1")
        if k: a(f"v_add_u32 v32, {256*k}, v32")
        a("v_mul_u32_u24 v33, 7282, v32")
        a("v_lshrrev_b32 v33, 16, v33")
        a("v_mul_u32_u24 v34, 9, v33")
        a("v_sub_u32 v34, v32, v34")
        a("v_min_u32 v34, 7, v34")
        a("v_lshlrev_b32 v34, 4, v34")
        a(f"v_lshl_add_u32 v{r}, v33, 7, v34")
    a("s_lshl_b32 s74, s50, 13")
    a("s_add_u32 s74, s74, s51")
    a(f"s_add_u32 s74, s74, {G_UT}")
    a("s_lshl_b32 s75, s54, 10")
    a(f"s_add_u32 s75, s75, {L_U+31*144}")
    a("s_lshl_b32 s60, s54, 2")
    a(f"s_add_u32 s60, s60, {L_SY+S_UA}")
    a("s_lshl_b32 s58, s61, 12")
    a("s_sub_u32 s58, 2048, s58")
    a(f"s_mov_b32 s63, {hex(LOG2E_HI)}")
    a("s_waitcnt vmcnt(7)")
    a("v_mul_f32 v17, s63, v14")
    a("v_fma_f32 v18, v14, s63, -v17")
    a(f"v_fmac_f32 v18, {hex(LOG2E_LO)}, v14")
    a("v_exp_f32 v17, v17")
    a(f"v_mul_f32 v18, {hex(LN2)}, v18")
    a("v_fma_f32 v17, v17, v18, v17")
    a("v_cvt_pk_bf16_f32 v17, v17, v17")
    a("v_and_b32 v17, 0xffff0000, v17")
    a("s_waitcnt vmcnt(0)")
    st(1)
    for r in (8, 9, 10, 11):
        a(f"v_mul_f32 v{r}, v17, v{r}")
    a("v_mul_f32 v8, s63, v8")
    a("v_mul_f32 v9, 0.15915494, v9")
    W1, W8, W256, W2, W4, W16 = 20, 22, 24, 26, 28, 30
    tmp = 32
    for k, mult in enumerate((1.0, 8.0, 256.0)):
        t = tmp + 2 * k
        a(f"v_mul_f32 v{t}, {hex(f2u(mult))}, v8")
        a(f"v_mul_f32 v{t+1}, {hex(f2u(mult))}, v9")
    for k in range(3):
        t = tmp + 2 * k
        a(f"v_exp_f32 v{t}, v{t}")
        a(f"v_fract_f32 v{t+1}, v{t+1}")
    for k, wr in enumerate((W1, W8, W256)):
        t = tmp + 2 * k
        a(f"v_cos_f32 v{wr}, v{t+1}")
        a(f"v_sin_f32 v{wr+1}, v{t+1}")
    U = {}
    nxt = [40]
    def newU(av):
        U[av] = {524: 8, 780: 10}.get(av) or nxt[0]
        if U[av] == nxt[0]: nxt[0] += 2
        return U[av]
    for l in cmul(newU(0), 12, 10): a(l)
    for k, wr in enumerate((W1, W8, W256)):
        t = tmp + 2 * k
        a(f"v_mul_f32 v{wr}, v{t}, v{wr}")
        a(f"v_mul_f32 v{wr+1}, v{t}, v{wr+1}")
    for l in interleave([cmul(W2, W1, W1), cmul(W16, W8, W8)]): a(l)
    for l in cmul(W4, W2, W2): a(l)
    WA, WB, WR, WI, UR, UI = 96, 100, 112, 128, 144, 96
    wops = [f"v_cvt_pk_bf16_f32 v{WR+15}, v{W8}, 1.0", f"v_cvt_pk_bf16_f32 v{WI+15}, v{W8+1}, 0"]
    ca, cb = W16, None
    wops += cmul(WB, W8, W16); cb = WB
    for k in range(1, 16):
        pk = [f"v_cvt_pk_bf16_f32 v{WR+15-k}, v{cb}, v{ca}", f"v_cvt_pk_bf16_f32 v{WI+15-k}, v{cb+1}, v{ca+1}"]
        if k < 15:
            na, nb = WA + 2 * (k & 1), WB + 2 * (k & 1)
            wops += interleave([cmul(na, ca, W16), cmul(nb, cb, W16), pk])
            ca, cb = na, nb
        else:
            wops += pk
    u1 = []; prev = 0
    for av in (256, 512, 768, 1024, 1280, 1536, 1792):
        u1 += cmul(newU(av), U[prev], W256); prev = av
    for av in (1024, 1280, 1536, 1792):
        u1 += cmul(newU(av + 8), U[av], W8)
    for av in (516, 520, 524):
        u1 += cmul(newU(av), U[av - 4], W4)
    u2 = []
    for av in range(1, 9):
        u2 += cmul(newU(av), U[av - 1], W1)
    for av in (258, 260, 262, 264):
        u2 += cmul(newU(av), U[av - 2], W2)
    for av in (772, 776, 780):
        u2 += cmul(newU(av), U[av - 4], W4)
    assert nxt[0] <= 96
    for l in interleave([wops, interleave([u1, u2])]): a(l)
    rows = [0,1,2,3,4,5,6,7, 256,258,260,4,260,262,264,8, 512,516,520,524,768,772,776,780,
            1024,1032,1280,1288,1536,1544,1792,1800]
    for p in range(16):
        x, y = U[rows[2*p]], U[rows[2*p+1]]
        a(f"v_cvt_pk_bf16_f32 v{UR+p}, v{x}, v{y}")
        a(f"v_cvt_pk_bf16_f32 v{UI+p}, -v{x+1}, -v{y+1}")
    TD, ES, KD = 40, 88, 20
    nb = [0]
    def bar(n=1):
        for _ in range(n):
            a("s_barrier"); nb[0] += 1
    for q in range(2):
        a(f"s_mov_b32 s64, {hex(0xff << (8*q))}")
        a(f"s_mov_b32 s65, {hex(0xff0000 << (8*q))}")
        for d in range(4):
            a(f"v_cndmask_b32 v{ES+4*q+d}, 0, v{Z+d}, s[64:65]")
    a("s_load_dword s52, s[32:33], 0")
    halves = [Xm + 8 * hf for Xm in (WR, UR, WI, UI) for hf in range(2)]
    def tm(i):
        T = TD + 16 * (i % 3)
        return [f"{MF} {vr(T,16)}, {vr(halves[i],4)}, {vr(ES,4)}, 0", f"{MF} {vr(T,16)}, {vr(halves[i]+4,4)}, {vr(ES+4,4)}, {vr(T,16)}"]
    def tc(i):
        T = TD + 16 * (i % 3)
        return [f"v_cvt_pk_bf16_f32 v{halves[i]+k}, v{T+2*k}, v{T+2*k+1}" for k in range(8)]
    def ts(Xm): return [f"v_permlane16_swap_b32 v{Xm+k}, v{Xm+8+k}" for k in range(8)]
    def fin(XU, XW, first): return [f"{MF} {vr(KD,16)}, {vr(XU+4*i,4)}, {vr(XW+4*i,4)}, " + ("0" if first and i == 0 else vr(KD,16)) for i in range(4)]
    def mixm(m, v):
        n = (len(v) + len(m) - 1) // len(m)
        for i, t in enumerate(m):
            a(t)
            for u in v[i*n:(i+1)*n]: a(u)
    a("s_nop 0")
    for t in tm(0) + tm(1) + tm(2): a(t)
    a("s_nop 7")
    for t in tc(0): a(t)
    mixm(tm(3), ["s_nop 0"] + tc(1))
    mixm(tm(4), tc(2) + ts(WR))
    mixm(tm(5), tc(3))
    mixm(tm(6), tc(4) + ts(UR))
    mixm(tm(7), tc(5))
    mixm(fin(UR, WR, True), tc(6) + ts(WI) + tc(7))
    a("s_nop 1")
    for t in ts(UI): a(t)
    a("s_nop 1")
    for t in fin(UI, WI, False): a(t)
    NPRE = 4
    a("v_lshlrev_b32 v157, 2, v7")
    a("v_lshlrev_b32 v156, 2, s50")
    a("v_mov_b32 v154, 0x7ffffff0")
    a("v_add_u32 v17, s58, v16")
    a("s_cmp_eq_u32 s61, s62")
    a("s_nop 6")
    a("s_cbranch_scc1 KA_X0")
    for i in range(8): a(f"v_swap_b32 v{KD+i}, v{KD+8+i}")
    a("KA_X0:")
    a(f"ds_write_b128 v16, {vr(KD+8,4)}")
    a(f"ds_write_b128 v16, {vr(KD+12,4)} offset:1024")
    if "xw" in X: a("s_waitcnt lgkmcnt(0)")
    if NPRE == 4: st(2)
    bar(4 - nb[0])
    gettag()
    mktag(0)
    a("s_cmp_lg_u32 s54, 0")
    a("s_cbranch_scc1 KA_NPB")
    publish()
    a("KA_NPB:")
    bar()
    D0, D1, FA, FB, FC = 112, 128, 48, 64, 80
    PW, PG, PA, PF, POF, PWF, POUT, PM, PS, PD = 144, 148, 149, 150, 151, 152, 153, 100, 108, 109
    w = ["v_lshrrev_b32 v8, 3, v1", "v_bfe_u32 v9, v1, 4, 1", "v_lshlrev_b32 v9, 2, v9", "v_and_b32 v10, 7, v1", "v_xor_b32 v9, v9, v10",
         "v_lshlrev_b32 v9, 4, v9", f"v_lshl_add_u32 v{PW}, v8, 10, v9"] + [f"v_add_u32 v{PW+q}, {7168*q}, v{PW}" for q in range(1, 4)]
    w += [f"v_lshlrev_b32 v{PF}, 7, v10", f"v_lshlrev_b32 v{PG}, 3, v7", f"v_lshlrev_b32 v{PD}, 12, v8", f"v_lshl_add_u32 v{PD}, v10, 4, v{PD}",
          "s_lshl_b32 s63, s62, 12", "s_lshl_b32 s64, s61, 4", "s_add_u32 s63, s63, s64", f"s_add_u32 s63, s63, {L_GA}",
          f"v_lshl_add_u32 v{PA}, v7, 7, s63", f"v_lshl_add_u32 v{PA}, v3, 5, v{PA}",
          f"v_lshlrev_b32 v{POUT}, 10, v7", f"v_lshl_add_u32 v{POUT}, v3, 4, v{POUT}",
          "s_lshl_b32 s63, s54, 11", f"s_add_u32 s63, s63, {L_GT}", f"v_add_u32 v{POF}, s63, v4",
          "v_lshrrev_b32 v8, 1, v7", f"v_lshl_add_u32 v{PS}, v8, 7, s63", f"v_lshl_add_u32 v{PS}, v3, 5, v{PS}", "v_and_b32 v8, 1, v7", f"v_lshl_add_u32 v{PS}, v8, 4, v{PS}",
          "v_bfe_u32 v8, v1, 2, 2", f"v_lshl_add_u32 v{PWF}, v3, 2, v8", f"v_lshlrev_b32 v{PWF}, 7, v{PWF}", "v_lshrrev_b32 v8, 1, v8", "v_xor_b32 v8, s62, v8",
          f"v_lshl_add_u32 v{PWF}, v8, 6, v{PWF}", "v_bfe_u32 v8, v1, 4, 1", f"v_lshl_add_u32 v{PWF}, v8, 5, v{PWF}", "v_and_b32 v8, 3, v1",
          f"v_lshl_add_u32 v{PWF}, v8, 3, v{PWF}", f"v_add_u32 v{PWF}, {L_WO}, v{PWF}"]
    w += ["v_lshrrev_b32 v8, 3, v7", "v_bfe_u32 v9, v7, 1, 1", "v_lshl_add_u32 v8, v8, 1, v9", "v_bfe_u32 v9, v7, 2, 1", "v_xor_b32 v9, v9, v3",
          "v_lshl_add_u32 v8, v9, 3, v8", "v_and_b32 v9, 1, v7", "v_lshlrev_b32 v9, 4, v9", "v_mov_b32 v10, 0xffff", "v_lshlrev_b32 v9, v9, v10"]
    w += [f"v_cmp_eq_u32 s[{4+2*k}:{5+2*k}], {k}, v8" for k in range(8)] + ["s_nop 0"]
    w += [f"v_cndmask_b32 v{PM+k}, 0, v9, s[{4+2*k}:{5+2*k}]" for k in range(8)]
    n = (len(w) + 3) // 4
    for k in range(3):
        bar()
        for t in w[k*n:(k+1)*n]: a(t)
    a("s_waitcnt lgkmcnt(0)")
    bar()
    a(f"ds_read_b128 {vr(KD+8,4)}, v17")
    a(f"ds_read_b128 {vr(KD+12,4)}, v17 offset:1024")
    for t in w[3*n:]: a(t)
    bar()
    a("buffer_load_dword v158, v157, s[44:47], s67 offen sc1")
    a("s_waitcnt lgkmcnt(0)")
    for i in range(8):
        a(f"v_add_f32 v{KD+i}, v{KD+i}, v{KD+8+i}")
    def uload():
        l = lbl("UL")
        a("s_mov_b32 m0, s75")
        a("s_cmp_lg_u32 s54, 0")
        a("buffer_load_dwordx4 v2, s[44:47], s74 offen" + (" nt" if "ntu" in X else "") + " lds")
        a(f"s_cbranch_scc1 {l}")
        a("s_add_u32 m0, s75, 8192")
        a("s_nop 0")
        a("buffer_load_dwordx4 v6, s[44:47], s74 offen" + (" nt" if "ntu" in X else "") + " lds")
        a(f"{l}:")
        a("s_add_u32 m0, s75, 4096")
        a("s_nop 0")
        a("buffer_load_dwordx4 v5, s[44:47], s74 offen" + (" nt" if "ntu" in X else "") + " lds")
        dsig("s_mov_b32 m0, s60")
    def tail(work):
        l = lbl("UE")
        n = (len(work) + 4) // 5
        parts = [work[i*n:(i+1)*n] for i in range(5)]
        a("s_barrier")
        for t in parts[0]: a(t)
        a("s_barrier")
        for t in parts[1]: a(t)
        a("s_barrier")
        a("s_waitcnt vmcnt(0)")
        a("v_cmp_ne_u32 vcc, s66, v158")
        a("s_mov_b32 s59, 1")
        a(f"s_cbranch_vccnz {l}")
        a("s_mov_b32 s59, 0")
        uload()
        a(f"{l}:")
        a("s_barrier")
        for t in parts[2]: a(t)
        a("s_barrier")
        for t in parts[3]: a(t)
        a("v_mov_b32 v12, s52")
        a("s_barrier")
        a(f"ds_write_b32 v{VSY}, v12 offset:{S_NONCE}")
        st(3)
        return parts[4]
    assert nb[0] == 10
    a("s_cmp_eq_u32 s61, s62")
    a("s_cbranch_scc0 KA_X1")
    rest = tail(["v_cmp_eq_u32 s[72:73], 31, v1", "v_lshlrev_b32 v8, 3, v3", "v_xor_b32 v8, 8, v8",
          "v_cndmask_b32 v9, 0, v15, s[72:73]", "v_add_u32 v18, v19, v8", f"v_add_f32 v{KD}, v{KD}, v9",
          f"v_add_u32 v36, {KPC+4+3072}, v18", f"v_add_u32 v37, {2*KPC+4+3072}, v18",
          f"v_cvt_pk_bf16_f32 v40, v{KD+3}, v{KD+2}", f"v_cvt_pk_bf16_f32 v41, v{KD+1}, v{KD+0}",
          f"v_cvt_pk_bf16_f32 v42, v{KD+6}, v{KD+5}", f"v_cvt_pk_bf16_f32 v43, v{KD+4}, v{KD+4}",
          f"v_cvt_pk_bf16_f32 v44, v{KD+7}, v{KD+3}", f"v_cvt_pk_bf16_f32 v45, v{KD+2}, v{KD+1}",
          f"v_cvt_pk_bf16_f32 v46, v{KD+6}, v{KD+6}", f"v_cvt_pk_bf16_f32 v47, v{KD+5}, v{KD+4}",
          "v_lshrrev_b32 v9, 16, v41"])
    for t in rest: a(t)
    a("ds_write_b64 v18, v[44:45] offset:3584")
    a("ds_write_b64 v18, v[46:47] offset:3072")
    a("ds_write2_b32 v36, v40, v41 offset0:128 offset1:129")
    a("ds_write2_b32 v36, v42, v43 offset0:0 offset1:1")
    a("ds_write2_b32 v37, v44, v45 offset0:128 offset1:129")
    a("ds_write2_b32 v37, v46, v47 offset0:0 offset1:1")
    a(f"ds_write_b64 v18, v[40:41] offset:{3*KPC+8+3584}")
    a(f"ds_write_b64 v18, v[42:43] offset:{3*KPC+8+3072}")
    a("s_mov_b64 exec, s[72:73]")
    a("ds_write_b32 v18, v9 offset:3592")
    a("ds_write_b32 v37, v9 offset:520")
    a("s_mov_b64 exec, -1")
    a("s_branch KA_XD")
    a("KA_X1:")
    r8, r9, r10, r11, r12, r13, r14, r15 = [KD + i for i in range(8)]
    V4 = [r8]*3 + [r9]*3 + [r10]*5 + [r11]
    V8a = [r12]*4 + [36] + [r13]*7
    V8b = [r14]*4 + [37] + [r15]*7
    w = ["v_and_b32 v8, 1, v1", "v_cmp_eq_u32 s[72:73], 1, v8", "v_cmp_eq_u32 s[70:71], 32, v1", "v_lshlrev_b32 v8, 9, v3", "v_sub_u32 v19, v19, v8", "v_sub_u32 v18, v19, v8",
         f"v_cndmask_b32 v36, v{r13}, v{r12}, s[72:73]", f"v_cndmask_b32 v37, v{r15}, v{r14}, s[72:73]", f"v_cndmask_b32 v{r11}, v{r11}, v{r10}, s[70:71]",
         f"v_cvt_pk_bf16_f32 v8, v{r9}, v{r8}", f"v_cvt_pk_bf16_f32 v9, v{r8}, v{r8}"]
    wr = []
    for c in range(4):
        for gi, (V, ad, off) in enumerate(((V8b, 18, 1024), (V8a, 18, 1536), (V4, 19, 2560))):
            R = 40 + 12 * c + 4 * gi
            w += [f"v_cvt_pk_bf16_f32 v{R+d}, v{V[8+c-2*d]}, v{V[7+c-2*d]}" for d in range(4)]
            wr.append(f"ds_write_b128 v{ad}, {vr(R,4)} offset:{c*KPC+off}")
    rest = tail(w)
    for t in interleave([wr[:9], rest]) + wr[9:]: a(t)
    a("s_mov_b32 exec_lo, 0x80000000\ns_mov_b32 exec_hi, 0")
    a(f"ds_write_b32 v19, v9 offset:{KPC+2560+16}")
    a(f"ds_write_b32 v19, v9 offset:{2*KPC+2560+16}")
    a(f"ds_write_b64 v19, v[8:9] offset:{3*KPC+2560+16}")
    a("s_mov_b64 exec, -1")
    a("KA_XD:")
    sig(S_UDONE)
    for i in range(32): a(f"v_mov_b32 v{D0+i}, 0")
    st(4)
    a("s_cmp_eq_u32 s59, 0")
    a("s_cbranch_scc1 KA_UOK")
    collect(False, "s_cmp_eq_u32 s54, 0")
    uload()
    a("KA_UOK:")
    wait(S_UDONE, 5)
    st(5)
    wait4(S_UA)
    st(6)
    if "noaux" in X: a("s_branch KA_AUXEND")
    def rdA(slot, step, w=False):
        o = 128 * (step >> 1) + 32 * (step & 1)
        a(f"ds_read_b64 {vr(FA+4*slot,2)}, v38 offset:{o}")
        if w: a("s_waitcnt lgkmcnt(0)")
        a(f"ds_read_b64 {vr(FA+4*slot+2,2)}, v38 offset:{o+8}")
    def rdB(R, slot, step, extra=0):
        a(f"ds_read_b128 {vr(R+4*slot,4)}, v39 offset:{288*(step>>1)+32*(step&1)+extra}")
    def loop(lab, nxt, near, paced):
        a(f"{lab}:")
        if not paced: a(f"ds_read_b32 v{VTMP}, v{VSY} offset:{S_GO}")
        for s in range(4):
            n = (11 if near else 9) - (1 if near and s == 0 else 0)
            a("s_waitcnt lgkmcnt(%d)" % (0 if paced else n))
            a(f"{MF} {vr(D1,16)}, {vr(FA+4*s,4)}, {vr(FB+4*s,4)}, {vr(D1,16)}")
            if near:
                rdB(FB, s, s + 4, 32 * 144)
                if paced: a("s_waitcnt lgkmcnt(0)")
                if paced and "slow2" in X:
                    rdB(FB, s, s + 4, 32 * 144); a("s_waitcnt lgkmcnt(0)")
                a(f"{MF} {vr(D0,16)}, {vr(FA+4*s,4)}, {vr(FC+4*s,4)}, {vr(D0,16)}")
                rdA(s, s + 4, paced and "slow3" in X)
                if paced and "slow" in X: a("s_waitcnt lgkmcnt(0)")
                rdB(FC, s, s + 4)
            else:
                rdA(s, s + 4)
                if paced and "slow" in X: a("s_waitcnt lgkmcnt(0)")
                rdB(FB, s, s + 4)
        a("v_add_u32 v38, 256, v38")
        a(f"v_add_u32 v39, {288*2}, v39")
        if not paced: a(f"v_readfirstlane_b32 s76, v{VTMP}")
        a("s_sub_u32 s63, s63, 1")
        a("s_cmp_lg_u32 s63, 0")
        if not paced:
            a(f"s_cbranch_scc0 {nxt}")
            a("s_cmp_eq_u32 s76, 0")
        a(f"s_cbranch_scc1 {lab}")
    for s in range(4): rdA(s, s); rdB(FB, s, s)
    a("s_mov_b32 s63, 8")
    loop("KA_CV1", "KA_CVM", False, False)
    loop("KA_CV1P", None, False, True)
    a("KA_CVM:")
    a(f"v_subrev_u32 v39, {32*144}, v39")
    a("s_waitcnt lgkmcnt(9)")
    for s in range(4): rdB(FC, s, s)
    a("s_waitcnt lgkmcnt(0)")
    a("s_mov_b32 s63, 8")
    a("s_cmp_lg_u32 s76, 0")
    a("s_cbranch_scc1 KA_CV2P")
    loop("KA_CV2", "KA_CVE", True, False)
    loop("KA_CV2P", None, True, True)
    a("KA_CVE:")
    st(7)
    a("s_lshl_b32 s63, s54, 12")
    a(f"s_add_u32 s63, s63, {L_CX}")
    a("v_add_u32 v13, s63, v4")
    a("v_xor_b32 v14, 4096, v13")
    wait(S_QRDY, 4)
    a("s_cmp_eq_u32 s61, 0")
    a("s_cbranch_scc0 KA_CVS")
    for i in range(4): a(f"ds_write_b128 v13, {vr(D1+4*i,4)} offset:{1024*i}")
    sig(S_CV, 167)
    wait(S_CV, 2, 167, nap=1)
    for i in range(4): a(f"ds_read_b128 {vr(D1+4*i,4)}, v14 offset:{1024*i}")
    a("s_branch KA_CVJ")
    a("KA_CVS:")
    for i in range(4): a(f"ds_write_b128 v13, {vr(D0+4*i,4)} offset:{1024*i}")
    sig(S_CV, 167)
    wait(S_CV, 2, 167, nap=1)
    for i in range(4): a(f"ds_read_b128 {vr(D0+4*i,4)}, v14 offset:{1024*i}")
    a("KA_CVJ:")
    a("s_lshl_b32 s56, s49, 2")
    a("s_and_b32 s57, s50, 3")
    a("s_add_u32 s56, s56, s57")
    a("s_lshr_b32 s57, s50, 2")
    a("s_lshl_b32 s72, s56, 11")
    a(f"s_add_u32 s72, s72, {W2_FO}")
    a("s_lshl_b32 s65, s56, 1")
    a("s_add_u32 s65, s65, s61")
    a("s_lshl_b32 s63, s57, 1")
    a("s_add_u32 s63, s63, s62")
    a("s_lshl_b32 s74, s63, 6")
    a("s_lshl_b32 s64, s65, 15")
    a("s_add_u32 s74, s74, s64")
    a("s_lshl_b32 s73, s57, 18")
    a("s_lshl_b32 s64, s54, 16")
    a("s_add_u32 s73, s73, s64")
    a("s_lshl_b32 s64, s56, 7")
    a("s_add_u32 s73, s73, s64")
    a(f"s_add_u32 s73, s73, {W2_GA}")
    a("s_lshl_b32 s75, s65, 8")
    a(f"s_add_u32 s75, s75, {W2_G}")
    a("v_mov_b32 v155, s52")
    a("s_lshl_b32 s63, s55, 13")
    a("s_lshl_b32 s64, s54, 11")
    a("s_add_u32 s63, s63, s64")
    a(f"s_add_u32 s63, s63, {W2_GA}")
    a("s_waitcnt lgkmcnt(0)")
    sig(S_CD)
    for i in range(16): a(f"v_add_f32 v{D0+i}, v{D0+i}, v{D1+i}")
    for i in range(8): a(f"v_cvt_pk_bf16_f32 v{64+i}, v{D0+2*i}, v{D0+2*i+1}")
    a(f"ds_write_b128 v{PS}, v[64:67]")
    a(f"ds_write_b128 v{PS}, v[68:71] offset:64")
    a(f"ds_read_b128 v[64:67], v{POF}")
    a(f"ds_read_b128 v[68:71], v{POF} offset:1024")
    a("s_waitcnt lgkmcnt(0)")
    a("buffer_store_dwordx4 v[64:67], v4, s[44:47], s63 offen sc1")
    a("buffer_store_dwordx4 v[68:71], v4, s[44:47], s63 offen offset:1024 sc1")
    if "nop3" in X: a("s_branch KA_AUXEND")
    a("s_lshl_b32 s63, s50, 11")
    a(f"s_add_u32 s71, s63, {W2_FO}")
    a("s_lshl_b32 s70, s49, 7")
    a("s_add_u32 s63, s71, s70")
    a("s_load_dword s68, s[34:35], s63")
    srd(a, 36, 26, 27, 512 * 512 * 2)
    srd(a, 40, 30, 31, 2048 * 512 * 2)
    a("v_lshlrev_b32 v12, 2, s49")
    wait(S_CD, 5, nap=4)
    a("s_waitcnt vmcnt(0)")
    a("s_mov_b64 exec, 1")
    a(f"ds_add_rtn_u32 v{VTMP}, v{VSY}, v{VONE} offset:{S_PC}")
    a("s_waitcnt lgkmcnt(0)")
    a(f"v_readfirstlane_b32 s76, v{VTMP}")
    a("s_cmp_lg_u32 s76, 3")
    a("s_cbranch_scc1 KA_NCL")
    a("buffer_store_dword v155, v156, s[44:47], s67 offen offset:2048 sc1")
    a("buffer_store_dword v155, v12, s[44:47], s71 offen offset:1024 sc1")
    a("KA_NCL:")
    a("s_mov_b64 exec, -1")
    a("s_lshl_b32 s58, s54, 12")
    a(f"s_add_u32 s58, s58, {L_WO}")
    a("s_lshl_b32 s59, s54, 15")
    a("s_lshl_b32 s63, s57, 7")
    a("s_add_u32 s59, s59, s63")
    for c in range(4):
        a(f"s_add_u32 m0, s58, {16384*c}")
        a(f"s_add_u32 s63, s59, {131072*c}")
        for q in range(4):
            a(f"buffer_load_dwordx4 v{PW+q}, s[36:39], s63 offen offset:{1024*q} lds")
        a("s_waitcnt vmcnt(0)")
    a("s_xor_b32 s63, s57, 4")
    a(f"s_mul_i32 s63, s63, {GRS}")
    a(f"s_add_u32 s63, s63, {G_FL+2048}")
    a("s_add_u32 s64, s34, s63")
    a("s_addc_u32 s65, s35, 0")
    a("s_add_u32 s70, s72, 1024")
    if "p3st" in X: a.stamp(1)
    a("s_mov_b32 s71, 0")
    a("s_load_dwordx16 s[4:19], s[64:65], 0")
    a("s_load_dwordx8 s[20:27], s[34:35], s70")
    a("s_load_dword s68, s[64:65], 64")
    a("s_waitcnt lgkmcnt(0)")
    for r in range(4, 28):
        a(f"s_xor_b32 s{r}, s{r}, s52")
        a(f"s_or_b32 s71, s71, s{r}")
    a("s_load_dwordx16 s[4:19], s[64:65], 64")
    a("s_waitcnt lgkmcnt(0)")
    for r in range(4, 20):
        a(f"s_xor_b32 s{r}, s{r}, s52")
        a(f"s_or_b32 s71, s71, s{r}")
    a("s_cbranch_scc0 KA_PCD")
    a("v_and_b32 v9, 7, v1")
    a("v_lshlrev_b32 v9, 2, v9")
    a(f"s_mov_b32 s69, {SLOW_TRIES}")
    a("KA_PC:")
    a("s_sleep 32")
    a("buffer_load_dword v10, v157, s[44:47], s63 offen sc1")
    a("buffer_load_dword v11, v9, s[44:47], s70 offen sc1")
    a("s_waitcnt vmcnt(0)")
    a("v_cmp_ne_u32 vcc, s52, v10")
    a("v_cmp_ne_u32 s[4:5], s52, v11")
    a("s_or_b64 vcc, vcc, s[4:5]")
    a("s_cbranch_scc0 KA_PCD")
    a("s_sub_u32 s69, s69, 1")
    a("s_cbranch_scc0 KA_PC")
    a("KA_PCD:")
    if "p3st" in X: a.stamp(2)
    if "gat" in X:
        a("s_add_u32 s64, s34, s73")
        a("s_addc_u32 s65, s35, 0")
        for i in range(16): a(f"s_load_dwordx2 s[68:69], s[64:65], {4096*i+60}")
    D, DA, GA, DG = 112, 128, 32, 40
    a("s_lshl_b32 s58, s54, 11")
    a(f"s_add_u32 m0, s58, {L_GA}")
    a("s_add_u32 s63, s73, 31744")
    a("s_waitcnt vmcnt(0) lgkmcnt(0)")
    a(f"buffer_load_dwordx4 v{PD}, s[44:47], s73 offen sc1 lds")
    a(f"buffer_load_dwordx4 v{PD}, s[44:47], s63 offen offset:1024 sc1 lds")
    a(f"buffer_load_dwordx2 v[14:15], v{PG}, s[44:47], s75 offen sc1")
    dsig(f"s_add_u32 m0, s60, {S_WA-S_UA}")
    a("s_lshl_b32 s58, s61, 12")
    a("s_lshl_b32 s59, s56, 16")
    a("s_add_u32 s59, s59, s58")
    a(f"s_add_u32 s59, s59, {W2_O}")
    a("s_waitcnt vmcnt(0)")
    wait4(S_WA, nap=4)
    a(f"ds_read_b128 {vr(GA,4)}, v{PA}")
    a(f"ds_read_b128 {vr(GA+4,4)}, v{PA} offset:64")
    a("v_lshrrev_b32 v13, 16, v14")
    a("v_or_b32 v13, v13, v14")
    for k in range(8):
        a(f"v_and_b32 v{DG+k}, v13, v{PM+k}")
    a("s_waitcnt lgkmcnt(0)")
    a("s_nop 0")
    a(f"{MF} {vr(DA,16)}, {vr(GA,4)}, {vr(DG,4)}, 0")
    a(f"{MF} {vr(DA,16)}, {vr(GA+4,4)}, {vr(DG+4,4)}, {vr(DA,16)}")
    if "p3st" in X: a.stamp(3)
    if "wb" in X:
        a("s_lshl_b32 s63, s50, 2")
        a("s_add_u32 s63, s63, s54")
        a("s_cmp_lg_u32 s63, 0")
        a("s_cbranch_scc1 KA_NOWB")
        a("buffer_wbl2 sc1")
        a("KA_NOWB:")
    OB4, W0, W1, D2 = 48, 16, 32, 144
    a(f"v_mov_b32 v2, v{POUT}")
    a(f"v_mov_b32 v5, v{PWF}")
    a("s_lshl_b32 s63, s54, 12")
    a(f"s_add_u32 s64, s63, {L_GT}")
    a("v_add_u32 v6, s64, v4")
    a("s_xor_b32 s63, s63, 8192")
    a(f"s_add_u32 s64, s63, {L_GT}")
    a("v_add_u32 v11, s64, v4")
    a("s_lshl_b32 s63, s61, 2")
    a(f"v_add_u32 v14, s63, v{VSY}")
    for i in range(16):
        a(f"v_mov_b32 v{D+i}, 0")
        a(f"v_mov_b32 v{D2+i}, 0")
    a("s_lshl_b32 s4, 0x55, s62")
    a(f"s_mov_b32 s7, {LDS_SPIN}")
    wait(S_FIN, FINN, nap=8)
    if "p3st" in X: a.stamp(4)
    a("KA_OL:")
    a(f"ds_read_b32 v10, v{VSY} offset:{S_PO}")
    a("s_sub_u32 s7, s7, 1")
    a("s_cselect_b32 s6, 0xff, 0")
    a("s_waitcnt lgkmcnt(0)")
    a("v_readfirstlane_b32 s5, v10")
    a("s_or_b32 s5, s5, s6")
    a("s_and_b32 s5, s5, s4")
    a("s_cbranch_scc0 KA_OL")
    for k in range(4):
        a(f"s_ff1_i32_b32 s{8+k}, s5")
        a(f"s_lshl_b32 s63, s{8+k}, 13")
        a("s_add_u32 s63, s63, s59")
        for q in range(4): a(f"buffer_load_dwordx4 {vr(OB4+16*k+4*q,4)}, v4, s[44:47], s63 offen offset:{1024*q} sc1")
        a(f"s_bitset0_b32 s4, s{8+k}")
        a(f"s_bitset0_b32 s5, s{8+k}")
        if k < 3:
            a("s_cmp_eq_u32 s5, 0")
            a(f"s_cbranch_scc1 KA_OP{k+1}")
    def wadr(k):
        a(f"s_lshl_b32 s63, s{8+k}, 13")
        a("v_add_u32 v12, s63, v5")
        a("v_xor_b32 v13, 64, v12")
    def rdw(W, ad, q):
        a(f"ds_read_b64_tr_b16 {vr(W+4*q,2)}, v{ad} offset:{2048*q}")
        a(f"ds_read_b64_tr_b16 {vr(W+4*q+2,2)}, v{ad} offset:{2048*q+1024}")
    for n in (4, 3, 2, 1):
        a(f"KA_OP{n}:")
        wadr(0)
        for q in range(4): rdw(W1, 13, q)
        a("s_waitcnt lgkmcnt(4)")
        for q in range(4): rdw(W0, 12, q)
        for k in range(n):
            B = OB4 + 16 * k
            a(f"s_waitcnt vmcnt({4*(n-1-k)}) lgkmcnt(7)")
            if k + 1 < n: wadr(k + 1)
            for q in range(4):
                a(f"{MF} {vr(D2,16)}, {vr(W1+4*q,4)}, {vr(B+4*q,4)}, {vr(D2,16)}")
                if k + 1 < n: rdw(W1, 13, q)
            a("s_waitcnt lgkmcnt(%d)" % (7 if k + 1 < n else 0))
            for q in range(4):
                a(f"{MF} {vr(D,16)}, {vr(W0+4*q,4)}, {vr(B+4*q,4)}, {vr(D,16)}")
                if k + 1 < n: rdw(W0, 12, q)
        a("s_cmp_lg_u32 s4, 0")
        a("s_cbranch_scc1 KA_OL")
        if n > 1: a("s_branch KA_OD")
    a("KA_OD:")
    if "p3st" in X: a.stamp(6)
    a("s_nop 4")
    for i in range(4): a(f"ds_write_b128 v6, {vr(D2+4*i,4)} offset:{1024*i}")
    sig(S_FX, 14)
    for i in range(16): a(f"v_fmac_f32 v{DA+i}, v15, v{D+i}")
    wait(S_FX, 2, 14)
    for i in range(4): a(f"ds_read_b128 {vr(D2+4*i,4)}, v11 offset:{1024*i}")
    if "p3st" in X: a.stamp(7)
    for i in range(4):
        a(f"s_waitcnt lgkmcnt({3-i})")
        for j in range(4): a(f"v_fmac_f32 v{DA+4*i+j}, v15, v{D2+4*i+j}")
    for i in range(8): a(f"v_cvt_pk_bf16_f32 v{GA+i}, v{DA+2*i}, v{DA+2*i+1}")
    a("s_nop 1")
    a(f"v_permlane32_swap_b32 v{GA}, v{GA+2}")
    a(f"v_permlane32_swap_b32 v{GA+1}, v{GA+3}")
    a(f"v_permlane32_swap_b32 v{GA+4}, v{GA+6}")
    a(f"v_permlane32_swap_b32 v{GA+5}, v{GA+7}")
    a(f"buffer_store_dwordx4 {vr(GA,4)}, v2, s[40:43], s74 offen")
    a(f"buffer_store_dwordx4 {vr(GA+4,4)}, v2, s[40:43], s74 offen offset:32")
    a("KA_AUXEND:")
    a.end(0)
```

```python
from common import *
import math, struct
LOG2E = 1.4426950408889634
LOG2E_HI = f2u(LOG2E)
_hi = struct.unpack("<f", struct.pack("<I", LOG2E_HI))[0]
LOG2E_LO = f2u(LOG2E - _hi)
LN2 = f2u(math.log(2.0))
QSCALE = f2u(0.25 * LOG2E)
MF = "v_mfma_f32_32x32x16_bf16"

L_X, L_W = 0, 65536
NSLOT = 6
L_OX = 0
L_Q = 114688
L_WO, L_GA, L_GT = 24576, 90112, 98304
L_CX = 73728
L_KP, KPC = 18688, 8384
L_U = 139264
L_XCH = 153600
L_GW = 161792
L_SY = 162816
KA_LDS = 163840
S_UA, S_WA, S_OA = 0, 16, 32
S_WB, S_UDONE, S_QRDY, S_NONCE, S_CV, S_OX, S_CD, S_FIN, S_PO, S_PC, S_OD, S_GO, S_FX, S_DONE, S_KN, S_KF = 96, 100, 104, 108, 112, 128, 144, 148, 152, 156, 160, 164, 168, 176, 180, 188
VSY, VONE, VTMP, VT4 = 164, 165, 166, 160
UNR = 4
PRIO1, PRIO0, WBIT, NEARLY = 6, 7, 4, 3
LDS_SPIN = 1 << 20
FAST_TRIES = 64
SLOW_TRIES = 20000

def interleave(chains):
    out = []
    chains = [list(c) for c in chains]
    while any(chains):
        for c in chains:
            if c: out.append(c.pop(0))
    return out

def cmul(d, x, w):
    return [f"v_mul_f32 v{d}, v{x}, v{w}", f"v_mul_f32 v{d+1}, v{x}, v{w+1}",
            f"v_fma_f32 v{d}, -v{x+1}, v{w+1}, v{d}", f"v_fmac_f32 v{d+1}, v{x+1}, v{w}"]
def cmul_pk(d, x, w):
    return [f"v_pk_mul_f32 {vr(d,2)}, {vr(x,2)}, {vr(w,2)} op_sel:[0,0] op_sel_hi:[0,1]",
            f"v_pk_fma_f32 {vr(d,2)}, {vr(x,2)}, {vr(w,2)}, {vr(d,2)} op_sel:[1,1,0] op_sel_hi:[1,0,1] neg_lo:[0,1,0]"]

def gen_ka(name, X=()):
    a = Asm()
    NSLOT = 7 if "s7" in X else 6
    DD = NSLOT - 2
    NT = " nt" if "nt" in X else " sc1" if "ksc" in X else ""
    NW = " nt" if "ntw" in X else ""
    NX = " nt" if "ntx" in X else ""
    NP = " nt" if "ntp" in X else ""
    NK = " nt" if "ntk" in X else ""
    PSL = 2 if "ps2" in X else 8 if "ps8" in X else 5
    cnt = [0]
    def lbl(p):
        cnt[0] += 1
        return f"KA_{p}{cnt[0]}"
    def sig(off, addr=VSY, val=VONE):
        a("s_mov_b64 exec, 1")
        a(f"ds_add_u32 v{addr}, v{val} offset:{off}")
        a("s_mov_b64 exec, -1")
    def wait(off, n, addr=VSY, out=76, nap=0):
        l, e = lbl("W"), lbl("E")
        a(f"s_mov_b32 s77, {LDS_SPIN}")
        if nap:
            a(f"s_branch {l}F")
        a(f"{l}:")
        if nap:
            a(f"s_sleep {nap}")
            a(f"{l}F:")
        a(f"ds_read_b32 v{VTMP}, v{addr} offset:{off}")
        a("s_sub_u32 s77, s77, 1")
        a("s_cbranch_scc1 " + e)
        a("s_waitcnt lgkmcnt(0)")
        a(f"v_readfirstlane_b32 s{out}, v{VTMP}")
        a(f"s_cmp_lt_u32 s{out}, {n}")
        a("s_cbranch_scc1 " + l)
        a(f"{e}:")
    def wait4(off, addr=VSY, nap=0):
        l, e = lbl("W"), lbl("E")
        a(f"s_mov_b32 s77, {LDS_SPIN}")
        if nap:
            a(f"s_branch {l}F")
        a(f"{l}:")
        if nap:
            a(f"s_sleep {nap}")
            a(f"{l}F:")
        a(f"ds_read_b128 {vr(VT4,4)}, v{addr} offset:{off}")
        a("s_sub_u32 s77, s77, 1")
        a("s_cbranch_scc1 " + e)
        a("s_waitcnt lgkmcnt(0)")
        a(f"v_or3_b32 v{VT4}, v{VT4}, v{VT4+1}, v{VT4+2}")
        a(f"v_or_b32 v{VT4}, v{VT4}, v{VT4+3}")
        a(f"v_cmp_ne_u32 vcc, 0, v{VT4}")
        a("s_cbranch_vccnz " + l)
        a(f"{e}:")
    def gettag():
        l, ok = lbl("TL"), lbl("TK")
        a("s_waitcnt lgkmcnt(0)")
        a("s_cmp_lg_u32 s52, 0")
        a(f"s_cbranch_scc1 {ok}")
        a("v_mov_b32 v155, 0")
        a(f"s_mov_b32 s69, {SLOW_TRIES}")
        a(f"{l}:")
        a("global_load_dword v158, v155, s[32:33] sc1")
        a("s_waitcnt vmcnt(0)")
        a("v_readfirstlane_b32 s52, v158")
        a("s_cmp_lg_u32 s52, 0")
        a(f"s_cbranch_scc1 {ok}")
        a("s_sub_u32 s69, s69, 1")
        a(f"s_cbranch_scc0 {l}")
        a("s_mov_b32 s52, 1")
        a(f"{ok}:")
    def dsig(m0expr):
        a(m0expr)
        a("s_mov_b64 exec, 1")
        a("buffer_load_dword v154, s[44:47], 0 offen lds")
        a("s_mov_b64 exec, -1")
    def mktag(fl_off):
        if "gfl" in X:
            a("s_mov_b32 s66, s52")
            a(f"s_add_u32 s67, s51, {G_FL + fl_off}")
            return
        a("s_getreg_b32 s66, hwreg(HW_REG_XCC_ID)")
        a("s_and_b32 s66, s66, 15")
        a("s_add_u32 s66, s66, 1")
        a("s_lshl_b32 s66, s66, 1")
        a("s_xor_b32 s66, s66, s52")
        a(f"s_add_u32 s67, s51, {G_FL + fl_off}")
    def publish():
        a("v_mov_b32 v155, s66")
        a("s_mov_b64 exec, 1")
        a("buffer_store_dword v155, v156, s[44:47], s67 offen" + (" sc1" if "gfl" in X else ""))
        a("s_mov_b64 exec, -1")
    def collect(wide, own, lanes=1):
        lf, ls, done = lbl("GF"), lbl("GS"), lbl("GD")
        def ld(r, off):
            if wide: a(f"buffer_load_dwordx2 v[{r}:{r+1}], v157, s[44:47], s67 offen offset:{off} sc1")
            else: a(f"buffer_load_dword v{r}, v157, s[44:47], s67 offen offset:{off} sc1")
        a(f"s_mov_b32 s69, {FAST_TRIES}")
        a(f"{lf}:")
        ld(158, 0)
        a("s_waitcnt vmcnt(0)")
        a("v_cmp_ne_u32 vcc, s66, v158")
        if wide:
            a("v_cmp_ne_u32 s[70:71], s66, v159")
            a("s_or_b64 vcc, vcc, s[70:71]")
            a(f"s_cbranch_scc0 {done}")
        else:
            a(f"s_cbranch_vccz {done}")
        a("s_sub_u32 s69, s69, 1")
        a(f"s_cbranch_scc0 {lf}")
        a("buffer_wbl2 sc1")
        a("s_waitcnt vmcnt(0)")
        a("v_mov_b32 v155, s52")
        if own is not None:
            a(own)
            a(f"s_cbranch_scc0 {ls}N")
        a(f"s_mov_b64 exec, {lanes}")
        a("buffer_store_dword v155, v156, s[44:47], s67 offen offset:1024 sc1")
        a("s_mov_b64 exec, -1")
        a(f"{ls}N:")
        a(f"s_mov_b32 s69, {SLOW_TRIES}")
        a(f"{ls}:")
        ld(158, 0)
        ld(160, 1024)
        a("s_waitcnt vmcnt(0)")
        a("v_cmp_ne_u32 vcc, s66, v158")
        a("v_cmp_ne_u32 s[70:71], s52, v160")
        a("s_and_b64 vcc, vcc, s[70:71]")
        if wide:
            a("v_cmp_ne_u32 s[70:71], s66, v159")
            a("v_cmp_ne_u32 s[72:73], s52, v161")
            a("s_and_b64 s[70:71], s[70:71], s[72:73]")
            a("s_or_b64 vcc, vcc, s[70:71]")
        a(f"s_cbranch_scc0 {done}A")
        a("s_sleep 8")
        a("s_sub_u32 s69, s69, 1")
        a(f"s_cbranch_scc0 {ls}")
        a(f"{done}A:")
        a("buffer_inv sc1")
        a("s_waitcnt vmcnt(0)")
        a(f"{done}:")

    a(f".globl {name}\n.p2align 8\n.type {name},@function\n{name}:")
    a("s_cmp_ge_u32 s2, 256")
    a("s_cbranch_scc1 KA_END")
    a.start()
    a("s_load_dwordx16 s[4:19], s[0:1], 0")
    a("s_load_dwordx16 s[20:35], s[0:1], 64")
    if "dly" in X: a("s_sleep 16")
    a("v_readfirstlane_b32 s48, v0")
    a("v_and_b32 v1, 63, v0")
    a("s_and_b32 s49, s2, 7")
    for k in (1, 3, 5, 7):
        if f"gx{k}" in X: a(f"s_xor_b32 s49, s49, {k}")
    a("s_lshr_b32 s50, s2, 3")
    a("s_lshr_b32 s48, s48, 6")
    def cpf():
        if "cpf" in X:
            a("s_cmp_lg_u32 s48, 0")
            a("s_cbranch_scc1 KA_CONS")
            a("s_getpc_b64 s[56:57]")
            a("KA_PCB:")
            a(f"s_sub_u32 s56, s56, KA_PCB-{name}")
            a("s_subb_u32 s57, s57, 0")
            a("v_lshl_add_u32 v8, v1, 5, s50")
            a("v_lshlrev_b32 v8, 6, v8")
            a(f"v_cmp_gt_u32 vcc, KA_END-{name}, v8")
            a("s_mov_b64 exec, vcc")
            a("v_mov_b32 v9, s57")
            a("v_add_co_u32 v8, vcc, s56, v8")
            a("v_addc_co_u32 v9, vcc, 0, v9, vcc")
            a("global_load_dword v24, v[8:9], off")
            a("s_mov_b64 exec, -1")

    a("s_cmp_lt_u32 s48, 4")
    a("s_cbranch_scc1 " + ("KA_CPF" if "cnear" in X else "KA_CONS0"))
    a("s_cmp_lt_u32 s48, 8")
    a("s_cbranch_scc1 KA_LOADER")
    a("s_setprio 3")
    a("s_sub_u32 s54, s48, 8")
    a("s_xor_b32 s55, s49, 4")
    a("s_lshl_b32 s55, s55, 5")
    a("s_add_u32 s55, s55, s50")
    a("s_lshl_b32 s59, s55, 9")
    a("s_lshl_b32 s60, s54, 7")
    a("s_add_u32 s59, s59, s60")
    a("v_lshl_add_u32 v2, v1, 1, s59")
    a("s_lshr_b32 s59, s59, 8")
    a("s_lshl_b32 s59, s59, 1")
    a("v_mov_b32 v5, s59")
    for i in range(8):
        a(f"v_mov_b32 v{8+i}, 0")
    a("s_waitcnt lgkmcnt(0)")
    a("global_load_short_d16_hi v14, v5, s[18:19]")
    for i in range(6):
        a(f"global_load_short_d16_hi v{8+i}, v2, s[{6+2*i}:{7+2*i}]{NP}")
    a("global_load_short_d16_hi v15, v5, s[20:21]")
    a("s_branch KA_AUX0")
    if "cnear" in X:
        a("KA_CPF:")
        cpf()
        a("s_branch KA_CONS")
    a("KA_LOADER:")
    def common():
        a(f"s_mul_i32 s51, s49, {GRS}")
        a("v_lshlrev_b32 v4, 4, v1")
        a("v_lshrrev_b32 v3, 5, v1")
        a(f"v_mov_b32 v{VSY}, {L_SY}")
        a(f"v_mov_b32 v{VONE}, 1")

    a("s_add_u32 s53, s49, s50")
    a("s_sub_u32 s54, s48, 4")
    a("v_lshrrev_b32 v5, 3, v1")
    a("v_and_b32 v6, 7, v1")
    a("v_lshrrev_b32 v7, 4, v1")
    a("v_xor_b32 v8, v6, v7")
    a("v_lshlrev_b32 v8, 4, v8")
    a("v_lshl_add_u32 v16, v5, 10, v8")
    a("s_and_b32 s73, s54, 1")
    a("s_lshl_b32 s58, s73, 6")
    a("s_lshl_b32 s55, s50, 16")
    a("s_lshl_b32 s60, s54, 13")
    a("s_add_u32 s60, s60, s55")
    a("v_xor_b32 v18, s58, v16")
    a("v_add_u32 v18, s60, v18")
    a("v_add_u32 v19, 32768, v18")
    a("v_and_b32 v7, 1, v7")
    a("v_lshlrev_b32 v7, 2, v7")
    a("v_xor_b32 v8, v6, v7")
    a("v_mul_u32_u24 v9, 3072, v5")
    a("v_lshl_add_u32 v9, v8, 4, v9")
    a("s_lshl_b32 s56, s49, 7")
    a("s_mul_i32 s62, s54, 3")
    for i in range(3):
        a(f"s_add_u32 s58, s62, {i}")
        a("s_and_b32 s59, s58, 3")
        a("s_mul_i32 s59, s59, 24576")
        a("s_lshr_b32 s58, s58, 2")
        a("s_lshl_b32 s58, s58, 10")
        a("s_add_u32 s58, s58, s59")
        a("s_add_u32 s58, s58, s56")
        if i: a(f"s_sub_u32 s58, s58, {1024*i}")
        a(f"v_add_u32 v{20+i}, s58, v9")
    a("s_lshl_b32 s61, s54, 10")
    a("s_lshl_b32 s62, s62, 10")
    a("s_and_b32 s64, s53, 7")
    a("s_lshl_b32 s65, s64, 7")
    a(f"s_mul_i32 s64, s64, {64*3072}")
    a("s_mov_b32 s38, %d\ns_mov_b32 s39, 0x20000\ns_mov_b32 s42, %d\ns_mov_b32 s43, 0x20000" % (2048*512*2, 512*1536*2))
    a("s_mov_b32 m0, s61")
    a("s_waitcnt lgkmcnt(0)")
    a("s_mov_b32 s36, s4\ns_and_b32 s37, s5, 0xffff\ns_mov_b32 s40, s24\ns_and_b32 s41, s25, 0xffff")
    a.stamp(1)
    ops = []
    def vm(t, tag):
        a(t); ops.append(tag)
    def need(tag, extra=""):
        last = max(i for i, t in enumerate(ops) if t == tag)
        a(f"s_waitcnt vmcnt({len(ops)-1-last}){extra}")
    def sub(j):
        hi = j + 1
        if hi < 16:
            a(f"s_add_u32 m0, s61, {4096*hi}")
            if hi % 2 == 0:
                a("s_add_u32 s65, s65, 128")
                a("s_and_b32 s65, s65, 1023")
            else:
                a("s_nop 0")
            if "nox3" in X:
                a("s_cmp_eq_u32 s65, 384\ns_cselect_b32 s59, 256, s65")
                vm(f"buffer_load_dwordx4 v{18+(hi&1)}, s[36:39], s59 offen{NX} lds", j)
            else:
                vm(f"buffer_load_dwordx4 v{18+(hi&1)}, s[36:39], s65 offen{NX} lds", j)
        a(f"s_add_u32 m0, s62, {L_W+12288*(j%NSLOT)}")
        a(f"s_add_u32 s58, s64, {32*3072}")
        for i in range(3):
            vm(f"buffer_load_dwordx4 v{20+i}, s[40:43], s64 offen offset:{1024*i}{NW} lds", j)
        a(f"s_cmp_lt_u32 s58, {512*3072}")
        a("s_cselect_b32 s64, s58, 0")
    vm(f"buffer_load_dwordx4 v18, s[36:39], s65 offen{NX} lds", 0)
    sub(0)
    common()
    srd(a, 44, 34, 35, W2_END)
    a("v_xor_b32 v17, 64, v16")
    a("v_add_u32 v17, 7168, v17")
    a("s_sub_u32 s74, 4, s50")
    a("s_and_b32 s74, s74, 7")
    a("s_lshl_b32 s74, s74, 13")
    a("s_lshl_b32 s58, s54, 11")
    a("s_add_u32 s74, s74, s58")
    a("s_mov_b32 m0, s74")
    a("s_lshl_b32 s58, s54, 14")
    a("s_add_u32 s58, s58, s55")
    a("s_xor_b32 s59, s56, 512")
    a("s_add_u32 s58, s58, s59")
    vm("buffer_load_dwordx4 v16, s[36:39], s58 offen lds", "xs")
    vm("buffer_load_dwordx4 v17, s[36:39], s58 offen offset:1024 lds", "xs")
    sub(1); sub(2)
    a("v_lshlrev_b32 v5, 7, v1")
    a(f"s_add_u32 s67, s51, {G_FL}")
    a(f"s_mov_b32 m0, {L_GW}")
    a("s_lshl_b32 s58, 16, s54")
    a("s_or_b32 exec_lo, s58, 1")
    a("s_mov_b32 exec_hi, 0")
    vm("buffer_load_dword v163, v5, s[44:47], s67 offen " + ("nt" if "ntu" in X else "sc1"), "fl")
    a("s_lshl_b32 s58, s54, 4")
    a("s_lshl_b64 exec, 0xffff, s58")
    vm("global_load_lds_dwordx4 v4, s[28:29]", "gw")
    a("s_mov_b64 exec, -1")
    sub(3)
    a("v_bfe_u32 v5, v1, 2, 2")
    a("v_lshrrev_b32 v6, 4, v1")
    a("v_bfe_u32 v7, v1, 1, 1")
    a("v_lshl_add_u32 v6, v6, 1, v7")
    a("v_lshrrev_b32 v7, 1, v5")
    a("v_xor_b32 v6, v6, v7")
    a("v_lshlrev_b32 v6, 4, v6")
    a("v_lshl_add_u32 v6, v5, 7, v6")
    a("v_and_b32 v7, 1, v1")
    a("v_lshl_add_u32 v6, v7, 3, v6")
    a("v_add_u32 v28, s74, v6")
    for i in range(1, 4):
        a(f"v_xor_b32 v{28+i}, {32*i}, v28")
    need("xs")
    a("s_setprio 3")
    for i in range(4):
        a(f"ds_read_b64_tr_b16 {vr(32+2*i,2)}, v{28+i} offset:{512*i}")
    if "utw" in X:
        a("s_lshl_b32 s75, s50, 13")
        a("s_lshl_b32 s59, s54, 11")
        a("s_add_u32 s75, s75, s59")
        a("s_add_u32 s75, s75, s51")
        a(f"s_add_u32 s75, s75, {G_UT}")
        a("s_waitcnt lgkmcnt(0)")
        US = " sc1" if "usc" in X else ""
        vm("buffer_store_dwordx4 v[32:35], v4, s[44:47], s75 offen" + US, 3)
        vm("buffer_store_dwordx4 v[36:39], v4, s[44:47], s75 offen offset:1024" + US, 3)
    else:
        a("v_lshrrev_b32 v5, 1, v1")
        a("v_lshlrev_b32 v5, 13, v5")
        a("v_lshl_add_u32 v27, v7, 6, v5")
        a("s_lshl_b32 s75, s50, 8")
        a("s_lshr_b32 s59, s54, 1")
        a("s_lshl_b32 s59, s59, 7")
        a("s_add_u32 s75, s75, s59")
        a("s_add_u32 s75, s75, s51")
        a(f"s_add_u32 s75, s75, {G_UT}")
        a("s_lshl_b32 s58, s73, 5")
        a("s_add_u32 s75, s75, s58")
        a("s_waitcnt lgkmcnt(0)")
        vm("buffer_store_dwordx4 v[32:35], v27, s[44:47], s75 offen" + NT, 3)
        vm("buffer_store_dwordx4 v[36:39], v27, s[44:47], s75 offen offset:16" + NT, 3)
    if "lst" in X: a.stamp(3)
    PRE = 7 if "p7" in X else 6 if "p6" in X else 5 if "p5" in X else 4
    for j in range(4, PRE): sub(j)
    a("v_lshrrev_b32 v10, 3, v1")
    a("s_lshl_b32 s58, s49, 3")
    a("v_add_u32 v10, s58, v10")
    a("v_and_b32 v11, 7, v1")
    a("v_bfe_u32 v12, v10, 1, 3")
    a("v_xor_b32 v12, v12, v11")
    a("v_lshlrev_b32 v12, 4, v12")
    a("v_lshl_add_u32 v12, v10, 7, v12")
    a("s_and_b32 s58, s53, 7")
    a("s_lshl_b32 s58, s58, 7")
    a("v_lshl_add_u32 v11, v11, 4, s58")
    a("v_bfe_u32 v5, v1, 4, 1")
    a("v_lshlrev_b32 v5, 16, v5")
    a("v_and_b32 v6, 15, v1")
    a("v_lshl_add_u32 v13, v6, 7, v5")
    a(f"s_mul_i32 s71, s54, {G_HEAD}")
    a("s_lshl_b32 s58, s50, 11")
    a("s_add_u32 s71, s71, s58")
    a("s_add_u32 s71, s71, s51")
    a("s_and_b32 s58, s50, 15")
    a(f"s_cmp_lt_u32 s58, {16 if 'n16' in X else 6 if 'n6' in X else NEARLY}")
    a("s_cselect_b32 s58, 0, 0x7ff00000")
    a("v_add_u32 v13, s58, v13")
    for c in range(8):
        a(f"v_add_u32 v{40+c}, {128*c}, v11")
        a(f"v_and_b32 v{40+c}, 1023, v{40+c}")
        a(f"v_add_u32 v{40+c}, {L_GW}, v{40+c}")
    for j in range(12):
        need(j)
        if "lst" in X and j in (0, 4, 8): a.stamp(4 + j // 4)
        a("s_barrier")
        if PRE <= j + DD < 16: sub(j + DD)
    if "tq" in X:
        a("s_mov_b32 exec_hi, 0")
        vm("buffer_load_dword v163, v13, s[44:47], s71 offen " + ("nt" if "ntu" in X else "sc1"), "tq")
        a("s_mov_b64 exec, -1")
    need(12)
    a("s_barrier")
    a("s_cmp_eq_u32 s54, 3")
    a("s_cbranch_scc1 KA_LG")
    for j in (13, 14, 15):
        need(j)
        a("s_barrier")
    a.stamp(2)
    a("s_cmp_eq_u32 s54, 2")
    a("s_cbranch_scc1 KA_LZ")

    a("KA_ATT:")
    if "lowp" in X: a("s_setprio 0")
    QA, QB, P, OA, OB, SA, SB = 8, 12, 28, 36, 52, 68, 84
    KBUF = [100, 112, 124, 136]
    IXV = 24
    SM32 = "v_smfmac_f32_32x32x32_bf16"
    a("s_and_b32 s54, s48, 3")
    a("s_lshr_b32 s55, s48, 2")
    a(f"s_mul_i32 s57, s54, {G_HEAD}")
    a("s_add_u32 s57, s57, s51")
    a("s_lshl_b32 s58, s55, 15")
    a("s_add_u32 s58, s58, s57")
    a("s_add_u32 s59, s58, 65536")
    a("s_lshl_b32 s56, s50, 16")
    a("s_lshl_b32 s60, s49, 13")
    a("s_add_u32 s56, s56, s60")
    a(f"s_add_u32 s56, s56, {W2_O}")
    a("s_lshl_b32 s60, s48, 10")
    a("s_add_u32 s56, s56, s60")
    a(f"v_mov_b32 v{IXV}, 0xdddd")
    a("s_mov_b32 s62, 0xffff")
    a("s_mov_b32 s63, 0xffff")
    a("v_and_b32 v2, 27, v1")
    a("v_and_b32 v6, 15, v1")
    a("v_lshl_add_u32 v6, v3, 4, v6")
    a("v_lshlrev_b32 v6, 4, v6")
    a("v_cmp_eq_u32 vcc, 16, v2")
    a("v_mov_b32 v7, 0x3f803f80")
    a("v_lshlrev_b32 v157, 3, v1")
    a("v_cndmask_b32 v7, 0, v7, vcc")
    a("s_lshl_b32 s60, s54, 11")
    a(f"s_add_u32 s60, s60, {L_Q}")
    a("v_add_u32 v5, s60, v4")
    a(f"s_mov_b32 s64, {hex((1<<PRIO1)|(1<<PRIO0))}")
    for B in KBUF:
        for i in range(8): a(f"v_mov_b32 v{B+4+i}, v7")
    for i in range(32): a(f"v_mov_b32 v{OA+i}, 0")
    for i in range(8): a(f"v_mov_b32 v{SB+8+i}, 0")
    a("s_mul_i32 s60, s48, 2304")
    a(f"s_add_u32 s60, s60, {L_OX}")
    a("s_xor_b32 s61, s48, 4")
    a("s_mul_i32 s61, s61, 2304")
    a(f"s_add_u32 s61, s61, {L_OX}")
    a("v_add_u32 v16, s60, v4")
    a("v_add_u32 v17, s61, v4")
    a("v_lshl_add_u32 v18, v1, 2, s60")
    a("v_lshl_add_u32 v19, v1, 2, s61")
    a("s_lshl_b32 s60, s54, 2")
    a(f"v_add_u32 v20, s60, v{VSY}")
    a(f"v_mov_b32 v21, {hex(f2u(2.0**-80))}")
    a(f"v_mov_b32 v22, {hex(f2u(2.0**80))}")
    a(f"v_mov_b32 v23, 0x7f7fffff")
    a("s_lshl_b32 s74, s50, 11")
    a(f"s_add_u32 s74, s74, {W2_FO}")
    a("v_lshlrev_b32 v154, 7, s49")
    a("s_mov_b32 s65, 0")
    a("s_cmp_eq_u32 s55, 0")
    a("s_cbranch_scc1 KA_AT1")
    wait(S_NONCE, 1, out=52)
    a("KA_AT1:")
    a("v_mov_b32 v153, s52")
    wait(S_QRDY, 4)
    a(f"ds_read_b128 {vr(QA,4)}, v5")
    a(f"ds_read_b128 {vr(QB,4)}, v5 offset:1024")
    if "lst" not in X: a.stamp(4)
    a("s_cmp_eq_u32 s55, 0" if "pol4" in X else "s_cmp_lg_u32 s48, 4")
    a("s_cbranch_scc1 KA_AT2")
    mktag(512)
    a("v_lshlrev_b32 v156, 7, v1")
    a("s_lshl_b32 s60, s50, 2")
    a("v_add_u32 v156, s60, v156")
    wait(S_DONE, 4)
    collect(True, None, 15)
    sig(S_GO)
    if "pol4" in X:
        a("s_cmp_lg_u32 s48, 7")
        a("s_cbranch_scc1 KA_AT3")
        sig(S_CD)
    a("s_branch KA_AT3")
    a("KA_AT2:")
    a("s_waitcnt vmcnt(0)")
    a("s_cmp_lg_u32 s48, 7")
    a("s_cbranch_scc1 KA_NOGF")
    sig(S_CD)
    a("KA_NOGF:")
    wait(S_GO, 1)
    a("KA_AT3:")
    def kload(B, off): a(f"buffer_load_dwordx4 {vr(B,4)}, v4, s[44:47], s58 offen offset:{off}{NK}")
    def vload(B, off):
        a("s_mov_b64 exec, s[62:63]")
        a(f"buffer_load_dwordx4 {vr(B+4,4)}, v6, s[44:47], s59 offen offset:{off}{NK}")
        a(f"buffer_load_dwordx4 {vr(B+8,4)}, v6, s[44:47], s59 offen offset:{off+512}{NK}")
        a("s_mov_b64 exec, -1")
    if "dly2" in X: a("s_sleep 16")
    if "it7" in X: a("s_mov_b32 s65, 1")
    kload(KBUF[0], 0)
    for t in range(3):
        vload(KBUF[t], 1024 * t); kload(KBUF[t+1], 1024 * (t + 1))
    a("s_add_u32 s58, s58, 4096")
    a("s_add_u32 s59, s59, 3072")
    a("s_setprio 2")
    if "lst" not in X: a.stamp(7)
    a("s_waitcnt vmcnt(9) lgkmcnt(0)")
    a.stamp(7 if "lst" in X else 5)
    a(f"{MF} {vr(SA,16)}, {vr(KBUF[0],4)}, {vr(QA,4)}, 0")
    a("s_nop 11")
    a(".p2align 6")
    if "ph4" in X: a("s_nop 0")
    a("KA_LOOP:")
    if "ast" in X:
        for k, b in enumerate((1, 2, 3, 5)):
            a(f"s_cmp_lg_u32 s65, {b}\ns_cbranch_scc1 KA_Q{k}")
            a.stamp(1 + k)
            a(f"KA_Q{k}:")
    for u in range(4):
        B, Bn, Bp = KBUF[u], KBUF[(u+1) % 4], KBUF[(u+3) % 4]
        if u == (3 if "h3" in X else 2):
            a("s_bitcmp1_b32 s64, s65")
            a("s_cbranch_scc1 KA_SPECIAL")
            a("KA_BODY:")
        for unit in range(2):
            Sc, Sn, Oc, Op, Qn = (SA, SB, OA, OB, QB) if unit == 0 else (SB, SA, OB, OA, QA)
            for i in range(16):
                if i == 2:
                    a(f"{SM32} {vr(Op,16)}, {vr((Bp if unit == 0 else B)+8,4)}, {vr(Sn+8,8)}, v{IXV}")
                    if unit == 0: vload(Bp, 1024 * u)
                if i == 5:
                    a(f"{MF} {vr(Sn,16)}, {vr(B if unit == 0 else Bn,4)}, {vr(Qn,4)}, 0")
                    if unit == 0: kload(B, 1024 * u)
                if i == 11:
                    if unit == 0: a("s_waitcnt vmcnt(9)")
                    a(f"{SM32} {vr(Oc,16)}, {vr(B+4,4)}, {vr(Sc,8)}, v{IXV}")
                if i == 13 and u == 3 and unit == 1:
                    a("s_add_u32 s58, s58, 4096")
                    a("s_add_u32 s59, s59, 4096")
                    a("s_add_u32 s65, s65, 1")
                    a("s_cmp_lt_u32 s65, 8")
                a(f"v_exp_f32{'_e64' if 'e64' in X and i in (4, 15) else ''} v{Sc+i}, v{Sc+i}")
    a("s_cbranch_scc1 KA_LOOP")
    a("s_nop 0")
    a(f"{SM32} {vr(OB,16)}, {vr(KBUF[3]+8,4)}, {vr(SB+8,8)}, v{IXV}")
    if "lst" not in X: a.stamp(6)
    a("s_cmp_eq_u32 s55, 0")
    a("s_cbranch_scc1 KA_XA")
    for keep, send, lab in ((OB, OA, None), (OA, OB, "KA_XA")):
        if lab:
            a(f"{lab}:")
            a("s_nop 9")
        a(f"ds_write_b128 v16, {vr(send,4)}")
        a(f"ds_write_b128 v16, {vr(send+4,4)} offset:1024")
        a(f"ds_write_b32 v18, v{send+8} offset:2048")
        a("s_mov_b64 exec, 1")
        a(f"ds_add_u32 v20, v{VONE} offset:{S_OX}")
        a(f"ds_add_u32 v{VSY}, v{VONE} offset:{S_FIN}")
        a("s_mov_b64 exec, -1")
        wait(S_OX, 2, 20, nap=(1 if "oxn" in X else 0))
        a(f"ds_read_b32 v{send+8}, v19 offset:2048")
        a(f"ds_read_b128 {vr(send,4)}, v17")
        a(f"ds_read_b128 {vr(send+4,4)}, v17 offset:1024")
        if not lab: a("s_branch KA_XJ")
    a("KA_XJ:")
    a("s_waitcnt lgkmcnt(2)")
    a(f"v_add_f32 v{SA}, v{OA+8}, v{OB+8}")
    a("s_waitcnt lgkmcnt(0)")
    a(f"v_rcp_f32 v{SA+1}, v{SA}")
    for i in range(8):
        a(f"v_add_f32 v{OA+i}, v{OA+i}, v{OB+i}")
    a.c("safety check of the zero stand-in for the row max: l inside [2^-80, 2^80] and O finite")
    a(f"v_cmp_nge_f32 vcc, v{SA}, v21")
    a(f"v_cmp_nle_f32 s[68:69], v{SA}, v22")
    for i in range(8):
        a(f"v_mul_f32 v{OA+i}, v{OA+i}, v{SA+1}")
    a(f"v_add_f32 v{SA+2}, |v{OA}|, |v{OA+1}|")
    a(f"v_add_f32 v{SA+3}, |v{OA+2}|, |v{OA+3}|")
    a(f"v_add_f32 v{SA+4}, |v{OA+4}|, |v{OA+5}|")
    a(f"v_add_f32 v{SA+5}, |v{OA+6}|, |v{OA+7}|")
    a(f"v_add_f32 v{SA+2}, v{SA+2}, v{SA+3}")
    a(f"v_add_f32 v{SA+4}, v{SA+4}, v{SA+5}")
    a(f"v_add_f32 v{SA+2}, v{SA+2}, v{SA+4}")
    a("s_or_b64 vcc, vcc, s[68:69]")
    a(f"v_cmp_nle_f32 s[68:69], v{SA+2}, v23")
    for i in range(4):
        a(f"v_cvt_pk_bf16_f32 v{P+i}, v{OA+2*i}, v{OA+2*i+1}")
    a("s_or_b64 vcc, vcc, s[68:69]")
    a("s_cbranch_scc1 KA_SLOW")
    a("KA_FIN:")
    if "dly3" in X: a("s_sleep 16")
    a(f"buffer_store_dwordx4 {vr(P,4)}, v4, s[44:47], s56 offen sc1")
    a("s_waitcnt vmcnt(0)")
    a("s_mov_b64 exec, 1")
    a(f"ds_add_rtn_u32 v{VTMP}, v{VSY}, v{VONE} offset:{S_OD}")
    a("s_waitcnt lgkmcnt(0)")
    a(f"v_readfirstlane_b32 s76, v{VTMP}")
    a("s_cmp_lg_u32 s76, 7")
    a("s_cbranch_scc1 KA_NLAST")
    a("buffer_store_dword v153, v154, s[44:47], s74 offen sc1")
    a("KA_NLAST:")
    a("s_cmp_lg_u32 s76, 0")
    a("s_cbranch_scc1 KA_NFIRST")
    a("s_mov_b64 exec, 0xff")
    a("s_lshl_b32 s72, s49, 2")
    a("s_and_b32 s73, s50, 3")
    a("s_add_u32 s72, s72, s73")
    a("s_lshl_b32 s72, s72, 11")
    a(f"s_add_u32 s72, s72, {W2_FO}")
    a("v_lshlrev_b32 v16, 7, v1")
    a(f"s_mov_b32 s69, {SLOW_TRIES}")
    a("buffer_load_dword v17, v16, s[44:47], s72 offen sc1")
    a("KA_WP:")
    for cur, nxt in ((17, 18), (18, 17)):
        a(f"s_sleep {PSL}")
        a(f"buffer_load_dword v{nxt}, v16, s[44:47], s72 offen sc1")
        a("s_waitcnt vmcnt(1)")
        a(f"v_cmp_eq_u32 vcc, s52, v{cur}")
        a("s_nop 1")
        a("v_mov_b32 v19, vcc_lo")
        a(f"ds_or_b32 v{VSY}, v19 offset:{S_PO}")
        a("s_cmp_eq_u32 vcc_lo, 0xff")
        a("s_cbranch_scc1 KA_NFIRST")
    a("s_sub_u32 s69, s69, 1")
    a("s_cbranch_scc0 KA_WP")
    a("KA_NFIRST:")
    a.end(0)
    a("KA_SPECIAL:")
    if "lkw" in X: sig(S_WB)
    a("s_setprio 1")
    a(f"s_cmp_eq_u32 s65, {PRIO1}")
    a("s_cbranch_scc1 KA_BODY")
    a("s_setprio 0")
    a("s_branch KA_BODY")
    a.c("fallback: true row max over all keys, then recompute this query tile")
    a("KA_SLOW:")
    B = KBUF[0]
    a("s_cmp_eq_u32 s55, 0")
    a("s_cbranch_scc1 KA_SLQ")
    for i in range(4): a(f"v_mov_b32 v{QA+i}, v{QB+i}")
    a("KA_SLQ:")
    a("s_waitcnt vmcnt(0)")
    a(f"v_mov_b32 v{SB}, 0xff800000")
    a("s_mov_b32 s58, s57")
    a("s_mov_b32 s65, 0")
    a("KA_MAXL:")
    a(f"buffer_load_dwordx4 {vr(B,4)}, v4, s[44:47], s58 offen")
    a("s_add_u32 s58, s58, 1024")
    a("s_add_u32 s65, s65, 1")
    a("s_waitcnt vmcnt(0)")
    a(f"{MF} {vr(SA,16)}, {vr(B,4)}, {vr(QA,4)}, 0")
    a("s_nop 15")
    for i in range(8):
        a(f"v_max3_f32 v{SB}, v{SA+2*i}, v{SA+2*i+1}, v{SB}")
    a("s_cmp_lt_u32 s65, 64")
    a("s_cbranch_scc1 KA_MAXL")
    a(f"v_mov_b32 v{SB+1}, v{SB}")
    a("s_nop 1")
    a(f"v_permlane32_swap_b32 v{SB}, v{SB+1}")
    a(f"v_max_f32 v{SB}, v{SB}, v{SB+1}")
    for i in range(16):
        a(f"v_mov_b32 v{OA+i}, 0")
    a("s_mov_b32 s58, s57")
    a("s_add_u32 s59, s57, 65536")
    a("s_mov_b32 s65, 0")
    a("KA_SLOWL:")
    kload(B, 0); vload(B, 0)
    a("s_add_u32 s58, s58, 1024")
    a("s_add_u32 s59, s59, 1024")
    a("s_add_u32 s65, s65, 1")
    a("s_waitcnt vmcnt(0)")
    a(f"{MF} {vr(SA,16)}, {vr(B,4)}, {vr(QA,4)}, 0")
    a("s_nop 15")
    for i in range(16):
        a(f"v_sub_f32 v{SA+i}, v{SA+i}, v{SB}")
    for i in range(16):
        a(f"v_exp_f32 v{SA+i}, v{SA+i}")
    a("s_nop 1")
    a(f"{SM32} {vr(OA,16)}, {vr(B+4,4)}, {vr(SA,8)}, v{IXV}")
    a(f"{SM32} {vr(OA,16)}, {vr(B+8,4)}, {vr(SA+8,8)}, v{IXV}")
    a("s_nop 7")
    a("s_cmp_lt_u32 s65, 64")
    a("s_cbranch_scc1 KA_SLOWL")
    a("s_nop 15")
    a(f"v_rcp_f32 v{SA}, v{OA+8}")
    a("s_nop 0")
    for i in range(8):
        a(f"v_mul_f32 v{OA+i}, v{OA+i}, v{SA}")
    for i in range(4):
        a(f"v_cvt_pk_bf16_f32 v{P+i}, v{OA+2*i}, v{OA+2*i+1}")
    a("s_branch KA_FIN")

    a("KA_LZ:")
    a("v_mov_b32 v8, 0")
    a("v_lshlrev_b32 v5, 2, v1")
    a(f"v_add_u32 v5, {L_KP+4100}, v5")
    for c in range(4):
        if c % 2 == 0: a("s_mov_b64 exec, %s" % ("0x7fff" if c == 0 else "0x7ffe"))
        for ch in range(2): a(f"ds_write_b32 v5, v8 offset:{c*KPC+ch*KPROW}")
    a("s_mov_b64 exec, 1")
    a(f"ds_add_u32 v{VSY}, v{VONE} offset:{S_KN}")
    a(f"ds_add_u32 v{VSY}, v{VONE} offset:{S_KN+4}")
    a("s_mov_b64 exec, -1")
    a("s_branch KA_ATT")
    a("KA_LG:")
    def grd(c):
        a(f"ds_read_b128 {vr(64+4*c,4)}, v12 offset:{8192*c}")
        a(f"ds_read_b128 {vr(96+4*c,4)}, v{40+c}")
    grd(0); grd(1); grd(2)
    need(13)
    a("s_barrier")
    grd(3); grd(4); grd(5); grd(6)
    need(14)
    a("s_barrier")
    a("s_waitcnt lgkmcnt(6)")
    grd(7)
    need(15, " lgkmcnt(0)")
    a("s_barrier")
    a.stamp(2)
    a("v_mov_b32 v9, 0")
    a("s_lshl_b32 s58, s50, 9")
    a(f"s_add_u32 s58, s58, {W2_G}")
    a("v_lshlrev_b32 v5, 3, v10")
    for i in range(32): a(f"v_dot2_f32_bf16 v9, v{64+i}, v{96+i}, v9")
    a("s_nop 3")
    a("v_add_f32_dpp v9, v9, v9 quad_perm:[1,0,3,2] row_mask:0xf bank_mask:0xf")
    a("s_nop 1")
    a("v_add_f32_dpp v9, v9, v9 quad_perm:[2,3,0,1] row_mask:0xf bank_mask:0xf")
    a("s_nop 1")
    a("v_add_f32_dpp v9, v9, v9 row_half_mirror row_mask:0xf bank_mask:0xf")
    a("v_cvt_pk_bf16_f32 v9, v9, v9")
    a("v_and_b32 v9, 0xffff0000, v9")
    a(f"v_mul_f32 v9, {hex(f2u(-LOG2E))}, v9")
    a("v_exp_f32 v9, v9")
    a("s_nop 0")
    a("v_add_f32 v9, 1.0, v9")
    a("v_rcp_f32 v9, v9")
    a("s_nop 0")
    a("v_cvt_pk_bf16_f32 v10, v9, v9")
    a("v_and_b32 v10, 0xffff0000, v10")
    a("v_sub_f32 v11, 1.0, v10")
    a("v_cvt_pk_bf16_f32 v11, v11, v11")
    a("v_and_b32 v11, 0xffff0000, v11")
    a("s_mov_b32 exec_lo, 0x01010101")
    a("s_mov_b32 exec_hi, 0x01010101")
    a("buffer_store_dwordx2 v[10:11], v5, s[44:47], s58 offen sc1")
    a("s_mov_b64 exec, -1")
    a("s_branch KA_ATT")

    a("KA_CONS0:")
    if "cnear" not in X: cpf()
    a("KA_CONS:")
    common()
    a(f"v_lshl_add_u32 v5, v1, 2, v{VSY}")
    a("v_cmp_gt_u32 vcc, 24, v1")
    a("v_mov_b32 v6, 0")
    a("v_addc_co_u32 v6, vcc, 0, v6, vcc")
    a("ds_write_b32 v5, v6")
    a("s_setprio 3")
    ACC, FB = 112, 32
    XA, WAD, FLA = 16, 20, 21
    a("s_and_b32 s54, s48, 1")
    a("s_lshr_b32 s55, s48, 1")
    a("v_and_b32 v5, 31, v1")
    a("s_lshl_b32 s56, s54, 12")
    a("v_lshl_add_u32 v6, v5, 7, s56")
    a("v_bfe_u32 v7, v5, 1, 3")
    a("v_xor_b32 v7, v7, v3")
    a(f"v_lshl_add_u32 v{XA}, v7, 4, v6")
    for ks in range(1, 4):
        a(f"v_xor_b32 v{XA+ks}, {ks<<5}, v{XA}")
    a("v_bfe_u32 v7, v1, 2, 2")
    a("v_lshl_add_u32 v6, v3, 3, v7")
    a("v_lshlrev_b32 v6, 7, v6")
    a("v_lshrrev_b32 v7, 1, v7")
    a("v_xor_b32 v7, s55, v7")
    a("v_lshl_add_u32 v6, v7, 6, v6")
    a("v_bfe_u32 v7, v1, 4, 1")
    a("v_lshl_add_u32 v6, v7, 5, v6")
    a("v_and_b32 v7, 3, v1")
    a("v_lshl_add_u32 v6, v7, 3, v6")
    a(f"v_add_u32 v{WAD}, {L_W}, v6")
    for i in range(48):
        a(f"v_mov_b32 v{ACC+i}, 0")
    a("s_lshl_b32 s58, s48, 10")
    a(f"s_add_u32 s58, s58, {L_U}")
    a("v_add_u32 v5, s58, v4")
    a(f"ds_write_b128 v5, {vr(ACC,4)}")
    a(f"v_add_u32 v5, {L_U+4096}, v4")
    a("s_mov_b64 exec, 0x7fffff")
    a(f"ds_write_b128 v5, {vr(ACC,4)}")
    a("s_mov_b64 exec, -1")
    a("s_waitcnt lgkmcnt(0)")
    srd(a, 44, 34, 35, W2_END)
    WB = 22
    a("v_lshrrev_b32 v25, 1, v1")
    a("v_xor_b32 v25, v25, v1")
    a("v_and_b32 v25, 4, v25")
    a("v_mul_u32_u24 v25, 3, v25")
    a("v_xor_b32 v25, v25, v1")
    a("v_lshlrev_b32 v25, 4, v25")
    a(f"v_mov_b32 v{WB}, v{WAD}")
    def reads(step):
        F = FB + 16 * (step & 3)
        xo = (step >> 2) * 8192
        wo = (step & 1) * 2048
        r = [f"ds_read_b128 {vr(F,4)}, v{XA+(step&3)} offset:{xo}"]
        for ct in range(3):
            for hh in range(2):
                r.append(f"ds_read_b64_tr_b16 {vr(F+4+4*ct+2*hh,2)}, v{WAD} offset:{wo+ct*4096+hh*512}")
        return r
    def mfmas(step):
        F = FB + 16 * (step & 3)
        r = []
        for ct in range(3):
            x, w = vr(F, 4), vr(F + 4 + 4 * ct, 4)
            A, B = (w, x) if ct < 2 else (x, w)
            r.append(f"{MF} {vr(ACC+16*ct,16)}, {A}, {B}, {vr(ACC+16*ct,16)}")
        return r
    a("s_mov_b32 s58, 0")
    a("s_mov_b32 s57, 3")
    a("s_barrier")
    a.stamp(1)
    for t in reads(0) + reads(1): a(t)
    if "al" in X: a(".p2align 6")
    if "gph4" in X: a("s_nop 0")
    a("KA_GEMM:")
    for st in range(8):
        m, r = mfmas(st), reads(st + 2)
        if st % 2 == 0:
            a("s_add_u32 s58, s58, 12288")
            a(f"s_cmp_eq_u32 s58, {NSLOT*12288}")
            a("s_cselect_b32 s58, 0, s58")
            a(f"v_add_u32 v{WAD}, s58, v{WB}")
            if st == 6: a("s_cmp_eq_u32 s57, 0")
        a("s_waitcnt lgkmcnt(7)")
        a(m[0])
        if st == 6: a("s_cbranch_scc1 KA_GEND")
        if st % 2 == 0: a("s_barrier")
        [a(t) for t in r[:3]]; a(m[1]); [a(t) for t in r[3:6]]; a(m[2]); a(r[6])
    for k in range(4):
        a(f"v_add_u32 v{XA+k}, 16384, v{XA+k}")
    a("s_sub_u32 s57, s57, 1")
    a("s_branch KA_GEMM")
    a("KA_GEND:")
    m = mfmas(6); a(m[1]); a(m[2])
    a("s_waitcnt lgkmcnt(0)")
    for t in mfmas(7): a(t)
    a.stamp(2)
    a("s_lshl_b32 s58, s50, 1")
    a("s_add_u32 s58, s58, s54")
    a("s_lshl_b32 s58, s58, 10")
    a(f"s_mul_i32 s59, s55, {2*G_HEAD}")
    a("s_add_u32 s58, s58, s59")
    a("s_add_u32 s58, s58, s51")
    a(f"s_add_u32 s59, s58, {G_HEAD}")
    a("s_add_u32 s62, s58, 65536")
    a(f"s_mov_b32 s63, {hex(QSCALE)}")
    a("v_bfe_u32 v5, v1, 4, 1")
    a(f"v_mul_u32_u24 v5, {G_HEAD}, v5")
    a("v_and_b32 v6, 15, v1")
    a("v_lshl_add_u32 v6, v3, 4, v6")
    a("v_lshl_add_u32 v6, v6, 4, v5")
    for i in range(8):
        a(f"v_cvt_pk_bf16_f32 v{16+i}, v{ACC+16+2*i}, v{ACC+16+2*i+1}")
    a("buffer_store_dwordx4 v[16:19], v25, s[44:47], s58 offen" + NT)
    a("buffer_store_dwordx4 v[20:23], v25, s[44:47], s59 offen" + NT)
    for i in range(8):
        a(f"v_cvt_pk_bf16_f32 v{96+i}, v{ACC+32+2*i}, v{ACC+32+2*i+1}")
    a("buffer_store_dwordx4 v[96:99], v6, s[44:47], s62 offen" + NT)
    a("buffer_store_dwordx4 v[100:103], v6, s[44:47], s62 offen offset:512" + NT)
    wait(S_NONCE, 1, out=52)
    for i in range(16):
        a(f"v_mul_f32 v{ACC+i}, s63, v{ACC+i}")
    a("s_lshl_b32 s60, s55, 12")
    a("s_lshl_b32 s61, s54, 10")
    a("s_add_u32 s60, s60, s61")
    a(f"s_add_u32 s60, s60, {L_Q}")
    a("v_add_u32 v5, s60, v4")
    for i in range(8):
        a(f"v_cvt_pk_bf16_f32 v{32+i}, v{ACC+2*i}, v{ACC+2*i+1}")
    a("ds_write_b128 v5, v[32:35]")
    a("ds_write_b128 v5, v[36:39] offset:2048")
    sig(S_QRDY)
    mktag(512)
    a("s_lshl_b32 s60, s48, 7")
    a("s_lshl_b32 s61, s50, 2")
    a("s_add_u32 s60, s60, s61")
    a("v_mov_b32 v156, s60")
    a("s_waitcnt vmcnt(0)")
    publish()
    sig(S_DONE)
    a.stamp(3)
    a("s_branch KA_ATT")

    a("KA_AUX0:")
    common()
    import ka_aux
    ka_aux.gen_aux(a, sig, wait, wait4, lbl, X, gettag, mktag, publish, collect, dsig)
    a("KA_END:")
    a("s_endpgm")
    return a.text(), 168
```

```python
from common import *
from ka import *

def gen_aux(a, sig, wait, wait4, lbl, X, gettag, mktag, publish, collect, dsig):
    import ka
    cmul = ka.cmul if "nopk" in X else ka.cmul_pk
    PSL = 1 if "ps1" in X else 8 if "ps8" in X else 3
    FINN = 4 if "f4" in X else 1 if "f1" in X else 8
    DATA_TRIES = 0 if "dt0" in X else 200
    st = (lambda i: None) if "p3st" in X else a.stamp
    a("KA_AUX:")
    a("s_and_b32 s61, s54, 1")
    a("s_lshr_b32 s62, s54, 1")
    a("s_mov_b32 s52, 0")
    srd(a, 44, 34, 35, W2_END)
    a("s_lshl_b32 s63, s2, 2")
    a("s_add_u32 s63, s63, s54")
    a("s_cmp_lg_u32 s63, 3")
    a("s_cbranch_scc1 KA_NOPUB")
    a("s_memrealtime s[64:65]")
    a("s_waitcnt lgkmcnt(0)")
    a("s_or_b32 s64, s64, 1")
    a("v_mov_b32 v158, 0")
    a("v_mov_b32 v159, s64")
    a("s_mov_b64 exec, 1")
    a("global_store_dword v158, v159, s[32:33] sc1")
    a("s_mov_b64 exec, -1")
    a("KA_NOPUB:")
    a("v_and_b32 v7, 31, v1")
    Z = 160
    a("v_and_b32 v36, 1, v1")
    a("v_lshlrev_b32 v36, 4, v36")
    a("v_mov_b32 v37, 0x3f80")
    a("v_lshlrev_b32 v36, v36, v37")
    a("v_bfe_u32 v37, v1, 1, 2")
    for d in range(4):
        a(f"v_cmp_eq_u32 s[{64+2*d}:{65+2*d}], {d}, v37")
    a("s_nop 0")
    for d in range(4):
        a(f"v_cndmask_b32 v{Z+d}, 0, v36, s[{64+2*d}:{65+2*d}]")
    a("s_lshl_b32 s63, s54, 11")
    a(f"s_add_u32 s63, s63, {L_XCH}")
    a("v_add_u32 v16, s63, v4")
    a(f"s_mul_i32 s63, s62, {KPROW}")
    a(f"s_add_u32 s63, s63, {L_KP}")
    a("v_lshl_add_u32 v19, v7, 4, s63")
    a("s_lshl_b32 s64, s62, 2")
    a(f"v_add_u32 v167, s64, v{VSY}")
    a("v_lshrrev_b32 v32, 2, v7")
    a("v_lshlrev_b32 v32, 3, v32")
    a("v_sub_u32 v33, 4128, v32")
    a("v_lshl_add_u32 v33, v3, 4, v33")
    a("v_and_b32 v32, 3, v7")
    a(f"v_mul_u32_u24 v32, {KPC}, v32")
    a("s_lshl_b32 s64, s61, 6")
    a("s_sub_u32 s64, s63, s64")
    a("s_sub_u32 s64, s64, 416")
    a("v_add3_u32 v38, v32, v33, s64")
    a("v_mul_u32_u24 v39, 144, v7")
    a("v_lshl_add_u32 v39, v3, %d, v39" % (5 if "utw" in X else 4))
    a("s_lshl_b32 s64, s62, %d" % (4 if "utw" in X else 6))
    a("s_mul_i32 s65, s61, 144")
    a("s_sub_u32 s64, s64, s65")
    a(f"s_add_u32 s64, s64, {L_U+31*144-864}")
    a("v_add_u32 v39, s64, v39")
    a("s_lshl_b32 s64, s54, 6")
    for k, r in enumerate((2, 5, 6)):
        a("v_add_u32 v32, s64, v1")
        if k: a(f"v_add_u32 v32, {256*k}, v32")
        a("v_mul_u32_u24 v33, 7282, v32")
        a("v_lshrrev_b32 v33, 16, v33")
        a("v_mul_u32_u24 v34, 9, v33")
        a("v_sub_u32 v34, v32, v34")
        a("v_min_u32 v34, 7, v34")
        if "utw" in X:
            a("v_lshrrev_b32 v35, 1, v34")
            a("v_lshl_add_u32 v33, v33, 2, v35")
            a("v_and_b32 v34, 1, v34")
            a("v_lshlrev_b32 v34, 4, v34")
            a(f"v_lshl_add_u32 v{r}, v33, 10, v34")
        else:
            a("v_lshlrev_b32 v34, 4, v34")
            a(f"v_lshl_add_u32 v{r}, v33, 7, v34")
    a("s_lshl_b32 s74, s50, %d" % (5 if "utw" in X else 13))
    a("s_add_u32 s74, s74, s51")
    a(f"s_add_u32 s74, s74, {G_UT}")
    a("s_lshl_b32 s75, s54, 10")
    a(f"s_add_u32 s75, s75, {L_U+31*144}")
    a("s_lshl_b32 s60, s54, 2")
    a(f"s_add_u32 s60, s60, {L_SY+S_UA}")
    a("s_lshl_b32 s58, s61, 12")
    a("s_sub_u32 s58, 2048, s58")
    a(f"s_mov_b32 s63, {hex(LOG2E_HI)}")
    a("s_waitcnt vmcnt(7)")
    a("v_mul_f32 v17, s63, v14")
    a("v_fma_f32 v18, v14, s63, -v17")
    a(f"v_fmac_f32 v18, {hex(LOG2E_LO)}, v14")
    a("v_exp_f32 v17, v17")
    a(f"v_mul_f32 v18, {hex(LN2)}, v18")
    a("v_fma_f32 v17, v17, v18, v17")
    a("v_cvt_pk_bf16_f32 v17, v17, v17")
    a("v_and_b32 v17, 0xffff0000, v17")
    a("s_waitcnt vmcnt(0)")
    st(1)
    for r in (8, 9, 10, 11):
        a(f"v_mul_f32 v{r}, v17, v{r}")
    a("v_mul_f32 v8, s63, v8")
    a("v_mul_f32 v9, 0.15915494, v9")
    W1, W8, W256, W2, W4, W16 = 20, 22, 24, 26, 28, 30
    tmp = 32
    for k, mult in enumerate((1.0, 8.0, 256.0)):
        t = tmp + 2 * k
        a(f"v_mul_f32 v{t}, {hex(f2u(mult))}, v8")
        a(f"v_mul_f32 v{t+1}, {hex(f2u(mult))}, v9")
    for k in range(3):
        t = tmp + 2 * k
        a(f"v_exp_f32 v{t}, v{t}")
        a(f"v_fract_f32 v{t+1}, v{t+1}")
    for k, wr in enumerate((W1, W8, W256)):
        t = tmp + 2 * k
        a(f"v_cos_f32 v{wr}, v{t+1}")
        a(f"v_sin_f32 v{wr+1}, v{t+1}")
    U = {}
    nxt = [40]
    def newU(av):
        U[av] = {524: 8, 780: 10}.get(av) or nxt[0]
        if U[av] == nxt[0]: nxt[0] += 2
        return U[av]
    for l in cmul(newU(0), 12, 10): a(l)
    for k, wr in enumerate((W1, W8, W256)):
        t = tmp + 2 * k
        a(f"v_mul_f32 v{wr}, v{t}, v{wr}")
        a(f"v_mul_f32 v{wr+1}, v{t}, v{wr+1}")
    for l in interleave([cmul(W2, W1, W1), cmul(W16, W8, W8)]): a(l)
    for l in cmul(W4, W2, W2): a(l)
    WA, WB, WR, WI, UR, UI = 96, 100, 112, 128, 144, 96
    wops = [f"v_cvt_pk_bf16_f32 v{WR+15}, v{W8}, 1.0", f"v_cvt_pk_bf16_f32 v{WI+15}, v{W8+1}, 0"]
    ca, cb = W16, None
    wops += cmul(WB, W8, W16); cb = WB
    for k in range(1, 16):
        pk = [f"v_cvt_pk_bf16_f32 v{WR+15-k}, v{cb}, v{ca}", f"v_cvt_pk_bf16_f32 v{WI+15-k}, v{cb+1}, v{ca+1}"]
        if k < 15:
            na, nb = WA + 2 * (k & 1), WB + 2 * (k & 1)
            wops += interleave([cmul(na, ca, W16), cmul(nb, cb, W16), pk])
            ca, cb = na, nb
        else:
            wops += pk
    u1 = []; prev = 0
    for av in (256, 512, 768, 1024, 1280, 1536, 1792):
        u1 += cmul(newU(av), U[prev], W256); prev = av
    for av in (1024, 1280, 1536, 1792):
        u1 += cmul(newU(av + 8), U[av], W8)
    for av in (516, 520, 524):
        u1 += cmul(newU(av), U[av - 4], W4)
    u2 = []
    for av in range(1, 9):
        u2 += cmul(newU(av), U[av - 1], W1)
    for av in (258, 260, 262, 264):
        u2 += cmul(newU(av), U[av - 2], W2)
    for av in (772, 776, 780):
        u2 += cmul(newU(av), U[av - 4], W4)
    assert nxt[0] <= 96
    for l in interleave([wops, interleave([u1, u2])]): a(l)
    rows = [0,1,2,3,4,5,6,7, 256,258,260,4,260,262,264,8, 512,516,520,524,768,772,776,780,
            1024,1032,1280,1288,1536,1544,1792,1800]
    for p in range(16):
        x, y = U[rows[2*p]], U[rows[2*p+1]]
        a(f"v_cvt_pk_bf16_f32 v{UR+p}, v{x}, v{y}")
        a(f"v_cvt_pk_bf16_f32 v{UI+p}, -v{x+1}, -v{y+1}")
    TD, ES, KD = 40, 88, 20
    nb = [0]
    def bar(n=1):
        for _ in range(n):
            a("s_barrier"); nb[0] += 1
    for q in range(2):
        a(f"s_mov_b32 s64, {hex(0xff << (8*q))}")
        a(f"s_mov_b32 s65, {hex(0xff0000 << (8*q))}")
        for d in range(4):
            a(f"v_cndmask_b32 v{ES+4*q+d}, 0, v{Z+d}, s[64:65]")
    a("s_load_dword s52, s[32:33], 0")
    halves = [Xm + 8 * hf for Xm in (WR, UR, WI, UI) for hf in range(2)]
    def tm(i):
        T = TD + 16 * (i % 3)
        return [f"{MF} {vr(T,16)}, {vr(halves[i],4)}, {vr(ES,4)}, 0", f"{MF} {vr(T,16)}, {vr(halves[i]+4,4)}, {vr(ES+4,4)}, {vr(T,16)}"]
    def tc(i):
        T = TD + 16 * (i % 3)
        return [f"v_cvt_pk_bf16_f32 v{halves[i]+k}, v{T+2*k}, v{T+2*k+1}" for k in range(8)]
    def ts(Xm): return [f"v_permlane16_swap_b32 v{Xm+k}, v{Xm+8+k}" for k in range(8)]
    def fin(XU, XW, first): return [f"{MF} {vr(KD,16)}, {vr(XU+4*i,4)}, {vr(XW+4*i,4)}, " + ("0" if first and i == 0 else vr(KD,16)) for i in range(4)]
    def mixm(m, v):
        n = (len(v) + len(m) - 1) // len(m)
        for i, t in enumerate(m):
            a(t)
            for u in v[i*n:(i+1)*n]: a(u)
    a("s_nop 0")
    for t in tm(0) + tm(1) + tm(2): a(t)
    a("s_nop 7")
    for t in tc(0): a(t)
    mixm(tm(3), ["s_nop 0"] + tc(1))
    mixm(tm(4), tc(2) + ts(WR))
    mixm(tm(5), tc(3))
    mixm(tm(6), tc(4) + ts(UR))
    mixm(tm(7), tc(5))
    mixm(fin(UR, WR, True), tc(6) + ts(WI) + tc(7))
    a("s_nop 1")
    for t in ts(UI): a(t)
    a("s_nop 1")
    for t in fin(UI, WI, False): a(t)
    NPRE = 4
    a("v_lshlrev_b32 v157, 2, v7")
    a("v_lshlrev_b32 v156, 2, s50")
    a("v_mov_b32 v154, 0x7ffffff0")
    a("v_add_u32 v17, s58, v16")
    a("s_cmp_eq_u32 s61, s62")
    a("s_nop 6")
    a("s_cbranch_scc1 KA_X0")
    for i in range(8): a(f"v_swap_b32 v{KD+i}, v{KD+8+i}")
    a("KA_X0:")
    a(f"ds_write_b128 v16, {vr(KD+8,4)}")
    a(f"ds_write_b128 v16, {vr(KD+12,4)} offset:1024")
    if "xw" in X: a("s_waitcnt lgkmcnt(0)")
    if NPRE == 4: st(2)
    bar(4 - nb[0])
    gettag()
    mktag(0)
    a("s_cmp_lg_u32 s54, 0")
    a("s_cbranch_scc1 KA_NPB")
    publish()
    a("KA_NPB:")
    bar()
    D0, D1, FA, FB, FC = 112, 128, 48, 64, 80
    PW, PG, PA, PF, POF, PWF, POUT, PM, PS, PD = 144, 148, 149, 150, 151, 152, 153, 100, 108, 109
    w = ["v_lshrrev_b32 v8, 3, v1", "v_bfe_u32 v9, v1, 4, 1", "v_lshlrev_b32 v9, 2, v9", "v_and_b32 v10, 7, v1", "v_xor_b32 v9, v9, v10",
         "v_lshlrev_b32 v9, 4, v9", f"v_lshl_add_u32 v{PW}, v8, 10, v9"] + [f"v_add_u32 v{PW+q}, {7168*q}, v{PW}" for q in range(1, 4)]
    w += [f"v_lshlrev_b32 v{PF}, 7, v10", f"v_lshlrev_b32 v{PG}, 3, v7", f"v_lshlrev_b32 v{PD}, 12, v8", f"v_lshl_add_u32 v{PD}, v10, 4, v{PD}",
          "s_lshl_b32 s63, s62, 12", "s_lshl_b32 s64, s61, 4", "s_add_u32 s63, s63, s64", f"s_add_u32 s63, s63, {L_GA}",
          f"v_lshl_add_u32 v{PA}, v7, 7, s63", f"v_lshl_add_u32 v{PA}, v3, 5, v{PA}",
          f"v_lshlrev_b32 v{POUT}, 10, v7", f"v_lshl_add_u32 v{POUT}, v3, 4, v{POUT}",
          "s_lshl_b32 s63, s54, 11", f"s_add_u32 s63, s63, {L_GT}", f"v_add_u32 v{POF}, s63, v4",
          "v_lshrrev_b32 v8, 1, v7", f"v_lshl_add_u32 v{PS}, v8, 7, s63", f"v_lshl_add_u32 v{PS}, v3, 5, v{PS}", "v_and_b32 v8, 1, v7", f"v_lshl_add_u32 v{PS}, v8, 4, v{PS}",
          "v_bfe_u32 v8, v1, 2, 2", f"v_lshl_add_u32 v{PWF}, v3, 2, v8", f"v_lshlrev_b32 v{PWF}, 7, v{PWF}", "v_lshrrev_b32 v8, 1, v8", "v_xor_b32 v8, s62, v8",
          f"v_lshl_add_u32 v{PWF}, v8, 6, v{PWF}", "v_bfe_u32 v8, v1, 4, 1", f"v_lshl_add_u32 v{PWF}, v8, 5, v{PWF}", "v_and_b32 v8, 3, v1",
          f"v_lshl_add_u32 v{PWF}, v8, 3, v{PWF}", f"v_add_u32 v{PWF}, {L_WO}, v{PWF}"]
    w += ["v_lshrrev_b32 v8, 3, v7", "v_bfe_u32 v9, v7, 1, 1", "v_lshl_add_u32 v8, v8, 1, v9", "v_bfe_u32 v9, v7, 2, 1", "v_xor_b32 v9, v9, v3",
          "v_lshl_add_u32 v8, v9, 3, v8", "v_and_b32 v9, 1, v7", "v_lshlrev_b32 v9, 4, v9", "v_mov_b32 v10, 0xffff", "v_lshlrev_b32 v9, v9, v10"]
    w += [f"v_cmp_eq_u32 s[{4+2*k}:{5+2*k}], {k}, v8" for k in range(8)] + ["s_nop 0"]
    w += [f"v_cndmask_b32 v{PM+k}, 0, v9, s[{4+2*k}:{5+2*k}]" for k in range(8)]
    n = (len(w) + 3) // 4
    for k in range(3):
        bar()
        for t in w[k*n:(k+1)*n]: a(t)
    a("s_waitcnt lgkmcnt(0)")
    bar()
    a(f"ds_read_b128 {vr(KD+8,4)}, v17")
    a(f"ds_read_b128 {vr(KD+12,4)}, v17 offset:1024")
    for t in w[3*n:]: a(t)
    bar()
    a("buffer_load_dword v158, v157, s[44:47], s67 offen sc1")
    a("s_waitcnt lgkmcnt(0)")
    for i in range(8):
        a(f"v_add_f32 v{KD+i}, v{KD+i}, v{KD+8+i}")
    def uload():
        l = lbl("UL")
        a("s_mov_b32 m0, s75")
        a("s_cmp_lg_u32 s54, 0")
        a("buffer_load_dwordx4 v2, s[44:47], s74 offen" + (" nt" if "ntu" in X else "") + " lds")
        a(f"s_cbranch_scc1 {l}")
        a("s_add_u32 m0, s75, 8192")
        a("s_nop 0")
        a("buffer_load_dwordx4 v6, s[44:47], s74 offen" + (" nt" if "ntu" in X else "") + " lds")
        a(f"{l}:")
        a("s_add_u32 m0, s75, 4096")
        a("s_nop 0")
        a("buffer_load_dwordx4 v5, s[44:47], s74 offen" + (" nt" if "ntu" in X else "") + " lds")
        dsig("s_mov_b32 m0, s60")
    def tail(work):
        l = lbl("UE")
        work = work + [f"v_mov_b32 v{D0+i}, 0" for i in range(32)]
        n = (len(work) + 3) // 4
        parts = [work[i*n:(i+1)*n] for i in range(4)]
        a("s_barrier")
        for t in parts[0]: a(t)
        a("s_barrier")
        for t in parts[1]: a(t)
        a("s_barrier")
        a("s_waitcnt vmcnt(0)")
        a("v_cmp_ne_u32 vcc, s66, v158")
        a("s_mov_b32 s59, 1")
        a(f"s_cbranch_vccnz {l}")
        a("s_mov_b32 s59, 0")
        uload()
        a(f"{l}:")
        a("s_barrier")
        for t in parts[2]: a(t)
        a("s_barrier")
        for t in parts[3]: a(t)
        a("s_barrier")
        st(3)
    def ready():
        l = lbl("UK")
        a("s_cmp_eq_u32 s59, 0")
        a(f"s_cbranch_scc1 {l}")
        collect(False, "s_cmp_eq_u32 s54, 0")
        uload()
        a(f"{l}:")
        st(4)
        wait4(S_UA)
        st(5)
        wait(S_KN, 2, 167)
        st(6)
        if "noaux" in X: a("s_branch KA_AUXEND")
    def rdA(slot, step, w=False):
        o = 416 - 128 * (step >> 1) - 32 * (step & 1)
        a(f"ds_read_b64 {vr(FA+4*slot,2)}, v38 offset:{o}")
        a(f"ds_read_b64 {vr(FA+4*slot+2,2)}, v38 offset:{o+8}")
    def rdB(R, slot, step, extra=0):
        a(f"ds_read_b128 {vr(R+4*slot,4)}, v39 offset:{864-288*(step>>1)+(0 if step&1 else (64 if 'utw' in X else 32))+extra}")
    def steps(near, paced, flag, extra=None):
        for s in range(4):
            n = (11 if near else 9) - (1 if near and s == 0 and flag else 0)
            a("s_waitcnt lgkmcnt(%d)" % (0 if paced else n))
            a(f"{MF} {vr(D1,16)}, {vr(FA+4*s,4)}, {vr(FB+4*s,4)}, {vr(D1,16)}")
            if near:
                rdB(FB, s, s + 4, 32 * 144)
                if paced: a("s_waitcnt lgkmcnt(0)")
                if extra: [a(t) for t in extra[s][:-1]]
                a(f"{MF} {vr(D0,16)}, {vr(FA+4*s,4)}, {vr(FC+4*s,4)}, {vr(D0,16)}")
                rdA(s, s + 4)
                if paced and "slow" in X: a("s_waitcnt lgkmcnt(0)")
                rdB(FC, s, s + 4)
                if extra: a(extra[s][-1])
            else:
                rdA(s, s + 4)
                if paced and "slow" in X: a("s_waitcnt lgkmcnt(0)")
                rdB(FB, s, s + 4, 32 * 144)
        a("v_subrev_u32 v38, 256, v38")
        a(f"v_subrev_u32 v39, {288*2}, v39")
    def prime():
        for s in range(4):
            if s == 3: a("s_waitcnt lgkmcnt(8)")
            rdB(FB, s, s, 32 * 144); rdA(s, s); rdB(FC, s, s)
    assert nb[0] == 10
    a("s_cmp_eq_u32 s61, s62")
    a("s_cbranch_scc0 KA_X1")
    tail(["v_cmp_eq_u32 s[72:73], 31, v1", "v_lshlrev_b32 v8, 3, v3", "v_xor_b32 v8, 8, v8",
          "v_cndmask_b32 v9, 0, v15, s[72:73]", "v_add_u32 v18, v19, v8", f"v_add_f32 v{KD}, v{KD}, v9",
          f"v_add_u32 v36, {KPC+4+3072}, v18", f"v_add_u32 v37, {2*KPC+4+3072}, v18",
          f"v_cvt_pk_bf16_f32 v40, v{KD+3}, v{KD+2}", f"v_cvt_pk_bf16_f32 v41, v{KD+1}, v{KD+0}",
          f"v_cvt_pk_bf16_f32 v42, v{KD+6}, v{KD+5}", f"v_cvt_pk_bf16_f32 v43, v{KD+4}, v{KD+4}",
          f"v_cvt_pk_bf16_f32 v44, v{KD+7}, v{KD+3}", f"v_cvt_pk_bf16_f32 v45, v{KD+2}, v{KD+1}",
          f"v_cvt_pk_bf16_f32 v46, v{KD+6}, v{KD+6}", f"v_cvt_pk_bf16_f32 v47, v{KD+5}, v{KD+4}",
          "v_lshrrev_b32 v9, 16, v41"])
    a("ds_write_b64 v18, v[44:45] offset:3584")
    a("ds_write_b64 v18, v[46:47] offset:3072")
    a("ds_write2_b32 v36, v40, v41 offset0:128 offset1:129")
    a("ds_write2_b32 v36, v42, v43 offset0:0 offset1:1")
    a("ds_write2_b32 v37, v44, v45 offset0:128 offset1:129")
    a("ds_write2_b32 v37, v46, v47 offset0:0 offset1:1")
    a(f"ds_write_b64 v18, v[40:41] offset:{3*KPC+8+3584}")
    a(f"ds_write_b64 v18, v[42:43] offset:{3*KPC+8+3072}")
    a("s_mov_b64 exec, s[72:73]")
    a("ds_write_b32 v18, v9 offset:3592")
    a("ds_write_b32 v37, v9 offset:520")
    a(f"ds_add_u32 v167, v{VONE} offset:{S_KN}")
    a("s_mov_b64 exec, -1")
    ready()
    prime()
    a("s_mov_b32 s63, 3")
    a("KA_CV0:")
    steps(True, False, False)
    a("s_sub_u32 s63, s63, 1")
    a("s_cmp_lg_u32 s63, 0")
    a("s_cbranch_scc1 KA_CV0")
    wait(S_KF, 1, 167)
    a("s_branch KA_XD")
    a("KA_X1:")
    r8, r9, r10, r11, r12, r13, r14, r15 = [KD + i for i in range(8)]
    V4 = [r8]*3 + [r9]*3 + [r10]*5 + [r11]
    V8a = [r12]*4 + [36] + [r13]*7
    V8b = [r14]*4 + [37] + [r15]*7
    tail(["v_and_b32 v8, 1, v1", "v_cmp_eq_u32 s[72:73], 1, v8", "v_cmp_eq_u32 s[70:71], 32, v1", "v_lshlrev_b32 v8, 9, v3", "v_sub_u32 v19, v19, v8", "v_sub_u32 v18, v19, v8",
          f"v_cndmask_b32 v36, v{r13}, v{r12}, s[72:73]", f"v_cndmask_b32 v37, v{r15}, v{r14}, s[72:73]", f"v_cndmask_b32 v{r11}, v{r11}, v{r10}, s[70:71]",
          f"v_cvt_pk_bf16_f32 v8, v{r9}, v{r8}", f"v_cvt_pk_bf16_f32 v9, v{r8}, v{r8}", "v_mov_b32 v12, s52"])
    a("s_mov_b32 exec_lo, 0x80000000\ns_mov_b32 exec_hi, 0")
    a(f"ds_write_b32 v{VSY}, v12 offset:{S_NONCE}")
    a(f"ds_write_b32 v19, v9 offset:{KPC+2560+16}")
    a(f"ds_write_b32 v19, v9 offset:{2*KPC+2560+16}")
    a(f"ds_write_b64 v19, v[8:9] offset:{3*KPC+2560+16}")
    a("s_mov_b64 exec, -1")
    ready()
    prime()
    for (V, ad, off) in ((V4, 19, 2560), (V8a, 18, 1536), (V8b, 18, 1024)):
        ex = []
        for c in range(4):
            R = 40 + 4 * (c & 1)
            ex.append([f"v_cvt_pk_bf16_f32 v{R+d}, v{V[8+c-2*d]}, v{V[7+c-2*d]}" for d in range(4)] + [f"ds_write_b128 v{ad}, {vr(R,4)} offset:{c*KPC+off}"])
        steps(True, False, False, ex)
    sig(S_KF, 167)
    a("KA_XD:")
    def loop(lab, nxt, near, paced):
        a(f"{lab}:")
        if paced and "xcv" in X: a("s_branch KA_CVE")
        if not paced: a(f"ds_read_b32 v{VTMP}, v{VSY} offset:{S_GO}")
        steps(near, paced, True)
        if not paced: a(f"v_readfirstlane_b32 s76, v{VTMP}")
        a("s_sub_u32 s63, s63, 1")
        a("s_cmp_lg_u32 s63, 0")
        if not paced:
            a(f"s_cbranch_scc0 {nxt}")
            a("s_cmp_eq_u32 s76, 0")
        a(f"s_cbranch_scc1 {lab}")
    a("s_mov_b32 s63, 5")
    loop("KA_CV1", "KA_CVM", True, False)
    loop("KA_CV1P", None, True, True)
    a("KA_CVM:")
    a("s_mov_b32 s63, 8")
    a("s_cmp_lg_u32 s76, 0")
    a("s_cbranch_scc1 KA_CV2P")
    loop("KA_CV2", "KA_CVE", False, False)
    loop("KA_CV2P", None, False, True)
    a("KA_CVE:")
    st(7)
    a("s_lshl_b32 s63, s54, 12")
    a(f"s_add_u32 s63, s63, {L_CX}")
    a("v_add_u32 v13, s63, v4")
    a("v_xor_b32 v14, 4096, v13")
    wait(S_QRDY, 4)
    a("s_cmp_eq_u32 s61, 0")
    a("s_cbranch_scc0 KA_CVS")
    for i in range(4): a(f"ds_write_b128 v13, {vr(D1+4*i,4)} offset:{1024*i}")
    sig(S_CV, 167)
    wait(S_CV, 2, 167, nap=1)
    for i in range(4): a(f"ds_read_b128 {vr(D1+4*i,4)}, v14 offset:{1024*i}")
    a("s_branch KA_CVJ")
    a("KA_CVS:")
    for i in range(4): a(f"ds_write_b128 v13, {vr(D0+4*i,4)} offset:{1024*i}")
    sig(S_CV, 167)
    wait(S_CV, 2, 167, nap=1)
    for i in range(4): a(f"ds_read_b128 {vr(D0+4*i,4)}, v14 offset:{1024*i}")
    a("KA_CVJ:")
    a("s_lshl_b32 s56, s49, 2")
    a("s_and_b32 s57, s50, 3")
    a("s_add_u32 s56, s56, s57")
    a("s_lshr_b32 s57, s50, 2")
    a("s_lshl_b32 s72, s56, 11")
    a(f"s_add_u32 s72, s72, {W2_FO}")
    a("s_lshl_b32 s65, s56, 1")
    a("s_add_u32 s65, s65, s61")
    a("s_lshl_b32 s63, s57, 1")
    a("s_add_u32 s63, s63, s62")
    a("s_lshl_b32 s74, s63, 6")
    a("s_lshl_b32 s64, s65, 15")
    a("s_add_u32 s74, s74, s64")
    a("s_lshl_b32 s73, s57, 18")
    a("s_lshl_b32 s64, s54, 16")
    a("s_add_u32 s73, s73, s64")
    a("s_lshl_b32 s64, s56, 7")
    a("s_add_u32 s73, s73, s64")
    a(f"s_add_u32 s73, s73, {W2_GA}")
    a("s_lshl_b32 s75, s65, 8")
    a(f"s_add_u32 s75, s75, {W2_G}")
    a("v_mov_b32 v155, s52")
    a("s_lshl_b32 s63, s55, 13")
    a("s_lshl_b32 s64, s54, 11")
    a("s_add_u32 s63, s63, s64")
    a(f"s_add_u32 s63, s63, {W2_GA}")
    a("s_waitcnt lgkmcnt(0)")
    sig(S_CD)
    for i in range(16): a(f"v_add_f32 v{D0+i}, v{D0+i}, v{D1+i}")
    for i in range(8): a(f"v_cvt_pk_bf16_f32 v{64+i}, v{D0+2*i}, v{D0+2*i+1}")
    a(f"ds_write_b128 v{PS}, v[64:67]")
    a(f"ds_write_b128 v{PS}, v[68:71] offset:64")
    a(f"ds_read_b128 v[64:67], v{POF}")
    a(f"ds_read_b128 v[68:71], v{POF} offset:1024")
    a("s_waitcnt lgkmcnt(0)")
    a("buffer_store_dwordx4 v[64:67], v4, s[44:47], s63 offen sc1")
    a("buffer_store_dwordx4 v[68:71], v4, s[44:47], s63 offen offset:1024 sc1")
    if "nop3" in X: a("s_branch KA_AUXEND")
    a("s_lshl_b32 s63, s50, 11")
    a(f"s_add_u32 s71, s63, {W2_FO}")
    a("s_lshl_b32 s70, s49, 7")
    a("s_add_u32 s63, s71, s70")
    a("s_load_dword s68, s[34:35], s63")
    srd(a, 36, 26, 27, 512 * 512 * 2)
    srd(a, 40, 30, 31, 2048 * 512 * 2)
    a("v_lshlrev_b32 v12, 2, s49")
    wait(S_CD, 5, nap=4)
    a("s_waitcnt vmcnt(0)")
    a("s_mov_b64 exec, 1")
    a(f"ds_add_rtn_u32 v{VTMP}, v{VSY}, v{VONE} offset:{S_PC}")
    a("s_waitcnt lgkmcnt(0)")
    a(f"v_readfirstlane_b32 s76, v{VTMP}")
    a("s_cmp_lg_u32 s76, 3")
    a("s_cbranch_scc1 KA_NCL")
    a("buffer_store_dword v155, v156, s[44:47], s67 offen offset:2048 sc1")
    a("buffer_store_dword v155, v12, s[44:47], s71 offen offset:1024 sc1")
    a("KA_NCL:")
    a("s_mov_b64 exec, -1")
    a("s_lshl_b32 s58, s54, 12")
    a(f"s_add_u32 s58, s58, {L_WO}")
    a("s_lshl_b32 s59, s54, 15")
    a("s_lshl_b32 s63, s57, 7")
    a("s_add_u32 s59, s59, s63")
    for c in range(4):
        if "wrot" in X:
            a(f"s_add_u32 s64, s50, {c}")
            a("s_and_b32 s64, s64, 3")
            a("s_lshl_b32 s63, s64, 14")
            a("s_add_u32 m0, s58, s63")
            a("s_lshl_b32 s63, s64, 17")
            a("s_add_u32 s63, s63, s59")
        else:
            a(f"s_add_u32 m0, s58, {16384*c}")
            a(f"s_add_u32 s63, s59, {131072*c}")
        for q in range(4):
            if "xwo" not in X: a(f"buffer_load_dwordx4 v{PW+q}, s[36:39], s63 offen offset:{1024*q} lds")
        a("s_waitcnt vmcnt(0)")
    a("s_xor_b32 s63, s57, 4")
    a(f"s_mul_i32 s63, s63, {GRS}")
    a(f"s_add_u32 s63, s63, {G_FL+2048}")
    a("s_add_u32 s64, s34, s63")
    a("s_addc_u32 s65, s35, 0")
    a("s_add_u32 s70, s72, 1024")
    if "p3st" in X: a.stamp(1)
    if "preout" in X:
        a("s_lshl_b32 s4, s56, 16")
        a("s_lshl_b32 s5, s54, 14")
        a("s_add_u32 s4, s4, s5")
        a("s_lshl_b32 s5, s57, 7")
        a("s_add_u32 s4, s4, s5")
        a("s_add_u32 s4, s30, s4")
        a("s_addc_u32 s5, s31, 0")
        for i in range(16): a(f"s_load_dwordx2 s[68:69], s[4:5], {1024*i+60}")
    if "lkw" in X: wait(S_WB, 1, nap=16)
    a("s_mov_b32 s71, 0")
    G = ""
    a("s_load_dwordx16 s[4:19], s[64:65], 0" + G)
    a("s_load_dwordx8 s[20:27], s[34:35], s70" + G)
    a("s_load_dword s68, s[64:65], 64" + G)
    a("s_waitcnt lgkmcnt(0)")
    for r in range(4, 28):
        a(f"s_xor_b32 s{r}, s{r}, s52")
        a(f"s_or_b32 s71, s71, s{r}")
    a("s_load_dwordx16 s[4:19], s[64:65], 64" + G)
    a("s_waitcnt lgkmcnt(0)")
    for r in range(4, 20):
        a(f"s_xor_b32 s{r}, s{r}, s52")
        a(f"s_or_b32 s71, s71, s{r}")
    a("s_cbranch_scc0 KA_PCD")
    a("v_and_b32 v9, 7, v1")
    a("v_lshlrev_b32 v9, 2, v9")
    a(f"s_mov_b32 s69, {SLOW_TRIES}")
    a("KA_PC:")
    a("s_sleep 32")
    a("buffer_load_dword v10, v157, s[44:47], s63 offen sc1")
    a("buffer_load_dword v11, v9, s[44:47], s70 offen sc1")
    a("s_waitcnt vmcnt(0)")
    a("v_cmp_ne_u32 vcc, s52, v10")
    a("v_cmp_ne_u32 s[4:5], s52, v11")
    a("s_or_b64 vcc, vcc, s[4:5]")
    a("s_cbranch_scc0 KA_PCD")
    a("s_sub_u32 s69, s69, 1")
    a("s_cbranch_scc0 KA_PC")
    a("KA_PCD:")
    if "p3st" in X: a.stamp(2)
    if "gat" in X:
        a("s_add_u32 s64, s34, s73")
        a("s_addc_u32 s65, s35, 0")
        for i in range(16): a(f"s_load_dwordx2 s[68:69], s[64:65], {4096*i+60}")
    D, DA, GA, DG = 112, 128, 32, 40
    a("s_lshl_b32 s58, s54, 11")
    a(f"s_add_u32 m0, s58, {L_GA}")
    a("s_add_u32 s63, s73, 31744")
    a("s_waitcnt vmcnt(0) lgkmcnt(0)")
    if "xga" not in X:
        a(f"buffer_load_dwordx4 v{PD}, s[44:47], s73 offen sc1 lds")
        a(f"buffer_load_dwordx4 v{PD}, s[44:47], s63 offen offset:1024 sc1 lds")
    a(f"buffer_load_dwordx2 v[14:15], v{PG}, s[44:47], s75 offen sc1")
    dsig(f"s_add_u32 m0, s60, {S_WA-S_UA}")
    a("s_lshl_b32 s58, s61, 12")
    a("s_lshl_b32 s59, s56, 16")
    a("s_add_u32 s59, s59, s58")
    a(f"s_add_u32 s59, s59, {W2_O}")
    a("s_waitcnt vmcnt(0)")
    wait4(S_WA, nap=4)
    a(f"ds_read_b128 {vr(GA,4)}, v{PA}")
    a(f"ds_read_b128 {vr(GA+4,4)}, v{PA} offset:64")
    a("v_lshrrev_b32 v13, 16, v14")
    a("v_or_b32 v13, v13, v14")
    for k in range(8):
        a(f"v_and_b32 v{DG+k}, v13, v{PM+k}")
    a("s_waitcnt lgkmcnt(0)")
    a("s_nop 0")
    a(f"{MF} {vr(DA,16)}, {vr(GA,4)}, {vr(DG,4)}, 0")
    a(f"{MF} {vr(DA,16)}, {vr(GA+4,4)}, {vr(DG+4,4)}, {vr(DA,16)}")
    if "p3st" in X: a.stamp(3)
    if "wb" in X:
        a("s_lshl_b32 s63, s50, 2")
        a("s_add_u32 s63, s63, s54")
        a("s_cmp_lg_u32 s63, 0")
        a("s_cbranch_scc1 KA_NOWB")
        a("buffer_wbl2 sc1")
        a("KA_NOWB:")
    OB4, W0, W1, D2 = 48, 16, 32, 144
    a(f"v_mov_b32 v2, v{POUT}")
    a(f"v_mov_b32 v5, v{PWF}")
    a("s_lshl_b32 s63, s54, 12")
    a(f"s_add_u32 s64, s63, {L_GT}")
    a("v_add_u32 v6, s64, v4")
    a("s_xor_b32 s63, s63, 8192")
    a(f"s_add_u32 s64, s63, {L_GT}")
    a("v_add_u32 v11, s64, v4")
    a("s_lshl_b32 s63, s61, 2")
    a(f"v_add_u32 v14, s63, v{VSY}")
    if "mz" in X:
        for i in range(4): a(f"v_mov_b32 v{W0+i}, 0")
        a("s_nop 1")
        a(f"{MF} {vr(D,16)}, {vr(W0,4)}, {vr(W0,4)}, 0")
        a(f"{MF} {vr(D2,16)}, {vr(W0,4)}, {vr(W0,4)}, 0")
    else:
        for i in range(16):
            a(f"v_mov_b32 v{D+i}, 0")
            a(f"v_mov_b32 v{D2+i}, 0")
    a("s_lshl_b32 s4, 0x55, s62")
    a(f"s_mov_b32 s7, {LDS_SPIN}")
    wait(S_FIN, FINN, nap=8)
    if "p3st" in X: a.stamp(4)
    a("KA_OL:")
    a(f"ds_read_b32 v10, v{VSY} offset:{S_PO}")
    a("s_sub_u32 s7, s7, 1")
    a("s_cselect_b32 s6, 0xff, 0")
    a("s_waitcnt lgkmcnt(0)")
    a("v_readfirstlane_b32 s5, v10")
    a("s_or_b32 s5, s5, s6")
    a("s_and_b32 s5, s5, s4")
    a("s_cbranch_scc0 KA_OL")
    for k in range(4):
        a(f"s_ff1_i32_b32 s{8+k}, s5")
        a(f"s_lshl_b32 s63, s{8+k}, 13")
        a("s_add_u32 s63, s63, s59")
        for q in range(4): a(f"buffer_load_dwordx4 {vr(OB4+16*k+4*q,4)}, v4, s[44:47], s63 offen offset:{1024*q} sc1")
        a(f"s_bitset0_b32 s4, s{8+k}")
        a(f"s_bitset0_b32 s5, s{8+k}")
        if k < 3:
            a("s_cmp_eq_u32 s5, 0")
            a(f"s_cbranch_scc1 KA_OP{k+1}")
    def wadr(k):
        a(f"s_lshl_b32 s63, s{8+k}, 13")
        a("v_add_u32 v12, s63, v5")
        a("v_xor_b32 v13, 64, v12")
    def rdw(W, ad, q):
        a(f"ds_read_b64_tr_b16 {vr(W+4*q,2)}, v{ad} offset:{2048*q}")
        a(f"ds_read_b64_tr_b16 {vr(W+4*q+2,2)}, v{ad} offset:{2048*q+1024}")
    for n in (4, 3, 2, 1):
        a(f"KA_OP{n}:")
        wadr(0)
        for q in range(4): rdw(W1, 13, q)
        a("s_waitcnt lgkmcnt(4)")
        for q in range(4): rdw(W0, 12, q)
        for k in range(n):
            B = OB4 + 16 * k
            a(f"s_waitcnt vmcnt({4*(n-1-k)}) lgkmcnt(7)")
            if k + 1 < n: wadr(k + 1)
            for q in range(4):
                a(f"{MF} {vr(D2,16)}, {vr(W1+4*q,4)}, {vr(B+4*q,4)}, {vr(D2,16)}")
                if k + 1 < n: rdw(W1, 13, q)
            a("s_waitcnt lgkmcnt(%d)" % (7 if k + 1 < n else 0))
            for q in range(4):
                a(f"{MF} {vr(D,16)}, {vr(W0+4*q,4)}, {vr(B+4*q,4)}, {vr(D,16)}")
                if k + 1 < n: rdw(W0, 12, q)
        a("s_cmp_lg_u32 s4, 0")
        a("s_cbranch_scc1 KA_OL")
        if n > 1: a("s_branch KA_OD")
    a("KA_OD:")
    if "p3st" in X: a.stamp(6)
    a("s_nop 4")
    for i in range(4): a(f"ds_write_b128 v6, {vr(D2+4*i,4)} offset:{1024*i}")
    sig(S_FX, 14)
    for i in range(16): a(f"v_fmac_f32 v{DA+i}, v15, v{D+i}")
    wait(S_FX, 2, 14)
    for i in range(4): a(f"ds_read_b128 {vr(D2+4*i,4)}, v11 offset:{1024*i}")
    if "p3st" in X: a.stamp(7)
    for i in range(4):
        a(f"s_waitcnt lgkmcnt({3-i})")
        for j in range(4): a(f"v_fmac_f32 v{DA+4*i+j}, v15, v{D2+4*i+j}")
    for i in range(8): a(f"v_cvt_pk_bf16_f32 v{GA+i}, v{DA+2*i}, v{DA+2*i+1}")
    a("s_nop 1")
    a(f"v_permlane32_swap_b32 v{GA}, v{GA+2}")
    a(f"v_permlane32_swap_b32 v{GA+1}, v{GA+3}")
    a(f"v_permlane32_swap_b32 v{GA+4}, v{GA+6}")
    a(f"v_permlane32_swap_b32 v{GA+5}, v{GA+7}")
    OF = " nt" if "ont" in X else " sc1" if "osc" in X else " sc0 sc1 nt" if "oall" in X else ""
    a(f"buffer_store_dwordx4 {vr(GA,4)}, v2, s[40:43], s74 offen{OF}")
    a(f"buffer_store_dwordx4 {vr(GA+4,4)}, v2, s[40:43], s74 offen offset:32{OF}")
    a("KA_AUXEND:")
    a.end(0)
```

```python
from common import *
from ka import *

def gen_aux(a, sig, wait, wait4, lbl, X, gettag, mktag, publish, collect, dsig):
    import ka
    cmul = ka.cmul if "nopk" in X else ka.cmul_pk
    PSL = 1 if "ps1" in X else 8 if "ps8" in X else 3
    FINN = 4 if "f4" in X else 1 if "f1" in X else 8
    DATA_TRIES = 0 if "dt0" in X else 200
    st = (lambda i: None) if "p3st" in X else a.stamp
    a("KA_AUX:")
    a("s_and_b32 s61, s54, 1")
    a("s_lshr_b32 s62, s54, 1")
    a("s_mov_b32 s52, 0")
    srd(a, 44, 34, 35, W2_END)
    a("s_lshl_b32 s63, s2, 2")
    a("s_add_u32 s63, s63, s54")
    a("s_cmp_lg_u32 s63, 3")
    a("s_cbranch_scc1 KA_NOPUB")
    a("s_memrealtime s[64:65]")
    a("s_waitcnt lgkmcnt(0)")
    a("s_or_b32 s64, s64, 1")
    a("v_mov_b32 v158, 0")
    a("v_mov_b32 v159, s64")
    a("s_mov_b64 exec, 1")
    a("global_store_dword v158, v159, s[32:33] sc1")
    a("s_mov_b64 exec, -1")
    a("KA_NOPUB:")
    a("v_and_b32 v7, 31, v1")
    Z = 160
    a("v_and_b32 v36, 1, v1")
    a("v_lshlrev_b32 v36, 4, v36")
    a("v_mov_b32 v37, 0x3f80")
    a("v_lshlrev_b32 v36, v36, v37")
    a("v_bfe_u32 v37, v1, 1, 2")
    for d in range(4):
        a(f"v_cmp_eq_u32 s[{64+2*d}:{65+2*d}], {d}, v37")
    a("s_nop 0")
    for d in range(4):
        a(f"v_cndmask_b32 v{Z+d}, 0, v36, s[{64+2*d}:{65+2*d}]")
    a("s_lshl_b32 s63, s54, 11")
    a(f"s_add_u32 s63, s63, {L_XCH}")
    a("v_add_u32 v16, s63, v4")
    a(f"s_mul_i32 s63, s62, {KPROW}")
    a(f"s_add_u32 s63, s63, {L_KP}")
    a("v_lshl_add_u32 v19, v7, 4, s63")
    a("s_lshl_b32 s64, s62, 2")
    a(f"v_add_u32 v167, s64, v{VSY}")
    a("v_lshrrev_b32 v32, 2, v7")
    a("v_lshlrev_b32 v32, 3, v32")
    a("v_sub_u32 v33, 4128, v32")
    a("v_lshl_add_u32 v33, v3, 4, v33")
    a("v_and_b32 v32, 3, v7")
    a(f"v_mul_u32_u24 v32, {KPC}, v32")
    a("s_lshl_b32 s64, s61, 6")
    a("s_sub_u32 s64, s63, s64")
    a("s_sub_u32 s64, s64, 416")
    a("v_add3_u32 v38, v32, v33, s64")
    a("v_mul_u32_u24 v39, 144, v7")
    a("v_lshl_add_u32 v39, v3, %d, v39" % (5 if "utw" in X else 4))
    a("s_lshl_b32 s64, s62, %d" % (4 if "utw" in X else 6))
    a("s_mul_i32 s65, s61, 144")
    a("s_sub_u32 s64, s64, s65")
    a(f"s_add_u32 s64, s64, {L_U+31*144-864}")
    a("v_add_u32 v39, s64, v39")
    a("s_lshl_b32 s64, s54, 6")
    for k, r in enumerate((2, 5, 6)):
        a("v_add_u32 v32, s64, v1")
        if k: a(f"v_add_u32 v32, {256*k}, v32")
        a("v_mul_u32_u24 v33, 7282, v32")
        a("v_lshrrev_b32 v33, 16, v33")
        a("v_mul_u32_u24 v34, 9, v33")
        a("v_sub_u32 v34, v32, v34")
        a("v_min_u32 v34, 7, v34")
        if "utw" in X:
            a("v_lshrrev_b32 v35, 1, v34")
            a("v_lshl_add_u32 v33, v33, 2, v35")
            a("v_and_b32 v34, 1, v34")
            a("v_lshlrev_b32 v34, 4, v34")
            a(f"v_lshl_add_u32 v{r}, v33, 10, v34")
        else:
            a("v_lshlrev_b32 v34, 4, v34")
            a(f"v_lshl_add_u32 v{r}, v33, 7, v34")
    a("s_lshl_b32 s74, s50, %d" % (5 if "utw" in X else 13))
    a("s_add_u32 s74, s74, s51")
    a(f"s_add_u32 s74, s74, {G_UT}")
    a("s_lshl_b32 s75, s54, 10")
    a(f"s_add_u32 s75, s75, {L_U+31*144}")
    a("s_lshl_b32 s60, s54, 2")
    a(f"s_add_u32 s60, s60, {L_SY+S_UA}")
    a("s_lshl_b32 s58, s61, 12")
    a("s_sub_u32 s58, 2048, s58")
    a(f"s_mov_b32 s63, {hex(LOG2E_HI)}")
    a("s_waitcnt vmcnt(7)")
    a("v_mul_f32 v17, s63, v14")
    a("v_fma_f32 v18, v14, s63, -v17")
    a(f"v_fmac_f32 v18, {hex(LOG2E_LO)}, v14")
    a("v_exp_f32 v17, v17")
    a(f"v_mul_f32 v18, {hex(LN2)}, v18")
    a("v_fma_f32 v17, v17, v18, v17")
    a("v_cvt_pk_bf16_f32 v17, v17, v17")
    a("v_and_b32 v17, 0xffff0000, v17")
    a("s_waitcnt vmcnt(0)")
    st(1)
    for r in (8, 9, 10, 11):
        a(f"v_mul_f32 v{r}, v17, v{r}")
    a("v_mul_f32 v8, s63, v8")
    a("v_mul_f32 v9, 0.15915494, v9")
    W1, W8, W256, W2, W4, W16 = 20, 22, 24, 26, 28, 30
    tmp = 32
    for k, mult in enumerate((1.0, 8.0, 256.0)):
        t = tmp + 2 * k
        a(f"v_mul_f32 v{t}, {hex(f2u(mult))}, v8")
        a(f"v_mul_f32 v{t+1}, {hex(f2u(mult))}, v9")
    for k in range(3):
        t = tmp + 2 * k
        a(f"v_exp_f32 v{t}, v{t}")
        a(f"v_fract_f32 v{t+1}, v{t+1}")
    for k, wr in enumerate((W1, W8, W256)):
        t = tmp + 2 * k
        a(f"v_cos_f32 v{wr}, v{t+1}")
        a(f"v_sin_f32 v{wr+1}, v{t+1}")
    U = {}
    nxt = [40]
    def newU(av):
        U[av] = {524: 8, 780: 10}.get(av) or nxt[0]
        if U[av] == nxt[0]: nxt[0] += 2
        return U[av]
    for l in cmul(newU(0), 12, 10): a(l)
    for k, wr in enumerate((W1, W8, W256)):
        t = tmp + 2 * k
        a(f"v_mul_f32 v{wr}, v{t}, v{wr}")
        a(f"v_mul_f32 v{wr+1}, v{t}, v{wr+1}")
    for l in interleave([cmul(W2, W1, W1), cmul(W16, W8, W8)]): a(l)
    for l in cmul(W4, W2, W2): a(l)
    WA, WB, WR, WI, UR, UI = 96, 100, 112, 128, 144, 96
    wops = [f"v_cvt_pk_bf16_f32 v{WR+15}, v{W8}, 1.0", f"v_cvt_pk_bf16_f32 v{WI+15}, v{W8+1}, 0"]
    ca, cb = W16, None
    wops += cmul(WB, W8, W16); cb = WB
    for k in range(1, 16):
        pk = [f"v_cvt_pk_bf16_f32 v{WR+15-k}, v{cb}, v{ca}", f"v_cvt_pk_bf16_f32 v{WI+15-k}, v{cb+1}, v{ca+1}"]
        if k < 15:
            na, nb = WA + 2 * (k & 1), WB + 2 * (k & 1)
            wops += interleave([cmul(na, ca, W16), cmul(nb, cb, W16), pk])
            ca, cb = na, nb
        else:
            wops += pk
    u1 = []; prev = 0
    for av in (256, 512, 768, 1024, 1280, 1536, 1792):
        u1 += cmul(newU(av), U[prev], W256); prev = av
    for av in (1024, 1280, 1536, 1792):
        u1 += cmul(newU(av + 8), U[av], W8)
    for av in (516, 520, 524):
        u1 += cmul(newU(av), U[av - 4], W4)
    u2 = []
    for av in range(1, 9):
        u2 += cmul(newU(av), U[av - 1], W1)
    for av in (258, 260, 262, 264):
        u2 += cmul(newU(av), U[av - 2], W2)
    for av in (772, 776, 780):
        u2 += cmul(newU(av), U[av - 4], W4)
    assert nxt[0] <= 96
    for l in interleave([wops, interleave([u1, u2])]): a(l)
    rows = [0,1,2,3,4,5,6,7, 256,258,260,4,260,262,264,8, 512,516,520,524,768,772,776,780,
            1024,1032,1280,1288,1536,1544,1792,1800]
    for p in range(16):
        x, y = U[rows[2*p]], U[rows[2*p+1]]
        a(f"v_cvt_pk_bf16_f32 v{UR+p}, v{x}, v{y}")
        a(f"v_cvt_pk_bf16_f32 v{UI+p}, -v{x+1}, -v{y+1}")
    TD, ES, KD = 40, 88, 20
    nb = [0]
    def bar(n=1):
        for _ in range(n):
            a("s_barrier"); nb[0] += 1
    for q in range(2):
        a(f"s_mov_b32 s64, {hex(0xff << (8*q))}")
        a(f"s_mov_b32 s65, {hex(0xff0000 << (8*q))}")
        for d in range(4):
            a(f"v_cndmask_b32 v{ES+4*q+d}, 0, v{Z+d}, s[64:65]")
    a("s_load_dword s52, s[32:33], 0")
    halves = [Xm + 8 * hf for Xm in (WR, UR, WI, UI) for hf in range(2)]
    def tm(i):
        T = TD + 16 * (i % 3)
        return [f"{MF} {vr(T,16)}, {vr(halves[i],4)}, {vr(ES,4)}, 0", f"{MF} {vr(T,16)}, {vr(halves[i]+4,4)}, {vr(ES+4,4)}, {vr(T,16)}"]
    def tc(i):
        T = TD + 16 * (i % 3)
        return [f"v_cvt_pk_bf16_f32 v{halves[i]+k}, v{T+2*k}, v{T+2*k+1}" for k in range(8)]
    def ts(Xm): return [f"v_permlane16_swap_b32 v{Xm+k}, v{Xm+8+k}" for k in range(8)]
    def fin(XU, XW, first): return [f"{MF} {vr(KD,16)}, {vr(XU+4*i,4)}, {vr(XW+4*i,4)}, " + ("0" if first and i == 0 else vr(KD,16)) for i in range(4)]
    def mixm(m, v):
        n = (len(v) + len(m) - 1) // len(m)
        for i, t in enumerate(m):
            a(t)
            for u in v[i*n:(i+1)*n]: a(u)
    a("s_nop 0")
    for t in tm(0) + tm(1) + tm(2): a(t)
    a("s_nop 7")
    for t in tc(0): a(t)
    mixm(tm(3), ["s_nop 0"] + tc(1))
    mixm(tm(4), tc(2) + ts(WR))
    mixm(tm(5), tc(3))
    mixm(tm(6), tc(4) + ts(UR))
    mixm(tm(7), tc(5))
    mixm(fin(UR, WR, True), tc(6) + ts(WI) + tc(7))
    a("s_nop 1")
    for t in ts(UI): a(t)
    a("s_nop 1")
    for t in fin(UI, WI, False): a(t)
    NPRE = 4
    a("v_lshlrev_b32 v157, 2, v7")
    a("v_lshlrev_b32 v156, 2, s50")
    a("v_mov_b32 v154, 0x7ffffff0")
    a("v_add_u32 v17, s58, v16")
    a("s_cmp_eq_u32 s61, s62")
    a("s_nop 6")
    a("s_cbranch_scc1 KA_X0")
    for i in range(8): a(f"v_swap_b32 v{KD+i}, v{KD+8+i}")
    a("KA_X0:")
    a(f"ds_write_b128 v16, {vr(KD+8,4)}")
    a(f"ds_write_b128 v16, {vr(KD+12,4)} offset:1024")
    if "xw" in X: a("s_waitcnt lgkmcnt(0)")
    if NPRE == 4: st(2)
    bar(4 - nb[0])
    gettag()
    mktag(0)
    a("s_cmp_lg_u32 s54, 0")
    a("s_cbranch_scc1 KA_NPB")
    publish()
    a("KA_NPB:")
    bar()
    D0, D1, FA, FB, FC = 112, 128, 48, 64, 80
    PW, PG, PA, PF, POF, PWF, POUT, PM, PS, PD = 144, 148, 149, 150, 151, 152, 153, 100, 108, 109
    w = ["v_lshrrev_b32 v8, 3, v1", "v_bfe_u32 v9, v1, 4, 1", "v_lshlrev_b32 v9, 2, v9", "v_and_b32 v10, 7, v1", "v_xor_b32 v9, v9, v10",
         "v_lshlrev_b32 v9, 4, v9", f"v_lshl_add_u32 v{PW}, v8, 10, v9"] + [f"v_add_u32 v{PW+q}, {7168*q}, v{PW}" for q in range(1, 4)]
    w += [f"v_lshlrev_b32 v{PF}, 7, v10", f"v_lshlrev_b32 v{PG}, 3, v7", f"v_lshlrev_b32 v{PD}, 12, v8", f"v_lshl_add_u32 v{PD}, v10, 4, v{PD}",
          "s_lshl_b32 s63, s62, 12", "s_lshl_b32 s64, s61, 4", "s_add_u32 s63, s63, s64", f"s_add_u32 s63, s63, {L_GA}",
          f"v_lshl_add_u32 v{PA}, v7, 7, s63", f"v_lshl_add_u32 v{PA}, v3, 5, v{PA}",
          f"v_lshlrev_b32 v{POUT}, 10, v7", f"v_lshl_add_u32 v{POUT}, v3, 4, v{POUT}",
          "s_lshl_b32 s63, s54, 11", f"s_add_u32 s63, s63, {L_GT}", f"v_add_u32 v{POF}, s63, v4",
          "v_lshrrev_b32 v8, 1, v7", f"v_lshl_add_u32 v{PS}, v8, 7, s63", f"v_lshl_add_u32 v{PS}, v3, 5, v{PS}", "v_and_b32 v8, 1, v7", f"v_lshl_add_u32 v{PS}, v8, 4, v{PS}",
          "v_bfe_u32 v8, v1, 2, 2", f"v_lshl_add_u32 v{PWF}, v3, 2, v8", f"v_lshlrev_b32 v{PWF}, 7, v{PWF}", "v_lshrrev_b32 v8, 1, v8", "v_xor_b32 v8, s62, v8",
          f"v_lshl_add_u32 v{PWF}, v8, 6, v{PWF}", "v_bfe_u32 v8, v1, 4, 1", f"v_lshl_add_u32 v{PWF}, v8, 5, v{PWF}", "v_and_b32 v8, 3, v1",
          f"v_lshl_add_u32 v{PWF}, v8, 3, v{PWF}", f"v_add_u32 v{PWF}, {L_WO}, v{PWF}"]
    w += ["v_lshrrev_b32 v8, 3, v7", "v_bfe_u32 v9, v7, 1, 1", "v_lshl_add_u32 v8, v8, 1, v9", "v_bfe_u32 v9, v7, 2, 1", "v_xor_b32 v9, v9, v3",
          "v_lshl_add_u32 v8, v9, 3, v8", "v_and_b32 v9, 1, v7", "v_lshlrev_b32 v9, 4, v9", "v_mov_b32 v10, 0xffff", "v_lshlrev_b32 v9, v9, v10"]
    w += [f"v_cmp_eq_u32 s[{4+2*k}:{5+2*k}], {k}, v8" for k in range(8)] + ["s_nop 0"]
    w += [f"v_cndmask_b32 v{PM+k}, 0, v9, s[{4+2*k}:{5+2*k}]" for k in range(8)]
    n = (len(w) + 3) // 4
    for k in range(3):
        bar()
        for t in w[k*n:(k+1)*n]: a(t)
    a("s_waitcnt lgkmcnt(0)")
    bar()
    a(f"ds_read_b128 {vr(KD+8,4)}, v17")
    a(f"ds_read_b128 {vr(KD+12,4)}, v17 offset:1024")
    for t in w[3*n:]: a(t)
    bar()
    a("buffer_load_dword v158, v157, s[44:47], s67 offen sc1")
    a("s_waitcnt lgkmcnt(0)")
    for i in range(8):
        a(f"v_add_f32 v{KD+i}, v{KD+i}, v{KD+8+i}")
    def uload():
        l = lbl("UL")
        a("s_mov_b32 m0, s75")
        a("s_cmp_lg_u32 s54, 0")
        a("buffer_load_dwordx4 v2, s[44:47], s74 offen" + (" nt" if "ntu" in X else "") + " lds")
        a(f"s_cbranch_scc1 {l}")
        a("s_add_u32 m0, s75, 8192")
        a("s_nop 0")
        a("buffer_load_dwordx4 v6, s[44:47], s74 offen" + (" nt" if "ntu" in X else "") + " lds")
        a(f"{l}:")
        a("s_add_u32 m0, s75, 4096")
        a("s_nop 0")
        a("buffer_load_dwordx4 v5, s[44:47], s74 offen" + (" nt" if "ntu" in X else "") + " lds")
        dsig("s_mov_b32 m0, s60")
    def tail(work):
        l = lbl("UE")
        work = work + [f"v_mov_b32 v{D0+i}, 0" for i in range(32)]
        n = (len(work) + 3) // 4
        parts = [work[i*n:(i+1)*n] for i in range(4)]
        a("s_barrier")
        for t in parts[0]: a(t)
        a("s_barrier")
        for t in parts[1]: a(t)
        a("s_barrier")
        a("s_waitcnt vmcnt(0)")
        a("v_cmp_ne_u32 vcc, s66, v158")
        a("s_mov_b32 s59, 1")
        a(f"s_cbranch_vccnz {l}")
        a("s_mov_b32 s59, 0")
        uload()
        a(f"{l}:")
        a("s_barrier")
        for t in parts[2]: a(t)
        a("s_barrier")
        for t in parts[3]: a(t)
        a("s_barrier")
        st(3)
    def ready():
        l = lbl("UK")
        a("s_cmp_eq_u32 s59, 0")
        a(f"s_cbranch_scc1 {l}")
        collect(False, "s_cmp_eq_u32 s54, 0")
        uload()
        a(f"{l}:")
        st(4)
        wait4(S_UA)
        st(5)
        wait(S_KN, 2, 167)
        st(6)
        if "noaux" in X: a("s_branch KA_AUXEND")
    def rdA(slot, step, w=False):
        o = 416 - 128 * (step >> 1) - 32 * (step & 1)
        a(f"ds_read_b64 {vr(FA+4*slot,2)}, v38 offset:{o}")
        a(f"ds_read_b64 {vr(FA+4*slot+2,2)}, v38 offset:{o+8}")
    def rdB(R, slot, step, extra=0):
        a(f"ds_read_b128 {vr(R+4*slot,4)}, v39 offset:{864-288*(step>>1)+(0 if step&1 else (64 if 'utw' in X else 32))+extra}")
    def steps(near, paced, flag, extra=None):
        for s in range(4):
            n = (11 if near else 9) - (1 if near and s == 0 and flag else 0)
            a("s_waitcnt lgkmcnt(%d)" % (0 if paced else n))
            a(f"{MF} {vr(D1,16)}, {vr(FA+4*s,4)}, {vr(FB+4*s,4)}, {vr(D1,16)}")
            if near:
                rdB(FB, s, s + 4, 32 * 144)
                if paced: a("s_waitcnt lgkmcnt(0)")
                if extra: [a(t) for t in extra[s][:-1]]
                a(f"{MF} {vr(D0,16)}, {vr(FA+4*s,4)}, {vr(FC+4*s,4)}, {vr(D0,16)}")
                rdA(s, s + 4)
                if paced and "slow" in X: a("s_waitcnt lgkmcnt(0)")
                rdB(FC, s, s + 4)
                if extra: a(extra[s][-1])
            else:
                rdA(s, s + 4)
                if paced and "slow" in X: a("s_waitcnt lgkmcnt(0)")
                rdB(FB, s, s + 4, 32 * 144)
        a("v_subrev_u32 v38, 256, v38")
        a(f"v_subrev_u32 v39, {288*2}, v39")
    def prime():
        for s in range(4):
            if s == 3: a("s_waitcnt lgkmcnt(8)")
            rdB(FB, s, s, 32 * 144); rdA(s, s); rdB(FC, s, s)
    assert nb[0] == 10
    a("s_cmp_eq_u32 s61, s62")
    a("s_cbranch_scc0 KA_X1")
    tail(["v_cmp_eq_u32 s[72:73], 31, v1", "v_lshlrev_b32 v8, 3, v3", "v_xor_b32 v8, 8, v8",
          "v_cndmask_b32 v9, 0, v15, s[72:73]", "v_add_u32 v18, v19, v8", f"v_add_f32 v{KD}, v{KD}, v9",
          f"v_add_u32 v36, {KPC+4+3072}, v18", f"v_add_u32 v37, {2*KPC+4+3072}, v18",
          f"v_cvt_pk_bf16_f32 v40, v{KD+3}, v{KD+2}", f"v_cvt_pk_bf16_f32 v41, v{KD+1}, v{KD+0}",
          f"v_cvt_pk_bf16_f32 v42, v{KD+6}, v{KD+5}", f"v_cvt_pk_bf16_f32 v43, v{KD+4}, v{KD+4}",
          f"v_cvt_pk_bf16_f32 v44, v{KD+7}, v{KD+3}", f"v_cvt_pk_bf16_f32 v45, v{KD+2}, v{KD+1}",
          f"v_cvt_pk_bf16_f32 v46, v{KD+6}, v{KD+6}", f"v_cvt_pk_bf16_f32 v47, v{KD+5}, v{KD+4}",
          "v_lshrrev_b32 v9, 16, v41"])
    a("ds_write_b64 v18, v[44:45] offset:3584")
    a("ds_write_b64 v18, v[46:47] offset:3072")
    a("ds_write2_b32 v36, v40, v41 offset0:128 offset1:129")
    a("ds_write2_b32 v36, v42, v43 offset0:0 offset1:1")
    a("ds_write2_b32 v37, v44, v45 offset0:128 offset1:129")
    a("ds_write2_b32 v37, v46, v47 offset0:0 offset1:1")
    a(f"ds_write_b64 v18, v[40:41] offset:{3*KPC+8+3584}")
    a(f"ds_write_b64 v18, v[42:43] offset:{3*KPC+8+3072}")
    a("s_mov_b64 exec, s[72:73]")
    a("ds_write_b32 v18, v9 offset:3592")
    a("ds_write_b32 v37, v9 offset:520")
    a(f"ds_add_u32 v167, v{VONE} offset:{S_KN}")
    a("s_mov_b64 exec, -1")
    ready()
    prime()
    a("s_mov_b32 s63, 3")
    a("KA_CV0:")
    steps(True, False, False)
    a("s_sub_u32 s63, s63, 1")
    a("s_cmp_lg_u32 s63, 0")
    a("s_cbranch_scc1 KA_CV0")
    wait(S_KF, 1, 167)
    a("s_branch KA_XD")
    a("KA_X1:")
    r8, r9, r10, r11, r12, r13, r14, r15 = [KD + i for i in range(8)]
    V4 = [r8]*3 + [r9]*3 + [r10]*5 + [r11]
    V8a = [r12]*4 + [36] + [r13]*7
    V8b = [r14]*4 + [37] + [r15]*7
    tail(["v_and_b32 v8, 1, v1", "v_cmp_eq_u32 s[72:73], 1, v8", "v_cmp_eq_u32 s[70:71], 32, v1", "v_lshlrev_b32 v8, 9, v3", "v_sub_u32 v19, v19, v8", "v_sub_u32 v18, v19, v8",
          f"v_cndmask_b32 v36, v{r13}, v{r12}, s[72:73]", f"v_cndmask_b32 v37, v{r15}, v{r14}, s[72:73]", f"v_cndmask_b32 v{r11}, v{r11}, v{r10}, s[70:71]",
          f"v_cvt_pk_bf16_f32 v8, v{r9}, v{r8}", f"v_cvt_pk_bf16_f32 v9, v{r8}, v{r8}", "v_mov_b32 v12, s52"])
    a("s_mov_b32 exec_lo, 0x80000000\ns_mov_b32 exec_hi, 0")
    a(f"ds_write_b32 v{VSY}, v12 offset:{S_NONCE}")
    a(f"ds_write_b32 v19, v9 offset:{KPC+2560+16}")
    a(f"ds_write_b32 v19, v9 offset:{2*KPC+2560+16}")
    a(f"ds_write_b64 v19, v[8:9] offset:{3*KPC+2560+16}")
    a("s_mov_b64 exec, -1")
    ready()
    prime()
    for (V, ad, off) in ((V4, 19, 2560), (V8a, 18, 1536), (V8b, 18, 1024)):
        ex = []
        for c in range(4):
            R = 40 + 4 * (c & 1)
            ex.append([f"v_cvt_pk_bf16_f32 v{R+d}, v{V[8+c-2*d]}, v{V[7+c-2*d]}" for d in range(4)] + [f"ds_write_b128 v{ad}, {vr(R,4)} offset:{c*KPC+off}"])
        steps(True, False, False, ex)
    sig(S_KF, 167)
    a("KA_XD:")
    def loop(lab, nxt, near, paced):
        a(f"{lab}:")
        if paced and "xcv" in X: a("s_branch KA_CVE")
        if not paced: a(f"ds_read_b32 v{VTMP}, v{VSY} offset:{S_GO}")
        steps(near, paced, True)
        if not paced: a(f"v_readfirstlane_b32 s76, v{VTMP}")
        a("s_sub_u32 s63, s63, 1")
        a("s_cmp_lg_u32 s63, 0")
        if not paced:
            a(f"s_cbranch_scc0 {nxt}")
            a("s_cmp_eq_u32 s76, 0")
        a(f"s_cbranch_scc1 {lab}")
    a("s_mov_b32 s63, 5")
    loop("KA_CV1", "KA_CVM", True, False)
    loop("KA_CV1P", None, True, True)
    a("KA_CVM:")
    a("s_mov_b32 s63, 8")
    a("s_cmp_lg_u32 s76, 0")
    a("s_cbranch_scc1 KA_CV2P")
    loop("KA_CV2", "KA_CVE", False, False)
    loop("KA_CV2P", None, False, True)
    a("KA_CVE:")
    st(7)
    a("s_lshl_b32 s63, s54, 12")
    a(f"s_add_u32 s63, s63, {L_CX}")
    a("v_add_u32 v13, s63, v4")
    a("v_xor_b32 v14, 4096, v13")
    wait(S_QRDY, 4)
    a("s_cmp_eq_u32 s61, 0")
    a("s_cbranch_scc0 KA_CVS")
    for i in range(4): a(f"ds_write_b128 v13, {vr(D1+4*i,4)} offset:{1024*i}")
    sig(S_CV, 167)
    wait(S_CV, 2, 167, nap=1)
    for i in range(4): a(f"ds_read_b128 {vr(D1+4*i,4)}, v14 offset:{1024*i}")
    a("s_branch KA_CVJ")
    a("KA_CVS:")
    for i in range(4): a(f"ds_write_b128 v13, {vr(D0+4*i,4)} offset:{1024*i}")
    sig(S_CV, 167)
    wait(S_CV, 2, 167, nap=1)
    for i in range(4): a(f"ds_read_b128 {vr(D0+4*i,4)}, v14 offset:{1024*i}")
    a("KA_CVJ:")
    a("s_lshl_b32 s56, s49, 2")
    a("s_and_b32 s57, s50, 3")
    a("s_add_u32 s56, s56, s57")
    a("s_lshr_b32 s57, s50, 2")
    a("s_lshl_b32 s72, s56, 11")
    a(f"s_add_u32 s72, s72, {W2_FO}")
    a("s_lshl_b32 s65, s56, 1")
    a("s_add_u32 s65, s65, s61")
    a("s_lshl_b32 s63, s57, 1")
    a("s_add_u32 s63, s63, s62")
    a("s_lshl_b32 s74, s63, 6")
    a("s_lshl_b32 s64, s65, 15")
    a("s_add_u32 s74, s74, s64")
    a("s_lshl_b32 s73, s57, 18")
    a("s_lshl_b32 s64, s54, 16")
    a("s_add_u32 s73, s73, s64")
    a("s_lshl_b32 s64, s56, 7")
    a("s_add_u32 s73, s73, s64")
    a(f"s_add_u32 s73, s73, {W2_GA}")
    a("s_lshl_b32 s75, s65, 8")
    a(f"s_add_u32 s75, s75, {W2_G}")
    a("v_mov_b32 v155, s52")
    a("s_lshl_b32 s63, s55, 13")
    a("s_lshl_b32 s64, s54, 11")
    a("s_add_u32 s63, s63, s64")
    a(f"s_add_u32 s63, s63, {W2_GA}")
    a("s_waitcnt lgkmcnt(0)")
    sig(S_CD)
    for i in range(16): a(f"v_add_f32 v{D0+i}, v{D0+i}, v{D1+i}")
    for i in range(8): a(f"v_cvt_pk_bf16_f32 v{64+i}, v{D0+2*i}, v{D0+2*i+1}")
    a(f"ds_write_b128 v{PS}, v[64:67]")
    a(f"ds_write_b128 v{PS}, v[68:71] offset:64")
    a(f"ds_read_b128 v[64:67], v{POF}")
    a(f"ds_read_b128 v[68:71], v{POF} offset:1024")
    a("s_waitcnt lgkmcnt(0)")
    a("buffer_store_dwordx4 v[64:67], v4, s[44:47], s63 offen sc1")
    a("buffer_store_dwordx4 v[68:71], v4, s[44:47], s63 offen offset:1024 sc1")
    if "nop3" in X: a("s_branch KA_AUXEND")
    a("s_lshl_b32 s63, s50, 11")
    a(f"s_add_u32 s71, s63, {W2_FO}")
    a("s_lshl_b32 s70, s49, 7")
    a("s_add_u32 s63, s71, s70")
    a("s_load_dword s68, s[34:35], s63")
    srd(a, 36, 26, 27, 512 * 512 * 2)
    srd(a, 40, 30, 31, 2048 * 512 * 2)
    a("v_lshlrev_b32 v12, 2, s49")
    wait(S_CD, 5, nap=4)
    a("s_waitcnt vmcnt(0)")
    a("s_mov_b64 exec, 1")
    a(f"ds_add_rtn_u32 v{VTMP}, v{VSY}, v{VONE} offset:{S_PC}")
    a("s_waitcnt lgkmcnt(0)")
    a(f"v_readfirstlane_b32 s76, v{VTMP}")
    a("s_cmp_lg_u32 s76, 3")
    a("s_cbranch_scc1 KA_NCL")
    a("buffer_store_dword v155, v156, s[44:47], s67 offen offset:2048 sc1")
    a("buffer_store_dword v155, v12, s[44:47], s71 offen offset:1024 sc1")
    a("KA_NCL:")
    a("s_mov_b64 exec, -1")
    a("s_lshl_b32 s58, s54, 12")
    a(f"s_add_u32 s58, s58, {L_WO}")
    a("s_lshl_b32 s59, s54, 15")
    a("s_lshl_b32 s63, s57, 7")
    a("s_add_u32 s59, s59, s63")
    for c in range(4):
        if "wrot" in X:
            a(f"s_add_u32 s64, s50, {c}")
            a("s_and_b32 s64, s64, 3")
            a("s_lshl_b32 s63, s64, 14")
            a("s_add_u32 m0, s58, s63")
            a("s_lshl_b32 s63, s64, 17")
            a("s_add_u32 s63, s63, s59")
        else:
            a(f"s_add_u32 m0, s58, {16384*c}")
            a(f"s_add_u32 s63, s59, {131072*c}")
        for q in range(4):
            if "xwo" not in X: a(f"buffer_load_dwordx4 v{PW+q}, s[36:39], s63 offen offset:{1024*q} lds")
        a("s_waitcnt vmcnt(0)")
    a("s_xor_b32 s63, s57, 4")
    a(f"s_mul_i32 s63, s63, {GRS}")
    a(f"s_add_u32 s63, s63, {G_FL+2048}")
    a("s_add_u32 s64, s34, s63")
    a("s_addc_u32 s65, s35, 0")
    a("s_add_u32 s70, s72, 1024")
    if "p3st" in X: a.stamp(1)
    if "preout" in X:
        a("s_lshl_b32 s4, s56, 16")
        a("s_lshl_b32 s5, s54, 14")
        a("s_add_u32 s4, s4, s5")
        a("s_lshl_b32 s5, s57, 7")
        a("s_add_u32 s4, s4, s5")
        a("s_add_u32 s4, s30, s4")
        a("s_addc_u32 s5, s31, 0")
        for i in range(16): a(f"s_load_dwordx2 s[68:69], s[4:5], {1024*i+60}")
    if "aot" in X:
        a("s_lshl_b32 s4, s50, 16")
        a("s_lshl_b32 s5, s49, 13")
        a("s_add_u32 s4, s4, s5")
        a("s_lshl_b32 s5, s54, 11")
        a("s_add_u32 s4, s4, s5")
        a(f"s_add_u32 s4, s4, {W2_O}")
        a("s_add_u32 s4, s34, s4")
        a("s_addc_u32 s5, s35, 0")
        for i in range(16): a(f"s_load_dwordx2 s[68:69], s[4:5], {128*i+60}")
    if "lkw" in X: wait(S_WB, 1, nap=16)
    a("s_mov_b32 s71, 0")
    G = ""
    a("s_load_dwordx16 s[4:19], s[64:65], 0" + G)
    a("s_load_dwordx8 s[20:27], s[34:35], s70" + G)
    a("s_load_dword s68, s[64:65], 64" + G)
    a("s_waitcnt lgkmcnt(0)")
    for r in range(4, 28):
        a(f"s_xor_b32 s{r}, s{r}, s52")
        a(f"s_or_b32 s71, s71, s{r}")
    a("s_load_dwordx16 s[4:19], s[64:65], 64" + G)
    a("s_waitcnt lgkmcnt(0)")
    for r in range(4, 20):
        a(f"s_xor_b32 s{r}, s{r}, s52")
        a(f"s_or_b32 s71, s71, s{r}")
    a("s_cbranch_scc0 KA_PCD")
    a("v_and_b32 v9, 7, v1")
    a("v_lshlrev_b32 v9, 2, v9")
    a(f"s_mov_b32 s69, {SLOW_TRIES}")
    a("KA_PC:")
    a("s_sleep 32")
    a("buffer_load_dword v10, v157, s[44:47], s63 offen sc1")
    a("buffer_load_dword v11, v9, s[44:47], s70 offen sc1")
    a("s_waitcnt vmcnt(0)")
    a("v_cmp_ne_u32 vcc, s52, v10")
    a("v_cmp_ne_u32 s[4:5], s52, v11")
    a("s_or_b64 vcc, vcc, s[4:5]")
    a("s_cbranch_scc0 KA_PCD")
    a("s_sub_u32 s69, s69, 1")
    a("s_cbranch_scc0 KA_PC")
    a("KA_PCD:")
    if "p3st" in X: a.stamp(2)
    if "gat" in X:
        a("s_add_u32 s64, s34, s73")
        a("s_addc_u32 s65, s35, 0")
        for i in range(16): a(f"s_load_dwordx2 s[68:69], s[64:65], {4096*i+60}")
    D, DA, GA, DG = 112, 128, 32, 40
    a("s_lshl_b32 s58, s54, 11")
    a(f"s_add_u32 m0, s58, {L_GA}")
    a("s_add_u32 s63, s73, 31744")
    a("s_waitcnt vmcnt(0) lgkmcnt(0)")
    if "xga" not in X:
        a(f"buffer_load_dwordx4 v{PD}, s[44:47], s73 offen sc1 lds")
        a(f"buffer_load_dwordx4 v{PD}, s[44:47], s63 offen offset:1024 sc1 lds")
    a(f"buffer_load_dwordx2 v[14:15], v{PG}, s[44:47], s75 offen sc1")
    dsig(f"s_add_u32 m0, s60, {S_WA-S_UA}")
    a("s_lshl_b32 s58, s61, 12")
    a("s_lshl_b32 s59, s56, 16")
    a("s_add_u32 s59, s59, s58")
    a(f"s_add_u32 s59, s59, {W2_O}")
    a("s_waitcnt vmcnt(0)")
    wait4(S_WA, nap=4)
    a(f"ds_read_b128 {vr(GA,4)}, v{PA}")
    a(f"ds_read_b128 {vr(GA+4,4)}, v{PA} offset:64")
    a("v_lshrrev_b32 v13, 16, v14")
    a("v_or_b32 v13, v13, v14")
    for k in range(8):
        a(f"v_and_b32 v{DG+k}, v13, v{PM+k}")
    a("s_waitcnt lgkmcnt(0)")
    a("s_nop 0")
    a(f"{MF} {vr(DA,16)}, {vr(GA,4)}, {vr(DG,4)}, 0")
    a(f"{MF} {vr(DA,16)}, {vr(GA+4,4)}, {vr(DG+4,4)}, {vr(DA,16)}")
    if "p3st" in X: a.stamp(3)
    if "wb" in X:
        a("s_lshl_b32 s63, s50, 2")
        a("s_add_u32 s63, s63, s54")
        a("s_cmp_lg_u32 s63, 0")
        a("s_cbranch_scc1 KA_NOWB")
        a("buffer_wbl2 sc1")
        a("KA_NOWB:")
    OB4, W0, W1, D2 = 48, 16, 32, 144
    a(f"v_mov_b32 v2, v{POUT}")
    a(f"v_mov_b32 v5, v{PWF}")
    a("s_lshl_b32 s63, s54, 12")
    a(f"s_add_u32 s64, s63, {L_GT}")
    a("v_add_u32 v6, s64, v4")
    a("s_xor_b32 s63, s63, 8192")
    a(f"s_add_u32 s64, s63, {L_GT}")
    a("v_add_u32 v11, s64, v4")
    a("s_lshl_b32 s63, s61, 2")
    a(f"v_add_u32 v14, s63, v{VSY}")
    if "mz" in X:
        for i in range(4): a(f"v_mov_b32 v{W0+i}, 0")
        a("s_nop 1")
        a(f"{MF} {vr(D,16)}, {vr(W0,4)}, {vr(W0,4)}, 0")
        a(f"{MF} {vr(D2,16)}, {vr(W0,4)}, {vr(W0,4)}, 0")
    else:
        for i in range(16):
            a(f"v_mov_b32 v{D+i}, 0")
            a(f"v_mov_b32 v{D2+i}, 0")
    a("s_lshl_b32 s4, 0x55, s62")
    a(f"s_mov_b32 s7, {LDS_SPIN}")
    wait(S_FIN, FINN, nap=8)
    if "p3st" in X: a.stamp(4)
    a("KA_OL:")
    a(f"ds_read_b32 v10, v{VSY} offset:{S_PO}")
    a("s_sub_u32 s7, s7, 1")
    a("s_cselect_b32 s6, 0xff, 0")
    a("s_waitcnt lgkmcnt(0)")
    a("v_readfirstlane_b32 s5, v10")
    a("s_or_b32 s5, s5, s6")
    a("s_and_b32 s5, s5, s4")
    a("s_cbranch_scc0 KA_OL")
    for k in range(4):
        a(f"s_ff1_i32_b32 s{8+k}, s5")
        a(f"s_lshl_b32 s63, s{8+k}, 13")
        a("s_add_u32 s63, s63, s59")
        for q in range(4): a(f"buffer_load_dwordx4 {vr(OB4+16*k+4*q,4)}, v4, s[44:47], s63 offen offset:{1024*q} sc1")
        a(f"s_bitset0_b32 s4, s{8+k}")
        a(f"s_bitset0_b32 s5, s{8+k}")
        if k < 3:
            a("s_cmp_eq_u32 s5, 0")
            a(f"s_cbranch_scc1 KA_OP{k+1}")
    def wadr(k):
        a(f"s_lshl_b32 s63, s{8+k}, 13")
        a("v_add_u32 v12, s63, v5")
        a("v_xor_b32 v13, 64, v12")
    def rdw(W, ad, q):
        a(f"ds_read_b64_tr_b16 {vr(W+4*q,2)}, v{ad} offset:{2048*q}")
        a(f"ds_read_b64_tr_b16 {vr(W+4*q+2,2)}, v{ad} offset:{2048*q+1024}")
    for n in (4, 3, 2, 1):
        a(f"KA_OP{n}:")
        wadr(0)
        for q in range(4): rdw(W1, 13, q)
        a("s_waitcnt lgkmcnt(4)")
        for q in range(4): rdw(W0, 12, q)
        for k in range(n):
            B = OB4 + 16 * k
            a(f"s_waitcnt vmcnt({4*(n-1-k)}) lgkmcnt(7)")
            if k + 1 < n: wadr(k + 1)
            for q in range(4):
                a(f"{MF} {vr(D2,16)}, {vr(W1+4*q,4)}, {vr(B+4*q,4)}, {vr(D2,16)}")
                if k + 1 < n: rdw(W1, 13, q)
            a("s_waitcnt lgkmcnt(%d)" % (7 if k + 1 < n else 0))
            for q in range(4):
                a(f"{MF} {vr(D,16)}, {vr(W0+4*q,4)}, {vr(B+4*q,4)}, {vr(D,16)}")
                if k + 1 < n: rdw(W0, 12, q)
        a("s_cmp_lg_u32 s4, 0")
        a("s_cbranch_scc1 KA_OL")
        if n > 1: a("s_branch KA_OD")
    a("KA_OD:")
    if "p3st" in X: a.stamp(6)
    a("s_nop 4")
    for i in range(4): a(f"ds_write_b128 v6, {vr(D2+4*i,4)} offset:{1024*i}")
    sig(S_FX, 14)
    for i in range(16): a(f"v_fmac_f32 v{DA+i}, v15, v{D+i}")
    wait(S_FX, 2, 14)
    for i in range(4): a(f"ds_read_b128 {vr(D2+4*i,4)}, v11 offset:{1024*i}")
    if "p3st" in X: a.stamp(7)
    for i in range(4):
        a(f"s_waitcnt lgkmcnt({3-i})")
        for j in range(4): a(f"v_fmac_f32 v{DA+4*i+j}, v15, v{D2+4*i+j}")
    for i in range(8): a(f"v_cvt_pk_bf16_f32 v{GA+i}, v{DA+2*i}, v{DA+2*i+1}")
    a("s_nop 1")
    a(f"v_permlane32_swap_b32 v{GA}, v{GA+2}")
    a(f"v_permlane32_swap_b32 v{GA+1}, v{GA+3}")
    a(f"v_permlane32_swap_b32 v{GA+4}, v{GA+6}")
    a(f"v_permlane32_swap_b32 v{GA+5}, v{GA+7}")
    OF = " nt" if "ont" in X else " sc1" if "osc" in X else " sc0 sc1 nt" if "oall" in X else ""
    a(f"buffer_store_dwordx4 {vr(GA,4)}, v2, s[40:43], s74 offen{OF}")
    a(f"buffer_store_dwordx4 {vr(GA+4,4)}, v2, s[40:43], s74 offen offset:32{OF}")
    a("KA_AUXEND:")
    a.end(0)
```

```python
from common import *
import math, struct
LOG2E = 1.4426950408889634
LOG2E_HI = f2u(LOG2E)
_hi = struct.unpack("<f", struct.pack("<I", LOG2E_HI))[0]
LOG2E_LO = f2u(LOG2E - _hi)
LN2 = f2u(math.log(2.0))
QSCALE = f2u(0.25 * LOG2E)
MF = "v_mfma_f32_32x32x16_bf16"

L_X, L_W = 0, 65536
NSLOT = 6
L_OX = 0
L_Q = 114688
L_WO, L_GA, L_GT, L_O = 18432, 83968, 98304, 92160
L_CX = 73728
L_KP, KPC = 18688, 8384
L_U = 139264
L_XCH = 153600
L_GW = 161792
L_SY = 162816
KA_LDS = 163840
S_UA, S_WA, S_OA = 0, 16, 32
S_WB, S_UDONE, S_QRDY, S_NONCE, S_CV, S_OX, S_CD, S_FIN, S_PO, S_PC, S_OD, S_GO, S_FX, S_DONE, S_KN, S_KF = 96, 100, 104, 108, 112, 128, 144, 148, 152, 156, 160, 164, 168, 176, 180, 188
VSY, VONE, VTMP, VT4 = 164, 165, 166, 160
UNR = 4
WBIT, NEARLY = 4, 3
LDS_SPIN = 1 << 20
FAST_TRIES = 64
SLOW_TRIES = 20000

def interleave(chains):
    out = []
    chains = [list(c) for c in chains]
    while any(chains):
        for c in chains:
            if c: out.append(c.pop(0))
    return out

def cmul(d, x, w):
    return [f"v_mul_f32 v{d}, v{x}, v{w}", f"v_mul_f32 v{d+1}, v{x}, v{w+1}",
            f"v_fma_f32 v{d}, -v{x+1}, v{w+1}, v{d}", f"v_fmac_f32 v{d+1}, v{x+1}, v{w}"]
def cmul_pk(d, x, w):
    return [f"v_pk_mul_f32 {vr(d,2)}, {vr(x,2)}, {vr(w,2)} op_sel:[0,0] op_sel_hi:[0,1]",
            f"v_pk_fma_f32 {vr(d,2)}, {vr(x,2)}, {vr(w,2)}, {vr(d,2)} op_sel:[1,1,0] op_sel_hi:[1,0,1] neg_lo:[0,1,0]"]

def gen_ka(name, X=()):
    a = Asm()
    PRIO1, PRIO0 = (5 if "pr5" in X else 6), 7
    NSLOT = 7 if "s7" in X else 6
    DD = NSLOT - 2
    NF = 4 if "nf4" in X else 3 if "nf3" in X else 2 if "nf2" in X else 0
    NT = " nt" if "nt" in X else " sc1" if "ksc" in X else ""
    NW = " nt" if "ntw" in X else ""
    NX = " nt" if "ntx" in X else ""
    NP = " nt" if "ntp" in X else ""
    NK = " nt" if "ntk" in X else ""
    PSL = 2 if "ps2" in X else 8 if "ps8" in X else 1 if "ps1" in X else 0 if "ps0" in X else 5
    PDP = 4 if "pd4" in X else 2
    cnt = [0]
    def lbl(p):
        cnt[0] += 1
        return f"KA_{p}{cnt[0]}"
    def sig(off, addr=VSY, val=VONE):
        a("s_mov_b64 exec, 1")
        a(f"ds_add_u32 v{addr}, v{val} offset:{off}")
        a("s_mov_b64 exec, -1")
    def wait(off, n, addr=VSY, out=76, nap=0):
        l, e = lbl("W"), lbl("E")
        a(f"s_mov_b32 s77, {LDS_SPIN}")
        if nap:
            a(f"s_branch {l}F")
        a(f"{l}:")
        if nap:
            a(f"s_sleep {nap}")
            a(f"{l}F:")
        a(f"ds_read_b32 v{VTMP}, v{addr} offset:{off}")
        a("s_sub_u32 s77, s77, 1")
        a("s_cbranch_scc1 " + e)
        a("s_waitcnt lgkmcnt(0)")
        a(f"v_readfirstlane_b32 s{out}, v{VTMP}")
        a(f"s_cmp_lt_u32 s{out}, {n}")
        a("s_cbranch_scc1 " + l)
        a(f"{e}:")
    def wait4(off, addr=VSY, nap=0):
        l, e = lbl("W"), lbl("E")
        a(f"s_mov_b32 s77, {LDS_SPIN}")
        if nap:
            a(f"s_branch {l}F")
        a(f"{l}:")
        if nap:
            a(f"s_sleep {nap}")
            a(f"{l}F:")
        a(f"ds_read_b128 {vr(VT4,4)}, v{addr} offset:{off}")
        a("s_sub_u32 s77, s77, 1")
        a("s_cbranch_scc1 " + e)
        a("s_waitcnt lgkmcnt(0)")
        a(f"v_or3_b32 v{VT4}, v{VT4}, v{VT4+1}, v{VT4+2}")
        a(f"v_or_b32 v{VT4}, v{VT4}, v{VT4+3}")
        a(f"v_cmp_ne_u32 vcc, 0, v{VT4}")
        a("s_cbranch_vccnz " + l)
        a(f"{e}:")
    def gettag():
        l, ok = lbl("TL"), lbl("TK")
        a("s_waitcnt lgkmcnt(0)")
        a("s_cmp_lg_u32 s52, 0")
        a(f"s_cbranch_scc1 {ok}")
        a("v_mov_b32 v155, 0")
        a(f"s_mov_b32 s69, {SLOW_TRIES}")
        a(f"{l}:")
        a("global_load_dword v158, v155, s[32:33] sc1")
        a("s_waitcnt vmcnt(0)")
        a("v_readfirstlane_b32 s52, v158")
        a("s_cmp_lg_u32 s52, 0")
        a(f"s_cbranch_scc1 {ok}")
        a("s_sub_u32 s69, s69, 1")
        a(f"s_cbranch_scc0 {l}")
        a("s_mov_b32 s52, 1")
        a(f"{ok}:")
    def dsig(m0expr):
        a(m0expr)
        a("s_mov_b64 exec, 1")
        a("buffer_load_dword v154, s[44:47], 0 offen lds")
        a("s_mov_b64 exec, -1")
    def mktag(fl_off):
        if "gfl" in X:
            a("s_mov_b32 s66, s52")
            a(f"s_add_u32 s67, s51, {G_FL + fl_off}")
            return
        a("s_getreg_b32 s66, hwreg(HW_REG_XCC_ID)")
        a("s_and_b32 s66, s66, 15")
        a("s_add_u32 s66, s66, 1")
        a("s_lshl_b32 s66, s66, 1")
        a("s_xor_b32 s66, s66, s52")
        a(f"s_add_u32 s67, s51, {G_FL + fl_off}")
    def publish():
        a("v_mov_b32 v155, s66")
        a("s_mov_b64 exec, 1")
        a("buffer_store_dword v155, v156, s[44:47], s67 offen" + (" sc1" if "gfl" in X else ""))
        a("s_mov_b64 exec, -1")
    def collect(wide, own, lanes=1):
        lf, ls, done = lbl("GF"), lbl("GS"), lbl("GD")
        def ld(r, off):
            if wide: a(f"buffer_load_dwordx2 v[{r}:{r+1}], v157, s[44:47], s67 offen offset:{off} sc1")
            else: a(f"buffer_load_dword v{r}, v157, s[44:47], s67 offen offset:{off} sc1")
        a(f"s_mov_b32 s69, {FAST_TRIES}")
        a(f"{lf}:")
        ld(158, 0)
        a("s_waitcnt vmcnt(0)")
        a("v_cmp_ne_u32 vcc, s66, v158")
        if wide:
            a("v_cmp_ne_u32 s[70:71], s66, v159")
            a("s_or_b64 vcc, vcc, s[70:71]")
            a(f"s_cbranch_scc0 {done}")
        else:
            a(f"s_cbranch_vccz {done}")
        a("s_sub_u32 s69, s69, 1")
        a(f"s_cbranch_scc0 {lf}")
        a("buffer_wbl2 sc1")
        a("s_waitcnt vmcnt(0)")
        a("v_mov_b32 v155, s52")
        if own is not None:
            a(own)
            a(f"s_cbranch_scc0 {ls}N")
        a(f"s_mov_b64 exec, {lanes}")
        a("buffer_store_dword v155, v156, s[44:47], s67 offen offset:1024 sc1")
        a("s_mov_b64 exec, -1")
        a(f"{ls}N:")
        a(f"s_mov_b32 s69, {SLOW_TRIES}")
        a(f"{ls}:")
        ld(158, 0)
        ld(160, 1024)
        a("s_waitcnt vmcnt(0)")
        a("v_cmp_ne_u32 vcc, s66, v158")
        a("v_cmp_ne_u32 s[70:71], s52, v160")
        a("s_and_b64 vcc, vcc, s[70:71]")
        if wide:
            a("v_cmp_ne_u32 s[70:71], s66, v159")
            a("v_cmp_ne_u32 s[72:73], s52, v161")
            a("s_and_b64 s[70:71], s[70:71], s[72:73]")
            a("s_or_b64 vcc, vcc, s[70:71]")
        a(f"s_cbranch_scc0 {done}A")
        a("s_sleep 8")
        a("s_sub_u32 s69, s69, 1")
        a(f"s_cbranch_scc0 {ls}")
        a(f"{done}A:")
        a("buffer_inv sc1")
        a("s_waitcnt vmcnt(0)")
        a(f"{done}:")

    a(f".globl {name}\n.p2align 8\n.type {name},@function\n{name}:")
    a("s_cmp_ge_u32 s2, 256")
    a("s_cbranch_scc1 KA_END")
    a.start()
    if NF:
        a("v_readfirstlane_b32 s48, v0")
        a("s_nop 1")
        a("s_cmp_lg_u32 s48, 64")
        a("s_cbranch_scc1 KA_P1")
        a("v_cmp_gt_u32 vcc, 88, v0")
        a(f"v_mov_b32 v5, {L_SY-256}")
        a("v_lshl_add_u32 v5, v0, 2, v5")
        a("v_mov_b32 v6, 0")
        a("v_addc_co_u32 v6, vcc, 0, v6, vcc")
        a("ds_write_b32 v5, v6")
        a("s_waitcnt lgkmcnt(0)")
        a("KA_P1:")
    a("s_load_dwordx16 s[4:19], s[0:1], 0")
    a("s_load_dwordx16 s[20:35], s[0:1], 64")
    if "dly" in X: a("s_sleep 16")
    if NF: a("s_barrier")
    else: a("v_readfirstlane_b32 s48, v0")
    a("v_and_b32 v1, 63, v0")
    a("s_and_b32 s49, s2, 7")
    for k in (1, 3, 5, 7):
        if f"gx{k}" in X: a(f"s_xor_b32 s49, s49, {k}")
    a("s_lshr_b32 s50, s2, 3")
    a("s_lshr_b32 s48, s48, 6")
    def cpf():
        if "cpf" in X:
            a("s_cmp_lg_u32 s48, 0")
            a("s_cbranch_scc1 " + ("KA_CPE" if "sb" in X else "KA_CONS"))
            a("s_getpc_b64 s[56:57]")
            a("KA_PCB:")
            a(f"s_sub_u32 s56, s56, KA_PCB-{name}")
            a("s_subb_u32 s57, s57, 0")
            a("v_lshl_add_u32 v8, v1, 5, s50")
            a("v_lshlrev_b32 v8, 6, v8")
            a(f"v_cmp_gt_u32 vcc, KA_END-{name}, v8")
            a("s_mov_b64 exec, vcc")
            a("v_mov_b32 v9, s57")
            a("v_add_co_u32 v8, vcc, s56, v8")
            a("v_addc_co_u32 v9, vcc, 0, v9, vcc")
            a("global_load_dword v24, v[8:9], off")
            a("s_mov_b64 exec, -1")

    a("s_cmp_lt_u32 s48, 4")
    a("s_cbranch_scc1 " + ("KA_CPF" if "cnear" in X else "KA_CONS0"))
    a("s_cmp_lt_u32 s48, 8")
    a("s_cbranch_scc1 KA_LOADER")
    a("s_setprio 3")
    a("s_sub_u32 s54, s48, 8")
    a("s_xor_b32 s55, s49, 4")
    a("s_lshl_b32 s55, s55, 5")
    a("s_add_u32 s55, s55, s50")
    a("s_lshl_b32 s59, s55, 9")
    a("s_lshl_b32 s60, s54, 7")
    a("s_add_u32 s59, s59, s60")
    a("v_lshl_add_u32 v2, v1, 1, s59")
    a("s_lshr_b32 s59, s59, 8")
    a("s_lshl_b32 s59, s59, 1")
    a("v_mov_b32 v5, s59")
    for i in range(8):
        a(f"v_mov_b32 v{8+i}, 0")
    a("s_waitcnt lgkmcnt(0)")
    a("global_load_short_d16_hi v14, v5, s[18:19]")
    for i in range(6):
        a(f"global_load_short_d16_hi v{8+i}, v2, s[{6+2*i}:{7+2*i}]{NP}")
    a("global_load_short_d16_hi v15, v5, s[20:21]")
    if "sb" in X: a("s_barrier")
    a("s_branch KA_AUX0")
    if "cnear" in X:
        a("KA_CPF:")
        cpf()
        a("KA_CPE:")
        if "sb" in X: a("s_barrier")
        a("s_branch KA_CONS")
    a("KA_LOADER:")
    def common():
        a(f"s_mul_i32 s51, s49, {GRS}")
        a("v_lshlrev_b32 v4, 4, v1")
        a("v_lshrrev_b32 v3, 5, v1")
        a(f"v_mov_b32 v{VSY}, {L_SY}")
        a(f"v_mov_b32 v{VONE}, 1")

    a("s_add_u32 s53, s49, s50")
    a("s_sub_u32 s54, s48, 4")
    a("v_lshrrev_b32 v5, 3, v1")
    a("v_and_b32 v6, 7, v1")
    a("v_lshrrev_b32 v7, 4, v1")
    a("v_xor_b32 v8, v6, v7")
    a("v_lshlrev_b32 v8, 4, v8")
    a("v_lshl_add_u32 v16, v5, 10, v8")
    a("s_and_b32 s73, s54, 1")
    a("s_lshl_b32 s58, s73, 6")
    a("s_lshl_b32 s55, s50, 16")
    a("s_lshl_b32 s60, s54, 13")
    a("s_add_u32 s60, s60, s55")
    a("v_xor_b32 v18, s58, v16")
    a("v_add_u32 v18, s60, v18")
    a("v_add_u32 v19, 32768, v18")
    a("v_and_b32 v7, 1, v7")
    a("v_lshlrev_b32 v7, 2, v7")
    a("v_xor_b32 v8, v6, v7")
    a("v_mul_u32_u24 v9, 3072, v5")
    a("v_lshl_add_u32 v9, v8, 4, v9")
    a("s_lshl_b32 s56, s49, 7")
    a("s_mul_i32 s62, s54, 3")
    for i in range(3):
        a(f"s_add_u32 s58, s62, {i}")
        a("s_and_b32 s59, s58, 3")
        a("s_mul_i32 s59, s59, 24576")
        a("s_lshr_b32 s58, s58, 2")
        a("s_lshl_b32 s58, s58, 10")
        a("s_add_u32 s58, s58, s59")
        a("s_add_u32 s58, s58, s56")
        if i: a(f"s_sub_u32 s58, s58, {1024*i}")
        a(f"v_add_u32 v{20+i}, s58, v9")
    a("s_lshl_b32 s61, s54, 10")
    a("s_lshl_b32 s62, s62, 10")
    a("s_and_b32 s64, s53, 7")
    a("s_lshl_b32 s65, s64, 7")
    a(f"s_mul_i32 s64, s64, {64*3072}")
    a("s_mov_b32 s38, %d\ns_mov_b32 s39, 0x20000\ns_mov_b32 s42, %d\ns_mov_b32 s43, 0x20000" % (2048*512*2, 512*1536*2))
    if NF:
        a("v_mov_b32 v23, 0x7ffffff0")
        a("s_lshl_b32 s72, s54, 2")
    a("s_mov_b32 m0, s61")
    a("s_waitcnt lgkmcnt(0)")
    a("s_mov_b32 s36, s4\ns_and_b32 s37, s5, 0xffff\ns_mov_b32 s40, s24\ns_and_b32 s41, s25, 0xffff")
    if "sb" in X: a("s_barrier")
    a.stamp(1)
    issued = []
    ops = []
    def vm(t, tag):
        a(t); ops.append(tag)
    def need(tag, extra=""):
        last = max(i for i, t in enumerate(ops) if t == tag)
        a(f"s_waitcnt vmcnt({len(ops)-1-last}){extra}")
    def sub(j):
        hi = j + 1
        if hi < 16:
            a(f"s_add_u32 m0, s61, {4096*hi}")
            if hi % 2 == 0:
                a("s_add_u32 s65, s65, 128")
                a("s_and_b32 s65, s65, 1023")
            else:
                a("s_nop 0")
            if "nox3" in X:
                a("s_cmp_eq_u32 s65, 384\ns_cselect_b32 s59, 256, s65")
                vm(f"buffer_load_dwordx4 v{18+(hi&1)}, s[36:39], s59 offen{NX} lds", j)
            else:
                vm(f"buffer_load_dwordx4 v{18+(hi&1)}, s[36:39], s65 offen{NX} lds", j)
        a(f"s_add_u32 m0, s62, {L_W+12288*(j%NSLOT)}")
        a(f"s_add_u32 s58, s64, {32*3072}")
        for i in range(3):
            vm(f"buffer_load_dwordx4 v{20+i}, s[40:43], s64 offen offset:{1024*i}{NW} lds", j)
        a(f"s_cmp_lt_u32 s58, {512*3072}")
        a("s_cselect_b32 s64, s58, 0")
        if j < NF:
            a(f"s_add_u32 m0, s72, {L_SY+S_OA+16*j}")
            a("s_mov_b64 exec, 1")
            vm("buffer_load_dword v23, s[36:39], 0 offen lds", "ds")
            a("s_mov_b64 exec, -1")
        issued.append(j)
    vm(f"buffer_load_dwordx4 v18, s[36:39], s65 offen{NX} lds", 0)
    sub(0)
    common()
    srd(a, 44, 34, 35, W2_END)
    a("v_xor_b32 v17, 64, v16")
    a("v_add_u32 v17, 7168, v17")
    a("s_sub_u32 s74, 4, s50")
    a("s_and_b32 s74, s74, 7")
    a("s_lshl_b32 s74, s74, 13")
    a("s_lshl_b32 s58, s54, 11")
    a("s_add_u32 s74, s74, s58")
    a("s_mov_b32 m0, s74")
    a("s_lshl_b32 s58, s54, 14")
    a("s_add_u32 s58, s58, s55")
    a("s_xor_b32 s59, s56, 512")
    a("s_add_u32 s58, s58, s59")
    vm("buffer_load_dwordx4 v16, s[36:39], s58 offen lds", "xs")
    vm("buffer_load_dwordx4 v17, s[36:39], s58 offen offset:1024 lds", "xs")
    sub(1); sub(2)
    a("v_lshlrev_b32 v5, 7, v1")
    a(f"s_add_u32 s67, s51, {G_FL}")
    a(f"s_mov_b32 m0, {L_GW}")
    a("s_lshl_b32 s58, 16, s54")
    a("s_or_b32 exec_lo, s58, 1")
    a("s_mov_b32 exec_hi, 0")
    vm("buffer_load_dword v163, v5, s[44:47], s67 offen " + ("nt" if "ntu" in X else "sc1"), "fl")
    a("s_lshl_b32 s58, s54, 4")
    a("s_lshl_b64 exec, 0xffff, s58")
    vm("global_load_lds_dwordx4 v4, s[28:29]", "gw")
    a("s_mov_b64 exec, -1")
    sub(3)
    a("v_bfe_u32 v5, v1, 2, 2")
    a("v_lshrrev_b32 v6, 4, v1")
    a("v_bfe_u32 v7, v1, 1, 1")
    a("v_lshl_add_u32 v6, v6, 1, v7")
    a("v_lshrrev_b32 v7, 1, v5")
    a("v_xor_b32 v6, v6, v7")
    a("v_lshlrev_b32 v6, 4, v6")
    a("v_lshl_add_u32 v6, v5, 7, v6")
    a("v_and_b32 v7, 1, v1")
    a("v_lshl_add_u32 v6, v7, 3, v6")
    a("v_add_u32 v28, s74, v6")
    for i in range(1, 4):
        a(f"v_xor_b32 v{28+i}, {32*i}, v28")
    need("xs")
    a("s_setprio 3")
    for i in range(4):
        a(f"ds_read_b64_tr_b16 {vr(32+2*i,2)}, v{28+i} offset:{512*i}")
    if "utw" in X:
        a("s_lshl_b32 s75, s50, 13")
        a("s_lshl_b32 s59, s54, 11")
        a("s_add_u32 s75, s75, s59")
        a("s_add_u32 s75, s75, s51")
        a(f"s_add_u32 s75, s75, {G_UT}")
        a("s_waitcnt lgkmcnt(0)")
        US = " sc1" if "usc" in X else ""
        vm("buffer_store_dwordx4 v[32:35], v4, s[44:47], s75 offen" + US, 3)
        vm("buffer_store_dwordx4 v[36:39], v4, s[44:47], s75 offen offset:1024" + US, 3)
    else:
        a("v_lshrrev_b32 v5, 1, v1")
        a("v_lshlrev_b32 v5, 13, v5")
        a("v_lshl_add_u32 v27, v7, 6, v5")
        a("s_lshl_b32 s75, s50, 8")
        a("s_lshr_b32 s59, s54, 1")
        a("s_lshl_b32 s59, s59, 7")
        a("s_add_u32 s75, s75, s59")
        a("s_add_u32 s75, s75, s51")
        a(f"s_add_u32 s75, s75, {G_UT}")
        a("s_lshl_b32 s58, s73, 5")
        a("s_add_u32 s75, s75, s58")
        a("s_waitcnt lgkmcnt(0)")
        vm("buffer_store_dwordx4 v[32:35], v27, s[44:47], s75 offen" + NT, 3)
        vm("buffer_store_dwordx4 v[36:39], v27, s[44:47], s75 offen offset:16" + NT, 3)
    if "lst" in X: a.stamp(3)
    PRE = 7 if "p7" in X else 6 if "p6" in X else 5 if "p5" in X else 4
    for j in range(4, PRE): sub(j)
    a("v_lshrrev_b32 v10, 3, v1")
    a("s_lshl_b32 s58, s49, 3")
    a("v_add_u32 v10, s58, v10")
    a("v_and_b32 v11, 7, v1")
    a("v_bfe_u32 v12, v10, 1, 3")
    a("v_xor_b32 v12, v12, v11")
    a("v_lshlrev_b32 v12, 4, v12")
    a("v_lshl_add_u32 v12, v10, 7, v12")
    a("s_and_b32 s58, s53, 7")
    a("s_lshl_b32 s58, s58, 7")
    a("v_lshl_add_u32 v11, v11, 4, s58")
    a("v_bfe_u32 v5, v1, 4, 1")
    a("v_lshlrev_b32 v5, 16, v5")
    a("v_and_b32 v6, 15, v1")
    a("v_lshl_add_u32 v13, v6, 7, v5")
    a(f"s_mul_i32 s71, s54, {G_HEAD}")
    a("s_lshl_b32 s58, s50, 11")
    a("s_add_u32 s71, s71, s58")
    a("s_add_u32 s71, s71, s51")
    a("s_and_b32 s58, s50, 15")
    a(f"s_cmp_lt_u32 s58, {16 if 'n16' in X else 6 if 'n6' in X else NEARLY}")
    a("s_cselect_b32 s58, 0, 0x7ff00000")
    a("v_add_u32 v13, s58, v13")
    for c in range(8):
        a(f"v_add_u32 v{40+c}, {128*c}, v11")
        a(f"v_and_b32 v{40+c}, 1023, v{40+c}")
        a(f"v_add_u32 v{40+c}, {L_GW}, v{40+c}")
    for j in range(NF, 12):
        need(j)
        if "lst" in X and j in (0, 4, 8): a.stamp(4 + j // 4)
        a("s_barrier")
        for k in range(len(issued), min(j + DD, 15) + 1): sub(k)
    if "tq" in X:
        a("s_mov_b32 exec_hi, 0")
        vm("buffer_load_dword v163, v13, s[44:47], s71 offen " + ("nt" if "ntu" in X else "sc1"), "tq")
        a("s_mov_b64 exec, -1")
    need(12)
    a("s_barrier")
    a("s_cmp_eq_u32 s54, 3")
    a("s_cbranch_scc1 KA_LG")
    for j in (13, 14, 15):
        need(j)
        a("s_barrier")
    a.stamp(2)
    a("s_cmp_eq_u32 s54, 2")
    a("s_cbranch_scc1 KA_LZ")

    a("KA_ATT:")
    if "lowp" in X: a("s_setprio 0")
    QA, QB, P, OA, OB, SA, SB = 8, 12, 28, 36, 52, 68, 84
    KBUF = [100, 112, 124, 136]
    IXV = 24
    SM32 = "v_smfmac_f32_32x32x32_bf16"
    a("s_and_b32 s54, s48, 3")
    a("s_lshr_b32 s55, s48, 2")
    a(f"s_mul_i32 s57, s54, {G_HEAD}")
    a("s_add_u32 s57, s57, s51")
    a("s_lshl_b32 s58, s55, 15")
    a("s_add_u32 s58, s58, s57")
    a("s_add_u32 s58, s58, 4096")
    a("s_add_u32 s58, s34, s58")
    a("s_addc_u32 s59, s35, 0")
    a("s_lshl_b32 s56, s50, 16")
    a("s_lshl_b32 s60, s49, 13")
    a("s_add_u32 s56, s56, s60")
    a(f"s_add_u32 s56, s56, {W2_O}")
    a("s_lshl_b32 s60, s48, 10")
    a("s_add_u32 s56, s56, s60")
    a(f"v_mov_b32 v{IXV}, 0xdddd")
    a("s_mov_b32 s62, 0xffff")
    a("s_mov_b32 s63, 0xffff")
    a("v_and_b32 v2, 27, v1")
    a("v_and_b32 v6, 15, v1")
    a("v_lshl_add_u32 v6, v3, 4, v6")
    a("v_lshlrev_b32 v6, 4, v6")
    a("v_add_u32 v6, 64512, v6")
    a("v_cmp_eq_u32 vcc, 16, v2")
    a("v_mov_b32 v7, 0x3f803f80")
    a("v_lshlrev_b32 v157, 3, v1")
    a("v_cndmask_b32 v7, 0, v7, vcc")
    a("s_lshl_b32 s60, s54, 11")
    a(f"s_add_u32 s60, s60, {L_Q}")
    a("v_add_u32 v5, s60, v4")
    a(f"s_mov_b32 s64, {hex((1<<PRIO1)|(1<<PRIO0))}")
    for B in KBUF:
        for i in range(8): a(f"v_mov_b32 v{B+4+i}, v7")
    for i in range(32): a(f"v_mov_b32 v{OA+i}, 0")
    for i in range(8): a(f"v_mov_b32 v{SB+8+i}, 0")
    a("s_mul_i32 s60, s48, 2304")
    a(f"s_add_u32 s60, s60, {L_OX}")
    a("s_xor_b32 s61, s48, 4")
    a("s_mul_i32 s61, s61, 2304")
    a(f"s_add_u32 s61, s61, {L_OX}")
    a("v_add_u32 v16, s60, v4")
    a("v_add_u32 v17, s61, v4")
    a("v_lshl_add_u32 v18, v1, 2, s60")
    a("v_lshl_add_u32 v19, v1, 2, s61")
    a("s_lshl_b32 s60, s54, 2")
    a(f"v_add_u32 v20, s60, v{VSY}")
    a(f"v_mov_b32 v21, {hex(f2u(2.0**-80))}")
    a(f"v_mov_b32 v22, {hex(f2u(2.0**80))}")
    a(f"v_mov_b32 v23, 0x7f7fffff")
    a("s_lshl_b32 s74, s50, 11")
    a(f"s_add_u32 s74, s74, {W2_FO}")
    a("v_lshlrev_b32 v154, %d, s49" % (2 if "pk1" in X else 7))
    if "pw" in X:
        a("s_lshl_b32 s60, s48, 2")
        a("v_add_u32 v154, s60, v154")
    a("s_mov_b32 s65, 0")
    a("s_cmp_eq_u32 s55, 0")
    a("s_cbranch_scc1 KA_AT1")
    wait(S_NONCE, 1, out=52)
    a("KA_AT1:")
    a("v_mov_b32 v153, s52")
    wait(S_QRDY, 4)
    a(f"ds_read_b128 {vr(QA,4)}, v5")
    a(f"ds_read_b128 {vr(QB,4)}, v5 offset:1024")
    if "lst" not in X: a.stamp(4)
    a("s_cmp_eq_u32 s55, 0" if "pol4" in X else "s_cmp_lg_u32 s48, 4")
    a("s_cbranch_scc1 KA_AT2")
    mktag(512)
    a("v_lshlrev_b32 v156, 7, v1")
    a("s_lshl_b32 s60, s50, 2")
    a("v_add_u32 v156, s60, v156")
    wait(S_DONE, 4)
    collect(True, None, 15)
    sig(S_GO)
    if "pol4" in X:
        a("s_cmp_lg_u32 s48, 7")
        a("s_cbranch_scc1 KA_AT3")
        sig(S_CD)
    a("s_branch KA_AT3")
    a("KA_AT2:")
    a("s_waitcnt vmcnt(0)")
    a("s_cmp_lg_u32 s48, 7")
    a("s_cbranch_scc1 KA_NOGF")
    sig(S_CD)
    a("KA_NOGF:")
    wait(S_GO, 1)
    a("KA_AT3:")
    def kload(B, off): a(f"global_load_dwordx4 {vr(B,4)}, v4, s[58:59] offset:{off}{NK}")
    def vload(B, off):
        a("s_mov_b64 exec, s[62:63]")
        a(f"global_load_dwordx4 {vr(B+4,4)}, v6, s[58:59] offset:{off}{NK}")
        a(f"global_load_dwordx4 {vr(B+8,4)}, v6, s[58:59] offset:{off+512}{NK}")
        a("s_mov_b64 exec, -1")
    if "dly2" in X: a("s_sleep 16")
    if "it7" in X: a("s_mov_b32 s65, 1")
    kload(KBUF[0], -4096)
    for t in range(3):
        vload(KBUF[t], 1024 * t - 3072); kload(KBUF[t+1], 1024 * t - 3072)
    a("s_setprio 2")
    if "lst" not in X: a.stamp(7)
    a("s_waitcnt vmcnt(9) lgkmcnt(0)")
    a.stamp(7 if "lst" in X else 5)
    a(f"{MF} {vr(SA,16)}, {vr(KBUF[0],4)}, {vr(QA,4)}, 0")
    a("s_nop 11")
    a(".p2align 6")
    if "ph4" in X: a("s_nop 0")
    a("KA_LOOP:")
    if "ast" in X:
        for k, b in enumerate((1, 2, 3, 5)):
            a(f"s_cmp_lg_u32 s65, {b}\ns_cbranch_scc1 KA_Q{k}")
            a.stamp(1 + k)
            a(f"KA_Q{k}:")
    for u in range(4):
        B, Bn, Bp = KBUF[u], KBUF[(u+1) % 4], KBUF[(u+3) % 4]
        if u == (3 if "h3" in X else 2):
            a("s_bitcmp1_b32 s64, s65")
            a("s_cbranch_scc1 KA_SPECIAL")
            a("KA_BODY:")
        for unit in range(2):
            Sc, Sn, Oc, Op, Qn = (SA, SB, OA, OB, QB) if unit == 0 else (SB, SA, OB, OA, QA)
            for i in range(16):
                if i == 2:
                    a(f"{SM32} {vr(Op,16)}, {vr((Bp if unit == 0 else B)+8,4)}, {vr(Sn+8,8)}, v{IXV}")
                    if unit == 0: vload(Bp, 1024 * u)
                if i == 5:
                    a(f"{MF} {vr(Sn,16)}, {vr(B if unit == 0 else Bn,4)}, {vr(Qn,4)}, 0")
                    if unit == 0: kload(B, 1024 * u)
                if i == 11:
                    if unit == 0: a("s_waitcnt vmcnt(9)")
                    a(f"{SM32} {vr(Oc,16)}, {vr(B+4,4)}, {vr(Sc,8)}, v{IXV}")
                if i == 13 and u == 3 and unit == 1:
                    a("s_add_u32 s58, s58, 4096")
                    a("s_addc_u32 s59, s59, 0")
                    a("s_add_u32 s65, s65, 1")
                    a("s_cmp_lt_u32 s65, 8")
                a(f"v_exp_f32{'_e64' if 'e64' in X and i in (4, 15) else ''} v{Sc+i}, v{Sc+i}")
    a("s_cbranch_scc1 KA_LOOP")
    a("s_nop 0")
    a(f"{SM32} {vr(OB,16)}, {vr(KBUF[3]+8,4)}, {vr(SB+8,8)}, v{IXV}")
    if "lst" not in X: a.stamp(6)
    a("s_cmp_eq_u32 s55, 0")
    a("s_cbranch_scc1 KA_XA")
    for keep, send, lab in ((OB, OA, None), (OA, OB, "KA_XA")):
        if lab:
            a(f"{lab}:")
            a("s_nop 9")
        a(f"ds_write_b128 v16, {vr(send,4)}")
        a(f"ds_write_b128 v16, {vr(send+4,4)} offset:1024")
        a(f"ds_write_b32 v18, v{send+8} offset:2048")
        a("s_mov_b64 exec, 1")
        a(f"ds_add_u32 v20, v{VONE} offset:{S_OX}")
        a(f"ds_add_u32 v{VSY}, v{VONE} offset:{S_FIN}")
        a("s_mov_b64 exec, -1")
        if "dp" in X: wait(S_PC, 4)
        wait(S_OX, 2, 20, nap=(1 if "oxn" in X else 0))
        a(f"ds_read_b32 v{send+8}, v19 offset:2048")
        a(f"ds_read_b128 {vr(send,4)}, v17")
        a(f"ds_read_b128 {vr(send+4,4)}, v17 offset:1024")
        if not lab: a("s_branch KA_XJ")
    a("KA_XJ:")
    a("s_waitcnt lgkmcnt(2)")
    a(f"v_add_f32 v{SA}, v{OA+8}, v{OB+8}")
    a("s_waitcnt lgkmcnt(0)")
    a(f"v_rcp_f32 v{SA+1}, v{SA}")
    for i in range(8):
        a(f"v_add_f32 v{OA+i}, v{OA+i}, v{OB+i}")
    a.c("safety check of the zero stand-in for the row max: l inside [2^-80, 2^80] and O finite")
    a(f"v_cmp_nge_f32 vcc, v{SA}, v21")
    a(f"v_cmp_nle_f32 s[68:69], v{SA}, v22")
    for i in range(8):
        a(f"v_mul_f32 v{OA+i}, v{OA+i}, v{SA+1}")
    a(f"v_add_f32 v{SA+2}, |v{OA}|, |v{OA+1}|")
    a(f"v_add_f32 v{SA+3}, |v{OA+2}|, |v{OA+3}|")
    a(f"v_add_f32 v{SA+4}, |v{OA+4}|, |v{OA+5}|")
    a(f"v_add_f32 v{SA+5}, |v{OA+6}|, |v{OA+7}|")
    a(f"v_add_f32 v{SA+2}, v{SA+2}, v{SA+3}")
    a(f"v_add_f32 v{SA+4}, v{SA+4}, v{SA+5}")
    a(f"v_add_f32 v{SA+2}, v{SA+2}, v{SA+4}")
    a("s_or_b64 vcc, vcc, s[68:69]")
    a(f"v_cmp_nle_f32 s[68:69], v{SA+2}, v23")
    for i in range(4):
        a(f"v_cvt_pk_bf16_f32 v{P+i}, v{OA+2*i}, v{OA+2*i+1}")
    a("s_or_b64 vcc, vcc, s[68:69]")
    a("s_cbranch_scc1 KA_SLOW")
    a("KA_FIN:")
    if "dly3" in X: a("s_sleep 16")
    a(f"buffer_store_dwordx4 {vr(P,4)}, v4, s[44:47], s56 offen sc1")
    a("s_waitcnt vmcnt(0)")
    a("s_mov_b64 exec, 1")
    if "pw" in X: a("buffer_atomic_swap v153, v154, s[44:47], s74 offen sc1")
    a(f"ds_add_rtn_u32 v{VTMP}, v{VSY}, v{VONE} offset:{S_OD}")
    a("s_waitcnt lgkmcnt(0)")
    a(f"v_readfirstlane_b32 s76, v{VTMP}")
    a("s_cmp_lg_u32 s76, %d" % (99 if "pw" in X else 7))
    a("s_cbranch_scc1 KA_NLAST")
    a("buffer_atomic_swap v153, v154, s[44:47], s74 offen sc1" if "fat" in X else "buffer_store_dword v153, v154, s[44:47], s74 offen sc1")
    a("KA_NLAST:")
    if "fet" in X:
        a("s_mov_b64 exec, -1")
        a("s_lshl_b32 s72, s49, 2")
        a("s_and_b32 s73, s50, 3")
        a("s_add_u32 s72, s72, s73")
        a("s_lshl_b32 s73, s72, 16")
        a("s_lshl_b32 s60, s48, 13")
        a("s_add_u32 s73, s73, s60")
        a(f"s_add_u32 s73, s73, {W2_O}")
        a("s_add_u32 s61, s73, 4096")
        a(f"s_add_u32 s60, s60, {L_O}")
        a("s_lshl_b32 s72, s72, 11")
        a(f"s_add_u32 s72, s72, {W2_FO}")
        a("v_lshlrev_b32 v16, 7, s48")
        a("v_mov_b32 v154, 0x7ffffff0")
        a("s_lshl_b32 s59, s48, 2")
        wait4(S_WA)
        wait(S_OD, 8)
        a(f"s_mov_b32 s69, {SLOW_TRIES}")
        a("s_mov_b64 exec, 1")
        a("buffer_load_dword v17, v16, s[44:47], s72 offen sc1")
        a("KA_WP:")
        for cur, nxt in ((17, 18), (18, 17)):
            a(f"s_sleep {PSL}")
            a(f"buffer_load_dword v{nxt}, v16, s[44:47], s72 offen sc1")
            a("s_waitcnt vmcnt(1)")
            a(f"v_cmp_eq_u32 vcc, s52, v{cur}")
            a("s_cbranch_vccnz KA_WPD")
        a("s_sub_u32 s69, s69, 1")
        a("s_cbranch_scc0 KA_WP")
        a("KA_WPD:")
        a("s_mov_b32 m0, s60")
        a("s_mov_b64 exec, -1")
        for q in range(4): a(f"buffer_load_dwordx4 v4, s[44:47], s73 offen offset:{1024*q} sc1 lds")
        a("s_add_u32 m0, s60, 4096")
        a("s_nop 0")
        for q in range(4): a(f"buffer_load_dwordx4 v4, s[44:47], s61 offen offset:{1024*q} sc1 lds")
        dsig(f"s_add_u32 m0, s59, {L_SY+S_OA}")
        a("s_waitcnt vmcnt(0)")
    else:
        a("s_cmp_lg_u32 s76, 0")
        a("s_cbranch_scc1 KA_NFIRST")
        def pl(r):
            if "pat" in X:
                a(f"v_mov_b32 v{r}, 0")
                a(f"buffer_atomic_or v{r}, v16, s[44:47], s72 offen sc0 sc1")
            else:
                a(f"buffer_load_dword v{r}, v16, s[44:47], s72 offen " + ("sc0 sc1" if "psys" in X else "sc1 nt" if "pnt" in X else "sc0 sc1 nt" if "pall" in X else "sc1"))
        a("s_mov_b64 exec, %s" % ("-1" if "pw" in X else "0xff"))
        a("s_lshl_b32 s72, s49, 2")
        a("s_and_b32 s73, s50, 3")
        a("s_add_u32 s72, s72, s73")
        a("s_lshl_b32 s72, s72, 11")
        a(f"s_add_u32 s72, s72, {W2_FO}")
        if "pw" in X:
            a("v_and_b32 v16, 7, v1")
            a("v_lshlrev_b32 v16, 7, v16")
            a("v_lshrrev_b32 v17, 3, v1")
            a("v_lshl_add_u32 v16, v17, 2, v16")
        else:
            a("v_lshlrev_b32 v16, %d, v1" % (2 if "pk1" in X else 7))
        if "dp" in X:
            a("s_mov_b64 exec, -1")
            a(f"s_sub_u32 s73, s72, {W2_FO}")
            a("s_lshl_b32 s73, s73, 5")
            a(f"s_add_u32 s73, s73, {W2_O+1020}")
            a("v_and_b32 v20, 7, v1")
            a("v_lshlrev_b32 v20, 13, v20")
            a("v_lshrrev_b32 v17, 3, v1")
            a("v_lshl_add_u32 v20, v17, 10, v20")
            wait4(S_WA)
            a(f"s_mov_b32 s69, {0 if 'dt0' in X else 60}")
            def pd(r):
                a(f"v_mov_b32 v{r}, 0")
                a(f"buffer_atomic_or v{r}, v20, s[44:47], s73 offen sc0 sc1")
            pd(24)
            a("KA_DP:")
            for cur, nxt in ((24, 25), (25, 24)):
                if PSL: a(f"s_sleep {PSL}")
                pd(nxt)
                a("s_waitcnt vmcnt(1)")
                a(f"v_cmp_ne_u32 vcc, -1, v{cur}")
                a("s_and_b32 s60, vcc_lo, vcc_hi")
                a("s_lshr_b32 s61, s60, 16")
                a("s_and_b32 s60, s60, s61")
                a("s_lshr_b32 s61, s60, 8")
                a("s_and_b32 s60, s60, s61")
                a("v_mov_b32 v19, s60")
                a(f"ds_write_b32 v{VSY}, v19 offset:{S_PO}")
                a("s_cmp_eq_u32 s60, 0xff")
                a("s_cbranch_scc1 KA_DPD")
            a("s_sub_u32 s69, s69, 1")
            a("s_cbranch_scc0 KA_DP")
            a("KA_DPD:")
            a("s_waitcnt vmcnt(0)")
            a("s_mov_b64 exec, 0xff")
        a(f"s_mov_b32 s69, {SLOW_TRIES}")
        for k in range(PDP - 1):
            pl(24 + k)
            if PSL and k < PDP - 2: a(f"s_sleep {PSL}")
        a("KA_WP:")
        for cur, nxt in [(24 + k, 24 + (k + PDP - 1) % PDP) for k in range(PDP)]:
            if PSL: a(f"s_sleep {PSL}")
            pl(nxt)
            a(f"s_waitcnt vmcnt({PDP-1})")
            a(f"v_cmp_eq_u32 vcc, s52, v{cur}")
            if "pw" in X:
                a("s_and_b32 s60, vcc_lo, vcc_hi")
                a("s_lshr_b32 s61, s60, 16")
                a("s_and_b32 s60, s60, s61")
                a("s_lshr_b32 s61, s60, 8")
                a("s_and_b32 s60, s60, s61")
                a("v_mov_b32 v19, s60")
                a(f"ds_write_b32 v{VSY}, v19 offset:{S_PO}")
                a("s_cmp_eq_u32 s60, 0xff")
            else:
                a("s_nop 1")
                a("v_mov_b32 v19, vcc_lo")
                if "dp" in X: a("v_mul_u32_u24 v19, 0x101, v19")
                a(f"ds_or_b32 v{VSY}, v19 offset:{S_PO}")
                a("s_cmp_eq_u32 vcc_lo, 0xff")
            a("s_cbranch_scc1 KA_NFIRST")
        a("s_sub_u32 s69, s69, 1")
        a("s_cbranch_scc0 KA_WP")
        a("KA_NFIRST:")
    a.end(0)
    a("KA_SPECIAL:")
    if "lkw" in X: sig(S_WB)
    a("s_setprio 1")
    a(f"s_cmp_eq_u32 s65, {PRIO1}")
    a("s_cbranch_scc1 KA_BODY")
    a("s_setprio 0")
    a("s_branch KA_BODY")
    a.c("fallback: true row max over all keys, then recompute this query tile")
    a("KA_SLOW:")
    B = KBUF[0]
    a("s_cmp_eq_u32 s55, 0")
    a("s_cbranch_scc1 KA_SLQ")
    for i in range(4): a(f"v_mov_b32 v{QA+i}, v{QB+i}")
    a("KA_SLQ:")
    a("s_waitcnt vmcnt(0)")
    a(f"v_mov_b32 v{SB}, 0xff800000")
    a("s_add_u32 s58, s34, s57")
    a("s_addc_u32 s59, s35, 0")
    a("s_mov_b32 s65, 0")
    a("KA_MAXL:")
    kload(B, 0)
    a("s_add_u32 s58, s58, 1024")
    a("s_addc_u32 s59, s59, 0")
    a("s_add_u32 s65, s65, 1")
    a("s_waitcnt vmcnt(0)")
    a(f"{MF} {vr(SA,16)}, {vr(B,4)}, {vr(QA,4)}, 0")
    a("s_nop 15")
    for i in range(8):
        a(f"v_max3_f32 v{SB}, v{SA+2*i}, v{SA+2*i+1}, v{SB}")
    a("s_cmp_lt_u32 s65, 64")
    a("s_cbranch_scc1 KA_MAXL")
    a(f"v_mov_b32 v{SB+1}, v{SB}")
    a("s_nop 1")
    a(f"v_permlane32_swap_b32 v{SB}, v{SB+1}")
    a(f"v_max_f32 v{SB}, v{SB}, v{SB+1}")
    for i in range(16):
        a(f"v_mov_b32 v{OA+i}, 0")
    a("s_add_u32 s58, s34, s57")
    a("s_addc_u32 s59, s35, 0")
    a("s_mov_b32 s65, 0")
    a("KA_SLOWL:")
    kload(B, 0); vload(B, 1024)
    a("s_add_u32 s58, s58, 1024")
    a("s_addc_u32 s59, s59, 0")
    a("s_add_u32 s65, s65, 1")
    a("s_waitcnt vmcnt(0)")
    a(f"{MF} {vr(SA,16)}, {vr(B,4)}, {vr(QA,4)}, 0")
    a("s_nop 15")
    for i in range(16):
        a(f"v_sub_f32 v{SA+i}, v{SA+i}, v{SB}")
    for i in range(16):
        a(f"v_exp_f32 v{SA+i}, v{SA+i}")
    a("s_nop 1")
    a(f"{SM32} {vr(OA,16)}, {vr(B+4,4)}, {vr(SA,8)}, v{IXV}")
    a(f"{SM32} {vr(OA,16)}, {vr(B+8,4)}, {vr(SA+8,8)}, v{IXV}")
    a("s_nop 7")
    a("s_cmp_lt_u32 s65, 64")
    a("s_cbranch_scc1 KA_SLOWL")
    a("s_nop 15")
    a(f"v_rcp_f32 v{SA}, v{OA+8}")
    a("s_nop 0")
    for i in range(8):
        a(f"v_mul_f32 v{OA+i}, v{OA+i}, v{SA}")
    for i in range(4):
        a(f"v_cvt_pk_bf16_f32 v{P+i}, v{OA+2*i}, v{OA+2*i+1}")
    a("s_branch KA_FIN")

    a("KA_LZ:")
    a("v_mov_b32 v8, 0")
    a("v_lshlrev_b32 v5, 2, v1")
    a(f"v_add_u32 v5, {L_KP+4100}, v5")
    for c in range(4):
        if c % 2 == 0: a("s_mov_b64 exec, %s" % ("0x7fff" if c == 0 else "0x7ffe"))
        for ch in range(2): a(f"ds_write_b32 v5, v8 offset:{c*KPC+ch*KPROW}")
    a("s_mov_b64 exec, 1")
    a(f"ds_add_u32 v{VSY}, v{VONE} offset:{S_KN}")
    a(f"ds_add_u32 v{VSY}, v{VONE} offset:{S_KN+4}")
    a("s_mov_b64 exec, -1")
    a("s_branch KA_ATT")
    a("KA_LG:")
    def grd(c):
        a(f"ds_read_b128 {vr(64+4*c,4)}, v12 offset:{8192*c}")
        a(f"ds_read_b128 {vr(96+4*c,4)}, v{40+c}")
    grd(0); grd(1); grd(2)
    need(13)
    a("s_barrier")
    grd(3); grd(4); grd(5); grd(6)
    need(14)
    a("s_barrier")
    a("s_waitcnt lgkmcnt(6)")
    grd(7)
    need(15, " lgkmcnt(0)")
    a("s_barrier")
    a.stamp(2)
    a("v_mov_b32 v9, 0")
    a("s_lshl_b32 s58, s50, 9")
    a(f"s_add_u32 s58, s58, {W2_G}")
    a("v_lshlrev_b32 v5, 3, v10")
    for i in range(32): a(f"v_dot2_f32_bf16 v9, v{64+i}, v{96+i}, v9")
    a("s_nop 3")
    a("v_add_f32_dpp v9, v9, v9 quad_perm:[1,0,3,2] row_mask:0xf bank_mask:0xf")
    a("s_nop 1")
    a("v_add_f32_dpp v9, v9, v9 quad_perm:[2,3,0,1] row_mask:0xf bank_mask:0xf")
    a("s_nop 1")
    a("v_add_f32_dpp v9, v9, v9 row_half_mirror row_mask:0xf bank_mask:0xf")
    a("v_cvt_pk_bf16_f32 v9, v9, v9")
    a("v_and_b32 v9, 0xffff0000, v9")
    a(f"v_mul_f32 v9, {hex(f2u(-LOG2E))}, v9")
    a("v_exp_f32 v9, v9")
    a("s_nop 0")
    a("v_add_f32 v9, 1.0, v9")
    a("v_rcp_f32 v9, v9")
    a("s_nop 0")
    a("v_cvt_pk_bf16_f32 v10, v9, v9")
    a("v_and_b32 v10, 0xffff0000, v10")
    a("v_sub_f32 v11, 1.0, v10")
    a("v_cvt_pk_bf16_f32 v11, v11, v11")
    a("v_and_b32 v11, 0xffff0000, v11")
    a("s_mov_b32 exec_lo, 0x01010101")
    a("s_mov_b32 exec_hi, 0x01010101")
    a("buffer_store_dwordx2 v[10:11], v5, s[44:47], s58 offen sc1")
    a("s_mov_b64 exec, -1")
    a("s_branch KA_ATT")

    a("KA_CONS0:")
    if "cnear" not in X: cpf()
    a("KA_CONS:")
    common()
    if not NF:
        a(f"v_lshl_add_u32 v5, v1, 2, v{VSY}")
        a("v_cmp_gt_u32 vcc, 24, v1")
        a("v_mov_b32 v6, 0")
        a("v_addc_co_u32 v6, vcc, 0, v6, vcc")
        a("ds_write_b32 v5, v6")
    a("s_setprio 3")
    ACC, FB = 112, 32
    XA, WAD, FLA = 16, 20, 21
    a("s_and_b32 s54, s48, 1")
    a("s_lshr_b32 s55, s48, 1")
    a("v_and_b32 v5, 31, v1")
    a("s_lshl_b32 s56, s54, 12")
    a("v_lshl_add_u32 v6, v5, 7, s56")
    a("v_bfe_u32 v7, v5, 1, 3")
    a("v_xor_b32 v7, v7, v3")
    a(f"v_lshl_add_u32 v{XA}, v7, 4, v6")
    for ks in range(1, 4):
        a(f"v_xor_b32 v{XA+ks}, {ks<<5}, v{XA}")
    a("v_bfe_u32 v7, v1, 2, 2")
    a("v_lshl_add_u32 v6, v3, 3, v7")
    a("v_lshlrev_b32 v6, 7, v6")
    a("v_lshrrev_b32 v7, 1, v7")
    a("v_xor_b32 v7, s55, v7")
    a("v_lshl_add_u32 v6, v7, 6, v6")
    a("v_bfe_u32 v7, v1, 4, 1")
    a("v_lshl_add_u32 v6, v7, 5, v6")
    a("v_and_b32 v7, 3, v1")
    a("v_lshl_add_u32 v6, v7, 3, v6")
    a(f"v_add_u32 v{WAD}, {L_W}, v6")
    for i in range(48):
        a(f"v_mov_b32 v{ACC+i}, 0")
    a("s_lshl_b32 s58, s48, 10")
    a(f"s_add_u32 s58, s58, {L_U}")
    a("v_add_u32 v5, s58, v4")
    a(f"ds_write_b128 v5, {vr(ACC,4)}")
    a(f"v_add_u32 v5, {L_U+4096}, v4")
    a("s_mov_b64 exec, 0x7fffff")
    a(f"ds_write_b128 v5, {vr(ACC,4)}")
    a("s_mov_b64 exec, -1")
    a("s_waitcnt lgkmcnt(0)")
    srd(a, 44, 34, 35, W2_END)
    WB = 22
    a("v_lshrrev_b32 v25, 1, v1")
    a("v_xor_b32 v25, v25, v1")
    a("v_and_b32 v25, 4, v25")
    a("v_mul_u32_u24 v25, 3, v25")
    a("v_xor_b32 v25, v25, v1")
    a("v_lshlrev_b32 v25, 4, v25")
    a(f"v_mov_b32 v{WB}, v{WAD}")
    def reads(step):
        F = FB + 16 * (step & 3)
        xo = (step >> 2) * 8192
        wo = (step & 1) * 2048
        r = [f"ds_read_b128 {vr(F,4)}, v{XA+(step&3)} offset:{xo}"]
        for ct in range(3):
            for hh in range(2):
                r.append(f"ds_read_b64_tr_b16 {vr(F+4+4*ct+2*hh,2)}, v{WAD} offset:{wo+ct*4096+hh*512}")
        return r
    def mfmas(step):
        F = FB + 16 * (step & 3)
        r = []
        for ct in range(3):
            x, w = vr(F, 4), vr(F + 4 + 4 * ct, 4)
            A, B = (w, x) if ct < 2 else (x, w)
            r.append(f"{MF} {vr(ACC+16*ct,16)}, {A}, {B}, {vr(ACC+16*ct,16)}")
        return r
    a("s_mov_b32 s58, 0")
    a("s_mov_b32 s57, 3")
    if NF: wait4(S_OA, nap=1)
    else: a("s_barrier")
    a.stamp(1)
    for t in reads(0) + reads(1): a(t)
    if "al" in X: a(".p2align 6")
    if "gph4" in X: a("s_nop 0")
    a("KA_GEMM:")
    for st in range(8):
        m, r = mfmas(st), reads(st + 2)
        if st % 2 == 0:
            a("s_add_u32 s58, s58, 12288")
            a(f"s_cmp_eq_u32 s58, {NSLOT*12288}")
            a("s_cselect_b32 s58, 0, s58")
            a(f"v_add_u32 v{WAD}, s58, v{WB}")
            if st == 6: a("s_cmp_eq_u32 s57, 0")
            elif st // 2 + 1 < NF: a("s_cmp_eq_u32 s57, 3")
        a("s_waitcnt lgkmcnt(7)")
        a(m[0])
        if st == 6: a("s_cbranch_scc1 KA_GEND")
        if st % 2 == 0:
            if st // 2 + 1 < NF: a(f"s_cbranch_scc1 KA_GW{st}")
            a("s_barrier")
            if st // 2 + 1 < NF: a(f"KA_GR{st}:")
        [a(t) for t in r[:3]]; a(m[1]); [a(t) for t in r[3:6]]; a(m[2]); a(r[6])
    for k in range(4):
        a(f"v_add_u32 v{XA+k}, 16384, v{XA+k}")
    a("s_sub_u32 s57, s57, 1")
    a("s_branch KA_GEMM")
    for st in (0, 2, 4):
        if st // 2 + 1 < NF:
            a(f"KA_GW{st}:")
            wait4(S_OA + 16 * (st // 2 + 1))
            a(f"s_branch KA_GR{st}")
    a("KA_GEND:")
    m = mfmas(6); a(m[1]); a(m[2])
    a("s_waitcnt lgkmcnt(0)")
    for t in mfmas(7): a(t)
    a.stamp(2)
    a("s_lshl_b32 s58, s50, 1")
    a("s_add_u32 s58, s58, s54")
    a("s_lshl_b32 s58, s58, 10")
    a(f"s_mul_i32 s59, s55, {2*G_HEAD}")
    a("s_add_u32 s58, s58, s59")
    a("s_add_u32 s58, s58, s51")
    a(f"s_add_u32 s59, s58, {G_HEAD}")
    a("s_add_u32 s62, s58, 65536")
    a(f"s_mov_b32 s63, {hex(QSCALE)}")
    a("v_bfe_u32 v5, v1, 4, 1")
    a(f"v_mul_u32_u24 v5, {G_HEAD}, v5")
    a("v_and_b32 v6, 15, v1")
    a("v_lshl_add_u32 v6, v3, 4, v6")
    a("v_lshl_add_u32 v6, v6, 4, v5")
    for i in range(8):
        a(f"v_cvt_pk_bf16_f32 v{16+i}, v{ACC+16+2*i}, v{ACC+16+2*i+1}")
    a("buffer_store_dwordx4 v[16:19], v25, s[44:47], s58 offen" + NT)
    a("buffer_store_dwordx4 v[20:23], v25, s[44:47], s59 offen" + NT)
    for i in range(8):
        a(f"v_cvt_pk_bf16_f32 v{96+i}, v{ACC+32+2*i}, v{ACC+32+2*i+1}")
    a("buffer_store_dwordx4 v[96:99], v6, s[44:47], s62 offen" + NT)
    a("buffer_store_dwordx4 v[100:103], v6, s[44:47], s62 offen offset:512" + NT)
    wait(S_NONCE, 1, out=52)
    for i in range(16):
        a(f"v_mul_f32 v{ACC+i}, s63, v{ACC+i}")
    a("s_lshl_b32 s60, s55, 12")
    a("s_lshl_b32 s61, s54, 10")
    a("s_add_u32 s60, s60, s61")
    a(f"s_add_u32 s60, s60, {L_Q}")
    a("v_add_u32 v5, s60, v4")
    for i in range(8):
        a(f"v_cvt_pk_bf16_f32 v{32+i}, v{ACC+2*i}, v{ACC+2*i+1}")
    a("ds_write_b128 v5, v[32:35]")
    a("ds_write_b128 v5, v[36:39] offset:2048")
    sig(S_QRDY)
    mktag(512)
    a("s_lshl_b32 s60, s48, 7")
    a("s_lshl_b32 s61, s50, 2")
    a("s_add_u32 s60, s60, s61")
    a("v_mov_b32 v156, s60")
    a("s_waitcnt vmcnt(0)")
    publish()
    sig(S_DONE)
    if "tq2" in X:
        a("s_and_b32 s60, s50, 15")
        a("s_cmp_ge_u32 s60, 2")
        a("s_cbranch_scc1 KA_NTQ")
        a("v_bfe_u32 v5, v1, 4, 2")
        a("v_lshlrev_b32 v5, 16, v5")
        a("v_and_b32 v7, 15, v1")
        a("v_lshl_add_u32 v5, v7, 6, v5")
        a("buffer_load_dword v163, v5, s[44:47], s58 offen sc1")
        a("KA_NTQ:")
    a.stamp(3)
    a("s_branch KA_ATT")

    a("KA_AUX0:")
    common()
    import ka_aux
    ka_aux.gen_aux(a, sig, wait, wait4, lbl, X, gettag, mktag, publish, collect, dsig, NF)
    a("KA_END:")
    a("s_endpgm")
    return a.text(), 168
```

```python
from common import *
from ka import *

def gen_aux(a, sig, wait, wait4, lbl, X, gettag, mktag, publish, collect, dsig, NF):
    import ka
    cmul = ka.cmul if "nopk" in X else ka.cmul_pk
    PSL = 1 if "ps1" in X else 8 if "ps8" in X else 3
    FINN = 4 if "f4" in X else 1 if "f1" in X else 8
    DATA_TRIES = 0 if "dt0" in X else 200
    st = (lambda i: None) if "p3st" in X else a.stamp
    a("KA_AUX:")
    a("s_and_b32 s61, s54, 1")
    a("s_lshr_b32 s62, s54, 1")
    a("s_mov_b32 s52, 0")
    srd(a, 44, 34, 35, W2_END)
    a("s_lshl_b32 s63, s2, 2")
    a("s_add_u32 s63, s63, s54")
    a("s_cmp_lg_u32 s63, 3")
    a("s_cbranch_scc1 KA_NOPUB")
    a("s_memrealtime s[64:65]")
    a("s_waitcnt lgkmcnt(0)")
    a("s_or_b32 s64, s64, 1")
    a("v_mov_b32 v158, 0")
    a("v_mov_b32 v159, s64")
    a("s_mov_b64 exec, 1")
    a("global_store_dword v158, v159, s[32:33] sc1")
    a("s_mov_b64 exec, -1")
    a("KA_NOPUB:")
    a("v_and_b32 v7, 31, v1")
    Z = 160
    a("v_and_b32 v36, 1, v1")
    a("v_lshlrev_b32 v36, 4, v36")
    a("v_mov_b32 v37, 0x3f80")
    a("v_lshlrev_b32 v36, v36, v37")
    a("v_bfe_u32 v37, v1, 1, 2")
    for d in range(4):
        a(f"v_cmp_eq_u32 s[{64+2*d}:{65+2*d}], {d}, v37")
    a("s_nop 0")
    for d in range(4):
        a(f"v_cndmask_b32 v{Z+d}, 0, v36, s[{64+2*d}:{65+2*d}]")
    a("s_lshl_b32 s63, s54, 11")
    a(f"s_add_u32 s63, s63, {L_XCH}")
    a("v_add_u32 v16, s63, v4")
    a(f"s_mul_i32 s63, s62, {KPROW}")
    a(f"s_add_u32 s63, s63, {L_KP}")
    a("v_lshl_add_u32 v19, v7, 4, s63")
    a("s_lshl_b32 s64, s62, 2")
    a(f"v_add_u32 v167, s64, v{VSY}")
    a("v_lshrrev_b32 v32, 2, v7")
    a("v_lshlrev_b32 v32, 3, v32")
    a("v_sub_u32 v33, 4128, v32")
    a("v_lshl_add_u32 v33, v3, 4, v33")
    a("v_and_b32 v32, 3, v7")
    a(f"v_mul_u32_u24 v32, {KPC}, v32")
    a("s_lshl_b32 s64, s61, 6")
    a("s_sub_u32 s64, s63, s64")
    a("s_sub_u32 s64, s64, 416")
    a("v_add3_u32 v38, v32, v33, s64")
    a("v_mul_u32_u24 v39, 144, v7")
    a("v_lshl_add_u32 v39, v3, %d, v39" % (5 if "utw" in X else 4))
    a("s_lshl_b32 s64, s62, %d" % (4 if "utw" in X else 6))
    a("s_mul_i32 s65, s61, 144")
    a("s_sub_u32 s64, s64, s65")
    a(f"s_add_u32 s64, s64, {L_U+31*144-864}")
    a("v_add_u32 v39, s64, v39")
    a("s_lshl_b32 s64, s54, 6")
    for k, r in enumerate((2, 5, 6)):
        a("v_add_u32 v32, s64, v1")
        if k: a(f"v_add_u32 v32, {256*k}, v32")
        a("v_mul_u32_u24 v33, 7282, v32")
        a("v_lshrrev_b32 v33, 16, v33")
        a("v_mul_u32_u24 v34, 9, v33")
        a("v_sub_u32 v34, v32, v34")
        a("v_min_u32 v34, 7, v34")
        if "utw" in X:
            a("v_lshrrev_b32 v35, 1, v34")
            a("v_lshl_add_u32 v33, v33, 2, v35")
            a("v_and_b32 v34, 1, v34")
            a("v_lshlrev_b32 v34, 4, v34")
            a(f"v_lshl_add_u32 v{r}, v33, 10, v34")
        else:
            a("v_lshlrev_b32 v34, 4, v34")
            a(f"v_lshl_add_u32 v{r}, v33, 7, v34")
    a("s_lshl_b32 s74, s50, %d" % (5 if "utw" in X else 13))
    a("s_add_u32 s74, s74, s51")
    a(f"s_add_u32 s74, s74, {G_UT}")
    a("s_lshl_b32 s75, s54, 10")
    a(f"s_add_u32 s75, s75, {L_U+31*144}")
    a("s_lshl_b32 s60, s54, 2")
    a(f"s_add_u32 s60, s60, {L_SY+S_UA}")
    a("s_lshl_b32 s58, s61, 12")
    a("s_sub_u32 s58, 2048, s58")
    a(f"s_mov_b32 s63, {hex(LOG2E_HI)}")
    a("s_waitcnt vmcnt(7)")
    a("v_mul_f32 v17, s63, v14")
    a("v_fma_f32 v18, v14, s63, -v17")
    a(f"v_fmac_f32 v18, {hex(LOG2E_LO)}, v14")
    a("v_exp_f32 v17, v17")
    a(f"v_mul_f32 v18, {hex(LN2)}, v18")
    a("v_fma_f32 v17, v17, v18, v17")
    a("v_cvt_pk_bf16_f32 v17, v17, v17")
    a("v_and_b32 v17, 0xffff0000, v17")
    a("s_waitcnt vmcnt(0)")
    st(1)
    for r in (8, 9, 10, 11):
        a(f"v_mul_f32 v{r}, v17, v{r}")
    a("v_mul_f32 v8, s63, v8")
    a("v_mul_f32 v9, 0.15915494, v9")
    W1, W8, W256, W2, W4, W16 = 20, 22, 24, 26, 28, 30
    tmp = 32
    for k, mult in enumerate((1.0, 8.0, 256.0)):
        t = tmp + 2 * k
        a(f"v_mul_f32 v{t}, {hex(f2u(mult))}, v8")
        a(f"v_mul_f32 v{t+1}, {hex(f2u(mult))}, v9")
    for k in range(3):
        t = tmp + 2 * k
        a(f"v_exp_f32 v{t}, v{t}")
        a(f"v_fract_f32 v{t+1}, v{t+1}")
    for k, wr in enumerate((W1, W8, W256)):
        t = tmp + 2 * k
        a(f"v_cos_f32 v{wr}, v{t+1}")
        a(f"v_sin_f32 v{wr+1}, v{t+1}")
    U = {}
    nxt = [40]
    def newU(av):
        U[av] = {524: 8, 780: 10}.get(av) or nxt[0]
        if U[av] == nxt[0]: nxt[0] += 2
        return U[av]
    for l in cmul(newU(0), 12, 10): a(l)
    for k, wr in enumerate((W1, W8, W256)):
        t = tmp + 2 * k
        a(f"v_mul_f32 v{wr}, v{t}, v{wr}")
        a(f"v_mul_f32 v{wr+1}, v{t}, v{wr+1}")
    for l in interleave([cmul(W2, W1, W1), cmul(W16, W8, W8)]): a(l)
    for l in cmul(W4, W2, W2): a(l)
    WA, WB, WR, WI, UR, UI = 96, 100, 112, 128, 144, 96
    wops = [f"v_cvt_pk_bf16_f32 v{WR+15}, v{W8}, 1.0", f"v_cvt_pk_bf16_f32 v{WI+15}, v{W8+1}, 0"]
    ca, cb = W16, None
    wops += cmul(WB, W8, W16); cb = WB
    for k in range(1, 16):
        pk = [f"v_cvt_pk_bf16_f32 v{WR+15-k}, v{cb}, v{ca}", f"v_cvt_pk_bf16_f32 v{WI+15-k}, v{cb+1}, v{ca+1}"]
        if k < 15:
            na, nb = WA + 2 * (k & 1), WB + 2 * (k & 1)
            wops += interleave([cmul(na, ca, W16), cmul(nb, cb, W16), pk])
            ca, cb = na, nb
        else:
            wops += pk
    u1 = []; prev = 0
    for av in (256, 512, 768, 1024, 1280, 1536, 1792):
        u1 += cmul(newU(av), U[prev], W256); prev = av
    for av in (1024, 1280, 1536, 1792):
        u1 += cmul(newU(av + 8), U[av], W8)
    for av in (516, 520, 524):
        u1 += cmul(newU(av), U[av - 4], W4)
    u2 = []
    for av in range(1, 9):
        u2 += cmul(newU(av), U[av - 1], W1)
    for av in (258, 260, 262, 264):
        u2 += cmul(newU(av), U[av - 2], W2)
    for av in (772, 776, 780):
        u2 += cmul(newU(av), U[av - 4], W4)
    assert nxt[0] <= 96
    for l in interleave([wops, interleave([u1, u2])]): a(l)
    rows = [0,1,2,3,4,5,6,7, 256,258,260,4,260,262,264,8, 512,516,520,524,768,772,776,780,
            1024,1032,1280,1288,1536,1544,1792,1800]
    for p in range(16):
        x, y = U[rows[2*p]], U[rows[2*p+1]]
        a(f"v_cvt_pk_bf16_f32 v{UR+p}, v{x}, v{y}")
        a(f"v_cvt_pk_bf16_f32 v{UI+p}, -v{x+1}, -v{y+1}")
    TD, ES, KD = 40, 88, 20
    nb = [NF]
    def bar(n=1):
        for _ in range(n):
            a("s_barrier"); nb[0] += 1
    for q in range(2):
        a(f"s_mov_b32 s64, {hex(0xff << (8*q))}")
        a(f"s_mov_b32 s65, {hex(0xff0000 << (8*q))}")
        for d in range(4):
            a(f"v_cndmask_b32 v{ES+4*q+d}, 0, v{Z+d}, s[64:65]")
    a("s_load_dword s52, s[32:33], 0")
    halves = [Xm + 8 * hf for Xm in (WR, UR, WI, UI) for hf in range(2)]
    def tm(i):
        T = TD + 16 * (i % 3)
        return [f"{MF} {vr(T,16)}, {vr(halves[i],4)}, {vr(ES,4)}, 0", f"{MF} {vr(T,16)}, {vr(halves[i]+4,4)}, {vr(ES+4,4)}, {vr(T,16)}"]
    def tc(i):
        T = TD + 16 * (i % 3)
        return [f"v_cvt_pk_bf16_f32 v{halves[i]+k}, v{T+2*k}, v{T+2*k+1}" for k in range(8)]
    def ts(Xm): return [f"v_permlane16_swap_b32 v{Xm+k}, v{Xm+8+k}" for k in range(8)]
    def fin(XU, XW, first): return [f"{MF} {vr(KD,16)}, {vr(XU+4*i,4)}, {vr(XW+4*i,4)}, " + ("0" if first and i == 0 else vr(KD,16)) for i in range(4)]
    def mixm(m, v):
        n = (len(v) + len(m) - 1) // len(m)
        for i, t in enumerate(m):
            a(t)
            for u in v[i*n:(i+1)*n]: a(u)
    a("s_nop 0")
    for t in tm(0) + tm(1) + tm(2): a(t)
    a("s_nop 7")
    for t in tc(0): a(t)
    mixm(tm(3), ["s_nop 0"] + tc(1))
    mixm(tm(4), tc(2) + ts(WR))
    mixm(tm(5), tc(3))
    mixm(tm(6), tc(4) + ts(UR))
    mixm(tm(7), tc(5))
    mixm(fin(UR, WR, True), tc(6) + ts(WI) + tc(7))
    a("s_nop 1")
    for t in ts(UI): a(t)
    a("s_nop 1")
    for t in fin(UI, WI, False): a(t)
    NPRE = 4
    a("v_lshlrev_b32 v157, 2, v7")
    a("v_lshlrev_b32 v156, 2, s50")
    a("v_mov_b32 v154, 0x7ffffff0")
    a("v_add_u32 v17, s58, v16")
    a("s_cmp_eq_u32 s61, s62")
    a("s_nop 6")
    a("s_cbranch_scc1 KA_X0")
    for i in range(8): a(f"v_swap_b32 v{KD+i}, v{KD+8+i}")
    a("KA_X0:")
    a(f"ds_write_b128 v16, {vr(KD+8,4)}")
    a(f"ds_write_b128 v16, {vr(KD+12,4)} offset:1024")
    if "xw" in X: a("s_waitcnt lgkmcnt(0)")
    if NPRE == 4: st(2)
    bar(max(4 - nb[0], 1))
    gettag()
    mktag(0)
    a("s_cmp_lg_u32 s54, 0")
    a("s_cbranch_scc1 KA_NPB")
    publish()
    a("KA_NPB:")
    bar(5 - nb[0])
    D0, D1, FA, FB, FC = 112, 128, 48, 64, 80
    PW, PG, PA, PF, POF, PWF, POUT, PM, PS, PD = 144, 148, 149, 150, 151, 152, 153, 100, 108, 109
    w = ["v_lshrrev_b32 v8, 3, v1", "v_bfe_u32 v9, v1, 4, 1", "v_lshlrev_b32 v9, 2, v9", "v_and_b32 v10, 7, v1", "v_xor_b32 v9, v9, v10",
         "v_lshlrev_b32 v9, 4, v9", f"v_lshl_add_u32 v{PW}, v8, 10, v9"] + [f"v_add_u32 v{PW+q}, {7168*q}, v{PW}" for q in range(1, 4)]
    w += [f"v_lshlrev_b32 v{PF}, 7, v10", f"v_lshlrev_b32 v{PG}, 3, v7", f"v_lshlrev_b32 v{PD}, 12, v8", f"v_lshl_add_u32 v{PD}, v10, 4, v{PD}",
          "s_lshl_b32 s63, s62, 12", "s_lshl_b32 s64, s61, 4", "s_add_u32 s63, s63, s64", f"s_add_u32 s63, s63, {L_GA}",
          f"v_lshl_add_u32 v{PA}, v7, 7, s63", f"v_lshl_add_u32 v{PA}, v3, 5, v{PA}",
          f"v_lshlrev_b32 v{POUT}, 10, v7", f"v_lshl_add_u32 v{POUT}, v3, 4, v{POUT}",
          "s_lshl_b32 s63, s54, 11", f"s_add_u32 s63, s63, {L_GT}", f"v_add_u32 v{POF}, s63, v4",
          "v_lshrrev_b32 v8, 1, v7", f"v_lshl_add_u32 v{PS}, v8, 7, s63", f"v_lshl_add_u32 v{PS}, v3, 5, v{PS}", "v_and_b32 v8, 1, v7", f"v_lshl_add_u32 v{PS}, v8, 4, v{PS}",
          "v_bfe_u32 v8, v1, 2, 2", f"v_lshl_add_u32 v{PWF}, v3, 2, v8", f"v_lshlrev_b32 v{PWF}, 7, v{PWF}", "v_lshrrev_b32 v8, 1, v8", "v_xor_b32 v8, s62, v8",
          f"v_lshl_add_u32 v{PWF}, v8, 6, v{PWF}", "v_bfe_u32 v8, v1, 4, 1", f"v_lshl_add_u32 v{PWF}, v8, 5, v{PWF}", "v_and_b32 v8, 3, v1",
          f"v_lshl_add_u32 v{PWF}, v8, 3, v{PWF}", f"v_add_u32 v{PWF}, {L_WO}, v{PWF}"]
    w += ["v_lshrrev_b32 v8, 3, v7", "v_bfe_u32 v9, v7, 1, 1", "v_lshl_add_u32 v8, v8, 1, v9", "v_bfe_u32 v9, v7, 2, 1", "v_xor_b32 v9, v9, v3",
          "v_lshl_add_u32 v8, v9, 3, v8", "v_and_b32 v9, 1, v7", "v_lshlrev_b32 v9, 4, v9", "v_mov_b32 v10, 0xffff", "v_lshlrev_b32 v9, v9, v10"]
    w += [f"v_cmp_eq_u32 s[{4+2*k}:{5+2*k}], {k}, v8" for k in range(8)] + ["s_nop 0"]
    w += [f"v_cndmask_b32 v{PM+k}, 0, v9, s[{4+2*k}:{5+2*k}]" for k in range(8)]
    n = (len(w) + 3) // 4
    for k in range(3):
        bar()
        for t in w[k*n:(k+1)*n]: a(t)
    a("s_waitcnt lgkmcnt(0)")
    bar()
    a(f"ds_read_b128 {vr(KD+8,4)}, v17")
    a(f"ds_read_b128 {vr(KD+12,4)}, v17 offset:1024")
    for t in w[3*n:]: a(t)
    bar()
    a("buffer_load_dword v158, v157, s[44:47], s67 offen sc1")
    a("s_waitcnt lgkmcnt(0)")
    for i in range(8):
        a(f"v_add_f32 v{KD+i}, v{KD+i}, v{KD+8+i}")
    def uload():
        l = lbl("UL")
        a("s_mov_b32 m0, s75")
        a("s_cmp_lg_u32 s54, 0")
        a("buffer_load_dwordx4 v2, s[44:47], s74 offen" + (" nt" if "ntu" in X else "") + " lds")
        a(f"s_cbranch_scc1 {l}")
        a("s_add_u32 m0, s75, 8192")
        a("s_nop 0")
        a("buffer_load_dwordx4 v6, s[44:47], s74 offen" + (" nt" if "ntu" in X else "") + " lds")
        a(f"{l}:")
        a("s_add_u32 m0, s75, 4096")
        a("s_nop 0")
        a("buffer_load_dwordx4 v5, s[44:47], s74 offen" + (" nt" if "ntu" in X else "") + " lds")
        dsig("s_mov_b32 m0, s60")
    def tail(work):
        l = lbl("UE")
        work = work + [f"v_mov_b32 v{D0+i}, 0" for i in range(32)]
        n = (len(work) + 3) // 4
        parts = [work[i*n:(i+1)*n] for i in range(4)]
        a("s_barrier")
        for t in parts[0]: a(t)
        a("s_barrier")
        for t in parts[1]: a(t)
        a("s_barrier")
        a("s_waitcnt vmcnt(0)")
        a("v_cmp_ne_u32 vcc, s66, v158")
        a("s_mov_b32 s59, 1")
        a(f"s_cbranch_vccnz {l}")
        a("s_mov_b32 s59, 0")
        uload()
        a(f"{l}:")
        a("s_barrier")
        for t in parts[2]: a(t)
        a("s_barrier")
        for t in parts[3]: a(t)
        a("s_barrier")
        st(3)
    def ready():
        l = lbl("UK")
        a("s_cmp_eq_u32 s59, 0")
        a(f"s_cbranch_scc1 {l}")
        collect(False, "s_cmp_eq_u32 s54, 0")
        uload()
        a(f"{l}:")
        st(4)
        wait4(S_UA)
        st(5)
        wait(S_KN, 2, 167)
        st(6)
        if "noaux" in X: a("s_branch KA_AUXEND")
    def rdA(slot, step, w=False):
        o = 416 - 128 * (step >> 1) - 32 * (step & 1)
        a(f"ds_read_b64 {vr(FA+4*slot,2)}, v38 offset:{o}")
        a(f"ds_read_b64 {vr(FA+4*slot+2,2)}, v38 offset:{o+8}")
    def rdB(R, slot, step, extra=0):
        a(f"ds_read_b128 {vr(R+4*slot,4)}, v39 offset:{864-288*(step>>1)+(0 if step&1 else (64 if 'utw' in X else 32))+extra}")
    def steps(near, paced, flag, extra=None):
        for s in range(4):
            n = (11 if near else 9) - (1 if near and s == 0 and flag else 0)
            a("s_waitcnt lgkmcnt(%d)" % (0 if paced else n))
            a(f"{MF} {vr(D1,16)}, {vr(FA+4*s,4)}, {vr(FB+4*s,4)}, {vr(D1,16)}")
            if near:
                rdB(FB, s, s + 4, 32 * 144)
                if paced: a("s_waitcnt lgkmcnt(0)")
                if extra: [a(t) for t in extra[s][:-1]]
                a(f"{MF} {vr(D0,16)}, {vr(FA+4*s,4)}, {vr(FC+4*s,4)}, {vr(D0,16)}")
                rdA(s, s + 4)
                if paced and "slow" in X: a("s_waitcnt lgkmcnt(0)")
                rdB(FC, s, s + 4)
                if extra: a(extra[s][-1])
            else:
                rdA(s, s + 4)
                if paced and "slow" in X: a("s_waitcnt lgkmcnt(0)")
                rdB(FB, s, s + 4, 32 * 144)
        a("v_subrev_u32 v38, 256, v38")
        a(f"v_subrev_u32 v39, {288*2}, v39")
    def prime():
        for s in range(4):
            if s == 3: a("s_waitcnt lgkmcnt(8)")
            rdB(FB, s, s, 32 * 144); rdA(s, s); rdB(FC, s, s)
    assert nb[0] == 10
    a("s_cmp_eq_u32 s61, s62")
    a("s_cbranch_scc0 KA_X1")
    tail(["v_cmp_eq_u32 s[72:73], 31, v1", "v_lshlrev_b32 v8, 3, v3", "v_xor_b32 v8, 8, v8",
          "v_cndmask_b32 v9, 0, v15, s[72:73]", "v_add_u32 v18, v19, v8", f"v_add_f32 v{KD}, v{KD}, v9",
          f"v_add_u32 v36, {KPC+4+3072}, v18", f"v_add_u32 v37, {2*KPC+4+3072}, v18",
          f"v_cvt_pk_bf16_f32 v40, v{KD+3}, v{KD+2}", f"v_cvt_pk_bf16_f32 v41, v{KD+1}, v{KD+0}",
          f"v_cvt_pk_bf16_f32 v42, v{KD+6}, v{KD+5}", f"v_cvt_pk_bf16_f32 v43, v{KD+4}, v{KD+4}",
          f"v_cvt_pk_bf16_f32 v44, v{KD+7}, v{KD+3}", f"v_cvt_pk_bf16_f32 v45, v{KD+2}, v{KD+1}",
          f"v_cvt_pk_bf16_f32 v46, v{KD+6}, v{KD+6}", f"v_cvt_pk_bf16_f32 v47, v{KD+5}, v{KD+4}",
          "v_lshrrev_b32 v9, 16, v41"])
    a("ds_write_b64 v18, v[44:45] offset:3584")
    a("ds_write_b64 v18, v[46:47] offset:3072")
    a("ds_write2_b32 v36, v40, v41 offset0:128 offset1:129")
    a("ds_write2_b32 v36, v42, v43 offset0:0 offset1:1")
    a("ds_write2_b32 v37, v44, v45 offset0:128 offset1:129")
    a("ds_write2_b32 v37, v46, v47 offset0:0 offset1:1")
    a(f"ds_write_b64 v18, v[40:41] offset:{3*KPC+8+3584}")
    a(f"ds_write_b64 v18, v[42:43] offset:{3*KPC+8+3072}")
    a("s_mov_b64 exec, s[72:73]")
    a("ds_write_b32 v18, v9 offset:3592")
    a("ds_write_b32 v37, v9 offset:520")
    a(f"ds_add_u32 v167, v{VONE} offset:{S_KN}")
    a("s_mov_b64 exec, -1")
    ready()
    prime()
    a("s_mov_b32 s63, 3")
    a("KA_CV0:")
    steps(True, False, False)
    a("s_sub_u32 s63, s63, 1")
    a("s_cmp_lg_u32 s63, 0")
    a("s_cbranch_scc1 KA_CV0")
    wait(S_KF, 1, 167)
    a("s_branch KA_XD")
    a("KA_X1:")
    r8, r9, r10, r11, r12, r13, r14, r15 = [KD + i for i in range(8)]
    V4 = [r8]*3 + [r9]*3 + [r10]*5 + [r11]
    V8a = [r12]*4 + [36] + [r13]*7
    V8b = [r14]*4 + [37] + [r15]*7
    tail(["v_and_b32 v8, 1, v1", "v_cmp_eq_u32 s[72:73], 1, v8", "v_cmp_eq_u32 s[70:71], 32, v1", "v_lshlrev_b32 v8, 9, v3", "v_sub_u32 v19, v19, v8", "v_sub_u32 v18, v19, v8",
          f"v_cndmask_b32 v36, v{r13}, v{r12}, s[72:73]", f"v_cndmask_b32 v37, v{r15}, v{r14}, s[72:73]", f"v_cndmask_b32 v{r11}, v{r11}, v{r10}, s[70:71]",
          f"v_cvt_pk_bf16_f32 v8, v{r9}, v{r8}", f"v_cvt_pk_bf16_f32 v9, v{r8}, v{r8}", "v_mov_b32 v12, s52"])
    a("s_mov_b32 exec_lo, 0x80000000\ns_mov_b32 exec_hi, 0")
    a(f"ds_write_b32 v{VSY}, v12 offset:{S_NONCE}")
    a(f"ds_write_b32 v19, v9 offset:{KPC+2560+16}")
    a(f"ds_write_b32 v19, v9 offset:{2*KPC+2560+16}")
    a(f"ds_write_b64 v19, v[8:9] offset:{3*KPC+2560+16}")
    a("s_mov_b64 exec, -1")
    ready()
    prime()
    for (V, ad, off) in ((V4, 19, 2560), (V8a, 18, 1536), (V8b, 18, 1024)):
        ex = []
        for c in range(4):
            R = 40 + 4 * (c & 1)
            ex.append([f"v_cvt_pk_bf16_f32 v{R+d}, v{V[8+c-2*d]}, v{V[7+c-2*d]}" for d in range(4)] + [f"ds_write_b128 v{ad}, {vr(R,4)} offset:{c*KPC+off}"])
        steps(True, False, False, ex)
    sig(S_KF, 167)
    a("KA_XD:")
    def loop(lab, nxt, near, paced):
        a(f"{lab}:")
        if paced and "xcv" in X: a("s_branch KA_CVE")
        if not paced: a(f"ds_read_b32 v{VTMP}, v{VSY} offset:{S_GO}")
        steps(near, paced, True)
        if not paced: a(f"v_readfirstlane_b32 s76, v{VTMP}")
        a("s_sub_u32 s63, s63, 1")
        a("s_cmp_lg_u32 s63, 0")
        if not paced:
            a(f"s_cbranch_scc0 {nxt}")
            a("s_cmp_eq_u32 s76, 0")
        a(f"s_cbranch_scc1 {lab}")
    a("s_mov_b32 s63, 5")
    loop("KA_CV1", "KA_CVM", True, False)
    loop("KA_CV1P", None, True, True)
    a("KA_CVM:")
    a("s_mov_b32 s63, 8")
    a("s_cmp_lg_u32 s76, 0")
    a("s_cbranch_scc1 KA_CV2P")
    loop("KA_CV2", "KA_CVE", False, False)
    loop("KA_CV2P", None, False, True)
    a("KA_CVE:")
    st(7)
    a("s_lshl_b32 s63, s54, 12")
    a(f"s_add_u32 s63, s63, {L_CX}")
    a("v_add_u32 v13, s63, v4")
    a("v_xor_b32 v14, 4096, v13")
    wait(S_QRDY, 4)
    a("s_cmp_eq_u32 s61, 0")
    a("s_cbranch_scc0 KA_CVS")
    for i in range(4): a(f"ds_write_b128 v13, {vr(D1+4*i,4)} offset:{1024*i}")
    sig(S_CV, 167)
    wait(S_CV, 2, 167, nap=1)
    for i in range(4): a(f"ds_read_b128 {vr(D1+4*i,4)}, v14 offset:{1024*i}")
    a("s_branch KA_CVJ")
    a("KA_CVS:")
    for i in range(4): a(f"ds_write_b128 v13, {vr(D0+4*i,4)} offset:{1024*i}")
    sig(S_CV, 167)
    wait(S_CV, 2, 167, nap=1)
    for i in range(4): a(f"ds_read_b128 {vr(D0+4*i,4)}, v14 offset:{1024*i}")
    a("KA_CVJ:")
    a("s_lshl_b32 s56, s49, 2")
    a("s_and_b32 s57, s50, 3")
    a("s_add_u32 s56, s56, s57")
    a("s_lshr_b32 s57, s50, 2")
    a("s_lshl_b32 s72, s56, 11")
    a(f"s_add_u32 s72, s72, {W2_FO}")
    a("s_lshl_b32 s65, s56, 1")
    a("s_add_u32 s65, s65, s61")
    a("s_lshl_b32 s63, s57, 1")
    a("s_add_u32 s63, s63, s62")
    a("s_lshl_b32 s74, s63, 6")
    a("s_lshl_b32 s64, s65, 15")
    a("s_add_u32 s74, s74, s64")
    a("s_lshl_b32 s73, s57, 18")
    a("s_lshl_b32 s64, s54, 16")
    a("s_add_u32 s73, s73, s64")
    a("s_lshl_b32 s64, s56, 7")
    a("s_add_u32 s73, s73, s64")
    a(f"s_add_u32 s73, s73, {W2_GA}")
    a("s_lshl_b32 s75, s65, 8")
    a(f"s_add_u32 s75, s75, {W2_G}")
    a("v_mov_b32 v155, s52")
    a("s_lshl_b32 s63, s55, 13")
    a("s_lshl_b32 s64, s54, 11")
    a("s_add_u32 s63, s63, s64")
    a(f"s_add_u32 s63, s63, {W2_GA}")
    a("s_waitcnt lgkmcnt(0)")
    sig(S_CD)
    for i in range(16): a(f"v_add_f32 v{D0+i}, v{D0+i}, v{D1+i}")
    for i in range(8): a(f"v_cvt_pk_bf16_f32 v{64+i}, v{D0+2*i}, v{D0+2*i+1}")
    a(f"ds_write_b128 v{PS}, v[64:67]")
    a(f"ds_write_b128 v{PS}, v[68:71] offset:64")
    a(f"ds_read_b128 v[64:67], v{POF}")
    a(f"ds_read_b128 v[68:71], v{POF} offset:1024")
    a("s_waitcnt lgkmcnt(0)")
    a("buffer_store_dwordx4 v[64:67], v4, s[44:47], s63 offen sc1")
    a("buffer_store_dwordx4 v[68:71], v4, s[44:47], s63 offen offset:1024 sc1")
    if "nop3" in X: a("s_branch KA_AUXEND")
    a("s_lshl_b32 s63, s50, 11")
    a(f"s_add_u32 s71, s63, {W2_FO}")
    a("s_lshl_b32 s70, s49, 7")
    a("s_add_u32 s63, s71, s70")
    if "nofl" not in X: a("s_load_dword s68, s[34:35], s63")
    srd(a, 36, 26, 27, 512 * 512 * 2)
    srd(a, 40, 30, 31, 2048 * 512 * 2)
    a("v_lshlrev_b32 v12, 2, s49")
    if "dp" in X:
        a("s_lshl_b32 s4, s50, 16")
        a("s_lshl_b32 s5, s49, 13")
        a("s_add_u32 s4, s4, s5")
        a("s_lshl_b32 s5, s54, 11")
        a("s_add_u32 s4, s4, s5")
        a(f"s_add_u32 s4, s4, {W2_O}")
        for i in range(4): a(f"v_mov_b32 v{8+i}, -1")
        a("buffer_store_dwordx4 v[8:11], v4, s[44:47], s4 offen sc1")
        a("buffer_store_dwordx4 v[8:11], v4, s[44:47], s4 offen offset:1024 sc1")
    wait(S_CD, 5, nap=4)
    a("s_waitcnt vmcnt(0)")
    a("s_mov_b64 exec, 1")
    a(f"ds_add_rtn_u32 v{VTMP}, v{VSY}, v{VONE} offset:{S_PC}")
    a("s_waitcnt lgkmcnt(0)")
    a(f"v_readfirstlane_b32 s76, v{VTMP}")
    a("s_cmp_lg_u32 s76, 3")
    a("s_cbranch_scc1 KA_NCL")
    a("buffer_store_dword v155, v156, s[44:47], s67 offen offset:2048 sc1")
    a("buffer_store_dword v155, v12, s[44:47], s71 offen offset:1024 sc1")
    a("KA_NCL:")
    a("s_mov_b64 exec, -1")
    a("s_lshl_b32 s58, s54, 12")
    a(f"s_add_u32 s58, s58, {L_WO}")
    a("s_lshl_b32 s59, s54, 15")
    a("s_lshl_b32 s63, s57, 7")
    a("s_add_u32 s59, s59, s63")
    for c in range(4):
        if "wrot" in X:
            a(f"s_add_u32 s64, s50, {c}")
            a("s_and_b32 s64, s64, 3")
            a("s_lshl_b32 s63, s64, 14")
            a("s_add_u32 m0, s58, s63")
            a("s_lshl_b32 s63, s64, 17")
            a("s_add_u32 s63, s63, s59")
        else:
            a(f"s_add_u32 m0, s58, {16384*c}")
            a(f"s_add_u32 s63, s59, {131072*c}")
        for q in range(4):
            if "xwo" not in X: a(f"buffer_load_dwordx4 v{PW+q}, s[36:39], s63 offen offset:{1024*q} lds")
        a("s_waitcnt vmcnt(0)")
    a("s_xor_b32 s63, s57, 4")
    a(f"s_mul_i32 s63, s63, {GRS}")
    a(f"s_add_u32 s63, s63, {G_FL+2048}")
    a("s_add_u32 s64, s34, s63")
    a("s_addc_u32 s65, s35, 0")
    a("s_add_u32 s70, s72, 1024")
    if "p3st" in X: a.stamp(1)
    if "preout" in X:
        a("s_lshl_b32 s4, s56, 16")
        a("s_lshl_b32 s5, s54, 14")
        a("s_add_u32 s4, s4, s5")
        a("s_lshl_b32 s5, s57, 7")
        a("s_add_u32 s4, s4, s5")
        a("s_add_u32 s4, s30, s4")
        a("s_addc_u32 s5, s31, 0")
        for i in range(16): a(f"s_load_dwordx2 s[68:69], s[4:5], {1024*i+60}")
    if "aot" in X:
        a("s_lshl_b32 s4, s50, 16")
        a("s_lshl_b32 s5, s49, 13")
        a("s_add_u32 s4, s4, s5")
        a("s_lshl_b32 s5, s54, 11")
        a("s_add_u32 s4, s4, s5")
        a(f"s_add_u32 s4, s4, {W2_O}")
        a("s_add_u32 s4, s34, s4")
        a("s_addc_u32 s5, s35, 0")
        for i in range(16): a(f"s_load_dwordx2 s[68:69], s[4:5], {128*i+60}")
    if "lkw" in X: wait(S_WB, 1, nap=16)
    a("s_mov_b32 s71, 0")
    G = ""
    a("s_load_dwordx16 s[4:19], s[64:65], 0" + G)
    a("s_load_dwordx8 s[20:27], s[34:35], s70" + G)
    a("s_load_dword s68, s[64:65], 64" + G)
    a("s_waitcnt lgkmcnt(0)")
    for r in range(4, 28):
        a(f"s_xor_b32 s{r}, s{r}, s52")
        a(f"s_or_b32 s71, s71, s{r}")
    a("s_load_dwordx16 s[4:19], s[64:65], 64" + G)
    a("s_waitcnt lgkmcnt(0)")
    for r in range(4, 20):
        a(f"s_xor_b32 s{r}, s{r}, s52")
        a(f"s_or_b32 s71, s71, s{r}")
    a("s_cbranch_scc0 KA_PCD")
    a("v_and_b32 v9, 7, v1")
    a("v_lshlrev_b32 v9, 2, v9")
    a(f"s_mov_b32 s69, {SLOW_TRIES}")
    a("KA_PC:")
    a("s_sleep 32")
    a("buffer_load_dword v10, v157, s[44:47], s63 offen sc1")
    a("buffer_load_dword v11, v9, s[44:47], s70 offen sc1")
    a("s_waitcnt vmcnt(0)")
    a("v_cmp_ne_u32 vcc, s52, v10")
    a("v_cmp_ne_u32 s[4:5], s52, v11")
    a("s_or_b64 vcc, vcc, s[4:5]")
    a("s_cbranch_scc0 KA_PCD")
    a("s_sub_u32 s69, s69, 1")
    a("s_cbranch_scc0 KA_PC")
    a("KA_PCD:")
    if "p3st" in X: a.stamp(2)
    if "gat" in X:
        a("s_add_u32 s64, s34, s73")
        a("s_addc_u32 s65, s35, 0")
        for i in range(16): a(f"s_load_dwordx2 s[68:69], s[64:65], {4096*i+60}")
    D, DA, GA, DG = 112, 128, 32, 40
    a("s_lshl_b32 s58, s54, 11")
    a(f"s_add_u32 m0, s58, {L_GA}")
    a("s_add_u32 s63, s73, 31744")
    a("s_waitcnt vmcnt(0) lgkmcnt(0)")
    if "xga" not in X:
        a(f"buffer_load_dwordx4 v{PD}, s[44:47], s73 offen sc1 lds")
        a(f"buffer_load_dwordx4 v{PD}, s[44:47], s63 offen offset:1024 sc1 lds")
    a(f"buffer_load_dwordx2 v[14:15], v{PG}, s[44:47], s75 offen sc1")
    dsig(f"s_add_u32 m0, s60, {S_WA-S_UA}")
    a("s_lshl_b32 s58, s61, 12")
    a("s_lshl_b32 s59, s56, 16")
    a("s_add_u32 s59, s59, s58")
    a(f"s_add_u32 s59, s59, {W2_O}")
    a("s_waitcnt vmcnt(0)")
    wait4(S_WA, nap=4)
    a(f"ds_read_b128 {vr(GA,4)}, v{PA}")
    a(f"ds_read_b128 {vr(GA+4,4)}, v{PA} offset:64")
    a("v_lshrrev_b32 v13, 16, v14")
    a("v_or_b32 v13, v13, v14")
    for k in range(8):
        a(f"v_and_b32 v{DG+k}, v13, v{PM+k}")
    a("s_waitcnt lgkmcnt(0)")
    a("s_nop 0")
    a(f"{MF} {vr(DA,16)}, {vr(GA,4)}, {vr(DG,4)}, 0")
    a(f"{MF} {vr(DA,16)}, {vr(GA+4,4)}, {vr(DG+4,4)}, {vr(DA,16)}")
    if "p3st" in X: a.stamp(3)
    if "wb" in X:
        a("s_lshl_b32 s63, s50, 2")
        a("s_add_u32 s63, s63, s54")
        a("s_cmp_lg_u32 s63, 0")
        a("s_cbranch_scc1 KA_NOWB")
        a("buffer_wbl2 sc1")
        a("KA_NOWB:")
    if "fet" in X:
        W0, O0 = 48, 64
        a(f"v_mov_b32 v2, v{POUT}")
        a("s_lshl_b32 s63, s61, 12")
        a(f"s_add_u32 s63, s63, {L_O}")
        a("v_add_u32 v5, s63, v4")
        a("v_and_b32 v6, 7, v1")
        a(f"v_lshl_add_u32 v6, v6, 2, v{VSY}")
        for i in range(4): a(f"v_mov_b32 v{W0+i}, 0")
        a("s_mov_b32 s4, 0xff")
        a(f"s_mov_b32 s7, {LDS_SPIN}")
        a(f"{MF} {vr(D,16)}, {vr(W0,4)}, {vr(W0,4)}, 0")
        wait(S_FIN, 8, nap=8)
        if "p3st" in X: a.stamp(4)
        a("KA_OL:")
        a(f"ds_read_b32 v10, v6 offset:{S_OA}")
        a("s_sub_u32 s7, s7, 1")
        a("s_cselect_b32 s6, 0xff, 0")
        a("s_waitcnt lgkmcnt(0)")
        a("v_cmp_eq_u32 vcc, 0, v10")
        a("s_or_b32 s5, s6, vcc_lo")
        a("s_and_b32 s5, s5, s4")
        a("s_cbranch_scc0 KA_OL")
        a("KA_OP:")
        a("s_ff1_i32_b32 s8, s5")
        a("s_lshl_b32 s63, s8, 13")
        a(f"v_add_u32 v12, s63, v{PWF}")
        a("v_add_u32 v13, s63, v5")
        for q in range(4):
            a(f"ds_read_b128 {vr(O0+4*q,4)}, v13 offset:{1024*q}")
            a(f"ds_read_b64_tr_b16 {vr(W0+4*q,2)}, v12 offset:{2048*q}")
            a(f"ds_read_b64_tr_b16 {vr(W0+4*q+2,2)}, v12 offset:{2048*q+1024}")
        a("s_bitset0_b32 s4, s8")
        a("s_bitset0_b32 s5, s8")
        for q in range(4):
            a(f"s_waitcnt lgkmcnt({9-3*q})")
            a(f"{MF} {vr(D,16)}, {vr(W0+4*q,4)}, {vr(O0+4*q,4)}, {vr(D,16)}")
        a("s_cmp_lg_u32 s5, 0")
        a("s_cbranch_scc1 KA_OP")
        a("s_cmp_lg_u32 s4, 0")
        a("s_cbranch_scc1 KA_OL")
        if "p3st" in X: a.stamp(7)
        a("s_nop 7")
        for i in range(16): a(f"v_fmac_f32 v{DA+i}, v15, v{D+i}")
    else:
        OB4, W0, W1, D2 = 48, 16, 32, 144
        a(f"v_mov_b32 v2, v{POUT}")
        a(f"v_mov_b32 v5, v{PWF}")
        a("s_lshl_b32 s63, s54, 12")
        a(f"s_add_u32 s64, s63, {L_GT}")
        a("v_add_u32 v6, s64, v4")
        a("s_xor_b32 s63, s63, 8192")
        a(f"s_add_u32 s64, s63, {L_GT}")
        a("v_add_u32 v11, s64, v4")
        a("s_lshl_b32 s63, s61, 2")
        a(f"v_add_u32 v14, s63, v{VSY}")
        if "mz" in X:
            for i in range(4): a(f"v_mov_b32 v{W0+i}, 0")
            a("s_nop 1")
            a(f"{MF} {vr(D,16)}, {vr(W0,4)}, {vr(W0,4)}, 0")
            a(f"{MF} {vr(D2,16)}, {vr(W0,4)}, {vr(W0,4)}, 0")
        else:
            for i in range(16):
                a(f"v_mov_b32 v{D+i}, 0")
                a(f"v_mov_b32 v{D2+i}, 0")
        if "otr" in X:
            a("s_mul_i32 s63, s54, 2560")
            a(f"s_add_u32 s63, s63, {L_U}")
            a("v_mul_u32_u24 v160, 80, v7")
            a("v_lshl_add_u32 v160, v3, 4, v160")
            a("v_add_u32 v160, s63, v160")
            a("v_lshrrev_b32 v162, 2, v1")
            a("v_and_b32 v163, 3, v1")
            a("v_mul_u32_u24 v161, 80, v162")
            a("v_lshl_add_u32 v161, v163, 4, v161")
            a("v_add_u32 v161, s63, v161")
            a("v_lshlrev_b32 v162, 10, v162")
            a("v_lshl_add_u32 v162, v163, 4, v162")
        a("s_lshl_b32 s4, 0x55, s62")
        a(f"s_mov_b32 s7, {LDS_SPIN}")
        wait(S_FIN, FINN, nap=8)
        if "p3st" in X: a.stamp(4)
        a("KA_OL:")
        a(f"ds_read_b32 v10, v{VSY} offset:{S_PO}")
        a("s_sub_u32 s7, s7, 1")
        a("s_cselect_b32 s6, 0xffff, 0")
        a("s_waitcnt lgkmcnt(0)")
        a("v_readfirstlane_b32 s5, v10")
        a("s_or_b32 s5, s5, s6")
        a("s_lshr_b32 s12, s5, 8")
        a("s_and_b32 s5, s5, s4")
        a("s_cbranch_scc0 KA_OL")
        for k in range(4):
            a(f"s_ff1_i32_b32 s{8+k}, s5")
            a(f"s_lshl_b32 s63, s{8+k}, 13")
            a("s_add_u32 s63, s63, s59")
            for q in range(4): a(f"buffer_load_dwordx4 {vr(OB4+16*k+4*q,4)}, v4, s[44:47], s63 offen offset:{1024*q} sc1")
            a(f"s_bitset0_b32 s4, s{8+k}")
            a(f"s_bitset0_b32 s5, s{8+k}")
            if k < 3:
                a("s_cmp_eq_u32 s5, 0")
                a(f"s_cbranch_scc1 KA_OP{k+1}")
        def wadr(k):
            a(f"s_lshl_b32 s63, s{8+k}, 13")
            a("v_add_u32 v12, s63, v5")
            a("v_xor_b32 v13, 64, v12")
        def rdw(W, ad, q):
            a(f"ds_read_b64_tr_b16 {vr(W+4*q,2)}, v{ad} offset:{2048*q}")
            a(f"ds_read_b64_tr_b16 {vr(W+4*q+2,2)}, v{ad} offset:{2048*q+1024}")
        for n in (4, 3, 2, 1):
            a(f"KA_OP{n}:")
            wadr(0)
            for q in range(4): rdw(W1, 13, q)
            a("s_waitcnt lgkmcnt(4)")
            for q in range(4): rdw(W0, 12, q)
            for k in range(n):
                B = OB4 + 16 * k
                a(f"s_waitcnt vmcnt({4*(n-1-k)}) lgkmcnt(7)")
                if "dp" in X:
                    ok = lbl("DK")
                    a(f"v_max3_u32 v8, v{B}, v{B+1}, v{B+2}")
                    a(f"v_max3_u32 v9, v{B+3}, v{B+4}, v{B+5}")
                    for i in range(5): a(f"v_max3_u32 v{8+(i&1)}, v{B+6+2*i}, v{B+7+2*i}, v{8+(i&1)}")
                    a("v_max_u32 v8, v8, v9")
                    a("v_cmp_eq_u32 vcc, -1, v8")
                    a(f"s_cbranch_vccz {ok}")
                    a(f"s_bitcmp1_b32 s12, s{8+k}")
                    a(f"s_cbranch_scc1 {ok}")
                    a(f"s_bitset1_b32 s4, s{8+k}")
                    for i in range(16): a(f"v_mov_b32 v{B+i}, 0")
                    a("s_nop 1")
                    a(f"{ok}:")
                if k + 1 < n: wadr(k + 1)
                for q in range(4):
                    a(f"{MF} {vr(D2,16)}, {vr(W1+4*q,4)}, {vr(B+4*q,4)}, {vr(D2,16)}")
                    if k + 1 < n: rdw(W1, 13, q)
                a("s_waitcnt lgkmcnt(%d)" % (7 if k + 1 < n else 0))
                for q in range(4):
                    a(f"{MF} {vr(D,16)}, {vr(W0+4*q,4)}, {vr(B+4*q,4)}, {vr(D,16)}")
                    if k + 1 < n: rdw(W0, 12, q)
            a("s_cmp_lg_u32 s4, 0")
            a("s_cbranch_scc1 KA_OL")
            if n > 1: a("s_branch KA_OD")
        a("KA_OD:")
        if "p3st" in X: a.stamp(6)
        a("s_nop 4")
        for i in range(4): a(f"ds_write_b128 v6, {vr(D2+4*i,4)} offset:{1024*i}")
        sig(S_FX, 14)
        for i in range(16): a(f"v_fmac_f32 v{DA+i}, v15, v{D+i}")
        wait(S_FX, 2, 14)
        for i in range(4): a(f"ds_read_b128 {vr(D2+4*i,4)}, v11 offset:{1024*i}")
        if "p3st" in X: a.stamp(7)
        for i in range(4):
            a(f"s_waitcnt lgkmcnt({3-i})")
            for j in range(4): a(f"v_fmac_f32 v{DA+4*i+j}, v15, v{D2+4*i+j}")
    for i in range(8): a(f"v_cvt_pk_bf16_f32 v{GA+i}, v{DA+2*i}, v{DA+2*i+1}")
    a("s_nop 1")
    a(f"v_permlane32_swap_b32 v{GA}, v{GA+2}")
    a(f"v_permlane32_swap_b32 v{GA+1}, v{GA+3}")
    a(f"v_permlane32_swap_b32 v{GA+4}, v{GA+6}")
    a(f"v_permlane32_swap_b32 v{GA+5}, v{GA+7}")
    OF = " nt" if "ont" in X else " sc1" if "osc" in X else " sc0 sc1 nt" if "oall" in X else ""
    if "otr" in X:
        a(f"ds_write_b128 v160, {vr(GA,4)}")
        a(f"ds_write_b128 v160, {vr(GA+4,4)} offset:32")
        a(f"ds_read_b128 {vr(GA,4)}, v161")
        a(f"ds_read_b128 {vr(GA+4,4)}, v161 offset:1280")
        a("s_add_u32 s75, s74, 16384")
        a("s_waitcnt lgkmcnt(1)")
        a(f"buffer_store_dwordx4 {vr(GA,4)}, v162, s[40:43], s74 offen{OF}")
        a("s_waitcnt lgkmcnt(0)")
        a(f"buffer_store_dwordx4 {vr(GA+4,4)}, v162, s[40:43], s75 offen{OF}")
    else:
        a(f"buffer_store_dwordx4 {vr(GA,4)}, v2, s[40:43], s74 offen{OF}")
        a(f"buffer_store_dwordx4 {vr(GA+4,4)}, v2, s[40:43], s74 offen offset:32{OF}")
    a("KA_AUXEND:")
    a.end(0)
```

```python
from common import *
import math, struct
LOG2E = 1.4426950408889634
LOG2E_HI = f2u(LOG2E)
_hi = struct.unpack("<f", struct.pack("<I", LOG2E_HI))[0]
LOG2E_LO = f2u(LOG2E - _hi)
LN2 = f2u(math.log(2.0))
QSCALE = f2u(0.25 * LOG2E)
MF = "v_mfma_f32_32x32x16_bf16"

L_X, L_W = 0, 65536
NSLOT = 6
L_OX = 0
L_Q = 114688
L_WO, L_GA, L_GT, L_O = 18432, 83968, 98304, 92160
L_CX = 73728
L_KP, KPC = 18688, 8384
L_U = 139264
L_XCH = 153600
L_GW = 161792
L_SY = 162816
KA_LDS = 163840
S_UA, S_WA, S_OA = 0, 16, 32
S_WB, S_UDONE, S_QRDY, S_NONCE, S_CV, S_OX, S_CD, S_FIN, S_PO, S_PC, S_OD, S_GO, S_FX, S_DONE, S_KN, S_KF = 96, 100, 104, 108, 112, 128, 144, 148, 152, 156, 160, 164, 168, 176, 180, 188
VSY, VONE, VTMP, VT4 = 164, 165, 166, 160
UNR = 4
PRIO1, PRIO0, WBIT, NEARLY = 6, 7, 4, 3
LDS_SPIN = 1 << 20
FAST_TRIES = 64
SLOW_TRIES = 20000

def interleave(chains):
    out = []
    chains = [list(c) for c in chains]
    while any(chains):
        for c in chains:
            if c: out.append(c.pop(0))
    return out

def cmul(d, x, w):
    return [f"v_mul_f32 v{d}, v{x}, v{w}", f"v_mul_f32 v{d+1}, v{x}, v{w+1}",
            f"v_fma_f32 v{d}, -v{x+1}, v{w+1}, v{d}", f"v_fmac_f32 v{d+1}, v{x+1}, v{w}"]
def cmul_pk(d, x, w):
    return [f"v_pk_mul_f32 {vr(d,2)}, {vr(x,2)}, {vr(w,2)} op_sel:[0,0] op_sel_hi:[0,1]",
            f"v_pk_fma_f32 {vr(d,2)}, {vr(x,2)}, {vr(w,2)}, {vr(d,2)} op_sel:[1,1,0] op_sel_hi:[1,0,1] neg_lo:[0,1,0]"]

def gen_ka(name, X=()):
    a = Asm()
    NSLOT = 7 if "s7" in X else 6
    DD = NSLOT - 2
    NT = " nt" if "nt" in X else " sc1" if "ksc" in X else ""
    NW = " nt" if "ntw" in X else ""
    NX = " nt" if "ntx" in X else ""
    NP = " nt" if "ntp" in X else ""
    NK = " nt" if "ntk" in X else ""
    PSL = 2 if "ps2" in X else 8 if "ps8" in X else 1 if "ps1" in X else 0 if "ps0" in X else 5
    PDP = 4 if "pd4" in X else 2
    cnt = [0]
    def lbl(p):
        cnt[0] += 1
        return f"KA_{p}{cnt[0]}"
    def sig(off, addr=VSY, val=VONE):
        a("s_mov_b64 exec, 1")
        a(f"ds_add_u32 v{addr}, v{val} offset:{off}")
        a("s_mov_b64 exec, -1")
    def wait(off, n, addr=VSY, out=76, nap=0):
        l, e = lbl("W"), lbl("E")
        a(f"s_mov_b32 s77, {LDS_SPIN}")
        if nap:
            a(f"s_branch {l}F")
        a(f"{l}:")
        if nap:
            a(f"s_sleep {nap}")
            a(f"{l}F:")
        a(f"ds_read_b32 v{VTMP}, v{addr} offset:{off}")
        a("s_sub_u32 s77, s77, 1")
        a("s_cbranch_scc1 " + e)
        a("s_waitcnt lgkmcnt(0)")
        a(f"v_readfirstlane_b32 s{out}, v{VTMP}")
        a(f"s_cmp_lt_u32 s{out}, {n}")
        a("s_cbranch_scc1 " + l)
        a(f"{e}:")
    def wait4(off, addr=VSY, nap=0):
        l, e = lbl("W"), lbl("E")
        a(f"s_mov_b32 s77, {LDS_SPIN}")
        if nap:
            a(f"s_branch {l}F")
        a(f"{l}:")
        if nap:
            a(f"s_sleep {nap}")
            a(f"{l}F:")
        a(f"ds_read_b128 {vr(VT4,4)}, v{addr} offset:{off}")
        a("s_sub_u32 s77, s77, 1")
        a("s_cbranch_scc1 " + e)
        a("s_waitcnt lgkmcnt(0)")
        a(f"v_or3_b32 v{VT4}, v{VT4}, v{VT4+1}, v{VT4+2}")
        a(f"v_or_b32 v{VT4}, v{VT4}, v{VT4+3}")
        a(f"v_cmp_ne_u32 vcc, 0, v{VT4}")
        a("s_cbranch_vccnz " + l)
        a(f"{e}:")
    def gettag():
        l, ok = lbl("TL"), lbl("TK")
        a("s_waitcnt lgkmcnt(0)")
        a("s_cmp_lg_u32 s52, 0")
        a(f"s_cbranch_scc1 {ok}")
        a("v_mov_b32 v155, 0")
        a(f"s_mov_b32 s69, {SLOW_TRIES}")
        a(f"{l}:")
        a("global_load_dword v158, v155, s[32:33] sc1")
        a("s_waitcnt vmcnt(0)")
        a("v_readfirstlane_b32 s52, v158")
        a("s_cmp_lg_u32 s52, 0")
        a(f"s_cbranch_scc1 {ok}")
        a("s_sub_u32 s69, s69, 1")
        a(f"s_cbranch_scc0 {l}")
        a("s_mov_b32 s52, 1")
        a(f"{ok}:")
    def dsig(m0expr):
        a(m0expr)
        a("s_mov_b64 exec, 1")
        a("buffer_load_dword v154, s[44:47], 0 offen lds")
        a("s_mov_b64 exec, -1")
    def mktag(fl_off):
        if "gfl" in X:
            a("s_mov_b32 s66, s52")
            a(f"s_add_u32 s67, s51, {G_FL + fl_off}")
            return
        a("s_getreg_b32 s66, hwreg(HW_REG_XCC_ID)")
        a("s_and_b32 s66, s66, 15")
        a("s_add_u32 s66, s66, 1")
        a("s_lshl_b32 s66, s66, 1")
        a("s_xor_b32 s66, s66, s52")
        a(f"s_add_u32 s67, s51, {G_FL + fl_off}")
    def publish():
        a("v_mov_b32 v155, s66")
        a("s_mov_b64 exec, 1")
        a("buffer_store_dword v155, v156, s[44:47], s67 offen" + (" sc1" if "gfl" in X else ""))
        a("s_mov_b64 exec, -1")
    def collect(wide, own, lanes=1):
        lf, ls, done = lbl("GF"), lbl("GS"), lbl("GD")
        def ld(r, off):
            if wide: a(f"buffer_load_dwordx2 v[{r}:{r+1}], v157, s[44:47], s67 offen offset:{off} sc1")
            else: a(f"buffer_load_dword v{r}, v157, s[44:47], s67 offen offset:{off} sc1")
        a(f"s_mov_b32 s69, {FAST_TRIES}")
        a(f"{lf}:")
        ld(158, 0)
        a("s_waitcnt vmcnt(0)")
        a("v_cmp_ne_u32 vcc, s66, v158")
        if wide:
            a("v_cmp_ne_u32 s[70:71], s66, v159")
            a("s_or_b64 vcc, vcc, s[70:71]")
            a(f"s_cbranch_scc0 {done}")
        else:
            a(f"s_cbranch_vccz {done}")
        a("s_sub_u32 s69, s69, 1")
        a(f"s_cbranch_scc0 {lf}")
        a("buffer_wbl2 sc1")
        a("s_waitcnt vmcnt(0)")
        a("v_mov_b32 v155, s52")
        if own is not None:
            a(own)
            a(f"s_cbranch_scc0 {ls}N")
        a(f"s_mov_b64 exec, {lanes}")
        a("buffer_store_dword v155, v156, s[44:47], s67 offen offset:1024 sc1")
        a("s_mov_b64 exec, -1")
        a(f"{ls}N:")
        a(f"s_mov_b32 s69, {SLOW_TRIES}")
        a(f"{ls}:")
        ld(158, 0)
        ld(160, 1024)
        a("s_waitcnt vmcnt(0)")
        a("v_cmp_ne_u32 vcc, s66, v158")
        a("v_cmp_ne_u32 s[70:71], s52, v160")
        a("s_and_b64 vcc, vcc, s[70:71]")
        if wide:
            a("v_cmp_ne_u32 s[70:71], s66, v159")
            a("v_cmp_ne_u32 s[72:73], s52, v161")
            a("s_and_b64 s[70:71], s[70:71], s[72:73]")
            a("s_or_b64 vcc, vcc, s[70:71]")
        a(f"s_cbranch_scc0 {done}A")
        a("s_sleep 8")
        a("s_sub_u32 s69, s69, 1")
        a(f"s_cbranch_scc0 {ls}")
        a(f"{done}A:")
        a("buffer_inv sc1")
        a("s_waitcnt vmcnt(0)")
        a(f"{done}:")

    a(f".globl {name}\n.p2align 8\n.type {name},@function\n{name}:")
    a("s_cmp_ge_u32 s2, 256")
    a("s_cbranch_scc1 KA_END")
    a.start()
    a("s_load_dwordx16 s[4:19], s[0:1], 0")
    a("s_load_dwordx16 s[20:35], s[0:1], 64")
    if "dly" in X: a("s_sleep 16")
    a("v_readfirstlane_b32 s48, v0")
    a("v_and_b32 v1, 63, v0")
    a("s_and_b32 s49, s2, 7")
    for k in (1, 3, 5, 7):
        if f"gx{k}" in X: a(f"s_xor_b32 s49, s49, {k}")
    a("s_lshr_b32 s50, s2, 3")
    a("s_lshr_b32 s48, s48, 6")
    def cpf():
        if "cpf" in X:
            a("s_cmp_lg_u32 s48, 0")
            a("s_cbranch_scc1 KA_CONS")
            a("s_getpc_b64 s[56:57]")
            a("KA_PCB:")
            a(f"s_sub_u32 s56, s56, KA_PCB-{name}")
            a("s_subb_u32 s57, s57, 0")
            a("v_lshl_add_u32 v8, v1, 5, s50")
            a("v_lshlrev_b32 v8, 6, v8")
            a(f"v_cmp_gt_u32 vcc, KA_END-{name}, v8")
            a("s_mov_b64 exec, vcc")
            a("v_mov_b32 v9, s57")
            a("v_add_co_u32 v8, vcc, s56, v8")
            a("v_addc_co_u32 v9, vcc, 0, v9, vcc")
            a("global_load_dword v24, v[8:9], off")
            a("s_mov_b64 exec, -1")

    a("s_cmp_lt_u32 s48, 4")
    a("s_cbranch_scc1 " + ("KA_CPF" if "cnear" in X else "KA_CONS0"))
    a("s_cmp_lt_u32 s48, 8")
    a("s_cbranch_scc1 KA_LOADER")
    a("s_setprio 3")
    a("s_sub_u32 s54, s48, 8")
    a("s_xor_b32 s55, s49, 4")
    a("s_lshl_b32 s55, s55, 5")
    a("s_add_u32 s55, s55, s50")
    a("s_lshl_b32 s59, s55, 9")
    a("s_lshl_b32 s60, s54, 7")
    a("s_add_u32 s59, s59, s60")
    a("v_lshl_add_u32 v2, v1, 1, s59")
    a("s_lshr_b32 s59, s59, 8")
    a("s_lshl_b32 s59, s59, 1")
    a("v_mov_b32 v5, s59")
    for i in range(8):
        a(f"v_mov_b32 v{8+i}, 0")
    a("s_waitcnt lgkmcnt(0)")
    a("global_load_short_d16_hi v14, v5, s[18:19]")
    for i in range(6):
        a(f"global_load_short_d16_hi v{8+i}, v2, s[{6+2*i}:{7+2*i}]{NP}")
    a("global_load_short_d16_hi v15, v5, s[20:21]")
    a("s_branch KA_AUX0")
    if "cnear" in X:
        a("KA_CPF:")
        cpf()
        a("s_branch KA_CONS")
    a("KA_LOADER:")
    def common():
        a(f"s_mul_i32 s51, s49, {GRS}")
        a("v_lshlrev_b32 v4, 4, v1")
        a("v_lshrrev_b32 v3, 5, v1")
        a(f"v_mov_b32 v{VSY}, {L_SY}")
        a(f"v_mov_b32 v{VONE}, 1")

    a("s_add_u32 s53, s49, s50")
    a("s_sub_u32 s54, s48, 4")
    a("v_lshrrev_b32 v5, 3, v1")
    a("v_and_b32 v6, 7, v1")
    a("v_lshrrev_b32 v7, 4, v1")
    a("v_xor_b32 v8, v6, v7")
    a("v_lshlrev_b32 v8, 4, v8")
    a("v_lshl_add_u32 v16, v5, 10, v8")
    a("s_and_b32 s73, s54, 1")
    a("s_lshl_b32 s58, s73, 6")
    a("s_lshl_b32 s55, s50, 16")
    a("s_lshl_b32 s60, s54, 13")
    a("s_add_u32 s60, s60, s55")
    a("v_xor_b32 v18, s58, v16")
    a("v_add_u32 v18, s60, v18")
    a("v_add_u32 v19, 32768, v18")
    a("v_and_b32 v7, 1, v7")
    a("v_lshlrev_b32 v7, 2, v7")
    a("v_xor_b32 v8, v6, v7")
    a("v_mul_u32_u24 v9, 3072, v5")
    a("v_lshl_add_u32 v9, v8, 4, v9")
    a("s_lshl_b32 s56, s49, 7")
    a("s_mul_i32 s62, s54, 3")
    for i in range(3):
        a(f"s_add_u32 s58, s62, {i}")
        a("s_and_b32 s59, s58, 3")
        a("s_mul_i32 s59, s59, 24576")
        a("s_lshr_b32 s58, s58, 2")
        a("s_lshl_b32 s58, s58, 10")
        a("s_add_u32 s58, s58, s59")
        a("s_add_u32 s58, s58, s56")
        if i: a(f"s_sub_u32 s58, s58, {1024*i}")
        a(f"v_add_u32 v{20+i}, s58, v9")
    a("s_lshl_b32 s61, s54, 10")
    a("s_lshl_b32 s62, s62, 10")
    a("s_and_b32 s64, s53, 7")
    a("s_lshl_b32 s65, s64, 7")
    a(f"s_mul_i32 s64, s64, {64*3072}")
    a("s_mov_b32 s38, %d\ns_mov_b32 s39, 0x20000\ns_mov_b32 s42, %d\ns_mov_b32 s43, 0x20000" % (2048*512*2, 512*1536*2))
    a("s_mov_b32 m0, s61")
    a("s_waitcnt lgkmcnt(0)")
    a("s_mov_b32 s36, s4\ns_and_b32 s37, s5, 0xffff\ns_mov_b32 s40, s24\ns_and_b32 s41, s25, 0xffff")
    a.stamp(1)
    ops = []
    def vm(t, tag):
        a(t); ops.append(tag)
    def need(tag, extra=""):
        last = max(i for i, t in enumerate(ops) if t == tag)
        a(f"s_waitcnt vmcnt({len(ops)-1-last}){extra}")
    def sub(j):
        hi = j + 1
        if hi < 16:
            a(f"s_add_u32 m0, s61, {4096*hi}")
            if hi % 2 == 0:
                a("s_add_u32 s65, s65, 128")
                a("s_and_b32 s65, s65, 1023")
            else:
                a("s_nop 0")
            if "nox3" in X:
                a("s_cmp_eq_u32 s65, 384\ns_cselect_b32 s59, 256, s65")
                vm(f"buffer_load_dwordx4 v{18+(hi&1)}, s[36:39], s59 offen{NX} lds", j)
            else:
                vm(f"buffer_load_dwordx4 v{18+(hi&1)}, s[36:39], s65 offen{NX} lds", j)
        a(f"s_add_u32 m0, s62, {L_W+12288*(j%NSLOT)}")
        a(f"s_add_u32 s58, s64, {32*3072}")
        for i in range(3):
            vm(f"buffer_load_dwordx4 v{20+i}, s[40:43], s64 offen offset:{1024*i}{NW} lds", j)
        a(f"s_cmp_lt_u32 s58, {512*3072}")
        a("s_cselect_b32 s64, s58, 0")
    vm(f"buffer_load_dwordx4 v18, s[36:39], s65 offen{NX} lds", 0)
    sub(0)
    common()
    srd(a, 44, 34, 35, W2_END)
    a("v_xor_b32 v17, 64, v16")
    a("v_add_u32 v17, 7168, v17")
    a("s_sub_u32 s74, 4, s50")
    a("s_and_b32 s74, s74, 7")
    a("s_lshl_b32 s74, s74, 13")
    a("s_lshl_b32 s58, s54, 11")
    a("s_add_u32 s74, s74, s58")
    a("s_mov_b32 m0, s74")
    a("s_lshl_b32 s58, s54, 14")
    a("s_add_u32 s58, s58, s55")
    a("s_xor_b32 s59, s56, 512")
    a("s_add_u32 s58, s58, s59")
    vm("buffer_load_dwordx4 v16, s[36:39], s58 offen lds", "xs")
    vm("buffer_load_dwordx4 v17, s[36:39], s58 offen offset:1024 lds", "xs")
    sub(1); sub(2)
    a("v_lshlrev_b32 v5, 7, v1")
    a(f"s_add_u32 s67, s51, {G_FL}")
    a(f"s_mov_b32 m0, {L_GW}")
    a("s_lshl_b32 s58, 16, s54")
    a("s_or_b32 exec_lo, s58, 1")
    a("s_mov_b32 exec_hi, 0")
    vm("buffer_load_dword v163, v5, s[44:47], s67 offen " + ("nt" if "ntu" in X else "sc1"), "fl")
    a("s_lshl_b32 s58, s54, 4")
    a("s_lshl_b64 exec, 0xffff, s58")
    vm("global_load_lds_dwordx4 v4, s[28:29]", "gw")
    a("s_mov_b64 exec, -1")
    sub(3)
    a("v_bfe_u32 v5, v1, 2, 2")
    a("v_lshrrev_b32 v6, 4, v1")
    a("v_bfe_u32 v7, v1, 1, 1")
    a("v_lshl_add_u32 v6, v6, 1, v7")
    a("v_lshrrev_b32 v7, 1, v5")
    a("v_xor_b32 v6, v6, v7")
    a("v_lshlrev_b32 v6, 4, v6")
    a("v_lshl_add_u32 v6, v5, 7, v6")
    a("v_and_b32 v7, 1, v1")
    a("v_lshl_add_u32 v6, v7, 3, v6")
    a("v_add_u32 v28, s74, v6")
    for i in range(1, 4):
        a(f"v_xor_b32 v{28+i}, {32*i}, v28")
    need("xs")
    a("s_setprio 3")
    for i in range(4):
        a(f"ds_read_b64_tr_b16 {vr(32+2*i,2)}, v{28+i} offset:{512*i}")
    if "utw" in X:
        a("s_lshl_b32 s75, s50, 13")
        a("s_lshl_b32 s59, s54, 11")
        a("s_add_u32 s75, s75, s59")
        a("s_add_u32 s75, s75, s51")
        a(f"s_add_u32 s75, s75, {G_UT}")
        a("s_waitcnt lgkmcnt(0)")
        US = " sc1" if "usc" in X else ""
        vm("buffer_store_dwordx4 v[32:35], v4, s[44:47], s75 offen" + US, 3)
        vm("buffer_store_dwordx4 v[36:39], v4, s[44:47], s75 offen offset:1024" + US, 3)
    else:
        a("v_lshrrev_b32 v5, 1, v1")
        a("v_lshlrev_b32 v5, 13, v5")
        a("v_lshl_add_u32 v27, v7, 6, v5")
        a("s_lshl_b32 s75, s50, 8")
        a("s_lshr_b32 s59, s54, 1")
        a("s_lshl_b32 s59, s59, 7")
        a("s_add_u32 s75, s75, s59")
        a("s_add_u32 s75, s75, s51")
        a(f"s_add_u32 s75, s75, {G_UT}")
        a("s_lshl_b32 s58, s73, 5")
        a("s_add_u32 s75, s75, s58")
        a("s_waitcnt lgkmcnt(0)")
        vm("buffer_store_dwordx4 v[32:35], v27, s[44:47], s75 offen" + NT, 3)
        vm("buffer_store_dwordx4 v[36:39], v27, s[44:47], s75 offen offset:16" + NT, 3)
    if "lst" in X: a.stamp(3)
    PRE = 7 if "p7" in X else 6 if "p6" in X else 5 if "p5" in X else 4
    for j in range(4, PRE): sub(j)
    a("v_lshrrev_b32 v10, 3, v1")
    a("s_lshl_b32 s58, s49, 3")
    a("v_add_u32 v10, s58, v10")
    a("v_and_b32 v11, 7, v1")
    a("v_bfe_u32 v12, v10, 1, 3")
    a("v_xor_b32 v12, v12, v11")
    a("v_lshlrev_b32 v12, 4, v12")
    a("v_lshl_add_u32 v12, v10, 7, v12")
    a("s_and_b32 s58, s53, 7")
    a("s_lshl_b32 s58, s58, 7")
    a("v_lshl_add_u32 v11, v11, 4, s58")
    a("v_bfe_u32 v5, v1, 4, 1")
    a("v_lshlrev_b32 v5, 16, v5")
    a("v_and_b32 v6, 15, v1")
    a("v_lshl_add_u32 v13, v6, 7, v5")
    a(f"s_mul_i32 s71, s54, {G_HEAD}")
    a("s_lshl_b32 s58, s50, 11")
    a("s_add_u32 s71, s71, s58")
    a("s_add_u32 s71, s71, s51")
    a("s_and_b32 s58, s50, 15")
    a(f"s_cmp_lt_u32 s58, {16 if 'n16' in X else 6 if 'n6' in X else NEARLY}")
    a("s_cselect_b32 s58, 0, 0x7ff00000")
    a("v_add_u32 v13, s58, v13")
    for c in range(8):
        a(f"v_add_u32 v{40+c}, {128*c}, v11")
        a(f"v_and_b32 v{40+c}, 1023, v{40+c}")
        a(f"v_add_u32 v{40+c}, {L_GW}, v{40+c}")
    for j in range(12):
        need(j)
        if "lst" in X and j in (0, 4, 8): a.stamp(4 + j // 4)
        a("s_barrier")
        if PRE <= j + DD < 16: sub(j + DD)
    if "tq" in X:
        a("s_mov_b32 exec_hi, 0")
        vm("buffer_load_dword v163, v13, s[44:47], s71 offen " + ("nt" if "ntu" in X else "sc1"), "tq")
        a("s_mov_b64 exec, -1")
    need(12)
    a("s_barrier")
    a("s_cmp_eq_u32 s54, 3")
    a("s_cbranch_scc1 KA_LG")
    for j in (13, 14, 15):
        need(j)
        a("s_barrier")
    a.stamp(2)
    a("s_cmp_eq_u32 s54, 2")
    a("s_cbranch_scc1 KA_LZ")

    a("KA_ATT:")
    if "lowp" in X: a("s_setprio 0")
    QA, QB, P, OA, OB, SA, SB = 8, 12, 28, 36, 52, 68, 84
    KBUF = [100, 112, 124, 136]
    IXV = 24
    SM32 = "v_smfmac_f32_32x32x32_bf16"
    a("s_and_b32 s54, s48, 3")
    a("s_lshr_b32 s55, s48, 2")
    a(f"s_mul_i32 s57, s54, {G_HEAD}")
    a("s_add_u32 s57, s57, s51")
    a("s_lshl_b32 s58, s55, 15")
    a("s_add_u32 s58, s58, s57")
    a("s_add_u32 s59, s58, 65536")
    a("s_lshl_b32 s56, s50, 16")
    a("s_lshl_b32 s60, s49, 13")
    a("s_add_u32 s56, s56, s60")
    a(f"s_add_u32 s56, s56, {W2_O}")
    a("s_lshl_b32 s60, s48, 10")
    a("s_add_u32 s56, s56, s60")
    a(f"v_mov_b32 v{IXV}, 0xdddd")
    a("s_mov_b32 s62, 0xffff")
    a("s_mov_b32 s63, 0xffff")
    a("v_and_b32 v2, 27, v1")
    a("v_and_b32 v6, 15, v1")
    a("v_lshl_add_u32 v6, v3, 4, v6")
    a("v_lshlrev_b32 v6, 4, v6")
    a("v_cmp_eq_u32 vcc, 16, v2")
    a("v_mov_b32 v7, 0x3f803f80")
    a("v_lshlrev_b32 v157, 3, v1")
    a("v_cndmask_b32 v7, 0, v7, vcc")
    a("s_lshl_b32 s60, s54, 11")
    a(f"s_add_u32 s60, s60, {L_Q}")
    a("v_add_u32 v5, s60, v4")
    a(f"s_mov_b32 s64, {hex((1<<PRIO1)|(1<<PRIO0))}")
    for B in KBUF:
        for i in range(8): a(f"v_mov_b32 v{B+4+i}, v7")
    for i in range(32): a(f"v_mov_b32 v{OA+i}, 0")
    for i in range(8): a(f"v_mov_b32 v{SB+8+i}, 0")
    a("s_mul_i32 s60, s48, 2304")
    a(f"s_add_u32 s60, s60, {L_OX}")
    a("s_xor_b32 s61, s48, 4")
    a("s_mul_i32 s61, s61, 2304")
    a(f"s_add_u32 s61, s61, {L_OX}")
    a("v_add_u32 v16, s60, v4")
    a("v_add_u32 v17, s61, v4")
    a("v_lshl_add_u32 v18, v1, 2, s60")
    a("v_lshl_add_u32 v19, v1, 2, s61")
    a("s_lshl_b32 s60, s54, 2")
    a(f"v_add_u32 v20, s60, v{VSY}")
    a(f"v_mov_b32 v21, {hex(f2u(2.0**-80))}")
    a(f"v_mov_b32 v22, {hex(f2u(2.0**80))}")
    a(f"v_mov_b32 v23, 0x7f7fffff")
    a("s_lshl_b32 s74, s50, 11")
    a(f"s_add_u32 s74, s74, {W2_FO}")
    a("v_lshlrev_b32 v154, %d, s49" % (2 if "pk1" in X else 7))
    if "pw" in X:
        a("s_lshl_b32 s60, s48, 2")
        a("v_add_u32 v154, s60, v154")
    a("s_mov_b32 s65, 0")
    a("s_cmp_eq_u32 s55, 0")
    a("s_cbranch_scc1 KA_AT1")
    wait(S_NONCE, 1, out=52)
    a("KA_AT1:")
    a("v_mov_b32 v153, s52")
    wait(S_QRDY, 4)
    a(f"ds_read_b128 {vr(QA,4)}, v5")
    a(f"ds_read_b128 {vr(QB,4)}, v5 offset:1024")
    if "lst" not in X: a.stamp(4)
    a("s_cmp_eq_u32 s55, 0" if "pol4" in X else "s_cmp_lg_u32 s48, 4")
    a("s_cbranch_scc1 KA_AT2")
    mktag(512)
    a("v_lshlrev_b32 v156, 7, v1")
    a("s_lshl_b32 s60, s50, 2")
    a("v_add_u32 v156, s60, v156")
    wait(S_DONE, 4)
    collect(True, None, 15)
    sig(S_GO)
    if "pol4" in X:
        a("s_cmp_lg_u32 s48, 7")
        a("s_cbranch_scc1 KA_AT3")
        sig(S_CD)
    a("s_branch KA_AT3")
    a("KA_AT2:")
    a("s_waitcnt vmcnt(0)")
    a("s_cmp_lg_u32 s48, 7")
    a("s_cbranch_scc1 KA_NOGF")
    sig(S_CD)
    a("KA_NOGF:")
    wait(S_GO, 1)
    a("KA_AT3:")
    def kload(B, off): a(f"buffer_load_dwordx4 {vr(B,4)}, v4, s[44:47], s58 offen offset:{off}{NK}")
    def vload(B, off):
        a("s_mov_b64 exec, s[62:63]")
        a(f"buffer_load_dwordx4 {vr(B+4,4)}, v6, s[44:47], s59 offen offset:{off}{NK}")
        a(f"buffer_load_dwordx4 {vr(B+8,4)}, v6, s[44:47], s59 offen offset:{off+512}{NK}")
        a("s_mov_b64 exec, -1")
    if "dly2" in X: a("s_sleep 16")
    if "it7" in X: a("s_mov_b32 s65, 1")
    kload(KBUF[0], 0)
    for t in range(3):
        vload(KBUF[t], 1024 * t); kload(KBUF[t+1], 1024 * (t + 1))
    a("s_add_u32 s58, s58, 4096")
    a("s_add_u32 s59, s59, 3072")
    a("s_setprio 2")
    if "lst" not in X: a.stamp(7)
    a("s_waitcnt vmcnt(9) lgkmcnt(0)")
    a.stamp(7 if "lst" in X else 5)
    a(f"{MF} {vr(SA,16)}, {vr(KBUF[0],4)}, {vr(QA,4)}, 0")
    a("s_nop 11")
    a(".p2align 6")
    if "ph4" in X: a("s_nop 0")
    a("KA_LOOP:")
    if "ast" in X:
        for k, b in enumerate((1, 2, 3, 5)):
            a(f"s_cmp_lg_u32 s65, {b}\ns_cbranch_scc1 KA_Q{k}")
            a.stamp(1 + k)
            a(f"KA_Q{k}:")
    for u in range(4):
        B, Bn, Bp = KBUF[u], KBUF[(u+1) % 4], KBUF[(u+3) % 4]
        if u == (3 if "h3" in X else 2):
            a("s_bitcmp1_b32 s64, s65")
            a("s_cbranch_scc1 KA_SPECIAL")
            a("KA_BODY:")
        for unit in range(2):
            Sc, Sn, Oc, Op, Qn = (SA, SB, OA, OB, QB) if unit == 0 else (SB, SA, OB, OA, QA)
            for i in range(16):
                if i == 2:
                    a(f"{SM32} {vr(Op,16)}, {vr((Bp if unit == 0 else B)+8,4)}, {vr(Sn+8,8)}, v{IXV}")
                    if unit == 0: vload(Bp, 1024 * u)
                if i == 5:
                    a(f"{MF} {vr(Sn,16)}, {vr(B if unit == 0 else Bn,4)}, {vr(Qn,4)}, 0")
                    if unit == 0: kload(B, 1024 * u)
                if i == 11:
                    if unit == 0: a("s_waitcnt vmcnt(9)")
                    a(f"{SM32} {vr(Oc,16)}, {vr(B+4,4)}, {vr(Sc,8)}, v{IXV}")
                if i == 13 and u == 3 and unit == 1:
                    a("s_add_u32 s58, s58, 4096")
                    a("s_add_u32 s59, s59, 4096")
                    a("s_add_u32 s65, s65, 1")
                    a("s_cmp_lt_u32 s65, 8")
                a(f"v_exp_f32{'_e64' if 'e64' in X and i in (4, 15) else ''} v{Sc+i}, v{Sc+i}")
    a("s_cbranch_scc1 KA_LOOP")
    a("s_nop 0")
    a(f"{SM32} {vr(OB,16)}, {vr(KBUF[3]+8,4)}, {vr(SB+8,8)}, v{IXV}")
    if "lst" not in X: a.stamp(6)
    a("s_cmp_eq_u32 s55, 0")
    a("s_cbranch_scc1 KA_XA")
    for keep, send, lab in ((OB, OA, None), (OA, OB, "KA_XA")):
        if lab:
            a(f"{lab}:")
            a("s_nop 9")
        a(f"ds_write_b128 v16, {vr(send,4)}")
        a(f"ds_write_b128 v16, {vr(send+4,4)} offset:1024")
        a(f"ds_write_b32 v18, v{send+8} offset:2048")
        a("s_mov_b64 exec, 1")
        a(f"ds_add_u32 v20, v{VONE} offset:{S_OX}")
        a(f"ds_add_u32 v{VSY}, v{VONE} offset:{S_FIN}")
        a("s_mov_b64 exec, -1")
        if "dp" in X: wait(S_PC, 4)
        wait(S_OX, 2, 20, nap=(1 if "oxn" in X else 0))
        a(f"ds_read_b32 v{send+8}, v19 offset:2048")
        a(f"ds_read_b128 {vr(send,4)}, v17")
        a(f"ds_read_b128 {vr(send+4,4)}, v17 offset:1024")
        if not lab: a("s_branch KA_XJ")
    a("KA_XJ:")
    a("s_waitcnt lgkmcnt(2)")
    a(f"v_add_f32 v{SA}, v{OA+8}, v{OB+8}")
    a("s_waitcnt lgkmcnt(0)")
    a(f"v_rcp_f32 v{SA+1}, v{SA}")
    for i in range(8):
        a(f"v_add_f32 v{OA+i}, v{OA+i}, v{OB+i}")
    a.c("safety check of the zero stand-in for the row max: l inside [2^-80, 2^80] and O finite")
    a(f"v_cmp_nge_f32 vcc, v{SA}, v21")
    a(f"v_cmp_nle_f32 s[68:69], v{SA}, v22")
    for i in range(8):
        a(f"v_mul_f32 v{OA+i}, v{OA+i}, v{SA+1}")
    a(f"v_add_f32 v{SA+2}, |v{OA}|, |v{OA+1}|")
    a(f"v_add_f32 v{SA+3}, |v{OA+2}|, |v{OA+3}|")
    a(f"v_add_f32 v{SA+4}, |v{OA+4}|, |v{OA+5}|")
    a(f"v_add_f32 v{SA+5}, |v{OA+6}|, |v{OA+7}|")
    a(f"v_add_f32 v{SA+2}, v{SA+2}, v{SA+3}")
    a(f"v_add_f32 v{SA+4}, v{SA+4}, v{SA+5}")
    a(f"v_add_f32 v{SA+2}, v{SA+2}, v{SA+4}")
    a("s_or_b64 vcc, vcc, s[68:69]")
    a(f"v_cmp_nle_f32 s[68:69], v{SA+2}, v23")
    for i in range(4):
        a(f"v_cvt_pk_bf16_f32 v{P+i}, v{OA+2*i}, v{OA+2*i+1}")
    a("s_or_b64 vcc, vcc, s[68:69]")
    a("s_cbranch_scc1 KA_SLOW")
    a("KA_FIN:")
    if "dly3" in X: a("s_sleep 16")
    a(f"buffer_store_dwordx4 {vr(P,4)}, v4, s[44:47], s56 offen sc1")
    a("s_waitcnt vmcnt(0)")
    a("s_mov_b64 exec, 1")
    if "pw" in X: a("buffer_atomic_swap v153, v154, s[44:47], s74 offen sc1")
    a(f"ds_add_rtn_u32 v{VTMP}, v{VSY}, v{VONE} offset:{S_OD}")
    a("s_waitcnt lgkmcnt(0)")
    a(f"v_readfirstlane_b32 s76, v{VTMP}")
    a("s_cmp_lg_u32 s76, %d" % (99 if "pw" in X else 7))
    a("s_cbranch_scc1 KA_NLAST")
    a("buffer_atomic_swap v153, v154, s[44:47], s74 offen sc1" if "fat" in X else "buffer_store_dword v153, v154, s[44:47], s74 offen sc1")
    a("KA_NLAST:")
    if "fet" in X:
        a("s_mov_b64 exec, -1")
        a("s_lshl_b32 s72, s49, 2")
        a("s_and_b32 s73, s50, 3")
        a("s_add_u32 s72, s72, s73")
        a("s_lshl_b32 s73, s72, 16")
        a("s_lshl_b32 s60, s48, 13")
        a("s_add_u32 s73, s73, s60")
        a(f"s_add_u32 s73, s73, {W2_O}")
        a("s_add_u32 s61, s73, 4096")
        a(f"s_add_u32 s60, s60, {L_O}")
        a("s_lshl_b32 s72, s72, 11")
        a(f"s_add_u32 s72, s72, {W2_FO}")
        a("v_lshlrev_b32 v16, 7, s48")
        a("v_mov_b32 v154, 0x7ffffff0")
        a("s_lshl_b32 s59, s48, 2")
        wait4(S_WA)
        wait(S_OD, 8)
        a(f"s_mov_b32 s69, {SLOW_TRIES}")
        a("s_mov_b64 exec, 1")
        a("buffer_load_dword v17, v16, s[44:47], s72 offen sc1")
        a("KA_WP:")
        for cur, nxt in ((17, 18), (18, 17)):
            a(f"s_sleep {PSL}")
            a(f"buffer_load_dword v{nxt}, v16, s[44:47], s72 offen sc1")
            a("s_waitcnt vmcnt(1)")
            a(f"v_cmp_eq_u32 vcc, s52, v{cur}")
            a("s_cbranch_vccnz KA_WPD")
        a("s_sub_u32 s69, s69, 1")
        a("s_cbranch_scc0 KA_WP")
        a("KA_WPD:")
        a("s_mov_b32 m0, s60")
        a("s_mov_b64 exec, -1")
        for q in range(4): a(f"buffer_load_dwordx4 v4, s[44:47], s73 offen offset:{1024*q} sc1 lds")
        a("s_add_u32 m0, s60, 4096")
        a("s_nop 0")
        for q in range(4): a(f"buffer_load_dwordx4 v4, s[44:47], s61 offen offset:{1024*q} sc1 lds")
        dsig(f"s_add_u32 m0, s59, {L_SY+S_OA}")
        a("s_waitcnt vmcnt(0)")
    else:
        a("s_cmp_lg_u32 s76, 0")
        a("s_cbranch_scc1 KA_NFIRST")
        def pl(r):
            if "pat" in X:
                a(f"v_mov_b32 v{r}, 0")
                a(f"buffer_atomic_or v{r}, v16, s[44:47], s72 offen sc0 sc1")
            else:
                a(f"buffer_load_dword v{r}, v16, s[44:47], s72 offen " + ("sc0 sc1" if "psys" in X else "sc1 nt" if "pnt" in X else "sc0 sc1 nt" if "pall" in X else "sc1"))
        a("s_mov_b64 exec, %s" % ("-1" if "pw" in X else "0xff"))
        a("s_lshl_b32 s72, s49, 2")
        a("s_and_b32 s73, s50, 3")
        a("s_add_u32 s72, s72, s73")
        a("s_lshl_b32 s72, s72, 11")
        a(f"s_add_u32 s72, s72, {W2_FO}")
        if "pw" in X:
            a("v_and_b32 v16, 7, v1")
            a("v_lshlrev_b32 v16, 7, v16")
            a("v_lshrrev_b32 v17, 3, v1")
            a("v_lshl_add_u32 v16, v17, 2, v16")
        else:
            a("v_lshlrev_b32 v16, %d, v1" % (2 if "pk1" in X else 7))
        if "dp" in X:
            a("s_mov_b64 exec, -1")
            a(f"s_sub_u32 s73, s72, {W2_FO}")
            a("s_lshl_b32 s73, s73, 5")
            a(f"s_add_u32 s73, s73, {W2_O+1020}")
            a("v_and_b32 v20, 7, v1")
            a("v_lshlrev_b32 v20, 13, v20")
            a("v_lshrrev_b32 v17, 3, v1")
            a("v_lshl_add_u32 v20, v17, 10, v20")
            wait4(S_WA)
            a(f"s_mov_b32 s69, {0 if 'dt0' in X else 60}")
            def pd(r):
                a(f"v_mov_b32 v{r}, 0")
                a(f"buffer_atomic_or v{r}, v20, s[44:47], s73 offen sc0 sc1")
            pd(24)
            a("KA_DP:")
            for cur, nxt in ((24, 25), (25, 24)):
                if PSL: a(f"s_sleep {PSL}")
                pd(nxt)
                a("s_waitcnt vmcnt(1)")
                a(f"v_cmp_ne_u32 vcc, -1, v{cur}")
                a("s_and_b32 s60, vcc_lo, vcc_hi")
                a("s_lshr_b32 s61, s60, 16")
                a("s_and_b32 s60, s60, s61")
                a("s_lshr_b32 s61, s60, 8")
                a("s_and_b32 s60, s60, s61")
                a("v_mov_b32 v19, s60")
                a(f"ds_write_b32 v{VSY}, v19 offset:{S_PO}")
                a("s_cmp_eq_u32 s60, 0xff")
                a("s_cbranch_scc1 KA_DPD")
            a("s_sub_u32 s69, s69, 1")
            a("s_cbranch_scc0 KA_DP")
            a("KA_DPD:")
            a("s_waitcnt vmcnt(0)")
            a("s_mov_b64 exec, 0xff")
        a(f"s_mov_b32 s69, {SLOW_TRIES}")
        for k in range(PDP - 1):
            pl(24 + k)
            if PSL and k < PDP - 2: a(f"s_sleep {PSL}")
        a("KA_WP:")
        for cur, nxt in [(24 + k, 24 + (k + PDP - 1) % PDP) for k in range(PDP)]:
            if PSL: a(f"s_sleep {PSL}")
            pl(nxt)
            a(f"s_waitcnt vmcnt({PDP-1})")
            a(f"v_cmp_eq_u32 vcc, s52, v{cur}")
            if "pw" in X:
                a("s_and_b32 s60, vcc_lo, vcc_hi")
                a("s_lshr_b32 s61, s60, 16")
                a("s_and_b32 s60, s60, s61")
                a("s_lshr_b32 s61, s60, 8")
                a("s_and_b32 s60, s60, s61")
                a("v_mov_b32 v19, s60")
                a(f"ds_write_b32 v{VSY}, v19 offset:{S_PO}")
                a("s_cmp_eq_u32 s60, 0xff")
            else:
                a("s_nop 1")
                a("v_mov_b32 v19, vcc_lo")
                if "dp" in X: a("v_mul_u32_u24 v19, 0x101, v19")
                a(f"ds_or_b32 v{VSY}, v19 offset:{S_PO}")
                a("s_cmp_eq_u32 vcc_lo, 0xff")
            a("s_cbranch_scc1 KA_NFIRST")
        a("s_sub_u32 s69, s69, 1")
        a("s_cbranch_scc0 KA_WP")
        a("KA_NFIRST:")
    a.end(0)
    a("KA_SPECIAL:")
    if "lkw" in X: sig(S_WB)
    a("s_setprio 1")
    a(f"s_cmp_eq_u32 s65, {PRIO1}")
    a("s_cbranch_scc1 KA_BODY")
    a("s_setprio 0")
    a("s_branch KA_BODY")
    a.c("fallback: true row max over all keys, then recompute this query tile")
    a("KA_SLOW:")
    B = KBUF[0]
    a("s_cmp_eq_u32 s55, 0")
    a("s_cbranch_scc1 KA_SLQ")
    for i in range(4): a(f"v_mov_b32 v{QA+i}, v{QB+i}")
    a("KA_SLQ:")
    a("s_waitcnt vmcnt(0)")
    a(f"v_mov_b32 v{SB}, 0xff800000")
    a("s_mov_b32 s58, s57")
    a("s_mov_b32 s65, 0")
    a("KA_MAXL:")
    a(f"buffer_load_dwordx4 {vr(B,4)}, v4, s[44:47], s58 offen")
    a("s_add_u32 s58, s58, 1024")
    a("s_add_u32 s65, s65, 1")
    a("s_waitcnt vmcnt(0)")
    a(f"{MF} {vr(SA,16)}, {vr(B,4)}, {vr(QA,4)}, 0")
    a("s_nop 15")
    for i in range(8):
        a(f"v_max3_f32 v{SB}, v{SA+2*i}, v{SA+2*i+1}, v{SB}")
    a("s_cmp_lt_u32 s65, 64")
    a("s_cbranch_scc1 KA_MAXL")
    a(f"v_mov_b32 v{SB+1}, v{SB}")
    a("s_nop 1")
    a(f"v_permlane32_swap_b32 v{SB}, v{SB+1}")
    a(f"v_max_f32 v{SB}, v{SB}, v{SB+1}")
    for i in range(16):
        a(f"v_mov_b32 v{OA+i}, 0")
    a("s_mov_b32 s58, s57")
    a("s_add_u32 s59, s57, 65536")
    a("s_mov_b32 s65, 0")
    a("KA_SLOWL:")
    kload(B, 0); vload(B, 0)
    a("s_add_u32 s58, s58, 1024")
    a("s_add_u32 s59, s59, 1024")
    a("s_add_u32 s65, s65, 1")
    a("s_waitcnt vmcnt(0)")
    a(f"{MF} {vr(SA,16)}, {vr(B,4)}, {vr(QA,4)}, 0")
    a("s_nop 15")
    for i in range(16):
        a(f"v_sub_f32 v{SA+i}, v{SA+i}, v{SB}")
    for i in range(16):
        a(f"v_exp_f32 v{SA+i}, v{SA+i}")
    a("s_nop 1")
    a(f"{SM32} {vr(OA,16)}, {vr(B+4,4)}, {vr(SA,8)}, v{IXV}")
    a(f"{SM32} {vr(OA,16)}, {vr(B+8,4)}, {vr(SA+8,8)}, v{IXV}")
    a("s_nop 7")
    a("s_cmp_lt_u32 s65, 64")
    a("s_cbranch_scc1 KA_SLOWL")
    a("s_nop 15")
    a(f"v_rcp_f32 v{SA}, v{OA+8}")
    a("s_nop 0")
    for i in range(8):
        a(f"v_mul_f32 v{OA+i}, v{OA+i}, v{SA}")
    for i in range(4):
        a(f"v_cvt_pk_bf16_f32 v{P+i}, v{OA+2*i}, v{OA+2*i+1}")
    a("s_branch KA_FIN")

    a("KA_LZ:")
    a("v_mov_b32 v8, 0")
    a("v_lshlrev_b32 v5, 2, v1")
    a(f"v_add_u32 v5, {L_KP+4100}, v5")
    for c in range(4):
        if c % 2 == 0: a("s_mov_b64 exec, %s" % ("0x7fff" if c == 0 else "0x7ffe"))
        for ch in range(2): a(f"ds_write_b32 v5, v8 offset:{c*KPC+ch*KPROW}")
    a("s_mov_b64 exec, 1")
    a(f"ds_add_u32 v{VSY}, v{VONE} offset:{S_KN}")
    a(f"ds_add_u32 v{VSY}, v{VONE} offset:{S_KN+4}")
    a("s_mov_b64 exec, -1")
    a("s_branch KA_ATT")
    a("KA_LG:")
    def grd(c):
        a(f"ds_read_b128 {vr(64+4*c,4)}, v12 offset:{8192*c}")
        a(f"ds_read_b128 {vr(96+4*c,4)}, v{40+c}")
    grd(0); grd(1); grd(2)
    need(13)
    a("s_barrier")
    grd(3); grd(4); grd(5); grd(6)
    need(14)
    a("s_barrier")
    a("s_waitcnt lgkmcnt(6)")
    grd(7)
    need(15, " lgkmcnt(0)")
    a("s_barrier")
    a.stamp(2)
    a("v_mov_b32 v9, 0")
    a("s_lshl_b32 s58, s50, 9")
    a(f"s_add_u32 s58, s58, {W2_G}")
    a("v_lshlrev_b32 v5, 3, v10")
    for i in range(32): a(f"v_dot2_f32_bf16 v9, v{64+i}, v{96+i}, v9")
    a("s_nop 3")
    a("v_add_f32_dpp v9, v9, v9 quad_perm:[1,0,3,2] row_mask:0xf bank_mask:0xf")
    a("s_nop 1")
    a("v_add_f32_dpp v9, v9, v9 quad_perm:[2,3,0,1] row_mask:0xf bank_mask:0xf")
    a("s_nop 1")
    a("v_add_f32_dpp v9, v9, v9 row_half_mirror row_mask:0xf bank_mask:0xf")
    a("v_cvt_pk_bf16_f32 v9, v9, v9")
    a("v_and_b32 v9, 0xffff0000, v9")
    a(f"v_mul_f32 v9, {hex(f2u(-LOG2E))}, v9")
    a("v_exp_f32 v9, v9")
    a("s_nop 0")
    a("v_add_f32 v9, 1.0, v9")
    a("v_rcp_f32 v9, v9")
    a("s_nop 0")
    a("v_cvt_pk_bf16_f32 v10, v9, v9")
    a("v_and_b32 v10, 0xffff0000, v10")
    a("v_sub_f32 v11, 1.0, v10")
    a("v_cvt_pk_bf16_f32 v11, v11, v11")
    a("v_and_b32 v11, 0xffff0000, v11")
    a("s_mov_b32 exec_lo, 0x01010101")
    a("s_mov_b32 exec_hi, 0x01010101")
    a("buffer_store_dwordx2 v[10:11], v5, s[44:47], s58 offen sc1")
    a("s_mov_b64 exec, -1")
    a("s_branch KA_ATT")

    a("KA_CONS0:")
    if "cnear" not in X: cpf()
    a("KA_CONS:")
    common()
    a(f"v_lshl_add_u32 v5, v1, 2, v{VSY}")
    a("v_cmp_gt_u32 vcc, 24, v1")
    a("v_mov_b32 v6, 0")
    a("v_addc_co_u32 v6, vcc, 0, v6, vcc")
    a("ds_write_b32 v5, v6")
    a("s_setprio 3")
    ACC, FB = 112, 32
    XA, WAD, FLA = 16, 20, 21
    a("s_and_b32 s54, s48, 1")
    a("s_lshr_b32 s55, s48, 1")
    a("v_and_b32 v5, 31, v1")
    a("s_lshl_b32 s56, s54, 12")
    a("v_lshl_add_u32 v6, v5, 7, s56")
    a("v_bfe_u32 v7, v5, 1, 3")
    a("v_xor_b32 v7, v7, v3")
    a(f"v_lshl_add_u32 v{XA}, v7, 4, v6")
    for ks in range(1, 4):
        a(f"v_xor_b32 v{XA+ks}, {ks<<5}, v{XA}")
    a("v_bfe_u32 v7, v1, 2, 2")
    a("v_lshl_add_u32 v6, v3, 3, v7")
    a("v_lshlrev_b32 v6, 7, v6")
    a("v_lshrrev_b32 v7, 1, v7")
    a("v_xor_b32 v7, s55, v7")
    a("v_lshl_add_u32 v6, v7, 6, v6")
    a("v_bfe_u32 v7, v1, 4, 1")
    a("v_lshl_add_u32 v6, v7, 5, v6")
    a("v_and_b32 v7, 3, v1")
    a("v_lshl_add_u32 v6, v7, 3, v6")
    a(f"v_add_u32 v{WAD}, {L_W}, v6")
    for i in range(48):
        a(f"v_mov_b32 v{ACC+i}, 0")
    a("s_lshl_b32 s58, s48, 10")
    a(f"s_add_u32 s58, s58, {L_U}")
    a("v_add_u32 v5, s58, v4")
    a(f"ds_write_b128 v5, {vr(ACC,4)}")
    a(f"v_add_u32 v5, {L_U+4096}, v4")
    a("s_mov_b64 exec, 0x7fffff")
    a(f"ds_write_b128 v5, {vr(ACC,4)}")
    a("s_mov_b64 exec, -1")
    a("s_waitcnt lgkmcnt(0)")
    srd(a, 44, 34, 35, W2_END)
    WB = 22
    a("v_lshrrev_b32 v25, 1, v1")
    a("v_xor_b32 v25, v25, v1")
    a("v_and_b32 v25, 4, v25")
    a("v_mul_u32_u24 v25, 3, v25")
    a("v_xor_b32 v25, v25, v1")
    a("v_lshlrev_b32 v25, 4, v25")
    a(f"v_mov_b32 v{WB}, v{WAD}")
    def reads(step):
        F = FB + 16 * (step & 3)
        xo = (step >> 2) * 8192
        wo = (step & 1) * 2048
        r = [f"ds_read_b128 {vr(F,4)}, v{XA+(step&3)} offset:{xo}"]
        for ct in range(3):
            for hh in range(2):
                r.append(f"ds_read_b64_tr_b16 {vr(F+4+4*ct+2*hh,2)}, v{WAD} offset:{wo+ct*4096+hh*512}")
        return r
    def mfmas(step):
        F = FB + 16 * (step & 3)
        r = []
        for ct in range(3):
            x, w = vr(F, 4), vr(F + 4 + 4 * ct, 4)
            A, B = (w, x) if ct < 2 else (x, w)
            r.append(f"{MF} {vr(ACC+16*ct,16)}, {A}, {B}, {vr(ACC+16*ct,16)}")
        return r
    a("s_mov_b32 s58, 0")
    a("s_mov_b32 s57, 3")
    a("s_barrier")
    a.stamp(1)
    for t in reads(0) + reads(1): a(t)
    if "al" in X: a(".p2align 6")
    if "gph4" in X: a("s_nop 0")
    a("KA_GEMM:")
    for st in range(8):
        m, r = mfmas(st), reads(st + 2)
        if st % 2 == 0:
            a("s_add_u32 s58, s58, 12288")
            a(f"s_cmp_eq_u32 s58, {NSLOT*12288}")
            a("s_cselect_b32 s58, 0, s58")
            a(f"v_add_u32 v{WAD}, s58, v{WB}")
            if st == 6: a("s_cmp_eq_u32 s57, 0")
        a("s_waitcnt lgkmcnt(7)")
        a(m[0])
        if st == 6: a("s_cbranch_scc1 KA_GEND")
        if st % 2 == 0: a("s_barrier")
        [a(t) for t in r[:3]]; a(m[1]); [a(t) for t in r[3:6]]; a(m[2]); a(r[6])
    for k in range(4):
        a(f"v_add_u32 v{XA+k}, 16384, v{XA+k}")
    a("s_sub_u32 s57, s57, 1")
    a("s_branch KA_GEMM")
    a("KA_GEND:")
    m = mfmas(6); a(m[1]); a(m[2])
    a("s_waitcnt lgkmcnt(0)")
    for t in mfmas(7): a(t)
    a.stamp(2)
    a("s_lshl_b32 s58, s50, 1")
    a("s_add_u32 s58, s58, s54")
    a("s_lshl_b32 s58, s58, 10")
    a(f"s_mul_i32 s59, s55, {2*G_HEAD}")
    a("s_add_u32 s58, s58, s59")
    a("s_add_u32 s58, s58, s51")
    a(f"s_add_u32 s59, s58, {G_HEAD}")
    a("s_add_u32 s62, s58, 65536")
    a(f"s_mov_b32 s63, {hex(QSCALE)}")
    a("v_bfe_u32 v5, v1, 4, 1")
    a(f"v_mul_u32_u24 v5, {G_HEAD}, v5")
    a("v_and_b32 v6, 15, v1")
    a("v_lshl_add_u32 v6, v3, 4, v6")
    a("v_lshl_add_u32 v6, v6, 4, v5")
    for i in range(8):
        a(f"v_cvt_pk_bf16_f32 v{16+i}, v{ACC+16+2*i}, v{ACC+16+2*i+1}")
    a("buffer_store_dwordx4 v[16:19], v25, s[44:47], s58 offen" + NT)
    a("buffer_store_dwordx4 v[20:23], v25, s[44:47], s59 offen" + NT)
    for i in range(8):
        a(f"v_cvt_pk_bf16_f32 v{96+i}, v{ACC+32+2*i}, v{ACC+32+2*i+1}")
    a("buffer_store_dwordx4 v[96:99], v6, s[44:47], s62 offen" + NT)
    a("buffer_store_dwordx4 v[100:103], v6, s[44:47], s62 offen offset:512" + NT)
    wait(S_NONCE, 1, out=52)
    for i in range(16):
        a(f"v_mul_f32 v{ACC+i}, s63, v{ACC+i}")
    a("s_lshl_b32 s60, s55, 12")
    a("s_lshl_b32 s61, s54, 10")
    a("s_add_u32 s60, s60, s61")
    a(f"s_add_u32 s60, s60, {L_Q}")
    a("v_add_u32 v5, s60, v4")
    for i in range(8):
        a(f"v_cvt_pk_bf16_f32 v{32+i}, v{ACC+2*i}, v{ACC+2*i+1}")
    a("ds_write_b128 v5, v[32:35]")
    a("ds_write_b128 v5, v[36:39] offset:2048")
    sig(S_QRDY)
    mktag(512)
    a("s_lshl_b32 s60, s48, 7")
    a("s_lshl_b32 s61, s50, 2")
    a("s_add_u32 s60, s60, s61")
    a("v_mov_b32 v156, s60")
    a("s_waitcnt vmcnt(0)")
    publish()
    sig(S_DONE)
    if "tq2" in X:
        a("s_and_b32 s60, s50, 15")
        a("s_cmp_ge_u32 s60, 2")
        a("s_cbranch_scc1 KA_NTQ")
        a("v_bfe_u32 v5, v1, 4, 2")
        a("v_lshlrev_b32 v5, 16, v5")
        a("v_and_b32 v7, 15, v1")
        a("v_lshl_add_u32 v5, v7, 6, v5")
        a("buffer_load_dword v163, v5, s[44:47], s58 offen sc1")
        a("KA_NTQ:")
    a.stamp(3)
    a("s_branch KA_ATT")

    a("KA_AUX0:")
    common()
    import ka_aux
    ka_aux.gen_aux(a, sig, wait, wait4, lbl, X, gettag, mktag, publish, collect, dsig)
    a("KA_END:")
    a("s_endpgm")
    return a.text(), 168
```

```python
from common import *
from ka import *

def gen_aux(a, sig, wait, wait4, lbl, X, gettag, mktag, publish, collect, dsig):
    import ka
    cmul = ka.cmul if "nopk" in X else ka.cmul_pk
    PSL = 1 if "ps1" in X else 8 if "ps8" in X else 3
    FINN = 4 if "f4" in X else 1 if "f1" in X else 8
    DATA_TRIES = 0 if "dt0" in X else 200
    st = (lambda i: None) if "p3st" in X else a.stamp
    a("KA_AUX:")
    a("s_and_b32 s61, s54, 1")
    a("s_lshr_b32 s62, s54, 1")
    a("s_mov_b32 s52, 0")
    srd(a, 44, 34, 35, W2_END)
    a("s_lshl_b32 s63, s2, 2")
    a("s_add_u32 s63, s63, s54")
    a("s_cmp_lg_u32 s63, 3")
    a("s_cbranch_scc1 KA_NOPUB")
    a("s_memrealtime s[64:65]")
    a("s_waitcnt lgkmcnt(0)")
    a("s_or_b32 s64, s64, 1")
    a("v_mov_b32 v158, 0")
    a("v_mov_b32 v159, s64")
    a("s_mov_b64 exec, 1")
    a("global_store_dword v158, v159, s[32:33] sc1")
    a("s_mov_b64 exec, -1")
    a("KA_NOPUB:")
    a("v_and_b32 v7, 31, v1")
    Z = 160
    a("v_and_b32 v36, 1, v1")
    a("v_lshlrev_b32 v36, 4, v36")
    a("v_mov_b32 v37, 0x3f80")
    a("v_lshlrev_b32 v36, v36, v37")
    a("v_bfe_u32 v37, v1, 1, 2")
    for d in range(4):
        a(f"v_cmp_eq_u32 s[{64+2*d}:{65+2*d}], {d}, v37")
    a("s_nop 0")
    for d in range(4):
        a(f"v_cndmask_b32 v{Z+d}, 0, v36, s[{64+2*d}:{65+2*d}]")
    a("s_lshl_b32 s63, s54, 11")
    a(f"s_add_u32 s63, s63, {L_XCH}")
    a("v_add_u32 v16, s63, v4")
    a(f"s_mul_i32 s63, s62, {KPROW}")
    a(f"s_add_u32 s63, s63, {L_KP}")
    a("v_lshl_add_u32 v19, v7, 4, s63")
    a("s_lshl_b32 s64, s62, 2")
    a(f"v_add_u32 v167, s64, v{VSY}")
    a("v_lshrrev_b32 v32, 2, v7")
    a("v_lshlrev_b32 v32, 3, v32")
    a("v_sub_u32 v33, 4128, v32")
    a("v_lshl_add_u32 v33, v3, 4, v33")
    a("v_and_b32 v32, 3, v7")
    a(f"v_mul_u32_u24 v32, {KPC}, v32")
    a("s_lshl_b32 s64, s61, 6")
    a("s_sub_u32 s64, s63, s64")
    a("s_sub_u32 s64, s64, 416")
    a("v_add3_u32 v38, v32, v33, s64")
    a("v_mul_u32_u24 v39, 144, v7")
    a("v_lshl_add_u32 v39, v3, %d, v39" % (5 if "utw" in X else 4))
    a("s_lshl_b32 s64, s62, %d" % (4 if "utw" in X else 6))
    a("s_mul_i32 s65, s61, 144")
    a("s_sub_u32 s64, s64, s65")
    a(f"s_add_u32 s64, s64, {L_U+31*144-864}")
    a("v_add_u32 v39, s64, v39")
    a("s_lshl_b32 s64, s54, 6")
    for k, r in enumerate((2, 5, 6)):
        a("v_add_u32 v32, s64, v1")
        if k: a(f"v_add_u32 v32, {256*k}, v32")
        a("v_mul_u32_u24 v33, 7282, v32")
        a("v_lshrrev_b32 v33, 16, v33")
        a("v_mul_u32_u24 v34, 9, v33")
        a("v_sub_u32 v34, v32, v34")
        a("v_min_u32 v34, 7, v34")
        if "utw" in X:
            a("v_lshrrev_b32 v35, 1, v34")
            a("v_lshl_add_u32 v33, v33, 2, v35")
            a("v_and_b32 v34, 1, v34")
            a("v_lshlrev_b32 v34, 4, v34")
            a(f"v_lshl_add_u32 v{r}, v33, 10, v34")
        else:
            a("v_lshlrev_b32 v34, 4, v34")
            a(f"v_lshl_add_u32 v{r}, v33, 7, v34")
    a("s_lshl_b32 s74, s50, %d" % (5 if "utw" in X else 13))
    a("s_add_u32 s74, s74, s51")
    a(f"s_add_u32 s74, s74, {G_UT}")
    a("s_lshl_b32 s75, s54, 10")
    a(f"s_add_u32 s75, s75, {L_U+31*144}")
    a("s_lshl_b32 s60, s54, 2")
    a(f"s_add_u32 s60, s60, {L_SY+S_UA}")
    a("s_lshl_b32 s58, s61, 12")
    a("s_sub_u32 s58, 2048, s58")
    a(f"s_mov_b32 s63, {hex(LOG2E_HI)}")
    a("s_waitcnt vmcnt(7)")
    a("v_mul_f32 v17, s63, v14")
    a("v_fma_f32 v18, v14, s63, -v17")
    a(f"v_fmac_f32 v18, {hex(LOG2E_LO)}, v14")
    a("v_exp_f32 v17, v17")
    a(f"v_mul_f32 v18, {hex(LN2)}, v18")
    a("v_fma_f32 v17, v17, v18, v17")
    a("v_cvt_pk_bf16_f32 v17, v17, v17")
    a("v_and_b32 v17, 0xffff0000, v17")
    a("s_waitcnt vmcnt(0)")
    st(1)
    for r in (8, 9, 10, 11):
        a(f"v_mul_f32 v{r}, v17, v{r}")
    a("v_mul_f32 v8, s63, v8")
    a("v_mul_f32 v9, 0.15915494, v9")
    W1, W8, W256, W2, W4, W16 = 20, 22, 24, 26, 28, 30
    tmp = 32
    for k, mult in enumerate((1.0, 8.0, 256.0)):
        t = tmp + 2 * k
        a(f"v_mul_f32 v{t}, {hex(f2u(mult))}, v8")
        a(f"v_mul_f32 v{t+1}, {hex(f2u(mult))}, v9")
    for k in range(3):
        t = tmp + 2 * k
        a(f"v_exp_f32 v{t}, v{t}")
        a(f"v_fract_f32 v{t+1}, v{t+1}")
    for k, wr in enumerate((W1, W8, W256)):
        t = tmp + 2 * k
        a(f"v_cos_f32 v{wr}, v{t+1}")
        a(f"v_sin_f32 v{wr+1}, v{t+1}")
    U = {}
    nxt = [40]
    def newU(av):
        U[av] = {524: 8, 780: 10}.get(av) or nxt[0]
        if U[av] == nxt[0]: nxt[0] += 2
        return U[av]
    for l in cmul(newU(0), 12, 10): a(l)
    for k, wr in enumerate((W1, W8, W256)):
        t = tmp + 2 * k
        a(f"v_mul_f32 v{wr}, v{t}, v{wr}")
        a(f"v_mul_f32 v{wr+1}, v{t}, v{wr+1}")
    for l in interleave([cmul(W2, W1, W1), cmul(W16, W8, W8)]): a(l)
    for l in cmul(W4, W2, W2): a(l)
    WA, WB, WR, WI, UR, UI = 96, 100, 112, 128, 144, 96
    wops = [f"v_cvt_pk_bf16_f32 v{WR+15}, v{W8}, 1.0", f"v_cvt_pk_bf16_f32 v{WI+15}, v{W8+1}, 0"]
    ca, cb = W16, None
    wops += cmul(WB, W8, W16); cb = WB
    for k in range(1, 16):
        pk = [f"v_cvt_pk_bf16_f32 v{WR+15-k}, v{cb}, v{ca}", f"v_cvt_pk_bf16_f32 v{WI+15-k}, v{cb+1}, v{ca+1}"]
        if k < 15:
            na, nb = WA + 2 * (k & 1), WB + 2 * (k & 1)
            wops += interleave([cmul(na, ca, W16), cmul(nb, cb, W16), pk])
            ca, cb = na, nb
        else:
            wops += pk
    u1 = []; prev = 0
    for av in (256, 512, 768, 1024, 1280, 1536, 1792):
        u1 += cmul(newU(av), U[prev], W256); prev = av
    for av in (1024, 1280, 1536, 1792):
        u1 += cmul(newU(av + 8), U[av], W8)
    for av in (516, 520, 524):
        u1 += cmul(newU(av), U[av - 4], W4)
    u2 = []
    for av in range(1, 9):
        u2 += cmul(newU(av), U[av - 1], W1)
    for av in (258, 260, 262, 264):
        u2 += cmul(newU(av), U[av - 2], W2)
    for av in (772, 776, 780):
        u2 += cmul(newU(av), U[av - 4], W4)
    assert nxt[0] <= 96
    for l in interleave([wops, interleave([u1, u2])]): a(l)
    rows = [0,1,2,3,4,5,6,7, 256,258,260,4,260,262,264,8, 512,516,520,524,768,772,776,780,
            1024,1032,1280,1288,1536,1544,1792,1800]
    for p in range(16):
        x, y = U[rows[2*p]], U[rows[2*p+1]]
        a(f"v_cvt_pk_bf16_f32 v{UR+p}, v{x}, v{y}")
        a(f"v_cvt_pk_bf16_f32 v{UI+p}, -v{x+1}, -v{y+1}")
    TD, ES, KD = 40, 88, 20
    nb = [0]
    def bar(n=1):
        for _ in range(n):
            a("s_barrier"); nb[0] += 1
    for q in range(2):
        a(f"s_mov_b32 s64, {hex(0xff << (8*q))}")
        a(f"s_mov_b32 s65, {hex(0xff0000 << (8*q))}")
        for d in range(4):
            a(f"v_cndmask_b32 v{ES+4*q+d}, 0, v{Z+d}, s[64:65]")
    a("s_load_dword s52, s[32:33], 0")
    halves = [Xm + 8 * hf for Xm in (WR, UR, WI, UI) for hf in range(2)]
    def tm(i):
        T = TD + 16 * (i % 3)
        return [f"{MF} {vr(T,16)}, {vr(halves[i],4)}, {vr(ES,4)}, 0", f"{MF} {vr(T,16)}, {vr(halves[i]+4,4)}, {vr(ES+4,4)}, {vr(T,16)}"]
    def tc(i):
        T = TD + 16 * (i % 3)
        return [f"v_cvt_pk_bf16_f32 v{halves[i]+k}, v{T+2*k}, v{T+2*k+1}" for k in range(8)]
    def ts(Xm): return [f"v_permlane16_swap_b32 v{Xm+k}, v{Xm+8+k}" for k in range(8)]
    def fin(XU, XW, first): return [f"{MF} {vr(KD,16)}, {vr(XU+4*i,4)}, {vr(XW+4*i,4)}, " + ("0" if first and i == 0 else vr(KD,16)) for i in range(4)]
    def mixm(m, v):
        n = (len(v) + len(m) - 1) // len(m)
        for i, t in enumerate(m):
            a(t)
            for u in v[i*n:(i+1)*n]: a(u)
    a("s_nop 0")
    for t in tm(0) + tm(1) + tm(2): a(t)
    a("s_nop 7")
    for t in tc(0): a(t)
    mixm(tm(3), ["s_nop 0"] + tc(1))
    mixm(tm(4), tc(2) + ts(WR))
    mixm(tm(5), tc(3))
    mixm(tm(6), tc(4) + ts(UR))
    mixm(tm(7), tc(5))
    mixm(fin(UR, WR, True), tc(6) + ts(WI) + tc(7))
    a("s_nop 1")
    for t in ts(UI): a(t)
    a("s_nop 1")
    for t in fin(UI, WI, False): a(t)
    NPRE = 4
    a("v_lshlrev_b32 v157, 2, v7")
    a("v_lshlrev_b32 v156, 2, s50")
    a("v_mov_b32 v154, 0x7ffffff0")
    a("v_add_u32 v17, s58, v16")
    a("s_cmp_eq_u32 s61, s62")
    a("s_nop 6")
    a("s_cbranch_scc1 KA_X0")
    for i in range(8): a(f"v_swap_b32 v{KD+i}, v{KD+8+i}")
    a("KA_X0:")
    a(f"ds_write_b128 v16, {vr(KD+8,4)}")
    a(f"ds_write_b128 v16, {vr(KD+12,4)} offset:1024")
    if "xw" in X: a("s_waitcnt lgkmcnt(0)")
    if NPRE == 4: st(2)
    bar(4 - nb[0])
    gettag()
    mktag(0)
    a("s_cmp_lg_u32 s54, 0")
    a("s_cbranch_scc1 KA_NPB")
    publish()
    a("KA_NPB:")
    bar()
    D0, D1, FA, FB, FC = 112, 128, 48, 64, 80
    PW, PG, PA, PF, POF, PWF, POUT, PM, PS, PD = 144, 148, 149, 150, 151, 152, 153, 100, 108, 109
    w = ["v_lshrrev_b32 v8, 3, v1", "v_bfe_u32 v9, v1, 4, 1", "v_lshlrev_b32 v9, 2, v9", "v_and_b32 v10, 7, v1", "v_xor_b32 v9, v9, v10",
         "v_lshlrev_b32 v9, 4, v9", f"v_lshl_add_u32 v{PW}, v8, 10, v9"] + [f"v_add_u32 v{PW+q}, {7168*q}, v{PW}" for q in range(1, 4)]
    w += [f"v_lshlrev_b32 v{PF}, 7, v10", f"v_lshlrev_b32 v{PG}, 3, v7", f"v_lshlrev_b32 v{PD}, 12, v8", f"v_lshl_add_u32 v{PD}, v10, 4, v{PD}",
          "s_lshl_b32 s63, s62, 12", "s_lshl_b32 s64, s61, 4", "s_add_u32 s63, s63, s64", f"s_add_u32 s63, s63, {L_GA}",
          f"v_lshl_add_u32 v{PA}, v7, 7, s63", f"v_lshl_add_u32 v{PA}, v3, 5, v{PA}",
          f"v_lshlrev_b32 v{POUT}, 10, v7", f"v_lshl_add_u32 v{POUT}, v3, 4, v{POUT}",
          "s_lshl_b32 s63, s54, 11", f"s_add_u32 s63, s63, {L_GT}", f"v_add_u32 v{POF}, s63, v4",
          "v_lshrrev_b32 v8, 1, v7", f"v_lshl_add_u32 v{PS}, v8, 7, s63", f"v_lshl_add_u32 v{PS}, v3, 5, v{PS}", "v_and_b32 v8, 1, v7", f"v_lshl_add_u32 v{PS}, v8, 4, v{PS}",
          "v_bfe_u32 v8, v1, 2, 2", f"v_lshl_add_u32 v{PWF}, v3, 2, v8", f"v_lshlrev_b32 v{PWF}, 7, v{PWF}", "v_lshrrev_b32 v8, 1, v8", "v_xor_b32 v8, s62, v8",
          f"v_lshl_add_u32 v{PWF}, v8, 6, v{PWF}", "v_bfe_u32 v8, v1, 4, 1", f"v_lshl_add_u32 v{PWF}, v8, 5, v{PWF}", "v_and_b32 v8, 3, v1",
          f"v_lshl_add_u32 v{PWF}, v8, 3, v{PWF}", f"v_add_u32 v{PWF}, {L_WO}, v{PWF}"]
    w += ["v_lshrrev_b32 v8, 3, v7", "v_bfe_u32 v9, v7, 1, 1", "v_lshl_add_u32 v8, v8, 1, v9", "v_bfe_u32 v9, v7, 2, 1", "v_xor_b32 v9, v9, v3",
          "v_lshl_add_u32 v8, v9, 3, v8", "v_and_b32 v9, 1, v7", "v_lshlrev_b32 v9, 4, v9", "v_mov_b32 v10, 0xffff", "v_lshlrev_b32 v9, v9, v10"]
    w += [f"v_cmp_eq_u32 s[{4+2*k}:{5+2*k}], {k}, v8" for k in range(8)] + ["s_nop 0"]
    w += [f"v_cndmask_b32 v{PM+k}, 0, v9, s[{4+2*k}:{5+2*k}]" for k in range(8)]
    n = (len(w) + 3) // 4
    for k in range(3):
        bar()
        for t in w[k*n:(k+1)*n]: a(t)
    a("s_waitcnt lgkmcnt(0)")
    bar()
    a(f"ds_read_b128 {vr(KD+8,4)}, v17")
    a(f"ds_read_b128 {vr(KD+12,4)}, v17 offset:1024")
    for t in w[3*n:]: a(t)
    bar()
    a("buffer_load_dword v158, v157, s[44:47], s67 offen sc1")
    a("s_waitcnt lgkmcnt(0)")
    for i in range(8):
        a(f"v_add_f32 v{KD+i}, v{KD+i}, v{KD+8+i}")
    def uload():
        l = lbl("UL")
        a("s_mov_b32 m0, s75")
        a("s_cmp_lg_u32 s54, 0")
        a("buffer_load_dwordx4 v2, s[44:47], s74 offen" + (" nt" if "ntu" in X else "") + " lds")
        a(f"s_cbranch_scc1 {l}")
        a("s_add_u32 m0, s75, 8192")
        a("s_nop 0")
        a("buffer_load_dwordx4 v6, s[44:47], s74 offen" + (" nt" if "ntu" in X else "") + " lds")
        a(f"{l}:")
        a("s_add_u32 m0, s75, 4096")
        a("s_nop 0")
        a("buffer_load_dwordx4 v5, s[44:47], s74 offen" + (" nt" if "ntu" in X else "") + " lds")
        dsig("s_mov_b32 m0, s60")
    def tail(work):
        l = lbl("UE")
        work = work + [f"v_mov_b32 v{D0+i}, 0" for i in range(32)]
        n = (len(work) + 3) // 4
        parts = [work[i*n:(i+1)*n] for i in range(4)]
        a("s_barrier")
        for t in parts[0]: a(t)
        a("s_barrier")
        for t in parts[1]: a(t)
        a("s_barrier")
        a("s_waitcnt vmcnt(0)")
        a("v_cmp_ne_u32 vcc, s66, v158")
        a("s_mov_b32 s59, 1")
        a(f"s_cbranch_vccnz {l}")
        a("s_mov_b32 s59, 0")
        uload()
        a(f"{l}:")
        a("s_barrier")
        for t in parts[2]: a(t)
        a("s_barrier")
        for t in parts[3]: a(t)
        a("s_barrier")
        st(3)
    def ready():
        l = lbl("UK")
        a("s_cmp_eq_u32 s59, 0")
        a(f"s_cbranch_scc1 {l}")
        collect(False, "s_cmp_eq_u32 s54, 0")
        uload()
        a(f"{l}:")
        st(4)
        wait4(S_UA)
        st(5)
        wait(S_KN, 2, 167)
        st(6)
        if "noaux" in X: a("s_branch KA_AUXEND")
    def rdA(slot, step, w=False):
        o = 416 - 128 * (step >> 1) - 32 * (step & 1)
        a(f"ds_read_b64 {vr(FA+4*slot,2)}, v38 offset:{o}")
        a(f"ds_read_b64 {vr(FA+4*slot+2,2)}, v38 offset:{o+8}")
    def rdB(R, slot, step, extra=0):
        a(f"ds_read_b128 {vr(R+4*slot,4)}, v39 offset:{864-288*(step>>1)+(0 if step&1 else (64 if 'utw' in X else 32))+extra}")
    def steps(near, paced, flag, extra=None):
        for s in range(4):
            n = (11 if near else 9) - (1 if near and s == 0 and flag else 0)
            a("s_waitcnt lgkmcnt(%d)" % (0 if paced else n))
            a(f"{MF} {vr(D1,16)}, {vr(FA+4*s,4)}, {vr(FB+4*s,4)}, {vr(D1,16)}")
            if near:
                rdB(FB, s, s + 4, 32 * 144)
                if paced: a("s_waitcnt lgkmcnt(0)")
                if extra: [a(t) for t in extra[s][:-1]]
                a(f"{MF} {vr(D0,16)}, {vr(FA+4*s,4)}, {vr(FC+4*s,4)}, {vr(D0,16)}")
                rdA(s, s + 4)
                if paced and "slow" in X: a("s_waitcnt lgkmcnt(0)")
                rdB(FC, s, s + 4)
                if extra: a(extra[s][-1])
            else:
                rdA(s, s + 4)
                if paced and "slow" in X: a("s_waitcnt lgkmcnt(0)")
                rdB(FB, s, s + 4, 32 * 144)
        a("v_subrev_u32 v38, 256, v38")
        a(f"v_subrev_u32 v39, {288*2}, v39")
    def prime():
        for s in range(4):
            if s == 3: a("s_waitcnt lgkmcnt(8)")
            rdB(FB, s, s, 32 * 144); rdA(s, s); rdB(FC, s, s)
    assert nb[0] == 10
    a("s_cmp_eq_u32 s61, s62")
    a("s_cbranch_scc0 KA_X1")
    tail(["v_cmp_eq_u32 s[72:73], 31, v1", "v_lshlrev_b32 v8, 3, v3", "v_xor_b32 v8, 8, v8",
          "v_cndmask_b32 v9, 0, v15, s[72:73]", "v_add_u32 v18, v19, v8", f"v_add_f32 v{KD}, v{KD}, v9",
          f"v_add_u32 v36, {KPC+4+3072}, v18", f"v_add_u32 v37, {2*KPC+4+3072}, v18",
          f"v_cvt_pk_bf16_f32 v40, v{KD+3}, v{KD+2}", f"v_cvt_pk_bf16_f32 v41, v{KD+1}, v{KD+0}",
          f"v_cvt_pk_bf16_f32 v42, v{KD+6}, v{KD+5}", f"v_cvt_pk_bf16_f32 v43, v{KD+4}, v{KD+4}",
          f"v_cvt_pk_bf16_f32 v44, v{KD+7}, v{KD+3}", f"v_cvt_pk_bf16_f32 v45, v{KD+2}, v{KD+1}",
          f"v_cvt_pk_bf16_f32 v46, v{KD+6}, v{KD+6}", f"v_cvt_pk_bf16_f32 v47, v{KD+5}, v{KD+4}",
          "v_lshrrev_b32 v9, 16, v41"])
    a("ds_write_b64 v18, v[44:45] offset:3584")
    a("ds_write_b64 v18, v[46:47] offset:3072")
    a("ds_write2_b32 v36, v40, v41 offset0:128 offset1:129")
    a("ds_write2_b32 v36, v42, v43 offset0:0 offset1:1")
    a("ds_write2_b32 v37, v44, v45 offset0:128 offset1:129")
    a("ds_write2_b32 v37, v46, v47 offset0:0 offset1:1")
    a(f"ds_write_b64 v18, v[40:41] offset:{3*KPC+8+3584}")
    a(f"ds_write_b64 v18, v[42:43] offset:{3*KPC+8+3072}")
    a("s_mov_b64 exec, s[72:73]")
    a("ds_write_b32 v18, v9 offset:3592")
    a("ds_write_b32 v37, v9 offset:520")
    a(f"ds_add_u32 v167, v{VONE} offset:{S_KN}")
    a("s_mov_b64 exec, -1")
    ready()
    prime()
    a("s_mov_b32 s63, 3")
    a("KA_CV0:")
    steps(True, False, False)
    a("s_sub_u32 s63, s63, 1")
    a("s_cmp_lg_u32 s63, 0")
    a("s_cbranch_scc1 KA_CV0")
    wait(S_KF, 1, 167)
    a("s_branch KA_XD")
    a("KA_X1:")
    r8, r9, r10, r11, r12, r13, r14, r15 = [KD + i for i in range(8)]
    V4 = [r8]*3 + [r9]*3 + [r10]*5 + [r11]
    V8a = [r12]*4 + [36] + [r13]*7
    V8b = [r14]*4 + [37] + [r15]*7
    tail(["v_and_b32 v8, 1, v1", "v_cmp_eq_u32 s[72:73], 1, v8", "v_cmp_eq_u32 s[70:71], 32, v1", "v_lshlrev_b32 v8, 9, v3", "v_sub_u32 v19, v19, v8", "v_sub_u32 v18, v19, v8",
          f"v_cndmask_b32 v36, v{r13}, v{r12}, s[72:73]", f"v_cndmask_b32 v37, v{r15}, v{r14}, s[72:73]", f"v_cndmask_b32 v{r11}, v{r11}, v{r10}, s[70:71]",
          f"v_cvt_pk_bf16_f32 v8, v{r9}, v{r8}", f"v_cvt_pk_bf16_f32 v9, v{r8}, v{r8}", "v_mov_b32 v12, s52"])
    a("s_mov_b32 exec_lo, 0x80000000\ns_mov_b32 exec_hi, 0")
    a(f"ds_write_b32 v{VSY}, v12 offset:{S_NONCE}")
    a(f"ds_write_b32 v19, v9 offset:{KPC+2560+16}")
    a(f"ds_write_b32 v19, v9 offset:{2*KPC+2560+16}")
    a(f"ds_write_b64 v19, v[8:9] offset:{3*KPC+2560+16}")
    a("s_mov_b64 exec, -1")
    ready()
    prime()
    for (V, ad, off) in ((V4, 19, 2560), (V8a, 18, 1536), (V8b, 18, 1024)):
        ex = []
        for c in range(4):
            R = 40 + 4 * (c & 1)
            ex.append([f"v_cvt_pk_bf16_f32 v{R+d}, v{V[8+c-2*d]}, v{V[7+c-2*d]}" for d in range(4)] + [f"ds_write_b128 v{ad}, {vr(R,4)} offset:{c*KPC+off}"])
        steps(True, False, False, ex)
    sig(S_KF, 167)
    a("KA_XD:")
    def loop(lab, nxt, near, paced):
        a(f"{lab}:")
        if paced and "xcv" in X: a("s_branch KA_CVE")
        if not paced: a(f"ds_read_b32 v{VTMP}, v{VSY} offset:{S_GO}")
        steps(near, paced, True)
        if not paced: a(f"v_readfirstlane_b32 s76, v{VTMP}")
        a("s_sub_u32 s63, s63, 1")
        a("s_cmp_lg_u32 s63, 0")
        if not paced:
            a(f"s_cbranch_scc0 {nxt}")
            a("s_cmp_eq_u32 s76, 0")
        a(f"s_cbranch_scc1 {lab}")
    a("s_mov_b32 s63, 5")
    loop("KA_CV1", "KA_CVM", True, False)
    loop("KA_CV1P", None, True, True)
    a("KA_CVM:")
    a("s_mov_b32 s63, 8")
    a("s_cmp_lg_u32 s76, 0")
    a("s_cbranch_scc1 KA_CV2P")
    loop("KA_CV2", "KA_CVE", False, False)
    loop("KA_CV2P", None, False, True)
    a("KA_CVE:")
    st(7)
    a("s_lshl_b32 s63, s54, 12")
    a(f"s_add_u32 s63, s63, {L_CX}")
    a("v_add_u32 v13, s63, v4")
    a("v_xor_b32 v14, 4096, v13")
    wait(S_QRDY, 4)
    a("s_cmp_eq_u32 s61, 0")
    a("s_cbranch_scc0 KA_CVS")
    for i in range(4): a(f"ds_write_b128 v13, {vr(D1+4*i,4)} offset:{1024*i}")
    sig(S_CV, 167)
    wait(S_CV, 2, 167, nap=1)
    for i in range(4): a(f"ds_read_b128 {vr(D1+4*i,4)}, v14 offset:{1024*i}")
    a("s_branch KA_CVJ")
    a("KA_CVS:")
    for i in range(4): a(f"ds_write_b128 v13, {vr(D0+4*i,4)} offset:{1024*i}")
    sig(S_CV, 167)
    wait(S_CV, 2, 167, nap=1)
    for i in range(4): a(f"ds_read_b128 {vr(D0+4*i,4)}, v14 offset:{1024*i}")
    a("KA_CVJ:")
    a("s_lshl_b32 s56, s49, 2")
    a("s_and_b32 s57, s50, 3")
    a("s_add_u32 s56, s56, s57")
    a("s_lshr_b32 s57, s50, 2")
    a("s_lshl_b32 s72, s56, 11")
    a(f"s_add_u32 s72, s72, {W2_FO}")
    a("s_lshl_b32 s65, s56, 1")
    a("s_add_u32 s65, s65, s61")
    a("s_lshl_b32 s63, s57, 1")
    a("s_add_u32 s63, s63, s62")
    a("s_lshl_b32 s74, s63, 6")
    a("s_lshl_b32 s64, s65, 15")
    a("s_add_u32 s74, s74, s64")
    a("s_lshl_b32 s73, s57, 18")
    a("s_lshl_b32 s64, s54, 16")
    a("s_add_u32 s73, s73, s64")
    a("s_lshl_b32 s64, s56, 7")
    a("s_add_u32 s73, s73, s64")
    a(f"s_add_u32 s73, s73, {W2_GA}")
    a("s_lshl_b32 s75, s65, 8")
    a(f"s_add_u32 s75, s75, {W2_G}")
    a("v_mov_b32 v155, s52")
    a("s_lshl_b32 s63, s55, 13")
    a("s_lshl_b32 s64, s54, 11")
    a("s_add_u32 s63, s63, s64")
    a(f"s_add_u32 s63, s63, {W2_GA}")
    a("s_waitcnt lgkmcnt(0)")
    sig(S_CD)
    for i in range(16): a(f"v_add_f32 v{D0+i}, v{D0+i}, v{D1+i}")
    for i in range(8): a(f"v_cvt_pk_bf16_f32 v{64+i}, v{D0+2*i}, v{D0+2*i+1}")
    a(f"ds_write_b128 v{PS}, v[64:67]")
    a(f"ds_write_b128 v{PS}, v[68:71] offset:64")
    a(f"ds_read_b128 v[64:67], v{POF}")
    a(f"ds_read_b128 v[68:71], v{POF} offset:1024")
    a("s_waitcnt lgkmcnt(0)")
    a("buffer_store_dwordx4 v[64:67], v4, s[44:47], s63 offen sc1")
    a("buffer_store_dwordx4 v[68:71], v4, s[44:47], s63 offen offset:1024 sc1")
    if "nop3" in X: a("s_branch KA_AUXEND")
    a("s_lshl_b32 s63, s50, 11")
    a(f"s_add_u32 s71, s63, {W2_FO}")
    a("s_lshl_b32 s70, s49, 7")
    a("s_add_u32 s63, s71, s70")
    if "nofl" not in X: a("s_load_dword s68, s[34:35], s63")
    srd(a, 36, 26, 27, 512 * 512 * 2)
    srd(a, 40, 30, 31, 2048 * 512 * 2)
    a("v_lshlrev_b32 v12, 2, s49")
    if "dp" in X:
        a("s_lshl_b32 s4, s50, 16")
        a("s_lshl_b32 s5, s49, 13")
        a("s_add_u32 s4, s4, s5")
        a("s_lshl_b32 s5, s54, 11")
        a("s_add_u32 s4, s4, s5")
        a(f"s_add_u32 s4, s4, {W2_O}")
        for i in range(4): a(f"v_mov_b32 v{8+i}, -1")
        a("buffer_store_dwordx4 v[8:11], v4, s[44:47], s4 offen sc1")
        a("buffer_store_dwordx4 v[8:11], v4, s[44:47], s4 offen offset:1024 sc1")
    wait(S_CD, 5, nap=4)
    a("s_waitcnt vmcnt(0)")
    a("s_mov_b64 exec, 1")
    a(f"ds_add_rtn_u32 v{VTMP}, v{VSY}, v{VONE} offset:{S_PC}")
    a("s_waitcnt lgkmcnt(0)")
    a(f"v_readfirstlane_b32 s76, v{VTMP}")
    a("s_cmp_lg_u32 s76, 3")
    a("s_cbranch_scc1 KA_NCL")
    a("buffer_store_dword v155, v156, s[44:47], s67 offen offset:2048 sc1")
    a("buffer_store_dword v155, v12, s[44:47], s71 offen offset:1024 sc1")
    a("KA_NCL:")
    a("s_mov_b64 exec, -1")
    a("s_lshl_b32 s58, s54, 12")
    a(f"s_add_u32 s58, s58, {L_WO}")
    a("s_lshl_b32 s59, s54, 15")
    a("s_lshl_b32 s63, s57, 7")
    a("s_add_u32 s59, s59, s63")
    for c in range(4):
        if "wrot" in X:
            a(f"s_add_u32 s64, s50, {c}")
            a("s_and_b32 s64, s64, 3")
            a("s_lshl_b32 s63, s64, 14")
            a("s_add_u32 m0, s58, s63")
            a("s_lshl_b32 s63, s64, 17")
            a("s_add_u32 s63, s63, s59")
        else:
            a(f"s_add_u32 m0, s58, {16384*c}")
            a(f"s_add_u32 s63, s59, {131072*c}")
        for q in range(4):
            if "xwo" not in X: a(f"buffer_load_dwordx4 v{PW+q}, s[36:39], s63 offen offset:{1024*q} lds")
        a("s_waitcnt vmcnt(0)")
    a("s_xor_b32 s63, s57, 4")
    a(f"s_mul_i32 s63, s63, {GRS}")
    a(f"s_add_u32 s63, s63, {G_FL+2048}")
    a("s_add_u32 s64, s34, s63")
    a("s_addc_u32 s65, s35, 0")
    a("s_add_u32 s70, s72, 1024")
    if "p3st" in X: a.stamp(1)
    if "preout" in X:
        a("s_lshl_b32 s4, s56, 16")
        a("s_lshl_b32 s5, s54, 14")
        a("s_add_u32 s4, s4, s5")
        a("s_lshl_b32 s5, s57, 7")
        a("s_add_u32 s4, s4, s5")
        a("s_add_u32 s4, s30, s4")
        a("s_addc_u32 s5, s31, 0")
        for i in range(16): a(f"s_load_dwordx2 s[68:69], s[4:5], {1024*i+60}")
    if "aot" in X:
        a("s_lshl_b32 s4, s50, 16")
        a("s_lshl_b32 s5, s49, 13")
        a("s_add_u32 s4, s4, s5")
        a("s_lshl_b32 s5, s54, 11")
        a("s_add_u32 s4, s4, s5")
        a(f"s_add_u32 s4, s4, {W2_O}")
        a("s_add_u32 s4, s34, s4")
        a("s_addc_u32 s5, s35, 0")
        for i in range(16): a(f"s_load_dwordx2 s[68:69], s[4:5], {128*i+60}")
    if "lkw" in X: wait(S_WB, 1, nap=16)
    a("s_mov_b32 s71, 0")
    G = ""
    a("s_load_dwordx16 s[4:19], s[64:65], 0" + G)
    a("s_load_dwordx8 s[20:27], s[34:35], s70" + G)
    a("s_load_dword s68, s[64:65], 64" + G)
    a("s_waitcnt lgkmcnt(0)")
    for r in range(4, 28):
        a(f"s_xor_b32 s{r}, s{r}, s52")
        a(f"s_or_b32 s71, s71, s{r}")
    a("s_load_dwordx16 s[4:19], s[64:65], 64" + G)
    a("s_waitcnt lgkmcnt(0)")
    for r in range(4, 20):
        a(f"s_xor_b32 s{r}, s{r}, s52")
        a(f"s_or_b32 s71, s71, s{r}")
    a("s_cbranch_scc0 KA_PCD")
    a("v_and_b32 v9, 7, v1")
    a("v_lshlrev_b32 v9, 2, v9")
    a(f"s_mov_b32 s69, {SLOW_TRIES}")
    a("KA_PC:")
    a("s_sleep 32")
    a("buffer_load_dword v10, v157, s[44:47], s63 offen sc1")
    a("buffer_load_dword v11, v9, s[44:47], s70 offen sc1")
    a("s_waitcnt vmcnt(0)")
    a("v_cmp_ne_u32 vcc, s52, v10")
    a("v_cmp_ne_u32 s[4:5], s52, v11")
    a("s_or_b64 vcc, vcc, s[4:5]")
    a("s_cbranch_scc0 KA_PCD")
    a("s_sub_u32 s69, s69, 1")
    a("s_cbranch_scc0 KA_PC")
    a("KA_PCD:")
    if "p3st" in X: a.stamp(2)
    if "gat" in X:
        a("s_add_u32 s64, s34, s73")
        a("s_addc_u32 s65, s35, 0")
        for i in range(16): a(f"s_load_dwordx2 s[68:69], s[64:65], {4096*i+60}")
    D, DA, GA, DG = 112, 128, 32, 40
    a("s_lshl_b32 s58, s54, 11")
    a(f"s_add_u32 m0, s58, {L_GA}")
    a("s_add_u32 s63, s73, 31744")
    a("s_waitcnt vmcnt(0) lgkmcnt(0)")
    if "xga" not in X:
        a(f"buffer_load_dwordx4 v{PD}, s[44:47], s73 offen sc1 lds")
        a(f"buffer_load_dwordx4 v{PD}, s[44:47], s63 offen offset:1024 sc1 lds")
    a(f"buffer_load_dwordx2 v[14:15], v{PG}, s[44:47], s75 offen sc1")
    dsig(f"s_add_u32 m0, s60, {S_WA-S_UA}")
    a("s_lshl_b32 s58, s61, 12")
    a("s_lshl_b32 s59, s56, 16")
    a("s_add_u32 s59, s59, s58")
    a(f"s_add_u32 s59, s59, {W2_O}")
    a("s_waitcnt vmcnt(0)")
    wait4(S_WA, nap=4)
    a(f"ds_read_b128 {vr(GA,4)}, v{PA}")
    a(f"ds_read_b128 {vr(GA+4,4)}, v{PA} offset:64")
    a("v_lshrrev_b32 v13, 16, v14")
    a("v_or_b32 v13, v13, v14")
    for k in range(8):
        a(f"v_and_b32 v{DG+k}, v13, v{PM+k}")
    a("s_waitcnt lgkmcnt(0)")
    a("s_nop 0")
    a(f"{MF} {vr(DA,16)}, {vr(GA,4)}, {vr(DG,4)}, 0")
    a(f"{MF} {vr(DA,16)}, {vr(GA+4,4)}, {vr(DG+4,4)}, {vr(DA,16)}")
    if "p3st" in X: a.stamp(3)
    if "wb" in X:
        a("s_lshl_b32 s63, s50, 2")
        a("s_add_u32 s63, s63, s54")
        a("s_cmp_lg_u32 s63, 0")
        a("s_cbranch_scc1 KA_NOWB")
        a("buffer_wbl2 sc1")
        a("KA_NOWB:")
    if "fet" in X:
        W0, O0 = 48, 64
        a(f"v_mov_b32 v2, v{POUT}")
        a("s_lshl_b32 s63, s61, 12")
        a(f"s_add_u32 s63, s63, {L_O}")
        a("v_add_u32 v5, s63, v4")
        a("v_and_b32 v6, 7, v1")
        a(f"v_lshl_add_u32 v6, v6, 2, v{VSY}")
        for i in range(4): a(f"v_mov_b32 v{W0+i}, 0")
        a("s_mov_b32 s4, 0xff")
        a(f"s_mov_b32 s7, {LDS_SPIN}")
        a(f"{MF} {vr(D,16)}, {vr(W0,4)}, {vr(W0,4)}, 0")
        wait(S_FIN, 8, nap=8)
        if "p3st" in X: a.stamp(4)
        a("KA_OL:")
        a(f"ds_read_b32 v10, v6 offset:{S_OA}")
        a("s_sub_u32 s7, s7, 1")
        a("s_cselect_b32 s6, 0xff, 0")
        a("s_waitcnt lgkmcnt(0)")
        a("v_cmp_eq_u32 vcc, 0, v10")
        a("s_or_b32 s5, s6, vcc_lo")
        a("s_and_b32 s5, s5, s4")
        a("s_cbranch_scc0 KA_OL")
        a("KA_OP:")
        a("s_ff1_i32_b32 s8, s5")
        a("s_lshl_b32 s63, s8, 13")
        a(f"v_add_u32 v12, s63, v{PWF}")
        a("v_add_u32 v13, s63, v5")
        for q in range(4):
            a(f"ds_read_b128 {vr(O0+4*q,4)}, v13 offset:{1024*q}")
            a(f"ds_read_b64_tr_b16 {vr(W0+4*q,2)}, v12 offset:{2048*q}")
            a(f"ds_read_b64_tr_b16 {vr(W0+4*q+2,2)}, v12 offset:{2048*q+1024}")
        a("s_bitset0_b32 s4, s8")
        a("s_bitset0_b32 s5, s8")
        for q in range(4):
            a(f"s_waitcnt lgkmcnt({9-3*q})")
            a(f"{MF} {vr(D,16)}, {vr(W0+4*q,4)}, {vr(O0+4*q,4)}, {vr(D,16)}")
        a("s_cmp_lg_u32 s5, 0")
        a("s_cbranch_scc1 KA_OP")
        a("s_cmp_lg_u32 s4, 0")
        a("s_cbranch_scc1 KA_OL")
        if "p3st" in X: a.stamp(7)
        a("s_nop 7")
        for i in range(16): a(f"v_fmac_f32 v{DA+i}, v15, v{D+i}")
    else:
        OB4, W0, W1, D2 = 48, 16, 32, 144
        a(f"v_mov_b32 v2, v{POUT}")
        a(f"v_mov_b32 v5, v{PWF}")
        a("s_lshl_b32 s63, s54, 12")
        a(f"s_add_u32 s64, s63, {L_GT}")
        a("v_add_u32 v6, s64, v4")
        a("s_xor_b32 s63, s63, 8192")
        a(f"s_add_u32 s64, s63, {L_GT}")
        a("v_add_u32 v11, s64, v4")
        a("s_lshl_b32 s63, s61, 2")
        a(f"v_add_u32 v14, s63, v{VSY}")
        if "mz" in X:
            for i in range(4): a(f"v_mov_b32 v{W0+i}, 0")
            a("s_nop 1")
            a(f"{MF} {vr(D,16)}, {vr(W0,4)}, {vr(W0,4)}, 0")
            a(f"{MF} {vr(D2,16)}, {vr(W0,4)}, {vr(W0,4)}, 0")
        else:
            for i in range(16):
                a(f"v_mov_b32 v{D+i}, 0")
                a(f"v_mov_b32 v{D2+i}, 0")
        a("s_lshl_b32 s4, 0x55, s62")
        a(f"s_mov_b32 s7, {LDS_SPIN}")
        wait(S_FIN, FINN, nap=8)
        if "p3st" in X: a.stamp(4)
        a("KA_OL:")
        a(f"ds_read_b32 v10, v{VSY} offset:{S_PO}")
        a("s_sub_u32 s7, s7, 1")
        a("s_cselect_b32 s6, 0xffff, 0")
        a("s_waitcnt lgkmcnt(0)")
        a("v_readfirstlane_b32 s5, v10")
        a("s_or_b32 s5, s5, s6")
        a("s_lshr_b32 s12, s5, 8")
        a("s_and_b32 s5, s5, s4")
        a("s_cbranch_scc0 KA_OL")
        for k in range(4):
            a(f"s_ff1_i32_b32 s{8+k}, s5")
            a(f"s_lshl_b32 s63, s{8+k}, 13")
            a("s_add_u32 s63, s63, s59")
            for q in range(4): a(f"buffer_load_dwordx4 {vr(OB4+16*k+4*q,4)}, v4, s[44:47], s63 offen offset:{1024*q} sc1")
            a(f"s_bitset0_b32 s4, s{8+k}")
            a(f"s_bitset0_b32 s5, s{8+k}")
            if k < 3:
                a("s_cmp_eq_u32 s5, 0")
                a(f"s_cbranch_scc1 KA_OP{k+1}")
        def wadr(k):
            a(f"s_lshl_b32 s63, s{8+k}, 13")
            a("v_add_u32 v12, s63, v5")
            a("v_xor_b32 v13, 64, v12")
        def rdw(W, ad, q):
            a(f"ds_read_b64_tr_b16 {vr(W+4*q,2)}, v{ad} offset:{2048*q}")
            a(f"ds_read_b64_tr_b16 {vr(W+4*q+2,2)}, v{ad} offset:{2048*q+1024}")
        for n in (4, 3, 2, 1):
            a(f"KA_OP{n}:")
            wadr(0)
            for q in range(4): rdw(W1, 13, q)
            a("s_waitcnt lgkmcnt(4)")
            for q in range(4): rdw(W0, 12, q)
            for k in range(n):
                B = OB4 + 16 * k
                a(f"s_waitcnt vmcnt({4*(n-1-k)}) lgkmcnt(7)")
                if "dp" in X:
                    ok = lbl("DK")
                    a(f"v_max3_u32 v8, v{B}, v{B+1}, v{B+2}")
                    a(f"v_max3_u32 v9, v{B+3}, v{B+4}, v{B+5}")
                    for i in range(5): a(f"v_max3_u32 v{8+(i&1)}, v{B+6+2*i}, v{B+7+2*i}, v{8+(i&1)}")
                    a("v_max_u32 v8, v8, v9")
                    a("v_cmp_eq_u32 vcc, -1, v8")
                    a(f"s_cbranch_vccz {ok}")
                    a(f"s_bitcmp1_b32 s12, s{8+k}")
                    a(f"s_cbranch_scc1 {ok}")
                    a(f"s_bitset1_b32 s4, s{8+k}")
                    for i in range(16): a(f"v_mov_b32 v{B+i}, 0")
                    a("s_nop 1")
                    a(f"{ok}:")
                if k + 1 < n: wadr(k + 1)
                for q in range(4):
                    a(f"{MF} {vr(D2,16)}, {vr(W1+4*q,4)}, {vr(B+4*q,4)}, {vr(D2,16)}")
                    if k + 1 < n: rdw(W1, 13, q)
                a("s_waitcnt lgkmcnt(%d)" % (7 if k + 1 < n else 0))
                for q in range(4):
                    a(f"{MF} {vr(D,16)}, {vr(W0+4*q,4)}, {vr(B+4*q,4)}, {vr(D,16)}")
                    if k + 1 < n: rdw(W0, 12, q)
            a("s_cmp_lg_u32 s4, 0")
            a("s_cbranch_scc1 KA_OL")
            if n > 1: a("s_branch KA_OD")
        a("KA_OD:")
        if "p3st" in X: a.stamp(6)
        a("s_nop 4")
        for i in range(4): a(f"ds_write_b128 v6, {vr(D2+4*i,4)} offset:{1024*i}")
        sig(S_FX, 14)
        for i in range(16): a(f"v_fmac_f32 v{DA+i}, v15, v{D+i}")
        wait(S_FX, 2, 14)
        for i in range(4): a(f"ds_read_b128 {vr(D2+4*i,4)}, v11 offset:{1024*i}")
        if "p3st" in X: a.stamp(7)
        for i in range(4):
            a(f"s_waitcnt lgkmcnt({3-i})")
            for j in range(4): a(f"v_fmac_f32 v{DA+4*i+j}, v15, v{D2+4*i+j}")
    for i in range(8): a(f"v_cvt_pk_bf16_f32 v{GA+i}, v{DA+2*i}, v{DA+2*i+1}")
    a("s_nop 1")
    a(f"v_permlane32_swap_b32 v{GA}, v{GA+2}")
    a(f"v_permlane32_swap_b32 v{GA+1}, v{GA+3}")
    a(f"v_permlane32_swap_b32 v{GA+4}, v{GA+6}")
    a(f"v_permlane32_swap_b32 v{GA+5}, v{GA+7}")
    OF = " nt" if "ont" in X else " sc1" if "osc" in X else " sc0 sc1 nt" if "oall" in X else ""
    a(f"buffer_store_dwordx4 {vr(GA,4)}, v2, s[40:43], s74 offen{OF}")
    a(f"buffer_store_dwordx4 {vr(GA+4,4)}, v2, s[40:43], s74 offen offset:32{OF}")
    a("KA_AUXEND:")
    a.end(0)
```

```python
from common import *
import math, struct
LOG2E = 1.4426950408889634
LOG2E_HI = f2u(LOG2E)
_hi = struct.unpack("<f", struct.pack("<I", LOG2E_HI))[0]
LOG2E_LO = f2u(LOG2E - _hi)
LN2 = f2u(math.log(2.0))
QSCALE = f2u(0.25 * LOG2E)
MF = "v_mfma_f32_32x32x16_bf16"

L_X, L_W = 0, 65536
NSLOT = 6
L_OX = 0
L_Q = 114688
L_WO, L_GA, L_GT, L_O = 18432, 83968, 98304, 92160
L_CX = 73728
L_KP, KPC = 18688, 8384
L_U = 139264
L_UD = L_U + 17 * 144
L_PZ = L_UD + 64 * 144
L_PD = L_PZ + 31 * 144
L_XCH = L_UD
L_GW = 162560
L_SY = 163584
KA_LDS = 163840
S_UA, S_WA, S_OA = 0, 16, 32
S_WB, S_UDONE, S_QRDY, S_NONCE, S_CV, S_OX, S_CD, S_FIN, S_PO, S_PC, S_OD, S_GO, S_FX, S_DONE, S_KN, S_KF, S_RUN = 96, 100, 104, 108, 112, 128, 144, 148, 152, 156, 160, 164, 168, 176, 180, 188, 196
VSY, VONE, VTMP, VT4 = 164, 165, 166, 160
UNR = 4
WBIT, NEARLY = 4, 3
LDS_SPIN = 1 << 20
FAST_TRIES = 64
SLOW_TRIES = 20000

def interleave(chains):
    out = []
    chains = [list(c) for c in chains]
    while any(chains):
        for c in chains:
            if c: out.append(c.pop(0))
    return out

def cmul(d, x, w):
    return [f"v_mul_f32 v{d}, v{x}, v{w}", f"v_mul_f32 v{d+1}, v{x}, v{w+1}",
            f"v_fma_f32 v{d}, -v{x+1}, v{w+1}, v{d}", f"v_fmac_f32 v{d+1}, v{x+1}, v{w}"]
def cmul_pk(d, x, w):
    return [f"v_pk_mul_f32 {vr(d,2)}, {vr(x,2)}, {vr(w,2)} op_sel:[0,0] op_sel_hi:[0,1]",
            f"v_pk_fma_f32 {vr(d,2)}, {vr(x,2)}, {vr(w,2)}, {vr(d,2)} op_sel:[1,1,0] op_sel_hi:[1,0,1] neg_lo:[0,1,0]"]

def gen_ka(name, X=()):
    a = Asm()
    PRIO1, PRIO0 = (5 if "pr5" in X else 6), 7
    NSLOT = 7 if "s7" in X else 6
    DD = NSLOT - 2
    NF = 4 if "nf4" in X else 3 if "nf3" in X else 2 if "nf2" in X else 0
    NT = " nt" if "nt" in X else " sc1" if "ksc" in X else ""
    NW = " nt" if "ntw" in X else ""
    NX = " nt" if "ntx" in X else ""
    NP = " nt" if "ntp" in X else ""
    NK = " nt" if "ntk" in X else ""
    PSL = 2 if "ps2" in X else 8 if "ps8" in X else 1 if "ps1" in X else 0 if "ps0" in X else 5
    PDP = 4 if "pd4" in X else 2
    cnt = [0]
    def lbl(p):
        cnt[0] += 1
        return f"KA_{p}{cnt[0]}"
    def sig(off, addr=VSY, val=VONE):
        a("s_mov_b64 exec, 1")
        a(f"ds_add_u32 v{addr}, v{val} offset:{off}")
        a("s_mov_b64 exec, -1")
    def wait(off, n, addr=VSY, out=76, nap=0):
        l, e = lbl("W"), lbl("E")
        a(f"s_mov_b32 s77, {LDS_SPIN}")
        if nap:
            a(f"s_branch {l}F")
        a(f"{l}:")
        if nap:
            a(f"s_sleep {nap}")
            a(f"{l}F:")
        a(f"ds_read_b32 v{VTMP}, v{addr} offset:{off}")
        a("s_sub_u32 s77, s77, 1")
        a("s_cbranch_scc1 " + e)
        a("s_waitcnt lgkmcnt(0)")
        a(f"v_readfirstlane_b32 s{out}, v{VTMP}")
        a(f"s_cmp_lt_u32 s{out}, {n}")
        a("s_cbranch_scc1 " + l)
        a(f"{e}:")
    def wait4(off, addr=VSY, nap=0):
        l, e = lbl("W"), lbl("E")
        a(f"s_mov_b32 s77, {LDS_SPIN}")
        if nap:
            a(f"s_branch {l}F")
        a(f"{l}:")
        if nap:
            a(f"s_sleep {nap}")
            a(f"{l}F:")
        a(f"ds_read_b128 {vr(VT4,4)}, v{addr} offset:{off}")
        a("s_sub_u32 s77, s77, 1")
        a("s_cbranch_scc1 " + e)
        a("s_waitcnt lgkmcnt(0)")
        a(f"v_or3_b32 v{VT4}, v{VT4}, v{VT4+1}, v{VT4+2}")
        a(f"v_or_b32 v{VT4}, v{VT4}, v{VT4+3}")
        a(f"v_cmp_ne_u32 vcc, 0, v{VT4}")
        a("s_cbranch_vccnz " + l)
        a(f"{e}:")
    def gettag():
        l, ok = lbl("TL"), lbl("TK")
        a("s_waitcnt lgkmcnt(0)")
        a("s_cmp_lg_u32 s52, 0")
        a(f"s_cbranch_scc1 {ok}")
        a("v_mov_b32 v155, 0")
        a(f"s_mov_b32 s69, {SLOW_TRIES}")
        a(f"{l}:")
        a("global_load_dword v158, v155, s[32:33] sc1")
        a("s_waitcnt vmcnt(0)")
        a("v_readfirstlane_b32 s52, v158")
        a("s_cmp_lg_u32 s52, 0")
        a(f"s_cbranch_scc1 {ok}")
        a("s_sub_u32 s69, s69, 1")
        a(f"s_cbranch_scc0 {l}")
        a("s_mov_b32 s52, 1")
        a(f"{ok}:")
    def dsig(m0expr):
        a(m0expr)
        a("s_mov_b64 exec, 1")
        a("buffer_load_dword v154, s[44:47], 0 offen lds")
        a("s_mov_b64 exec, -1")
    def mktag(fl_off):
        if "gfl" in X:
            a("s_mov_b32 s66, s52")
            a(f"s_add_u32 s67, s51, {G_FL + fl_off}")
            return
        a("s_getreg_b32 s66, hwreg(HW_REG_XCC_ID)")
        a("s_and_b32 s66, s66, 15")
        a("s_add_u32 s66, s66, 1")
        a("s_lshl_b32 s66, s66, 1")
        a("s_xor_b32 s66, s66, s52")
        a(f"s_add_u32 s67, s51, {G_FL + fl_off}")
    def publish():
        a("v_mov_b32 v155, s66")
        a("s_mov_b64 exec, 1")
        a("buffer_store_dword v155, v156, s[44:47], s67 offen" + (" sc1" if "gfl" in X else ""))
        a("s_mov_b64 exec, -1")
    def collect(wide, own, lanes=1):
        lf, ls, done = lbl("GF"), lbl("GS"), lbl("GD")
        def ld(r, off):
            if wide: a(f"buffer_load_dwordx2 v[{r}:{r+1}], v157, s[44:47], s67 offen offset:{off} sc1")
            else: a(f"buffer_load_dword v{r}, v157, s[44:47], s67 offen offset:{off} sc1")
        a(f"s_mov_b32 s69, {FAST_TRIES}")
        a(f"{lf}:")
        ld(158, 0)
        a("s_waitcnt vmcnt(0)")
        a("v_cmp_ne_u32 vcc, s66, v158")
        if wide:
            a("v_cmp_ne_u32 s[70:71], s66, v159")
            a("s_or_b64 vcc, vcc, s[70:71]")
            a(f"s_cbranch_scc0 {done}")
        else:
            a(f"s_cbranch_vccz {done}")
        a("s_sub_u32 s69, s69, 1")
        a(f"s_cbranch_scc0 {lf}")
        a("buffer_wbl2 sc1")
        a("s_waitcnt vmcnt(0)")
        a("v_mov_b32 v155, s52")
        if own is not None:
            a(own)
            a(f"s_cbranch_scc0 {ls}N")
        a(f"s_mov_b64 exec, {lanes}")
        a("buffer_store_dword v155, v156, s[44:47], s67 offen offset:1024 sc1")
        a("s_mov_b64 exec, -1")
        a(f"{ls}N:")
        a(f"s_mov_b32 s69, {SLOW_TRIES}")
        a(f"{ls}:")
        ld(158, 0)
        ld(160, 1024)
        a("s_waitcnt vmcnt(0)")
        a("v_cmp_ne_u32 vcc, s66, v158")
        a("v_cmp_ne_u32 s[70:71], s52, v160")
        a("s_and_b64 vcc, vcc, s[70:71]")
        if wide:
            a("v_cmp_ne_u32 s[70:71], s66, v159")
            a("v_cmp_ne_u32 s[72:73], s52, v161")
            a("s_and_b64 s[70:71], s[70:71], s[72:73]")
            a("s_or_b64 vcc, vcc, s[70:71]")
        a(f"s_cbranch_scc0 {done}A")
        a("s_sleep 8")
        a("s_sub_u32 s69, s69, 1")
        a(f"s_cbranch_scc0 {ls}")
        a(f"{done}A:")
        a("buffer_inv sc1")
        a("s_waitcnt vmcnt(0)")
        a(f"{done}:")

    a(f".globl {name}\n.p2align 8\n.type {name},@function\n{name}:")
    a("s_cmp_ge_u32 s2, 256")
    a("s_cbranch_scc1 KA_END")
    a.start()
    if NF:
        a("v_readfirstlane_b32 s48, v0")
        a("s_nop 1")
        a("s_cmp_lg_u32 s48, 64")
        a("s_cbranch_scc1 KA_P1")
        a("v_cmp_gt_u32 vcc, 88, v0")
        a(f"v_mov_b32 v5, {L_SY-256}")
        a("v_lshl_add_u32 v5, v0, 2, v5")
        a("v_mov_b32 v6, 0")
        a("v_addc_co_u32 v6, vcc, 0, v6, vcc")
        a("ds_write_b32 v5, v6")
        a("s_waitcnt lgkmcnt(0)")
        a("KA_P1:")
    a("s_load_dwordx16 s[4:19], s[0:1], 0")
    a("s_load_dwordx16 s[20:35], s[0:1], 64")
    if "dly" in X: a("s_sleep 16")
    if NF: a("s_barrier")
    else: a("v_readfirstlane_b32 s48, v0")
    a("v_and_b32 v1, 63, v0")
    a("s_and_b32 s49, s2, 7")
    for k in (1, 3, 5, 7):
        if f"gx{k}" in X: a(f"s_xor_b32 s49, s49, {k}")
    a("s_lshr_b32 s50, s2, 3")
    a("s_lshr_b32 s48, s48, 6")
    def cpf():
        if "cpf" in X:
            a("s_cmp_lg_u32 s48, 0")
            a("s_cbranch_scc1 " + ("KA_CPE" if "sb" in X else "KA_CONS"))
            a("s_getpc_b64 s[56:57]")
            a("KA_PCB:")
            a(f"s_sub_u32 s56, s56, KA_PCB-{name}")
            a("s_subb_u32 s57, s57, 0")
            a("v_lshl_add_u32 v8, v1, 5, s50")
            a("v_lshlrev_b32 v8, 6, v8")
            a(f"v_cmp_gt_u32 vcc, KA_END-{name}, v8")
            a("s_mov_b64 exec, vcc")
            a("v_mov_b32 v9, s57")
            a("v_add_co_u32 v8, vcc, s56, v8")
            a("v_addc_co_u32 v9, vcc, 0, v9, vcc")
            a("global_load_dword v24, v[8:9], off")
            a("s_mov_b64 exec, -1")

    a("s_cmp_lt_u32 s48, 4")
    a("s_cbranch_scc1 " + ("KA_CPF" if "cnear" in X else "KA_CONS0"))
    a("s_cmp_lt_u32 s48, 8")
    a("s_cbranch_scc1 KA_LOADER")
    a("s_setprio 3")
    a("s_sub_u32 s54, s48, 8")
    a("s_xor_b32 s55, s49, 4")
    a("s_lshl_b32 s55, s55, 5")
    a("s_add_u32 s55, s55, s50")
    a("s_lshl_b32 s59, s55, 9")
    a("s_lshl_b32 s60, s54, 7")
    a("s_add_u32 s59, s59, s60")
    a("v_lshl_add_u32 v2, v1, 1, s59")
    a("s_lshr_b32 s59, s59, 8")
    a("s_lshl_b32 s59, s59, 1")
    a("v_mov_b32 v5, s59")
    for i in range(8):
        a(f"v_mov_b32 v{8+i}, 0")
    a("s_waitcnt lgkmcnt(0)")
    a("global_load_short_d16_hi v14, v5, s[18:19]")
    for i in range(6):
        a(f"global_load_short_d16_hi v{8+i}, v2, s[{6+2*i}:{7+2*i}]{NP}")
    a("global_load_short_d16_hi v15, v5, s[20:21]")
    if "sb" in X: a("s_barrier")
    a("s_branch KA_AUX0")
    if "cnear" in X:
        a("KA_CPF:")
        cpf()
        a("KA_CPE:")
        if "sb" in X: a("s_barrier")
        a("s_branch KA_CONS")
    a("KA_LOADER:")
    def common():
        a(f"s_mul_i32 s51, s49, {GRS}")
        a("v_lshlrev_b32 v4, 4, v1")
        a("v_lshrrev_b32 v3, 5, v1")
        a(f"v_mov_b32 v{VSY}, {L_SY}")
        a(f"v_mov_b32 v{VONE}, 1")

    a("s_add_u32 s53, s49, s50")
    a("s_sub_u32 s54, s48, 4")
    a("v_lshrrev_b32 v5, 3, v1")
    a("v_and_b32 v6, 7, v1")
    a("v_lshrrev_b32 v7, 4, v1")
    a("v_xor_b32 v8, v6, v7")
    a("v_lshlrev_b32 v8, 4, v8")
    a("v_lshl_add_u32 v16, v5, 10, v8")
    a("s_and_b32 s73, s54, 1")
    a("s_lshl_b32 s58, s73, 6")
    a("s_lshl_b32 s55, s50, 16")
    a("s_lshl_b32 s60, s54, 13")
    a("s_add_u32 s60, s60, s55")
    a("v_xor_b32 v18, s58, v16")
    a("v_add_u32 v18, s60, v18")
    a("v_add_u32 v19, 32768, v18")
    a("v_and_b32 v7, 1, v7")
    a("v_lshlrev_b32 v7, 2, v7")
    a("v_xor_b32 v8, v6, v7")
    a("v_mul_u32_u24 v9, 3072, v5")
    a("v_lshl_add_u32 v9, v8, 4, v9")
    a("s_lshl_b32 s56, s49, 7")
    a("s_mul_i32 s62, s54, 3")
    for i in range(3):
        a(f"s_add_u32 s58, s62, {i}")
        a("s_and_b32 s59, s58, 3")
        a("s_mul_i32 s59, s59, 24576")
        a("s_lshr_b32 s58, s58, 2")
        a("s_lshl_b32 s58, s58, 10")
        a("s_add_u32 s58, s58, s59")
        a("s_add_u32 s58, s58, s56")
        if i: a(f"s_sub_u32 s58, s58, {1024*i}")
        a(f"v_add_u32 v{20+i}, s58, v9")
    a("s_lshl_b32 s61, s54, 10")
    a("s_lshl_b32 s62, s62, 10")
    a("s_and_b32 s64, s53, 7")
    a("s_lshl_b32 s65, s64, 7")
    a(f"s_mul_i32 s64, s64, {64*3072}")
    a("s_mov_b32 s38, %d\ns_mov_b32 s39, 0x20000\ns_mov_b32 s42, %d\ns_mov_b32 s43, 0x20000" % (2048*512*2, 512*1536*2))
    if NF:
        a("v_mov_b32 v23, 0x7ffffff0")
        a("s_lshl_b32 s72, s54, 2")
    a("s_mov_b32 m0, s61")
    a("s_waitcnt lgkmcnt(0)")
    a("s_mov_b32 s36, s4\ns_and_b32 s37, s5, 0xffff\ns_mov_b32 s40, s24\ns_and_b32 s41, s25, 0xffff")
    if "sb" in X: a("s_barrier")
    a.stamp(1)
    issued = []
    ops = []
    def vm(t, tag):
        a(t); ops.append(tag)
    def need(tag, extra=""):
        last = max(i for i, t in enumerate(ops) if t == tag)
        a(f"s_waitcnt vmcnt({len(ops)-1-last}){extra}")
    def sub(j):
        hi = j + 1
        if hi < 16:
            a(f"s_add_u32 m0, s61, {4096*hi}")
            if hi % 2 == 0:
                a("s_add_u32 s65, s65, 128")
                a("s_and_b32 s65, s65, 1023")
            else:
                a("s_nop 0")
            if "nox3" in X:
                a("s_cmp_eq_u32 s65, 384\ns_cselect_b32 s59, 256, s65")
                vm(f"buffer_load_dwordx4 v{18+(hi&1)}, s[36:39], s59 offen{NX} lds", j)
            else:
                vm(f"buffer_load_dwordx4 v{18+(hi&1)}, s[36:39], s65 offen{NX} lds", j)
        a(f"s_add_u32 m0, s62, {L_W+12288*(j%NSLOT)}")
        a(f"s_add_u32 s58, s64, {32*3072}")
        for i in range(3):
            vm(f"buffer_load_dwordx4 v{20+i}, s[40:43], s64 offen offset:{1024*i}{NW} lds", j)
        a(f"s_cmp_lt_u32 s58, {512*3072}")
        a("s_cselect_b32 s64, s58, 0")
        if j < NF:
            a(f"s_add_u32 m0, s72, {L_SY+S_OA+16*j}")
            a("s_mov_b64 exec, 1")
            vm("buffer_load_dword v23, s[36:39], 0 offen lds", "ds")
            a("s_mov_b64 exec, -1")
        issued.append(j)
    vm(f"buffer_load_dwordx4 v18, s[36:39], s65 offen{NX} lds", 0)
    sub(0)
    common()
    srd(a, 44, 34, 35, W2_END)
    a("v_xor_b32 v17, 64, v16")
    a("v_add_u32 v17, 7168, v17")
    a("s_sub_u32 s74, 4, s50")
    a("s_and_b32 s74, s74, 7")
    a("s_lshl_b32 s74, s74, 13")
    a("s_lshl_b32 s58, s54, 11")
    a("s_add_u32 s74, s74, s58")
    a("s_mov_b32 m0, s74")
    a("s_lshl_b32 s58, s54, 14")
    a("s_add_u32 s58, s58, s55")
    a("s_xor_b32 s59, s56, 512")
    a("s_add_u32 s58, s58, s59")
    vm("buffer_load_dwordx4 v16, s[36:39], s58 offen lds", "xs")
    vm("buffer_load_dwordx4 v17, s[36:39], s58 offen offset:1024 lds", "xs")
    sub(1); sub(2)
    a("v_lshlrev_b32 v5, 7, v1")
    a(f"s_add_u32 s67, s51, {G_FL}")
    a(f"s_mov_b32 m0, {L_GW}")
    a("s_lshl_b32 s58, 16, s54")
    a("s_or_b32 exec_lo, s58, 1")
    a("s_mov_b32 exec_hi, 0")
    vm("buffer_load_dword v163, v5, s[44:47], s67 offen " + ("nt" if "ntu" in X else "sc1"), "fl")
    a("s_lshl_b32 s58, s54, 4")
    a("s_lshl_b64 exec, 0xffff, s58")
    vm("global_load_lds_dwordx4 v4, s[28:29]", "gw")
    a("s_mov_b64 exec, -1")
    sub(3)
    a("v_bfe_u32 v5, v1, 2, 2")
    a("v_lshrrev_b32 v6, 4, v1")
    a("v_bfe_u32 v7, v1, 1, 1")
    a("v_lshl_add_u32 v6, v6, 1, v7")
    a("v_lshrrev_b32 v7, 1, v5")
    a("v_xor_b32 v6, v6, v7")
    a("v_lshlrev_b32 v6, 4, v6")
    a("v_lshl_add_u32 v6, v5, 7, v6")
    a("v_and_b32 v7, 1, v1")
    a("v_lshl_add_u32 v6, v7, 3, v6")
    a("v_add_u32 v28, s74, v6")
    for i in range(1, 4):
        a(f"v_xor_b32 v{28+i}, {32*i}, v28")
    need("xs")
    a("s_setprio 3")
    for i in range(4):
        a(f"ds_read_b64_tr_b16 {vr(32+2*i,2)}, v{28+i} offset:{512*i}")
    a("s_lshl_b32 s75, s50, 13")
    a("s_lshl_b32 s59, s54, 11")
    a("s_add_u32 s75, s75, s59")
    a("s_add_u32 s75, s75, s51")
    a(f"s_add_u32 s75, s75, {G_UT}")
    a("s_waitcnt lgkmcnt(0)")
    US = " sc1" if "usc" in X else ""
    vm("buffer_store_dwordx4 v[32:35], v4, s[44:47], s75 offen" + US, 3)
    vm("buffer_store_dwordx4 v[36:39], v4, s[44:47], s75 offen offset:1024" + US, 3)
    if "lst" in X: a.stamp(3)
    PRE = 7 if "p7" in X else 6 if "p6" in X else 5 if "p5" in X else 4
    for j in range(4, PRE): sub(j)
    a("v_lshrrev_b32 v10, 3, v1")
    a("s_lshl_b32 s58, s49, 3")
    a("v_add_u32 v10, s58, v10")
    a("v_and_b32 v11, 7, v1")
    a("v_bfe_u32 v12, v10, 1, 3")
    a("v_xor_b32 v12, v12, v11")
    a("v_lshlrev_b32 v12, 4, v12")
    a("v_lshl_add_u32 v12, v10, 7, v12")
    a("s_and_b32 s58, s53, 7")
    a("s_lshl_b32 s58, s58, 7")
    a("v_lshl_add_u32 v11, v11, 4, s58")
    a("v_bfe_u32 v5, v1, 4, 1")
    a("v_lshlrev_b32 v5, 16, v5")
    a("v_and_b32 v6, 15, v1")
    a("v_lshl_add_u32 v13, v6, 7, v5")
    a(f"s_mul_i32 s71, s54, {G_HEAD}")
    a("s_lshl_b32 s58, s50, 11")
    a("s_add_u32 s71, s71, s58")
    a("s_add_u32 s71, s71, s51")
    a("s_and_b32 s58, s50, 15")
    a(f"s_cmp_lt_u32 s58, {16 if 'n16' in X else 6 if 'n6' in X else NEARLY}")
    a("s_cselect_b32 s58, 0, 0x7ff00000")
    a("v_add_u32 v13, s58, v13")
    for c in range(8):
        a(f"v_add_u32 v{40+c}, {128*c}, v11")
        a(f"v_and_b32 v{40+c}, 1023, v{40+c}")
        a(f"v_add_u32 v{40+c}, {L_GW}, v{40+c}")
    for j in range(NF, 12):
        need(j)
        if "lst" in X and j in (0, 4, 8): a.stamp(4 + j // 4)
        a("s_barrier")
        for k in range(len(issued), min(j + DD, 15) + 1): sub(k)
    if "tq" in X:
        a("s_mov_b32 exec_hi, 0")
        vm("buffer_load_dword v163, v13, s[44:47], s71 offen " + ("nt" if "ntu" in X else "sc1"), "tq")
        a("s_mov_b64 exec, -1")
    need(12)
    a("s_barrier")
    a("s_cmp_eq_u32 s54, 3")
    a("s_cbranch_scc1 KA_LG")
    for j in (13, 14, 15):
        need(j)
        a("s_barrier")
    a.stamp(2)
    a("s_cmp_eq_u32 s54, 2")
    a("s_cbranch_scc1 KA_LZ")
    a("s_cmp_eq_u32 s54, 1")
    a("s_cbranch_scc1 KA_LP")

    a("KA_ATT:")
    if "lowp" in X: a("s_setprio 0")
    QA, QB, P, OA, OB, SA, SB = 8, 12, 28, 36, 52, 68, 84
    KBUF = [100, 112, 124, 136]
    IXV = 24
    SM32 = "v_smfmac_f32_32x32x32_bf16"
    a("s_and_b32 s54, s48, 3")
    a("s_lshr_b32 s55, s48, 2")
    a(f"s_mul_i32 s57, s54, {G_HEAD}")
    a("s_add_u32 s57, s57, s51")
    a("s_lshl_b32 s58, s55, 15")
    a("s_add_u32 s58, s58, s57")
    a("s_add_u32 s58, s58, 4096")
    a("s_add_u32 s58, s34, s58")
    a("s_addc_u32 s59, s35, 0")
    a("s_lshl_b32 s56, s50, 16")
    a("s_lshl_b32 s60, s49, 13")
    a("s_add_u32 s56, s56, s60")
    a(f"s_add_u32 s56, s56, {W2_O}")
    a("s_lshl_b32 s60, s48, 10")
    a("s_add_u32 s56, s56, s60")
    a(f"v_mov_b32 v{IXV}, 0xdddd")
    a("s_mov_b32 s62, 0xffff")
    a("s_mov_b32 s63, 0xffff")
    a("v_and_b32 v2, 27, v1")
    a("v_and_b32 v6, 15, v1")
    a("v_lshl_add_u32 v6, v3, 4, v6")
    a("v_lshlrev_b32 v6, 4, v6")
    a("v_add_u32 v6, 64512, v6")
    a("v_cmp_eq_u32 vcc, 16, v2")
    a("v_mov_b32 v7, 0x3f803f80")
    a("v_lshlrev_b32 v157, 3, v1")
    a("v_cndmask_b32 v7, 0, v7, vcc")
    a("s_lshl_b32 s60, s54, 11")
    a(f"s_add_u32 s60, s60, {L_Q}")
    a("v_add_u32 v5, s60, v4")
    a(f"s_mov_b32 s64, {hex((1<<PRIO1)|(1<<PRIO0))}")
    for B in KBUF:
        for i in range(8): a(f"v_mov_b32 v{B+4+i}, v7")
    for i in range(32): a(f"v_mov_b32 v{OA+i}, 0")
    for i in range(8): a(f"v_mov_b32 v{SB+8+i}, 0")
    a("s_mul_i32 s60, s48, 2304")
    a(f"s_add_u32 s60, s60, {L_OX}")
    a("s_xor_b32 s61, s48, 4")
    a("s_mul_i32 s61, s61, 2304")
    a(f"s_add_u32 s61, s61, {L_OX}")
    a("v_add_u32 v16, s60, v4")
    a("v_add_u32 v17, s61, v4")
    a("v_lshl_add_u32 v18, v1, 2, s60")
    a("v_lshl_add_u32 v19, v1, 2, s61")
    a("s_lshl_b32 s60, s54, 2")
    a(f"v_add_u32 v20, s60, v{VSY}")
    a(f"v_mov_b32 v21, {hex(f2u(2.0**-80))}")
    a(f"v_mov_b32 v22, {hex(f2u(2.0**80))}")
    a(f"v_mov_b32 v23, 0x7f7fffff")
    a("s_lshl_b32 s74, s50, 11")
    a(f"s_add_u32 s74, s74, {W2_FO}")
    a("v_lshlrev_b32 v154, %d, s49" % (2 if "pk1" in X else 7))
    if "pw" in X:
        a("s_lshl_b32 s60, s48, 2")
        a("v_add_u32 v154, s60, v154")
    a("s_mov_b32 s65, 0")
    a("s_cmp_eq_u32 s55, 0")
    a("s_cbranch_scc1 KA_AT1")
    wait(S_NONCE, 1, out=52, nap=(2 if "nap3" in X else 0))
    a("KA_AT1:")
    a("v_mov_b32 v153, s52")
    wait(S_QRDY, 4, nap=(4 if "nap2" in X else 2 if "naps" in X else 0))
    a(f"ds_read_b128 {vr(QA,4)}, v5")
    a(f"ds_read_b128 {vr(QB,4)}, v5 offset:1024")
    if "lst" not in X: a.stamp(4)
    a("s_cmp_eq_u32 s55, 0" if "pol4" in X else "s_cmp_lg_u32 s48, 4")
    a("s_cbranch_scc1 KA_AT2")
    mktag(512)
    a("v_lshlrev_b32 v156, 7, v1")
    a("s_lshl_b32 s60, s50, 2")
    a("v_add_u32 v156, s60, v156")
    wait(S_DONE, 4, nap=(1 if "nap3" in X else 0))
    collect(True, None, 15)
    sig(S_GO)
    if "pol4" in X:
        a("s_cmp_lg_u32 s48, 7")
        a("s_cbranch_scc1 KA_AT3")
        sig(S_CD)
    a("s_branch KA_AT3")
    a("KA_AT2:")
    a("s_waitcnt vmcnt(0)")
    a("s_cmp_lg_u32 s48, 7")
    a("s_cbranch_scc1 KA_NOGF")
    sig(S_CD)
    a("KA_NOGF:")
    wait(S_GO, 1, nap=(2 if "nap2" in X else 1 if "naps" in X else 0))
    a("KA_AT3:")
    def kload(B, off): a(f"global_load_dwordx4 {vr(B,4)}, v4, s[58:59] offset:{off}{NK}")
    def vload(B, off):
        a("s_mov_b64 exec, s[62:63]")
        a(f"global_load_dwordx4 {vr(B+4,4)}, v6, s[58:59] offset:{off}{NK}")
        a(f"global_load_dwordx4 {vr(B+8,4)}, v6, s[58:59] offset:{off+512}{NK}")
        a("s_mov_b64 exec, -1")
    if "dly2" in X: a("s_sleep 16")
    if "it7" in X: a("s_mov_b32 s65, 1")
    kload(KBUF[0], -4096)
    for t in range(3):
        vload(KBUF[t], 1024 * t - 3072); kload(KBUF[t+1], 1024 * t - 3072)
    if "run" in X:
        a("s_cmp_lg_u32 s48, 1")
        a("s_cbranch_scc1 KA_NRUN")
        sig(S_RUN)
        a("KA_NRUN:")
    a("s_setprio 2")
    if "lst" not in X: a.stamp(7)
    a("s_waitcnt vmcnt(9) lgkmcnt(0)")
    a.stamp(7 if "lst" in X else 5)
    a(f"{MF} {vr(SA,16)}, {vr(KBUF[0],4)}, {vr(QA,4)}, 0")
    a("s_nop 11")
    a(".p2align 6")
    if "ph4" in X: a("s_nop 0")
    a("KA_LOOP:")
    if "ast" in X:
        for k, b in enumerate((1, 2, 3, 5)):
            a(f"s_cmp_lg_u32 s65, {b}\ns_cbranch_scc1 KA_Q{k}")
            a.stamp(1 + k)
            a(f"KA_Q{k}:")
    for u in range(4):
        B, Bn, Bp = KBUF[u], KBUF[(u+1) % 4], KBUF[(u+3) % 4]
        if u == (3 if "h3" in X else 2):
            a("s_bitcmp1_b32 s64, s65")
            a("s_cbranch_scc1 KA_SPECIAL")
            a("KA_BODY:")
        for unit in range(2):
            Sc, Sn, Oc, Op, Qn = (SA, SB, OA, OB, QB) if unit == 0 else (SB, SA, OB, OA, QA)
            for i in range(16):
                if i == 2:
                    a(f"{SM32} {vr(Op,16)}, {vr((Bp if unit == 0 else B)+8,4)}, {vr(Sn+8,8)}, v{IXV}")
                    if unit == 0: vload(Bp, 1024 * u)
                if i == 5:
                    a(f"{MF} {vr(Sn,16)}, {vr(B if unit == 0 else Bn,4)}, {vr(Qn,4)}, 0")
                    if unit == 0: kload(B, 1024 * u)
                if i == 11:
                    if unit == 0: a("s_waitcnt vmcnt(9)")
                    a(f"{SM32} {vr(Oc,16)}, {vr(B+4,4)}, {vr(Sc,8)}, v{IXV}")
                if i == 13 and u == 3 and unit == 1:
                    a("s_add_u32 s58, s58, 4096")
                    a("s_addc_u32 s59, s59, 0")
                    a("s_add_u32 s65, s65, 1")
                    a("s_cmp_lt_u32 s65, 8")
                a(f"v_exp_f32{'_e64' if 'e64' in X and i in (4, 15) else ''} v{Sc+i}, v{Sc+i}")
    a("s_cbranch_scc1 KA_LOOP")
    a("s_nop 0")
    a(f"{SM32} {vr(OB,16)}, {vr(KBUF[3]+8,4)}, {vr(SB+8,8)}, v{IXV}")
    if "lst" not in X: a.stamp(6)
    a("s_cmp_eq_u32 s55, 0")
    a("s_cbranch_scc1 KA_XA")
    for keep, send, lab in ((OB, OA, None), (OA, OB, "KA_XA")):
        if lab:
            a(f"{lab}:")
            a("s_nop 9")
        a(f"ds_write_b128 v16, {vr(send,4)}")
        a(f"ds_write_b128 v16, {vr(send+4,4)} offset:1024")
        a(f"ds_write_b32 v18, v{send+8} offset:2048")
        a("s_mov_b64 exec, 1")
        a(f"ds_add_u32 v20, v{VONE} offset:{S_OX}")
        a(f"ds_add_u32 v{VSY}, v{VONE} offset:{S_FIN}")
        a("s_mov_b64 exec, -1")
        if "dp" in X: wait(S_PC, 4)
        wait(S_OX, 2, 20, nap=(1 if "oxn" in X else 0))
        a(f"ds_read_b32 v{send+8}, v19 offset:2048")
        a(f"ds_read_b128 {vr(send,4)}, v17")
        a(f"ds_read_b128 {vr(send+4,4)}, v17 offset:1024")
        if not lab: a("s_branch KA_XJ")
    a("KA_XJ:")
    a("s_waitcnt lgkmcnt(2)")
    a(f"v_add_f32 v{SA}, v{OA+8}, v{OB+8}")
    a("s_waitcnt lgkmcnt(0)")
    a(f"v_rcp_f32 v{SA+1}, v{SA}")
    for i in range(8):
        a(f"v_add_f32 v{OA+i}, v{OA+i}, v{OB+i}")
    a.c("safety check of the zero stand-in for the row max: l inside [2^-80, 2^80] and O finite")
    a(f"v_cmp_nge_f32 vcc, v{SA}, v21")
    a(f"v_cmp_nle_f32 s[68:69], v{SA}, v22")
    for i in range(8):
        a(f"v_mul_f32 v{OA+i}, v{OA+i}, v{SA+1}")
    a(f"v_add_f32 v{SA+2}, |v{OA}|, |v{OA+1}|")
    a(f"v_add_f32 v{SA+3}, |v{OA+2}|, |v{OA+3}|")
    a(f"v_add_f32 v{SA+4}, |v{OA+4}|, |v{OA+5}|")
    a(f"v_add_f32 v{SA+5}, |v{OA+6}|, |v{OA+7}|")
    a(f"v_add_f32 v{SA+2}, v{SA+2}, v{SA+3}")
    a(f"v_add_f32 v{SA+4}, v{SA+4}, v{SA+5}")
    a(f"v_add_f32 v{SA+2}, v{SA+2}, v{SA+4}")
    a("s_or_b64 vcc, vcc, s[68:69]")
    a(f"v_cmp_nle_f32 s[68:69], v{SA+2}, v23")
    for i in range(4):
        a(f"v_cvt_pk_bf16_f32 v{P+i}, v{OA+2*i}, v{OA+2*i+1}")
    a("s_or_b64 vcc, vcc, s[68:69]")
    a("s_cbranch_scc1 KA_SLOW")
    a("KA_FIN:")
    if "dly3" in X: a("s_sleep 16")
    a(f"buffer_store_dwordx4 {vr(P,4)}, v4, s[44:47], s56 offen sc1")
    a("s_waitcnt vmcnt(0)")
    a("s_mov_b64 exec, 1")
    if "pw" in X: a("buffer_atomic_swap v153, v154, s[44:47], s74 offen sc1")
    a(f"ds_add_rtn_u32 v{VTMP}, v{VSY}, v{VONE} offset:{S_OD}")
    a("s_waitcnt lgkmcnt(0)")
    a(f"v_readfirstlane_b32 s76, v{VTMP}")
    a("s_cmp_lg_u32 s76, %d" % (99 if "pw" in X else 7))
    a("s_cbranch_scc1 KA_NLAST")
    a("buffer_atomic_swap v153, v154, s[44:47], s74 offen sc1" if "fat" in X else "buffer_store_dword v153, v154, s[44:47], s74 offen sc1")
    a("KA_NLAST:")
    if "fet" in X:
        a("s_mov_b64 exec, -1")
        a("s_lshl_b32 s72, s49, 2")
        a("s_and_b32 s73, s50, 3")
        a("s_add_u32 s72, s72, s73")
        a("s_lshl_b32 s73, s72, 16")
        a("s_lshl_b32 s60, s48, 13")
        a("s_add_u32 s73, s73, s60")
        a(f"s_add_u32 s73, s73, {W2_O}")
        a("s_add_u32 s61, s73, 4096")
        a(f"s_add_u32 s60, s60, {L_O}")
        a("s_lshl_b32 s72, s72, 11")
        a(f"s_add_u32 s72, s72, {W2_FO}")
        a("v_lshlrev_b32 v16, 7, s48")
        a("v_mov_b32 v154, 0x7ffffff0")
        a("s_lshl_b32 s59, s48, 2")
        wait4(S_WA)
        wait(S_OD, 8)
        a(f"s_mov_b32 s69, {SLOW_TRIES}")
        a("s_mov_b64 exec, 1")
        a("buffer_load_dword v17, v16, s[44:47], s72 offen sc1")
        a("KA_WP:")
        for cur, nxt in ((17, 18), (18, 17)):
            a(f"s_sleep {PSL}")
            a(f"buffer_load_dword v{nxt}, v16, s[44:47], s72 offen sc1")
            a("s_waitcnt vmcnt(1)")
            a(f"v_cmp_eq_u32 vcc, s52, v{cur}")
            a("s_cbranch_vccnz KA_WPD")
        a("s_sub_u32 s69, s69, 1")
        a("s_cbranch_scc0 KA_WP")
        a("KA_WPD:")
        a("s_mov_b32 m0, s60")
        a("s_mov_b64 exec, -1")
        for q in range(4): a(f"buffer_load_dwordx4 v4, s[44:47], s73 offen offset:{1024*q} sc1 lds")
        a("s_add_u32 m0, s60, 4096")
        a("s_nop 0")
        for q in range(4): a(f"buffer_load_dwordx4 v4, s[44:47], s61 offen offset:{1024*q} sc1 lds")
        dsig(f"s_add_u32 m0, s59, {L_SY+S_OA}")
        a("s_waitcnt vmcnt(0)")
    else:
        a("s_cmp_lg_u32 s76, 0")
        a("s_cbranch_scc1 KA_NFIRST")
        def pl(r):
            if "pat" in X:
                a(f"v_mov_b32 v{r}, 0")
                a(f"buffer_atomic_or v{r}, v16, s[44:47], s72 offen sc0 sc1")
            else:
                a(f"buffer_load_dword v{r}, v16, s[44:47], s72 offen " + ("sc0 sc1" if "psys" in X else "sc1 nt" if "pnt" in X else "sc0 sc1 nt" if "pall" in X else "sc1"))
        a("s_mov_b64 exec, %s" % ("-1" if "pw" in X else "0xff"))
        a("s_lshl_b32 s72, s49, 2")
        a("s_and_b32 s73, s50, 3")
        a("s_add_u32 s72, s72, s73")
        a("s_lshl_b32 s72, s72, 11")
        a(f"s_add_u32 s72, s72, {W2_FO}")
        if "pw" in X:
            a("v_and_b32 v16, 7, v1")
            a("v_lshlrev_b32 v16, 7, v16")
            a("v_lshrrev_b32 v17, 3, v1")
            a("v_lshl_add_u32 v16, v17, 2, v16")
        else:
            a("v_lshlrev_b32 v16, %d, v1" % (2 if "pk1" in X else 7))
        if "dp" in X:
            a("s_mov_b64 exec, -1")
            a(f"s_sub_u32 s73, s72, {W2_FO}")
            a("s_lshl_b32 s73, s73, 5")
            a(f"s_add_u32 s73, s73, {W2_O+1020}")
            a("v_and_b32 v20, 7, v1")
            a("v_lshlrev_b32 v20, 13, v20")
            a("v_lshrrev_b32 v17, 3, v1")
            a("v_lshl_add_u32 v20, v17, 10, v20")
            wait4(S_WA)
            a(f"s_mov_b32 s69, {0 if 'dt0' in X else 60}")
            def pd(r):
                a(f"v_mov_b32 v{r}, 0")
                a(f"buffer_atomic_or v{r}, v20, s[44:47], s73 offen sc0 sc1")
            pd(24)
            a("KA_DP:")
            for cur, nxt in ((24, 25), (25, 24)):
                if PSL: a(f"s_sleep {PSL}")
                pd(nxt)
                a("s_waitcnt vmcnt(1)")
                a(f"v_cmp_ne_u32 vcc, -1, v{cur}")
                a("s_and_b32 s60, vcc_lo, vcc_hi")
                a("s_lshr_b32 s61, s60, 16")
                a("s_and_b32 s60, s60, s61")
                a("s_lshr_b32 s61, s60, 8")
                a("s_and_b32 s60, s60, s61")
                a("v_mov_b32 v19, s60")
                a(f"ds_write_b32 v{VSY}, v19 offset:{S_PO}")
                a("s_cmp_eq_u32 s60, 0xff")
                a("s_cbranch_scc1 KA_DPD")
            a("s_sub_u32 s69, s69, 1")
            a("s_cbranch_scc0 KA_DP")
            a("KA_DPD:")
            a("s_waitcnt vmcnt(0)")
            a("s_mov_b64 exec, 0xff")
        a(f"s_mov_b32 s69, {SLOW_TRIES}")
        for k in range(PDP - 1):
            pl(24 + k)
            if PSL and k < PDP - 2: a(f"s_sleep {PSL}")
        a("KA_WP:")
        for cur, nxt in [(24 + k, 24 + (k + PDP - 1) % PDP) for k in range(PDP)]:
            if PSL: a(f"s_sleep {PSL}")
            pl(nxt)
            a(f"s_waitcnt vmcnt({PDP-1})")
            a(f"v_cmp_eq_u32 vcc, s52, v{cur}")
            if "pw" in X:
                a("s_and_b32 s60, vcc_lo, vcc_hi")
                a("s_lshr_b32 s61, s60, 16")
                a("s_and_b32 s60, s60, s61")
                a("s_lshr_b32 s61, s60, 8")
                a("s_and_b32 s60, s60, s61")
                a("v_mov_b32 v19, s60")
                a(f"ds_write_b32 v{VSY}, v19 offset:{S_PO}")
                a("s_cmp_eq_u32 s60, 0xff")
            else:
                a("s_nop 1")
                a("v_mov_b32 v19, vcc_lo")
                if "dp" in X: a("v_mul_u32_u24 v19, 0x101, v19")
                a(f"ds_or_b32 v{VSY}, v19 offset:{S_PO}")
                a("s_cmp_eq_u32 vcc_lo, 0xff")
            a("s_cbranch_scc1 KA_NFIRST")
        a("s_sub_u32 s69, s69, 1")
        a("s_cbranch_scc0 KA_WP")
        a("KA_NFIRST:")
    a.end(0)
    a("KA_SPECIAL:")
    if "lkw" in X: sig(S_WB)
    a("s_setprio 1")
    a(f"s_cmp_eq_u32 s65, {PRIO1}")
    a("s_cbranch_scc1 KA_BODY")
    a("s_setprio 0")
    a("s_branch KA_BODY")
    a.c("fallback: true row max over all keys, then recompute this query tile")
    a("KA_SLOW:")
    B = KBUF[0]
    a("s_cmp_eq_u32 s55, 0")
    a("s_cbranch_scc1 KA_SLQ")
    for i in range(4): a(f"v_mov_b32 v{QA+i}, v{QB+i}")
    a("KA_SLQ:")
    a("s_waitcnt vmcnt(0)")
    a(f"v_mov_b32 v{SB}, 0xff800000")
    a("s_add_u32 s58, s34, s57")
    a("s_addc_u32 s59, s35, 0")
    a("s_mov_b32 s65, 0")
    a("KA_MAXL:")
    kload(B, 0)
    a("s_add_u32 s58, s58, 1024")
    a("s_addc_u32 s59, s59, 0")
    a("s_add_u32 s65, s65, 1")
    a("s_waitcnt vmcnt(0)")
    a(f"{MF} {vr(SA,16)}, {vr(B,4)}, {vr(QA,4)}, 0")
    a("s_nop 15")
    for i in range(8):
        a(f"v_max3_f32 v{SB}, v{SA+2*i}, v{SA+2*i+1}, v{SB}")
    a("s_cmp_lt_u32 s65, 64")
    a("s_cbranch_scc1 KA_MAXL")
    a(f"v_mov_b32 v{SB+1}, v{SB}")
    a("s_nop 1")
    a(f"v_permlane32_swap_b32 v{SB}, v{SB+1}")
    a(f"v_max_f32 v{SB}, v{SB}, v{SB+1}")
    for i in range(16):
        a(f"v_mov_b32 v{OA+i}, 0")
    a("s_add_u32 s58, s34, s57")
    a("s_addc_u32 s59, s35, 0")
    a("s_mov_b32 s65, 0")
    a("KA_SLOWL:")
    kload(B, 0); vload(B, 1024)
    a("s_add_u32 s58, s58, 1024")
    a("s_addc_u32 s59, s59, 0")
    a("s_add_u32 s65, s65, 1")
    a("s_waitcnt vmcnt(0)")
    a(f"{MF} {vr(SA,16)}, {vr(B,4)}, {vr(QA,4)}, 0")
    a("s_nop 15")
    for i in range(16):
        a(f"v_sub_f32 v{SA+i}, v{SA+i}, v{SB}")
    for i in range(16):
        a(f"v_exp_f32 v{SA+i}, v{SA+i}")
    a("s_nop 1")
    a(f"{SM32} {vr(OA,16)}, {vr(B+4,4)}, {vr(SA,8)}, v{IXV}")
    a(f"{SM32} {vr(OA,16)}, {vr(B+8,4)}, {vr(SA+8,8)}, v{IXV}")
    a("s_nop 7")
    a("s_cmp_lt_u32 s65, 64")
    a("s_cbranch_scc1 KA_SLOWL")
    a("s_nop 15")
    a(f"v_rcp_f32 v{SA}, v{OA+8}")
    a("s_nop 0")
    for i in range(8):
        a(f"v_mul_f32 v{OA+i}, v{OA+i}, v{SA}")
    for i in range(4):
        a(f"v_cvt_pk_bf16_f32 v{P+i}, v{OA+2*i}, v{OA+2*i+1}")
    a("s_branch KA_FIN")

    a("KA_LZ:")
    a("v_mov_b32 v8, 0")
    a("v_lshlrev_b32 v5, 2, v1")
    a(f"v_add_u32 v5, {L_KP+4100}, v5")
    for c in range(4):
        if c % 2 == 0: a("s_mov_b64 exec, %s" % ("0x7fff" if c == 0 else "0x7ffe"))
        for ch in range(2): a(f"ds_write_b32 v5, v8 offset:{c*KPC+ch*KPROW}")
    a("s_mov_b64 exec, 1")
    a(f"ds_add_u32 v{VSY}, v{VONE} offset:{S_KN}")
    a(f"ds_add_u32 v{VSY}, v{VONE} offset:{S_KN+4}")
    a("s_mov_b64 exec, -1")
    a("KA_LP:")
    a("s_setprio 0")
    a("s_mul_i32 s58, s54, 3072")
    a(f"s_add_u32 s58, s58, {L_UD-3072}")
    a("v_add_u32 v5, s58, v4")
    wait4(S_UA, nap=2)
    for k in range(4): a(f"ds_read_b128 {vr(32+4*k,4)}, v5 offset:{1024*k}")
    for k in range(4):
        a(f"s_waitcnt lgkmcnt(3)")
        for g in range(2):
            x, y, t = 32 + 4 * k + 2 * g, 33 + 4 * k + 2 * g, 56 + 4 * g
            a(f"v_lshlrev_b32 v{t}, 16, v{x}")
            a(f"v_and_b32 v{t+1}, 0xffff0000, v{x}")
            a(f"v_lshlrev_b32 v{t+2}, 16, v{y}")
            a(f"v_and_b32 v{t+3}, 0xffff0000, v{y}")
            a(f"v_add_f32 v{t+1}, v{t}, v{t+1}")
            a(f"v_add_f32 v{t+2}, v{t+1}, v{t+2}")
            a(f"v_add_f32 v{t+3}, v{t+2}, v{t+3}")
            a(f"v_cvt_pk_bf16_f32 v{x}, v{t}, v{t+1}")
            a(f"v_cvt_pk_bf16_f32 v{y}, v{t+2}, v{t+3}")
        a(f"ds_write_b128 v5, {vr(32+4*k,4)} offset:{L_PD-L_UD+1024*k}")
    sig(S_KF)
    a("s_branch KA_ATT")
    a("KA_LG:")
    def grd(c):
        a(f"ds_read_b128 {vr(64+4*c,4)}, v12 offset:{8192*c}")
        a(f"ds_read_b128 {vr(96+4*c,4)}, v{40+c}")
    grd(0); grd(1); grd(2)
    need(13)
    a("s_barrier")
    grd(3); grd(4); grd(5); grd(6)
    need(14)
    a("s_barrier")
    a("s_waitcnt lgkmcnt(6)")
    grd(7)
    need(15, " lgkmcnt(0)")
    a("s_barrier")
    a.stamp(2)
    a("v_mov_b32 v9, 0")
    a("s_lshl_b32 s58, s50, 9")
    a(f"s_add_u32 s58, s58, {W2_G}")
    a("v_lshlrev_b32 v5, 3, v10")
    for i in range(32): a(f"v_dot2_f32_bf16 v9, v{64+i}, v{96+i}, v9")
    a("s_nop 3")
    a("v_add_f32_dpp v9, v9, v9 quad_perm:[1,0,3,2] row_mask:0xf bank_mask:0xf")
    a("s_nop 1")
    a("v_add_f32_dpp v9, v9, v9 quad_perm:[2,3,0,1] row_mask:0xf bank_mask:0xf")
    a("s_nop 1")
    a("v_add_f32_dpp v9, v9, v9 row_half_mirror row_mask:0xf bank_mask:0xf")
    a("v_cvt_pk_bf16_f32 v9, v9, v9")
    a("v_and_b32 v9, 0xffff0000, v9")
    a(f"v_mul_f32 v9, {hex(f2u(-LOG2E))}, v9")
    a("v_exp_f32 v9, v9")
    a("s_nop 0")
    a("v_add_f32 v9, 1.0, v9")
    a("v_rcp_f32 v9, v9")
    a("s_nop 0")
    a("v_cvt_pk_bf16_f32 v10, v9, v9")
    a("v_and_b32 v10, 0xffff0000, v10")
    a("v_sub_f32 v11, 1.0, v10")
    a("v_cvt_pk_bf16_f32 v11, v11, v11")
    a("v_and_b32 v11, 0xffff0000, v11")
    a("s_mov_b32 exec_lo, 0x01010101")
    a("s_mov_b32 exec_hi, 0x01010101")
    a("buffer_store_dwordx2 v[10:11], v5, s[44:47], s58 offen sc1")
    a("s_mov_b64 exec, -1")
    a("s_branch KA_ATT")

    a("KA_CONS0:")
    if "cnear" not in X: cpf()
    a("KA_CONS:")
    common()
    if not NF:
        a(f"v_lshl_add_u32 v5, v1, 2, v{VSY}")
        a("v_cmp_gt_u32 vcc, 24, v1")
        a("v_mov_b32 v6, 0")
        a("v_addc_co_u32 v6, vcc, 0, v6, vcc")
        a("ds_write_b32 v5, v6")
    a("s_setprio 3")
    ACC, FB = 112, 32
    XA, WAD, FLA = 16, 20, 21
    a("s_and_b32 s54, s48, 1")
    a("s_lshr_b32 s55, s48, 1")
    a("v_and_b32 v5, 31, v1")
    a("s_lshl_b32 s56, s54, 12")
    a("v_lshl_add_u32 v6, v5, 7, s56")
    a("v_bfe_u32 v7, v5, 1, 3")
    a("v_xor_b32 v7, v7, v3")
    a(f"v_lshl_add_u32 v{XA}, v7, 4, v6")
    for ks in range(1, 4):
        a(f"v_xor_b32 v{XA+ks}, {ks<<5}, v{XA}")
    a("v_bfe_u32 v7, v1, 2, 2")
    a("v_lshl_add_u32 v6, v3, 3, v7")
    a("v_lshlrev_b32 v6, 7, v6")
    a("v_lshrrev_b32 v7, 1, v7")
    a("v_xor_b32 v7, s55, v7")
    a("v_lshl_add_u32 v6, v7, 6, v6")
    a("v_bfe_u32 v7, v1, 4, 1")
    a("v_lshl_add_u32 v6, v7, 5, v6")
    a("v_and_b32 v7, 3, v1")
    a("v_lshl_add_u32 v6, v7, 3, v6")
    a(f"v_add_u32 v{WAD}, {L_W}, v6")
    for i in range(48):
        a(f"v_mov_b32 v{ACC+i}, 0")
    a("s_lshl_b32 s58, s48, 10")
    a("v_add_u32 v5, s58, v4")
    a(f"v_add_u32 v6, {L_PZ}, v5")
    a(f"ds_write_b128 v6, {vr(ACC,4)}")
    a("v_cmp_gt_u32 vcc, 2448, v5")
    a(f"v_add_u32 v6, {L_U}, v5")
    a("s_and_saveexec_b64 s[60:61], vcc")
    a(f"ds_write_b128 v6, {vr(ACC,4)}")
    a("s_mov_b64 exec, 0x7fffff")
    a(f"v_add_u32 v6, {L_PZ+4096}, v4")
    a(f"ds_write_b128 v6, {vr(ACC,4)}")
    a("s_mov_b64 exec, -1")
    a("s_waitcnt lgkmcnt(0)")
    srd(a, 44, 34, 35, W2_END)
    WB = 22
    a("v_lshrrev_b32 v25, 1, v1")
    a("v_xor_b32 v25, v25, v1")
    a("v_and_b32 v25, 4, v25")
    a("v_mul_u32_u24 v25, 3, v25")
    a("v_xor_b32 v25, v25, v1")
    a("v_lshlrev_b32 v25, 4, v25")
    a(f"v_mov_b32 v{WB}, v{WAD}")
    def reads(step):
        F = FB + 16 * (step & 3)
        xo = (step >> 2) * 8192
        wo = (step & 1) * 2048
        r = [f"ds_read_b128 {vr(F,4)}, v{XA+(step&3)} offset:{xo}"]
        for ct in range(3):
            for hh in range(2):
                r.append(f"ds_read_b64_tr_b16 {vr(F+4+4*ct+2*hh,2)}, v{WAD} offset:{wo+ct*4096+hh*512}")
        return r
    def mfmas(step):
        F = FB + 16 * (step & 3)
        r = []
        for ct in range(3):
            x, w = vr(F, 4), vr(F + 4 + 4 * ct, 4)
            A, B = (w, x) if ct < 2 else (x, w)
            r.append(f"{MF} {vr(ACC+16*ct,16)}, {A}, {B}, {vr(ACC+16*ct,16)}")
        return r
    a("s_mov_b32 s58, 0")
    a("s_mov_b32 s57, 3")
    if NF: wait4(S_OA, nap=1)
    else: a("s_barrier")
    a.stamp(1)
    for t in reads(0) + reads(1): a(t)
    if "al" in X: a(".p2align 6")
    if "gph4" in X: a("s_nop 0")
    a("KA_GEMM:")
    for st in range(8):
        m, r = mfmas(st), reads(st + 2)
        if st % 2 == 0:
            a("s_add_u32 s58, s58, 12288")
            a(f"s_cmp_eq_u32 s58, {NSLOT*12288}")
            a("s_cselect_b32 s58, 0, s58")
            a(f"v_add_u32 v{WAD}, s58, v{WB}")
            if st == 6: a("s_cmp_eq_u32 s57, 0")
            elif st // 2 + 1 < NF: a("s_cmp_eq_u32 s57, 3")
        a("s_waitcnt lgkmcnt(7)")
        a(m[0])
        if st == 6: a("s_cbranch_scc1 KA_GEND")
        if st % 2 == 0:
            if st // 2 + 1 < NF: a(f"s_cbranch_scc1 KA_GW{st}")
            a("s_barrier")
            if st // 2 + 1 < NF: a(f"KA_GR{st}:")
        [a(t) for t in r[:3]]; a(m[1]); [a(t) for t in r[3:6]]; a(m[2]); a(r[6])
    for k in range(4):
        a(f"v_add_u32 v{XA+k}, 16384, v{XA+k}")
    a("s_sub_u32 s57, s57, 1")
    a("s_branch KA_GEMM")
    for st in (0, 2, 4):
        if st // 2 + 1 < NF:
            a(f"KA_GW{st}:")
            wait4(S_OA + 16 * (st // 2 + 1))
            a(f"s_branch KA_GR{st}")
    a("KA_GEND:")
    m = mfmas(6); a(m[1]); a(m[2])
    a("s_waitcnt lgkmcnt(0)")
    for t in mfmas(7): a(t)
    a.stamp(2)
    a("s_lshl_b32 s58, s50, 1")
    a("s_add_u32 s58, s58, s54")
    a("s_lshl_b32 s58, s58, 10")
    a(f"s_mul_i32 s59, s55, {2*G_HEAD}")
    a("s_add_u32 s58, s58, s59")
    a("s_add_u32 s58, s58, s51")
    a(f"s_add_u32 s59, s58, {G_HEAD}")
    a("s_add_u32 s62, s58, 65536")
    a(f"s_mov_b32 s63, {hex(QSCALE)}")
    a("v_bfe_u32 v5, v1, 4, 1")
    a(f"v_mul_u32_u24 v5, {G_HEAD}, v5")
    a("v_and_b32 v6, 15, v1")
    a("v_lshl_add_u32 v6, v3, 4, v6")
    a("v_lshl_add_u32 v6, v6, 4, v5")
    for i in range(8):
        a(f"v_cvt_pk_bf16_f32 v{16+i}, v{ACC+16+2*i}, v{ACC+16+2*i+1}")
    a("buffer_store_dwordx4 v[16:19], v25, s[44:47], s58 offen" + NT)
    a("buffer_store_dwordx4 v[20:23], v25, s[44:47], s59 offen" + NT)
    for i in range(8):
        a(f"v_cvt_pk_bf16_f32 v{96+i}, v{ACC+32+2*i}, v{ACC+32+2*i+1}")
    a("buffer_store_dwordx4 v[96:99], v6, s[44:47], s62 offen" + NT)
    a("buffer_store_dwordx4 v[100:103], v6, s[44:47], s62 offen offset:512" + NT)
    wait(S_NONCE, 1, out=52)
    for i in range(16):
        a(f"v_mul_f32 v{ACC+i}, s63, v{ACC+i}")
    a("s_lshl_b32 s60, s55, 12")
    a("s_lshl_b32 s61, s54, 10")
    a("s_add_u32 s60, s60, s61")
    a(f"s_add_u32 s60, s60, {L_Q}")
    a("v_add_u32 v5, s60, v4")
    for i in range(8):
        a(f"v_cvt_pk_bf16_f32 v{32+i}, v{ACC+2*i}, v{ACC+2*i+1}")
    a("ds_write_b128 v5, v[32:35]")
    a("ds_write_b128 v5, v[36:39] offset:2048")
    sig(S_QRDY)
    mktag(512)
    a("s_lshl_b32 s60, s48, 7")
    a("s_lshl_b32 s61, s50, 2")
    a("s_add_u32 s60, s60, s61")
    a("v_mov_b32 v156, s60")
    a("s_waitcnt vmcnt(0)")
    publish()
    sig(S_DONE)
    if "tq2" in X:
        a("s_and_b32 s60, s50, 15")
        a("s_cmp_ge_u32 s60, 2")
        a("s_cbranch_scc1 KA_NTQ")
        a("v_bfe_u32 v5, v1, 4, 2")
        a("v_lshlrev_b32 v5, 16, v5")
        a("v_and_b32 v7, 15, v1")
        a("v_lshl_add_u32 v5, v7, 6, v5")
        a("buffer_load_dword v163, v5, s[44:47], s58 offen sc1")
        a("KA_NTQ:")
    a.stamp(3)
    a("s_branch KA_ATT")

    a("KA_AUX0:")
    common()
    import ka_aux
    ka_aux.gen_aux(a, sig, wait, wait4, lbl, X, gettag, mktag, publish, collect, dsig, NF)
    a("KA_END:")
    a("s_endpgm")
    return a.text(), 168
```

```python
from common import *
from ka import *

def gen_aux(a, sig, wait, wait4, lbl, X, gettag, mktag, publish, collect, dsig, NF):
    import ka
    cmul = ka.cmul if "nopk" in X else ka.cmul_pk
    PSL = 1 if "ps1" in X else 8 if "ps8" in X else 3
    FINN = 4 if "f4" in X else 1 if "f1" in X else 8
    DATA_TRIES = 0 if "dt0" in X else 200
    st = (lambda i: None) if "p3st" in X else a.stamp
    a("KA_AUX:")
    a("s_and_b32 s61, s54, 1")
    a("s_lshr_b32 s62, s54, 1")
    a("s_mov_b32 s52, 0")
    srd(a, 44, 34, 35, W2_END)
    a("s_lshl_b32 s63, s2, 2")
    a("s_add_u32 s63, s63, s54")
    a("s_cmp_lg_u32 s63, 3")
    a("s_cbranch_scc1 KA_NOPUB")
    a("s_memrealtime s[64:65]")
    a("s_waitcnt lgkmcnt(0)")
    a("s_or_b32 s64, s64, 1")
    a("v_mov_b32 v158, 0")
    a("v_mov_b32 v159, s64")
    a("s_mov_b64 exec, 1")
    a("global_store_dword v158, v159, s[32:33] sc1")
    a("s_mov_b64 exec, -1")
    a("KA_NOPUB:")
    a("v_and_b32 v7, 31, v1")
    Z = 160
    a("v_and_b32 v36, 1, v1")
    a("v_lshlrev_b32 v36, 4, v36")
    a("v_mov_b32 v37, 0x3f80")
    a("v_lshlrev_b32 v36, v36, v37")
    a("v_bfe_u32 v37, v1, 1, 2")
    for d in range(4):
        a(f"v_cmp_eq_u32 s[{64+2*d}:{65+2*d}], {d}, v37")
    a("s_nop 0")
    for d in range(4):
        a(f"v_cndmask_b32 v{Z+d}, 0, v36, s[{64+2*d}:{65+2*d}]")
    a("s_lshl_b32 s63, s54, 11")
    a(f"s_add_u32 s63, s63, {L_XCH}")
    a("v_add_u32 v16, s63, v4")
    a(f"s_mul_i32 s63, s62, {KPROW}")
    a(f"s_add_u32 s63, s63, {L_KP}")
    a("v_lshl_add_u32 v19, v7, 4, s63")
    a("s_lshl_b32 s64, s62, 2")
    a(f"v_add_u32 v167, s64, v{VSY}")
    a("v_lshrrev_b32 v32, 2, v7")
    a("v_lshlrev_b32 v32, 3, v32")
    a("v_sub_u32 v33, 4128, v32")
    a("v_lshl_add_u32 v33, v3, 4, v33")
    a("v_and_b32 v32, 3, v7")
    a(f"v_mul_u32_u24 v32, {KPC}, v32")
    a("s_lshl_b32 s64, s61, 6")
    a("s_sub_u32 s64, s63, s64")
    a("s_sub_u32 s64, s64, 416")
    a("v_add3_u32 v38, v32, v33, s64")
    a("v_mul_u32_u24 v39, 144, v7")
    a("v_lshl_add_u32 v39, v3, 5, v39")
    a("s_lshl_b32 s64, s62, 4")
    a("s_mul_i32 s65, s61, 144")
    a("s_sub_u32 s64, s64, s65")
    a(f"s_add_u32 s64, s64, {L_UD-864}")
    a("v_add_u32 v39, s64, v39")
    a("s_lshl_b32 s64, s54, 6")
    for k, r in enumerate((2, 5, 6)):
        a("v_add_u32 v32, s64, v1")
        if k: a(f"v_add_u32 v32, {256*k}, v32")
        a("v_mul_u32_u24 v33, 7282, v32")
        a("v_lshrrev_b32 v33, 16, v33")
        a("v_mul_u32_u24 v34, 9, v33")
        a("v_sub_u32 v34, v32, v34")
        a("v_min_u32 v34, 7, v34")
        a("v_lshrrev_b32 v35, 1, v34")
        a("v_lshl_add_u32 v33, v33, 2, v35")
        a("v_and_b32 v34, 1, v34")
        a("v_lshlrev_b32 v34, 4, v34")
        a(f"v_lshl_add_u32 v{r}, v33, 10, v34")
    a("s_lshl_b32 s74, s50, 5")
    a("s_add_u32 s74, s74, s51")
    a(f"s_add_u32 s74, s74, {G_UT}")
    a("s_lshl_b32 s75, s54, 10")
    a(f"s_add_u32 s75, s75, {L_UD}")
    a("s_lshl_b32 s60, s54, 2")
    a(f"s_add_u32 s60, s60, {L_SY+S_UA}")
    a("s_lshl_b32 s58, s61, 12")
    a("s_sub_u32 s58, 2048, s58")
    a(f"s_mov_b32 s63, {hex(LOG2E_HI)}")
    a("s_waitcnt vmcnt(7)")
    a("v_mul_f32 v17, s63, v14")
    a("v_fma_f32 v18, v14, s63, -v17")
    a(f"v_fmac_f32 v18, {hex(LOG2E_LO)}, v14")
    a("v_exp_f32 v17, v17")
    a(f"v_mul_f32 v18, {hex(LN2)}, v18")
    a("v_fma_f32 v17, v17, v18, v17")
    a("v_cvt_pk_bf16_f32 v17, v17, v17")
    a("v_and_b32 v17, 0xffff0000, v17")
    a("s_waitcnt vmcnt(0)")
    st(1)
    for r in (8, 9, 10, 11):
        a(f"v_mul_f32 v{r}, v17, v{r}")
    a("v_mul_f32 v8, s63, v8")
    a("v_mul_f32 v9, 0.15915494, v9")
    W1, W8, W256, W2, W4, W16 = 20, 22, 24, 26, 28, 30
    tmp = 32
    for k, mult in enumerate((1.0, 8.0, 256.0)):
        t = tmp + 2 * k
        a(f"v_mul_f32 v{t}, {hex(f2u(mult))}, v8")
        a(f"v_mul_f32 v{t+1}, {hex(f2u(mult))}, v9")
    for k in range(3):
        t = tmp + 2 * k
        a(f"v_exp_f32 v{t}, v{t}")
        a(f"v_fract_f32 v{t+1}, v{t+1}")
    for k, wr in enumerate((W1, W8, W256)):
        t = tmp + 2 * k
        a(f"v_cos_f32 v{wr}, v{t+1}")
        a(f"v_sin_f32 v{wr+1}, v{t+1}")
    U = {}
    nxt = [40]
    def newU(av):
        U[av] = {524: 8, 780: 10}.get(av) or nxt[0]
        if U[av] == nxt[0]: nxt[0] += 2
        return U[av]
    for l in cmul(newU(0), 12, 10): a(l)
    for k, wr in enumerate((W1, W8, W256)):
        t = tmp + 2 * k
        a(f"v_mul_f32 v{wr}, v{t}, v{wr}")
        a(f"v_mul_f32 v{wr+1}, v{t}, v{wr+1}")
    for l in interleave([cmul(W2, W1, W1), cmul(W16, W8, W8)]): a(l)
    for l in cmul(W4, W2, W2): a(l)
    WA, WB, WR, WI, UR, UI = 96, 100, 112, 128, 144, 96
    wops = [f"v_cvt_pk_bf16_f32 v{WR+15}, v{W8}, 1.0", f"v_cvt_pk_bf16_f32 v{WI+15}, v{W8+1}, 0"]
    ca, cb = W16, None
    wops += cmul(WB, W8, W16); cb = WB
    for k in range(1, 16):
        pk = [f"v_cvt_pk_bf16_f32 v{WR+15-k}, v{cb}, v{ca}", f"v_cvt_pk_bf16_f32 v{WI+15-k}, v{cb+1}, v{ca+1}"]
        if k < 15:
            na, nb = WA + 2 * (k & 1), WB + 2 * (k & 1)
            wops += interleave([cmul(na, ca, W16), cmul(nb, cb, W16), pk])
            ca, cb = na, nb
        else:
            wops += pk
    u1 = []; prev = 0
    for av in (256, 512, 768, 1024, 1280, 1536, 1792):
        u1 += cmul(newU(av), U[prev], W256); prev = av
    for av in (1024, 1280, 1536, 1792):
        u1 += cmul(newU(av + 8), U[av], W8)
    for av in (516, 520, 524):
        u1 += cmul(newU(av), U[av - 4], W4)
    u2 = []
    for av in range(1, 9):
        u2 += cmul(newU(av), U[av - 1], W1)
    for av in (258, 260, 262, 264):
        u2 += cmul(newU(av), U[av - 2], W2)
    for av in (772, 776, 780):
        u2 += cmul(newU(av), U[av - 4], W4)
    assert nxt[0] <= 96
    for l in interleave([wops, interleave([u1, u2])]): a(l)
    rows = [0,1,2,3,4,5,6,7, 256,258,260,4,260,262,264,8, 512,516,520,524,768,772,776,780,
            1024,1032,1280,1288,1536,1544,1792,1800]
    for p in range(16):
        x, y = U[rows[2*p]], U[rows[2*p+1]]
        a(f"v_cvt_pk_bf16_f32 v{UR+p}, v{x}, v{y}")
        a(f"v_cvt_pk_bf16_f32 v{UI+p}, -v{x+1}, -v{y+1}")
    TD, ES, KD = 40, 88, 20
    nb = [NF]
    def bar(n=1):
        for _ in range(n):
            a("s_barrier"); nb[0] += 1
    for q in range(2):
        a(f"s_mov_b32 s64, {hex(0xff << (8*q))}")
        a(f"s_mov_b32 s65, {hex(0xff0000 << (8*q))}")
        for d in range(4):
            a(f"v_cndmask_b32 v{ES+4*q+d}, 0, v{Z+d}, s[64:65]")
    a("s_load_dword s52, s[32:33], 0")
    halves = [Xm + 8 * hf for Xm in (WR, UR, WI, UI) for hf in range(2)]
    def tm(i):
        T = TD + 16 * (i % 3)
        return [f"{MF} {vr(T,16)}, {vr(halves[i],4)}, {vr(ES,4)}, 0", f"{MF} {vr(T,16)}, {vr(halves[i]+4,4)}, {vr(ES+4,4)}, {vr(T,16)}"]
    def tc(i):
        T = TD + 16 * (i % 3)
        return [f"v_cvt_pk_bf16_f32 v{halves[i]+k}, v{T+2*k}, v{T+2*k+1}" for k in range(8)]
    def ts(Xm): return [f"v_permlane16_swap_b32 v{Xm+k}, v{Xm+8+k}" for k in range(8)]
    def fin(XU, XW, first): return [f"{MF} {vr(KD,16)}, {vr(XU+4*i,4)}, {vr(XW+4*i,4)}, " + ("0" if first and i == 0 else vr(KD,16)) for i in range(4)]
    def mixm(m, v):
        n = (len(v) + len(m) - 1) // len(m)
        for i, t in enumerate(m):
            a(t)
            for u in v[i*n:(i+1)*n]: a(u)
    a("s_nop 0")
    for t in tm(0) + tm(1) + tm(2): a(t)
    a("s_nop 7")
    for t in tc(0): a(t)
    mixm(tm(3), ["s_nop 0"] + tc(1))
    mixm(tm(4), tc(2) + ts(WR))
    mixm(tm(5), tc(3))
    mixm(tm(6), tc(4) + ts(UR))
    mixm(tm(7), tc(5))
    mixm(fin(UR, WR, True), tc(6) + ts(WI) + tc(7))
    a("s_nop 1")
    for t in ts(UI): a(t)
    a("s_nop 1")
    for t in fin(UI, WI, False): a(t)
    NPRE = 4
    a("v_lshlrev_b32 v157, 2, v7")
    a("v_lshlrev_b32 v156, 2, s50")
    a("v_mov_b32 v154, 0x7ffffff0")
    a("v_add_u32 v17, s58, v16")
    a("s_cmp_eq_u32 s61, s62")
    a("s_nop 6")
    a("s_cbranch_scc1 KA_X0")
    for i in range(8): a(f"v_swap_b32 v{KD+i}, v{KD+8+i}")
    a("KA_X0:")
    a(f"ds_write_b128 v16, {vr(KD+8,4)}")
    a(f"ds_write_b128 v16, {vr(KD+12,4)} offset:1024")
    if "xw" in X: a("s_waitcnt lgkmcnt(0)")
    if NPRE == 4: st(2)
    PRE3 = len(a.lines)
    bar(max(4 - nb[0], 1))
    gettag()
    mktag(0)
    a("s_cmp_lg_u32 s54, 0")
    a("s_cbranch_scc1 KA_NPB")
    publish()
    a("KA_NPB:")
    bar(5 - nb[0])
    D0, D1, FA, FB, FC = 112, 128, 48, 64, 80
    PW, PG, PA, PF, POF, PWF, POUT, PM, PS, PD = 144, 148, 149, 150, 151, 152, 153, 100, 108, 109
    w = ["v_lshrrev_b32 v8, 3, v1", "v_bfe_u32 v9, v1, 4, 1", "v_lshlrev_b32 v9, 2, v9", "v_and_b32 v10, 7, v1", "v_xor_b32 v9, v9, v10",
         "v_lshlrev_b32 v9, 4, v9", f"v_lshl_add_u32 v{PW}, v8, 10, v9"] + [f"v_add_u32 v{PW+q}, {7168*q}, v{PW}" for q in range(1, 4)]
    w += [f"v_lshlrev_b32 v{PF}, 7, v10", f"v_lshlrev_b32 v{PG}, 3, v7", f"v_lshlrev_b32 v{PD}, 12, v8", f"v_lshl_add_u32 v{PD}, v10, 4, v{PD}",
          "s_lshl_b32 s63, s62, 12", "s_lshl_b32 s64, s61, 4", "s_add_u32 s63, s63, s64", f"s_add_u32 s63, s63, {L_GA}",
          f"v_lshl_add_u32 v{PA}, v7, 7, s63", f"v_lshl_add_u32 v{PA}, v3, 5, v{PA}",
          f"v_lshlrev_b32 v{POUT}, 10, v7", f"v_lshl_add_u32 v{POUT}, v3, 4, v{POUT}",
          "s_lshl_b32 s63, s54, 11", f"s_add_u32 s63, s63, {L_GT}", f"v_add_u32 v{POF}, s63, v4",
          "v_lshrrev_b32 v8, 1, v7", f"v_lshl_add_u32 v{PS}, v8, 7, s63", f"v_lshl_add_u32 v{PS}, v3, 5, v{PS}", "v_and_b32 v8, 1, v7", f"v_lshl_add_u32 v{PS}, v8, 4, v{PS}",
          "v_bfe_u32 v8, v1, 2, 2", f"v_lshl_add_u32 v{PWF}, v3, 2, v8", f"v_lshlrev_b32 v{PWF}, 7, v{PWF}", "v_lshrrev_b32 v8, 1, v8", "v_xor_b32 v8, s62, v8",
          f"v_lshl_add_u32 v{PWF}, v8, 6, v{PWF}", "v_bfe_u32 v8, v1, 4, 1", f"v_lshl_add_u32 v{PWF}, v8, 5, v{PWF}", "v_and_b32 v8, 3, v1",
          f"v_lshl_add_u32 v{PWF}, v8, 3, v{PWF}", f"v_add_u32 v{PWF}, {L_WO}, v{PWF}"]
    w += ["v_lshrrev_b32 v8, 3, v7", "v_bfe_u32 v9, v7, 1, 1", "v_lshl_add_u32 v8, v8, 1, v9", "v_bfe_u32 v9, v7, 2, 1", "v_xor_b32 v9, v9, v3",
          "v_lshl_add_u32 v8, v9, 3, v8", "v_and_b32 v9, 1, v7", "v_lshlrev_b32 v9, 4, v9", "v_mov_b32 v10, 0xffff", "v_lshlrev_b32 v9, v9, v10"]
    w += [f"v_cmp_eq_u32 s[{4+2*k}:{5+2*k}], {k}, v8" for k in range(8)] + ["s_nop 0"]
    w += [f"v_cndmask_b32 v{PM+k}, 0, v9, s[{4+2*k}:{5+2*k}]" for k in range(8)]
    IX4, IX8, IXA, TA, PB_ = 96, 97, 98, 99, 110
    LUT4 = sum(j << (2 * r) for r, j in ((4, 1), (5, 2), (7, 1), (0, 2)))
    LUT4 |= LUT4 << 16
    LUT8 = sum(j << (2 * r) for r, j in ((6, 1), (7, 2), (13, 1), (14, 2)))
    w2 = [f"s_mov_b32 s20, {hex(LUT4)}", f"s_mov_b32 s21, {hex(LUT8)}", f"v_mov_b32 v{IX4}, 0xcccc", f"v_mov_b32 v{IX8}, 0xcccc"]
    for g in range(4):
        w2 += [f"v_add_u32 v8, {16-4*g}, v7", "v_and_b32 v8, 15, v8", "v_lshlrev_b32 v8, 1, v8",
               "v_bfe_u32 v9, s20, v8, 2", "v_bfe_u32 v10, s21, v8, 2",
               f"v_lshl_or_b32 v{IX4}, v9, {4*g}, v{IX4}", f"v_lshl_or_b32 v{IX8}, v10, {4*g}, v{IX8}"]
    w2 += ["v_lshlrev_b32 v8, 4, v3", "v_sub_u32 v8, v7, v8", "v_add_u32 v8, 3, v8", "v_max_i32 v8, 0, v8", "v_and_b32 v8, 0x3c, v8", "v_min_u32 v8, 16, v8",
           "s_lshl_b32 s22, s61, 4", "v_max_u32 v8, s22, v8", "v_lshlrev_b32 v8, v8, -1", f"v_bfi_b32 v{IXA}, v8, v{IX4}, v{IX8}"]
    w2 += ["v_and_b32 v8, 3, v7", f"v_mul_u32_u24 v9, {KPC}, v8", "v_lshrrev_b32 v8, 1, v8", "v_lshl_add_u32 v9, v8, 5, v9", "v_and_b32 v8, 28, v7",
           "v_sub_u32 v9, v9, v8", "v_lshl_add_u32 v9, v3, 4, v9", f"s_mul_i32 s22, s62, {KPROW}", "s_lshl_b32 s23, s61, 5", "s_sub_u32 s22, s22, s23",
           f"s_add_u32 s22, s22, {L_KP+2048-18*32}", f"v_add_u32 v{TA}, s22, v9", f"v_add_u32 v{PB_}, {L_PD-L_UD+864-18*144}, v39"]
    late = []
    if "lt2" in X: late += w2; w2 = []
    if "lt1" in X: late += w; w = []
    n = (len(w) + 3) // 4
    for k in range(3):
        bar()
        for t in w[k*n:(k+1)*n]: a(t)
    a("s_waitcnt lgkmcnt(0)")
    bar()
    a(f"ds_read_b128 {vr(KD+8,4)}, v17")
    a(f"ds_read_b128 {vr(KD+12,4)}, v17 offset:1024")
    for t in w[3*n:]: a(t)
    bar()
    a("buffer_load_dword v158, v157, s[44:47], s67 offen sc1")
    a("s_waitcnt lgkmcnt(0)")
    for i in range(8):
        a(f"v_add_f32 v{KD+i}, v{KD+i}, v{KD+8+i}")
    def uload():
        l = lbl("UL")
        a("s_mov_b32 m0, s75")
        a("s_cmp_lg_u32 s54, 0")
        a("buffer_load_dwordx4 v2, s[44:47], s74 offen" + (" nt" if "ntu" in X else "") + " lds")
        a(f"s_cbranch_scc1 {l}")
        a("s_add_u32 m0, s75, 8192")
        a("s_nop 0")
        a("buffer_load_dwordx4 v6, s[44:47], s74 offen" + (" nt" if "ntu" in X else "") + " lds")
        a(f"{l}:")
        a("s_add_u32 m0, s75, 4096")
        a("s_nop 0")
        a("buffer_load_dwordx4 v5, s[44:47], s74 offen" + (" nt" if "ntu" in X else "") + " lds")
        dsig("s_mov_b32 m0, s60")
    def tail(work, np_=4):
        l = lbl("UE")
        zero = [f"v_mov_b32 v{D0+i}, 0" for i in range(32)]
        if np_ == 4: work = work + zero
        n = (len(work) + 3) // 4
        parts = [work[i*n:(i+1)*n] for i in range(4)]
        a("s_barrier")
        for t in parts[0]: a(t)
        a("s_barrier")
        for t in parts[1]: a(t)
        a("s_barrier")
        a("s_waitcnt vmcnt(0)")
        a("v_cmp_ne_u32 vcc, s66, v158")
        a("s_mov_b32 s59, 1")
        a(f"s_cbranch_vccnz {l}")
        a("s_mov_b32 s59, 0")
        uload()
        a(f"{l}:")
        a("s_barrier")
        for t in parts[2]: a(t)
        a("s_barrier")
        for t in parts[3]: a(t)
        a("s_barrier")
        st(3)
        return zero
    n2 = (len(w2) + 2) // 3
    for k in (2, 1, 0):
        a.lines[PRE3+k+1:PRE3+k+1] = ["    " + t for t in w2[k*n2:(k+1)*n2]]
    assert nb[0] == 10 and NF == 0
    a("s_cmp_eq_u32 s61, s62")
    a("s_cbranch_scc0 KA_X1")
    tail(["v_cmp_eq_u32 s[72:73], 31, v1", "v_lshlrev_b32 v8, 3, v3", "v_xor_b32 v8, 8, v8",
          "v_cndmask_b32 v9, 0, v15, s[72:73]", "v_add_u32 v18, v19, v8", f"v_add_f32 v{KD}, v{KD}, v9",
          f"v_add_u32 v36, {KPC+4+3072}, v18", f"v_add_u32 v37, {2*KPC+4+3072}, v18",
          f"v_cvt_pk_bf16_f32 v40, v{KD+3}, v{KD+2}", f"v_cvt_pk_bf16_f32 v41, v{KD+1}, v{KD+0}",
          f"v_cvt_pk_bf16_f32 v42, v{KD+6}, v{KD+5}", f"v_cvt_pk_bf16_f32 v43, v{KD+4}, v{KD+4}",
          f"v_cvt_pk_bf16_f32 v44, v{KD+7}, v{KD+3}", f"v_cvt_pk_bf16_f32 v45, v{KD+2}, v{KD+1}",
          f"v_cvt_pk_bf16_f32 v46, v{KD+6}, v{KD+6}", f"v_cvt_pk_bf16_f32 v47, v{KD+5}, v{KD+4}",
          "v_lshrrev_b32 v9, 16, v41"])
    a("ds_write_b64 v18, v[44:45] offset:3584")
    a("ds_write_b64 v18, v[46:47] offset:3072")
    a("ds_write2_b32 v36, v40, v41 offset0:128 offset1:129")
    a("ds_write2_b32 v36, v42, v43 offset0:0 offset1:1")
    a("ds_write2_b32 v37, v44, v45 offset0:128 offset1:129")
    a("ds_write2_b32 v37, v46, v47 offset0:0 offset1:1")
    a(f"ds_write_b64 v18, v[40:41] offset:{3*KPC+8+3584}")
    a(f"ds_write_b64 v18, v[42:43] offset:{3*KPC+8+3072}")
    a("s_mov_b64 exec, s[72:73]")
    a("ds_write_b32 v18, v9 offset:3592")
    a("ds_write_b32 v37, v9 offset:520")
    a("s_branch KA_XD")
    a("KA_X1:")
    r8, r9, r10, r11, r12, r13, r14, r15 = [KD + i for i in range(8)]
    V4 = [r8]*3 + [r9]*3 + [r10]*5 + [r11]
    w = ["v_and_b32 v8, 1, v1", "v_cmp_eq_u32 s[72:73], 1, v8", "v_lshlrev_b32 v8, 3, v7", "v_sub_u32 v18, v19, v8", "v_lshlrev_b32 v8, 8, v3",
         f"v_cndmask_b32 v36, v{r13}, v{r12}, s[72:73]", f"v_cndmask_b32 v37, v{r15}, v{r14}, s[72:73]",
         "v_sub_u32 v18, v18, v8", "v_sub_u32 v17, v18, v8"]
    for ph in range(4):
        o = ph * KPC + (ph >> 1) * 32 + (4 if ph == 3 else 0)
        w += [f"v_add_u32 v{80+ph}, {o+1280}, v18", f"v_add_u32 v{84+ph}, {o+512}, v17"]
    w += [f"v_cvt_pk_bf16_f32 v8, v{r9}, v{r8}", f"v_cvt_pk_bf16_f32 v9, v{r8}, v{r8}", "v_mov_b32 v12, s52"]
    for c in range(4):
        w += [f"v_cvt_pk_bf16_f32 v{48+4*c+d}, v{V4[8+c-2*d]}, v{V4[7+c-2*d]}" for d in range(4)]
    w += [f"v_sub_f32 v10, v{r9}, v{r8}", f"v_sub_f32 v11, v{r10}, v{r9}",
          f"v_cvt_pk_bf16_f32 v64, v10, v{r8}", f"v_cvt_pk_bf16_f32 v65, v11, v{r9}", f"v_cvt_pk_bf16_f32 v66, 0, v{r10}"]
    for (k0, k8, xx, R) in ((r12, r13, 36, 68), (r14, r15, 37, 74)):
        w += [f"v_sub_f32 v10, v{xx}, v{k0}", f"v_sub_f32 v11, v{k8}, v{k0}", f"v_sub_f32 v13, v{k8}, v{xx}",
              f"v_cvt_pk_bf16_f32 v{R}, 0, v{k0}", f"v_cvt_pk_bf16_f32 v{R+1}, v10, v{k0}", f"v_cvt_pk_bf16_f32 v{R+2}, v11, v{k0}",
              f"v_cvt_pk_bf16_f32 v{R+3}, v13, v{xx}", f"v_cvt_pk_bf16_f32 v{R+4}, 0, v{k8}"]
    rest = tail(w, 5)
    a("s_mov_b32 exec_lo, 0x80000000\ns_mov_b32 exec_hi, 0")
    a(f"ds_write_b32 v{VSY}, v12 offset:{S_NONCE}")
    a(f"ds_write_b32 v19, v9 offset:{KPC+2560+16}")
    a(f"ds_write_b32 v19, v9 offset:{2*KPC+2560+16}")
    a(f"ds_write_b64 v19, v[8:9] offset:{3*KPC+2560+16}")
    a("s_mov_b32 exec_lo, 0xff000000")
    for c in range(4): a(f"ds_write_b128 v19, {vr(48+4*c,4)} offset:{c*KPC+2560}")
    a("s_mov_b64 exec, -1")
    for ph, (x, y) in enumerate(((65, 64), (66, 64), (66, 65), (65, 64))):
        a(f"ds_write2_b32 v{80+ph}, v{x}, v{y} offset0:0 offset1:1")
    for R, o in ((68, 64), (74, 0)):
        for ph, (x, y) in enumerate(((4, 1), (4, 2), (4, 2), (3, 0))):
            a(f"ds_write2_b32 v{84+ph}, v{R+x}, v{R+y} offset0:{o} offset1:{o+1}")
    for t in rest: a(t)
    a("s_mov_b64 exec, 1")
    a("KA_XD:")
    a(f"ds_add_u32 v167, v{VONE} offset:{S_KN}")
    a("s_mov_b64 exec, -1")
    for t in late: a(t)
    a("s_cmp_eq_u32 s59, 0")
    a("s_cbranch_scc1 KA_UOK")
    collect(False, "s_cmp_eq_u32 s54, 0")
    uload()
    a("KA_UOK:")
    st(4)
    wait4(S_UA)
    st(5)
    wait(S_KN, 3, 167)
    st(6)
    if "noaux" in X: a("s_branch KA_AUXEND")
    def rdA(slot, step):
        o = 416 - 128 * (step >> 1) - 32 * (step & 1)
        a(f"ds_read_b64 {vr(FA+4*slot,2)}, v38 offset:{o}")
        a(f"ds_read_b64 {vr(FA+4*slot+2,2)}, v38 offset:{o+8}")
    def rdB(R, slot, step, extra=0):
        a(f"ds_read_b128 {vr(R+4*slot,4)}, v39 offset:{864-288*(step>>1)+(0 if step&1 else 64)+extra}")
    for s in range(4):
        if s == 3: a("s_waitcnt lgkmcnt(8)")
        rdB(FB, s, s, 32 * 144); rdA(s, s); rdB(FC, s, s)
    a("s_mov_b32 s63, 4")
    a("KA_CV0:")
    for s in range(4):
        a("s_waitcnt lgkmcnt(11)")
        a(f"{MF} {vr(D1,16)}, {vr(FA+4*s,4)}, {vr(FB+4*s,4)}, {vr(D1,16)}")
        rdB(FB, s, s + 4, 32 * 144)
        a(f"{MF} {vr(D0,16)}, {vr(FA+4*s,4)}, {vr(FC+4*s,4)}, {vr(D0,16)}")
        rdA(s, s + 4); rdB(FC, s, s + 4)
    a("v_subrev_u32 v38, 256, v38")
    a(f"v_subrev_u32 v39, {288*2}, v39")
    a("s_sub_u32 s63, s63, 1")
    a("s_cmp_lg_u32 s63, 0")
    a("s_cbranch_scc1 KA_CV0")
    a("s_waitcnt lgkmcnt(8)")
    for s in range(2):
        a(f"{MF} {vr(D1,16)}, {vr(FA+4*s,4)}, {vr(FB+4*s,4)}, {vr(D1,16)}")
        a(f"{MF} {vr(D0,16)}, {vr(FA+4*s,4)}, {vr(FC+4*s,4)}, {vr(D0,16)}")
    if "cst" in X: a.stamp(1)
    SM = "v_smfmac_f32_32x32x32_bf16"
    TF, B1, B0 = 40, 56, 72
    def rdT():
        a(f"ds_read2_b32 {vr(TF,2)}, v{TA} offset0:0 offset1:1")
        a(f"ds_read2_b32 {vr(TF+2,2)}, v{TA} offset0:2 offset1:3")
    def rdP(R, off):
        a(f"ds_read_b128 {vr(R,4)}, v{PB_} offset:{off}")
        a(f"ds_read_b128 {vr(R+4,4)}, v{PB_} offset:{off+64}")
    wait(S_KF, 2, nap=1)
    a("s_mov_b32 s63, 7")
    a("KA_CV1:")
    rdT(); rdP(B1, 32 * 144)
    a("s_waitcnt lgkmcnt(0)")
    a(f"{SM} {vr(D1,16)}, {vr(TF,4)}, {vr(B1,8)}, v{IX4}")
    rdP(B0, 0)
    a(f"v_subrev_u32 v{TA}, 64, v{TA}")
    a(f"v_subrev_u32 v{PB_}, 288, v{PB_}")
    a("s_sub_u32 s63, s63, 1")
    a("s_cmp_lg_u32 s63, 0")
    a("s_waitcnt lgkmcnt(0)")
    a(f"{SM} {vr(D0,16)}, {vr(TF,4)}, {vr(B0,8)}, v{IX4}")
    a("s_cbranch_scc1 KA_CV1")
    a(f"v_subrev_u32 v{TA}, {64*15}, v{TA}")
    a(f"v_add_u32 v{PB_}, {32*144-288*15}, v{PB_}")
    for k in range(16):
        a(f"ds_read2_b32 {vr(TF,2)}, v{TA} offset0:{16*(15-k)} offset1:{16*(15-k)+1}")
        a(f"ds_read2_b32 {vr(TF+2,2)}, v{TA} offset0:{16*(15-k)+2} offset1:{16*(15-k)+3}")
        rdP(B1, 288 * (15 - k))
        a("s_waitcnt lgkmcnt(0)")
        a(f"{SM} {vr(D1,16)}, {vr(TF,4)}, {vr(B1,8)}, v{IXA if k == 0 else IX8}")
    a("KA_CVE:")
    st(7)
    a("s_lshl_b32 s63, s54, 12")
    a(f"s_add_u32 s63, s63, {L_CX}")
    a("v_add_u32 v13, s63, v4")
    a("v_xor_b32 v14, 4096, v13")
    wait(S_QRDY, 4)
    a("s_cmp_eq_u32 s61, 0")
    a("s_cbranch_scc0 KA_CVS")
    for i in range(4): a(f"ds_write_b128 v13, {vr(D1+4*i,4)} offset:{1024*i}")
    sig(S_CV, 167)
    wait(S_CV, 2, 167, nap=1)
    for i in range(4): a(f"ds_read_b128 {vr(D1+4*i,4)}, v14 offset:{1024*i}")
    a("s_branch KA_CVJ")
    a("KA_CVS:")
    for i in range(4): a(f"ds_write_b128 v13, {vr(D0+4*i,4)} offset:{1024*i}")
    sig(S_CV, 167)
    wait(S_CV, 2, 167, nap=1)
    for i in range(4): a(f"ds_read_b128 {vr(D0+4*i,4)}, v14 offset:{1024*i}")
    a("KA_CVJ:")
    a("s_lshl_b32 s56, s49, 2")
    a("s_and_b32 s57, s50, 3")
    a("s_add_u32 s56, s56, s57")
    a("s_lshr_b32 s57, s50, 2")
    a("s_lshl_b32 s72, s56, 11")
    a(f"s_add_u32 s72, s72, {W2_FO}")
    a("s_lshl_b32 s65, s56, 1")
    a("s_add_u32 s65, s65, s61")
    a("s_lshl_b32 s63, s57, 1")
    a("s_add_u32 s63, s63, s62")
    a("s_lshl_b32 s74, s63, 6")
    a("s_lshl_b32 s64, s65, 15")
    a("s_add_u32 s74, s74, s64")
    a("s_lshl_b32 s73, s57, 18")
    a("s_lshl_b32 s64, s54, 16")
    a("s_add_u32 s73, s73, s64")
    a("s_lshl_b32 s64, s56, 7")
    a("s_add_u32 s73, s73, s64")
    a(f"s_add_u32 s73, s73, {W2_GA}")
    a("s_lshl_b32 s75, s65, 8")
    a(f"s_add_u32 s75, s75, {W2_G}")
    a("v_mov_b32 v155, s52")
    a("s_lshl_b32 s63, s55, 13")
    a("s_lshl_b32 s64, s54, 11")
    a("s_add_u32 s63, s63, s64")
    a(f"s_add_u32 s63, s63, {W2_GA}")
    a("s_waitcnt lgkmcnt(0)")
    sig(S_CD)
    for i in range(16): a(f"v_add_f32 v{D0+i}, v{D0+i}, v{D1+i}")
    for i in range(8): a(f"v_cvt_pk_bf16_f32 v{64+i}, v{D0+2*i}, v{D0+2*i+1}")
    a(f"ds_write_b128 v{PS}, v[64:67]")
    a(f"ds_write_b128 v{PS}, v[68:71] offset:64")
    a(f"ds_read_b128 v[64:67], v{POF}")
    a(f"ds_read_b128 v[68:71], v{POF} offset:1024")
    a("s_waitcnt lgkmcnt(0)")
    a("buffer_store_dwordx4 v[64:67], v4, s[44:47], s63 offen sc1")
    a("buffer_store_dwordx4 v[68:71], v4, s[44:47], s63 offen offset:1024 sc1")
    if "nop3" in X: a("s_branch KA_AUXEND")
    a("s_lshl_b32 s63, s50, 11")
    a(f"s_add_u32 s71, s63, {W2_FO}")
    a("s_lshl_b32 s70, s49, 7")
    a("s_add_u32 s63, s71, s70")
    if "nofl" not in X: a("s_load_dword s68, s[34:35], s63")
    srd(a, 36, 26, 27, 512 * 512 * 2)
    srd(a, 40, 30, 31, 2048 * 512 * 2)
    a("v_lshlrev_b32 v12, 2, s49")
    if "dp" in X:
        a("s_lshl_b32 s4, s50, 16")
        a("s_lshl_b32 s5, s49, 13")
        a("s_add_u32 s4, s4, s5")
        a("s_lshl_b32 s5, s54, 11")
        a("s_add_u32 s4, s4, s5")
        a(f"s_add_u32 s4, s4, {W2_O}")
        for i in range(4): a(f"v_mov_b32 v{8+i}, -1")
        a("buffer_store_dwordx4 v[8:11], v4, s[44:47], s4 offen sc1")
        a("buffer_store_dwordx4 v[8:11], v4, s[44:47], s4 offen offset:1024 sc1")
    wait(S_CD, 5, nap=4)
    a("s_waitcnt vmcnt(0)")
    a("s_mov_b64 exec, 1")
    a(f"ds_add_rtn_u32 v{VTMP}, v{VSY}, v{VONE} offset:{S_PC}")
    a("s_waitcnt lgkmcnt(0)")
    a(f"v_readfirstlane_b32 s76, v{VTMP}")
    a("s_cmp_lg_u32 s76, 3")
    a("s_cbranch_scc1 KA_NCL")
    a("buffer_store_dword v155, v156, s[44:47], s67 offen offset:2048 sc1")
    a("buffer_store_dword v155, v12, s[44:47], s71 offen offset:1024 sc1")
    a("KA_NCL:")
    a("s_mov_b64 exec, -1")
    if "awt" in X:
        a("s_lshl_b32 s63, s50, 2")
        a("s_add_u32 s63, s63, s54")
        a("s_lshl_b32 s63, s63, 12")
        a("s_add_u32 s64, s26, s63")
        a("s_addc_u32 s65, s27, 0")
        for i in range(32): a(f"s_load_dwordx2 s[68:69], s[64:65], {128*i+60}")
        a("s_waitcnt lgkmcnt(0)")
    if "wlate" in X: wait(S_WB, 1, nap=16)
    a("s_lshl_b32 s58, s54, 12")
    a(f"s_add_u32 s58, s58, {L_WO}")
    a("s_lshl_b32 s59, s54, 15")
    a("s_lshl_b32 s63, s57, 7")
    a("s_add_u32 s59, s59, s63")
    for c in range(4):
        if "wrot" in X:
            a(f"s_add_u32 s64, s50, {c}")
            a("s_and_b32 s64, s64, 3")
            a("s_lshl_b32 s63, s64, 14")
            a("s_add_u32 m0, s58, s63")
            a("s_lshl_b32 s63, s64, 17")
            a("s_add_u32 s63, s63, s59")
        else:
            a(f"s_add_u32 m0, s58, {16384*c}")
            a(f"s_add_u32 s63, s59, {131072*c}")
        for q in range(4):
            if "xwo" not in X: a(f"buffer_load_dwordx4 v{PW+q}, s[36:39], s63 offen offset:{1024*q} lds")
            if "w1" in X or ("w2" in X and q == 1): a("s_waitcnt vmcnt(0)")
        if "w8" not in X or c & 1: a("s_waitcnt vmcnt(0)")
    a("s_xor_b32 s63, s57, 4")
    a(f"s_mul_i32 s63, s63, {GRS}")
    a(f"s_add_u32 s63, s63, {G_FL+2048}")
    a("s_add_u32 s64, s34, s63")
    a("s_addc_u32 s65, s35, 0")
    a("s_add_u32 s70, s72, 1024")
    if "p3st" in X: a.stamp(1)
    if "preout" in X:
        a("s_lshl_b32 s4, s56, 16")
        a("s_lshl_b32 s5, s54, 14")
        a("s_add_u32 s4, s4, s5")
        a("s_lshl_b32 s5, s57, 7")
        a("s_add_u32 s4, s4, s5")
        a("s_add_u32 s4, s30, s4")
        a("s_addc_u32 s5, s31, 0")
        for i in range(16): a(f"s_load_dwordx2 s[68:69], s[4:5], {1024*i+60}")
    if "aot" in X:
        a("s_lshl_b32 s4, s50, 16")
        a("s_lshl_b32 s5, s49, 13")
        a("s_add_u32 s4, s4, s5")
        a("s_lshl_b32 s5, s54, 11")
        a("s_add_u32 s4, s4, s5")
        a(f"s_add_u32 s4, s4, {W2_O}")
        a("s_add_u32 s4, s34, s4")
        a("s_addc_u32 s5, s35, 0")
        for i in range(16): a(f"s_load_dwordx2 s[68:69], s[4:5], {128*i+60}")
    if "lkw" in X: wait(S_WB, 1, nap=16)
    a("s_mov_b32 s71, 0")
    G = ""
    a("s_load_dwordx16 s[4:19], s[64:65], 0" + G)
    a("s_load_dwordx8 s[20:27], s[34:35], s70" + G)
    a("s_load_dword s68, s[64:65], 64" + G)
    a("s_waitcnt lgkmcnt(0)")
    for r in range(4, 28):
        a(f"s_xor_b32 s{r}, s{r}, s52")
        a(f"s_or_b32 s71, s71, s{r}")
    a("s_load_dwordx16 s[4:19], s[64:65], 64" + G)
    a("s_waitcnt lgkmcnt(0)")
    for r in range(4, 20):
        a(f"s_xor_b32 s{r}, s{r}, s52")
        a(f"s_or_b32 s71, s71, s{r}")
    a("s_cbranch_scc0 KA_PCD")
    a("v_and_b32 v9, 7, v1")
    a("v_lshlrev_b32 v9, 2, v9")
    a(f"s_mov_b32 s69, {SLOW_TRIES}")
    a("KA_PC:")
    a("s_sleep 32")
    a("buffer_load_dword v10, v157, s[44:47], s63 offen sc1")
    a("buffer_load_dword v11, v9, s[44:47], s70 offen sc1")
    a("s_waitcnt vmcnt(0)")
    a("v_cmp_ne_u32 vcc, s52, v10")
    a("v_cmp_ne_u32 s[4:5], s52, v11")
    a("s_or_b64 vcc, vcc, s[4:5]")
    a("s_cbranch_scc0 KA_PCD")
    a("s_sub_u32 s69, s69, 1")
    a("s_cbranch_scc0 KA_PC")
    a("KA_PCD:")
    if "p3st" in X: a.stamp(2)
    if "gat" in X:
        a("s_add_u32 s64, s34, s73")
        a("s_addc_u32 s65, s35, 0")
        for i in range(16): a(f"s_load_dwordx2 s[68:69], s[64:65], {4096*i+60}")
    D, DA, GA, DG = 112, 128, 32, 40
    a("s_lshl_b32 s58, s54, 11")
    a(f"s_add_u32 m0, s58, {L_GA}")
    a("s_add_u32 s63, s73, 31744")
    a("s_waitcnt vmcnt(0) lgkmcnt(0)")
    if "xga" not in X:
        a(f"buffer_load_dwordx4 v{PD}, s[44:47], s73 offen sc1 lds")
        a(f"buffer_load_dwordx4 v{PD}, s[44:47], s63 offen offset:1024 sc1 lds")
    a(f"buffer_load_dwordx2 v[14:15], v{PG}, s[44:47], s75 offen sc1")
    dsig(f"s_add_u32 m0, s60, {S_WA-S_UA}")
    a("s_lshl_b32 s58, s61, 12")
    a("s_lshl_b32 s59, s56, 16")
    a("s_add_u32 s59, s59, s58")
    a(f"s_add_u32 s59, s59, {W2_O}")
    a("s_waitcnt vmcnt(0)")
    wait4(S_WA, nap=4)
    a(f"ds_read_b128 {vr(GA,4)}, v{PA}")
    a(f"ds_read_b128 {vr(GA+4,4)}, v{PA} offset:64")
    a("v_lshrrev_b32 v13, 16, v14")
    a("v_or_b32 v13, v13, v14")
    for k in range(8):
        a(f"v_and_b32 v{DG+k}, v13, v{PM+k}")
    a("s_waitcnt lgkmcnt(0)")
    a("s_nop 0")
    a(f"{MF} {vr(DA,16)}, {vr(GA,4)}, {vr(DG,4)}, 0")
    a(f"{MF} {vr(DA,16)}, {vr(GA+4,4)}, {vr(DG+4,4)}, {vr(DA,16)}")
    if "p3st" in X: a.stamp(3)
    if "wb" in X:
        a("s_lshl_b32 s63, s50, 2")
        a("s_add_u32 s63, s63, s54")
        a("s_cmp_lg_u32 s63, 0")
        a("s_cbranch_scc1 KA_NOWB")
        a("buffer_wbl2 sc1")
        a("KA_NOWB:")
    if "fet" in X:
        W0, O0 = 48, 64
        a(f"v_mov_b32 v2, v{POUT}")
        a("s_lshl_b32 s63, s61, 12")
        a(f"s_add_u32 s63, s63, {L_O}")
        a("v_add_u32 v5, s63, v4")
        a("v_and_b32 v6, 7, v1")
        a(f"v_lshl_add_u32 v6, v6, 2, v{VSY}")
        for i in range(4): a(f"v_mov_b32 v{W0+i}, 0")
        a("s_mov_b32 s4, 0xff")
        a(f"s_mov_b32 s7, {LDS_SPIN}")
        a(f"{MF} {vr(D,16)}, {vr(W0,4)}, {vr(W0,4)}, 0")
        wait(S_FIN, 8, nap=8)
        if "p3st" in X: a.stamp(4)
        a("KA_OL:")
        a(f"ds_read_b32 v10, v6 offset:{S_OA}")
        a("s_sub_u32 s7, s7, 1")
        a("s_cselect_b32 s6, 0xff, 0")
        a("s_waitcnt lgkmcnt(0)")
        a("v_cmp_eq_u32 vcc, 0, v10")
        a("s_or_b32 s5, s6, vcc_lo")
        a("s_and_b32 s5, s5, s4")
        a("s_cbranch_scc0 KA_OL")
        a("KA_OP:")
        a("s_ff1_i32_b32 s8, s5")
        a("s_lshl_b32 s63, s8, 13")
        a(f"v_add_u32 v12, s63, v{PWF}")
        a("v_add_u32 v13, s63, v5")
        for q in range(4):
            a(f"ds_read_b128 {vr(O0+4*q,4)}, v13 offset:{1024*q}")
            a(f"ds_read_b64_tr_b16 {vr(W0+4*q,2)}, v12 offset:{2048*q}")
            a(f"ds_read_b64_tr_b16 {vr(W0+4*q+2,2)}, v12 offset:{2048*q+1024}")
        a("s_bitset0_b32 s4, s8")
        a("s_bitset0_b32 s5, s8")
        for q in range(4):
            a(f"s_waitcnt lgkmcnt({9-3*q})")
            a(f"{MF} {vr(D,16)}, {vr(W0+4*q,4)}, {vr(O0+4*q,4)}, {vr(D,16)}")
        a("s_cmp_lg_u32 s5, 0")
        a("s_cbranch_scc1 KA_OP")
        a("s_cmp_lg_u32 s4, 0")
        a("s_cbranch_scc1 KA_OL")
        if "p3st" in X: a.stamp(7)
        a("s_nop 7")
        for i in range(16): a(f"v_fmac_f32 v{DA+i}, v15, v{D+i}")
    else:
        OB4, W0, W1, D2 = 48, 16, 32, 144
        a(f"v_mov_b32 v2, v{POUT}")
        a(f"v_mov_b32 v5, v{PWF}")
        a("s_lshl_b32 s63, s54, 12")
        a(f"s_add_u32 s64, s63, {L_GT}")
        a("v_add_u32 v6, s64, v4")
        a("s_xor_b32 s63, s63, 8192")
        a(f"s_add_u32 s64, s63, {L_GT}")
        a("v_add_u32 v11, s64, v4")
        a("s_lshl_b32 s63, s61, 2")
        a(f"v_add_u32 v14, s63, v{VSY}")
        if "mz" in X:
            for i in range(4): a(f"v_mov_b32 v{W0+i}, 0")
            a("s_nop 1")
            a(f"{MF} {vr(D,16)}, {vr(W0,4)}, {vr(W0,4)}, 0")
            a(f"{MF} {vr(D2,16)}, {vr(W0,4)}, {vr(W0,4)}, 0")
        else:
            for i in range(16):
                a(f"v_mov_b32 v{D+i}, 0")
                a(f"v_mov_b32 v{D2+i}, 0")
        if "otr" in X:
            a("s_mul_i32 s63, s54, 2560")
            a(f"s_add_u32 s63, s63, {L_U}")
            a("v_mul_u32_u24 v160, 80, v7")
            a("v_lshl_add_u32 v160, v3, 4, v160")
            a("v_add_u32 v160, s63, v160")
            a("v_lshrrev_b32 v162, 2, v1")
            a("v_and_b32 v163, 3, v1")
            a("v_mul_u32_u24 v161, 80, v162")
            a("v_lshl_add_u32 v161, v163, 4, v161")
            a("v_add_u32 v161, s63, v161")
            a("v_lshlrev_b32 v162, 10, v162")
            a("v_lshl_add_u32 v162, v163, 4, v162")
        a("s_lshl_b32 s4, 0x55, s62")
        a(f"s_mov_b32 s7, {LDS_SPIN}")
        wait(S_FIN, FINN, nap=8)
        if "p3st" in X: a.stamp(4)
        a("KA_OL:")
        if "nap4" in X: a("s_sleep 1")
        a(f"ds_read_b32 v10, v{VSY} offset:{S_PO}")
        a("s_sub_u32 s7, s7, 1")
        a("s_cselect_b32 s6, 0xffff, 0")
        a("s_waitcnt lgkmcnt(0)")
        a("v_readfirstlane_b32 s5, v10")
        a("s_or_b32 s5, s5, s6")
        a("s_lshr_b32 s12, s5, 8")
        a("s_and_b32 s5, s5, s4")
        a("s_cbranch_scc0 KA_OL")
        for k in range(4):
            a(f"s_ff1_i32_b32 s{8+k}, s5")
            a(f"s_lshl_b32 s63, s{8+k}, 13")
            a("s_add_u32 s63, s63, s59")
            for q in range(4): a(f"buffer_load_dwordx4 {vr(OB4+16*k+4*q,4)}, v4, s[44:47], s63 offen offset:{1024*q} sc1")
            a(f"s_bitset0_b32 s4, s{8+k}")
            a(f"s_bitset0_b32 s5, s{8+k}")
            if k < 3:
                a("s_cmp_eq_u32 s5, 0")
                a(f"s_cbranch_scc1 KA_OP{k+1}")
        def wadr(k):
            a(f"s_lshl_b32 s63, s{8+k}, 13")
            a("v_add_u32 v12, s63, v5")
            a("v_xor_b32 v13, 64, v12")
        def rdw(W, ad, q):
            a(f"ds_read_b64_tr_b16 {vr(W+4*q,2)}, v{ad} offset:{2048*q}")
            a(f"ds_read_b64_tr_b16 {vr(W+4*q+2,2)}, v{ad} offset:{2048*q+1024}")
        for n in (4, 3, 2, 1):
            a(f"KA_OP{n}:")
            wadr(0)
            for q in range(4): rdw(W1, 13, q)
            a("s_waitcnt lgkmcnt(4)")
            for q in range(4): rdw(W0, 12, q)
            for k in range(n):
                B = OB4 + 16 * k
                a(f"s_waitcnt vmcnt({4*(n-1-k)}) lgkmcnt(7)")
                if "dp" in X:
                    ok = lbl("DK")
                    a(f"v_max3_u32 v8, v{B}, v{B+1}, v{B+2}")
                    a(f"v_max3_u32 v9, v{B+3}, v{B+4}, v{B+5}")
                    for i in range(5): a(f"v_max3_u32 v{8+(i&1)}, v{B+6+2*i}, v{B+7+2*i}, v{8+(i&1)}")
                    a("v_max_u32 v8, v8, v9")
                    a("v_cmp_eq_u32 vcc, -1, v8")
                    a(f"s_cbranch_vccz {ok}")
                    a(f"s_bitcmp1_b32 s12, s{8+k}")
                    a(f"s_cbranch_scc1 {ok}")
                    a(f"s_bitset1_b32 s4, s{8+k}")
                    for i in range(16): a(f"v_mov_b32 v{B+i}, 0")
                    a("s_nop 1")
                    a(f"{ok}:")
                if k + 1 < n: wadr(k + 1)
                for q in range(4):
                    a(f"{MF} {vr(D2,16)}, {vr(W1+4*q,4)}, {vr(B+4*q,4)}, {vr(D2,16)}")
                    if k + 1 < n: rdw(W1, 13, q)
                a("s_waitcnt lgkmcnt(%d)" % (7 if k + 1 < n else 0))
                for q in range(4):
                    a(f"{MF} {vr(D,16)}, {vr(W0+4*q,4)}, {vr(B+4*q,4)}, {vr(D,16)}")
                    if k + 1 < n: rdw(W0, 12, q)
            a("s_cmp_lg_u32 s4, 0")
            a("s_cbranch_scc1 KA_OL")
            if n > 1: a("s_branch KA_OD")
        a("KA_OD:")
        if "p3st" in X: a.stamp(6)
        a("s_nop 4")
        for i in range(4): a(f"ds_write_b128 v6, {vr(D2+4*i,4)} offset:{1024*i}")
        sig(S_FX, 14)
        for i in range(16): a(f"v_fmac_f32 v{DA+i}, v15, v{D+i}")
        wait(S_FX, 2, 14)
        for i in range(4): a(f"ds_read_b128 {vr(D2+4*i,4)}, v11 offset:{1024*i}")
        if "p3st" in X: a.stamp(7)
        for i in range(4):
            a(f"s_waitcnt lgkmcnt({3-i})")
            for j in range(4): a(f"v_fmac_f32 v{DA+4*i+j}, v15, v{D2+4*i+j}")
    for i in range(8): a(f"v_cvt_pk_bf16_f32 v{GA+i}, v{DA+2*i}, v{DA+2*i+1}")
    a("s_nop 1")
    a(f"v_permlane32_swap_b32 v{GA}, v{GA+2}")
    a(f"v_permlane32_swap_b32 v{GA+1}, v{GA+3}")
    a(f"v_permlane32_swap_b32 v{GA+4}, v{GA+6}")
    a(f"v_permlane32_swap_b32 v{GA+5}, v{GA+7}")
    OF = " nt" if "ont" in X else " sc1" if "osc" in X else " sc0 sc1 nt" if "oall" in X else ""
    if "otr" in X:
        a(f"ds_write_b128 v160, {vr(GA,4)}")
        a(f"ds_write_b128 v160, {vr(GA+4,4)} offset:32")
        a(f"ds_read_b128 {vr(GA,4)}, v161")
        a(f"ds_read_b128 {vr(GA+4,4)}, v161 offset:1280")
        a("s_add_u32 s75, s74, 16384")
        a("s_waitcnt lgkmcnt(1)")
        a(f"buffer_store_dwordx4 {vr(GA,4)}, v162, s[40:43], s74 offen{OF}")
        a("s_waitcnt lgkmcnt(0)")
        a(f"buffer_store_dwordx4 {vr(GA+4,4)}, v162, s[40:43], s75 offen{OF}")
    else:
        a(f"buffer_store_dwordx4 {vr(GA,4)}, v2, s[40:43], s74 offen{OF}")
        a(f"buffer_store_dwordx4 {vr(GA+4,4)}, v2, s[40:43], s74 offen offset:32{OF}")
    a("KA_AUXEND:")
    a.end(0)
```

```python
from common import *
import math, struct
LOG2E = 1.4426950408889634
LOG2E_HI = f2u(LOG2E)
_hi = struct.unpack("<f", struct.pack("<I", LOG2E_HI))[0]
LOG2E_LO = f2u(LOG2E - _hi)
LN2 = f2u(math.log(2.0))
QSCALE = f2u(0.25 * LOG2E)
MF = "v_mfma_f32_32x32x16_bf16"

L_X, L_W = 0, 65536
NSLOT = 6
L_OX = 0
L_Q = 114688
L_WO, L_GA, L_GT, L_O = 18432, 83968, 98304, 92160
L_CX = 73728
L_KP, KPC = 18688, 8384
L_U = 139264
L_XCH = 153600
L_GW = 161792
L_SY = 162816
KA_LDS = 163840
S_UA, S_WA, S_OA = 0, 16, 32
S_WB, S_UDONE, S_QRDY, S_NONCE, S_CV, S_OX, S_CD, S_FIN, S_PO, S_PC, S_OD, S_GO, S_FX, S_DONE, S_KN, S_KF, S_RUN = 96, 100, 104, 108, 112, 128, 144, 148, 152, 156, 160, 164, 168, 176, 180, 188, 196
VSY, VONE, VTMP, VT4 = 164, 165, 166, 160
UNR = 4
WBIT, NEARLY = 4, 3
LDS_SPIN = 1 << 20
FAST_TRIES = 64
SLOW_TRIES = 20000

def interleave(chains):
    out = []
    chains = [list(c) for c in chains]
    while any(chains):
        for c in chains:
            if c: out.append(c.pop(0))
    return out

def cmul(d, x, w):
    return [f"v_mul_f32 v{d}, v{x}, v{w}", f"v_mul_f32 v{d+1}, v{x}, v{w+1}",
            f"v_fma_f32 v{d}, -v{x+1}, v{w+1}, v{d}", f"v_fmac_f32 v{d+1}, v{x+1}, v{w}"]
def cmul_pk(d, x, w):
    return [f"v_pk_mul_f32 {vr(d,2)}, {vr(x,2)}, {vr(w,2)} op_sel:[0,0] op_sel_hi:[0,1]",
            f"v_pk_fma_f32 {vr(d,2)}, {vr(x,2)}, {vr(w,2)}, {vr(d,2)} op_sel:[1,1,0] op_sel_hi:[1,0,1] neg_lo:[0,1,0]"]

def gen_ka(name, X=()):
    a = Asm()
    PRIO1, PRIO0 = (5 if "pr5" in X else 6), 7
    NSLOT = 7 if "s7" in X else 6
    DD = NSLOT - 2
    NF = 4 if "nf4" in X else 3 if "nf3" in X else 2 if "nf2" in X else 0
    NT = " nt" if "nt" in X else " sc1" if "ksc" in X else ""
    NW = " nt" if "ntw" in X else ""
    NX = " nt" if "ntx" in X else ""
    NP = " nt" if "ntp" in X else ""
    NK = " nt" if "ntk" in X else ""
    PSL = 2 if "ps2" in X else 8 if "ps8" in X else 1 if "ps1" in X else 0 if "ps0" in X else 5
    PDP = 4 if "pd4" in X else 2
    cnt = [0]
    def lbl(p):
        cnt[0] += 1
        return f"KA_{p}{cnt[0]}"
    def sig(off, addr=VSY, val=VONE):
        a("s_mov_b64 exec, 1")
        a(f"ds_add_u32 v{addr}, v{val} offset:{off}")
        a("s_mov_b64 exec, -1")
    def wait(off, n, addr=VSY, out=76, nap=0):
        l, e = lbl("W"), lbl("E")
        a(f"s_mov_b32 s77, {LDS_SPIN}")
        if nap:
            a(f"s_branch {l}F")
        a(f"{l}:")
        if nap:
            a(f"s_sleep {nap}")
            a(f"{l}F:")
        a(f"ds_read_b32 v{VTMP}, v{addr} offset:{off}")
        a("s_sub_u32 s77, s77, 1")
        a("s_cbranch_scc1 " + e)
        a("s_waitcnt lgkmcnt(0)")
        a(f"v_readfirstlane_b32 s{out}, v{VTMP}")
        a(f"s_cmp_lt_u32 s{out}, {n}")
        a("s_cbranch_scc1 " + l)
        a(f"{e}:")
    def wait4(off, addr=VSY, nap=0):
        l, e = lbl("W"), lbl("E")
        a(f"s_mov_b32 s77, {LDS_SPIN}")
        if nap:
            a(f"s_branch {l}F")
        a(f"{l}:")
        if nap:
            a(f"s_sleep {nap}")
            a(f"{l}F:")
        a(f"ds_read_b128 {vr(VT4,4)}, v{addr} offset:{off}")
        a("s_sub_u32 s77, s77, 1")
        a("s_cbranch_scc1 " + e)
        a("s_waitcnt lgkmcnt(0)")
        a(f"v_or3_b32 v{VT4}, v{VT4}, v{VT4+1}, v{VT4+2}")
        a(f"v_or_b32 v{VT4}, v{VT4}, v{VT4+3}")
        a(f"v_cmp_ne_u32 vcc, 0, v{VT4}")
        a("s_cbranch_vccnz " + l)
        a(f"{e}:")
    def gettag():
        l, ok = lbl("TL"), lbl("TK")
        a("s_waitcnt lgkmcnt(0)")
        a("s_cmp_lg_u32 s52, 0")
        a(f"s_cbranch_scc1 {ok}")
        a("v_mov_b32 v155, 0")
        a(f"s_mov_b32 s69, {SLOW_TRIES}")
        a(f"{l}:")
        a("global_load_dword v158, v155, s[32:33] sc1")
        a("s_waitcnt vmcnt(0)")
        a("v_readfirstlane_b32 s52, v158")
        a("s_cmp_lg_u32 s52, 0")
        a(f"s_cbranch_scc1 {ok}")
        a("s_sub_u32 s69, s69, 1")
        a(f"s_cbranch_scc0 {l}")
        a("s_mov_b32 s52, 1")
        a(f"{ok}:")
    def dsig(m0expr):
        a(m0expr)
        a("s_mov_b64 exec, 1")
        a("buffer_load_dword v154, s[44:47], 0 offen lds")
        a("s_mov_b64 exec, -1")
    def mktag(fl_off):
        if "gfl" in X:
            a("s_mov_b32 s66, s52")
            a(f"s_add_u32 s67, s51, {G_FL + fl_off}")
            return
        a("s_getreg_b32 s66, hwreg(HW_REG_XCC_ID)")
        a("s_and_b32 s66, s66, 15")
        a("s_add_u32 s66, s66, 1")
        a("s_lshl_b32 s66, s66, 1")
        a("s_xor_b32 s66, s66, s52")
        a(f"s_add_u32 s67, s51, {G_FL + fl_off}")
    def publish():
        a("v_mov_b32 v155, s66")
        a("s_mov_b64 exec, 1")
        a("buffer_store_dword v155, v156, s[44:47], s67 offen" + (" sc1" if "gfl" in X else ""))
        a("s_mov_b64 exec, -1")
    def collect(wide, own, lanes=1):
        lf, ls, done = lbl("GF"), lbl("GS"), lbl("GD")
        def ld(r, off):
            if wide: a(f"buffer_load_dwordx2 v[{r}:{r+1}], v157, s[44:47], s67 offen offset:{off} sc1")
            else: a(f"buffer_load_dword v{r}, v157, s[44:47], s67 offen offset:{off} sc1")
        a(f"s_mov_b32 s69, {FAST_TRIES}")
        a(f"{lf}:")
        ld(158, 0)
        a("s_waitcnt vmcnt(0)")
        a("v_cmp_ne_u32 vcc, s66, v158")
        if wide:
            a("v_cmp_ne_u32 s[70:71], s66, v159")
            a("s_or_b64 vcc, vcc, s[70:71]")
            a(f"s_cbranch_scc0 {done}")
        else:
            a(f"s_cbranch_vccz {done}")
        a("s_sub_u32 s69, s69, 1")
        a(f"s_cbranch_scc0 {lf}")
        a("buffer_wbl2 sc1")
        a("s_waitcnt vmcnt(0)")
        a("v_mov_b32 v155, s52")
        if own is not None:
            a(own)
            a(f"s_cbranch_scc0 {ls}N")
        a(f"s_mov_b64 exec, {lanes}")
        a("buffer_store_dword v155, v156, s[44:47], s67 offen offset:1024 sc1")
        a("s_mov_b64 exec, -1")
        a(f"{ls}N:")
        a(f"s_mov_b32 s69, {SLOW_TRIES}")
        a(f"{ls}:")
        ld(158, 0)
        ld(160, 1024)
        a("s_waitcnt vmcnt(0)")
        a("v_cmp_ne_u32 vcc, s66, v158")
        a("v_cmp_ne_u32 s[70:71], s52, v160")
        a("s_and_b64 vcc, vcc, s[70:71]")
        if wide:
            a("v_cmp_ne_u32 s[70:71], s66, v159")
            a("v_cmp_ne_u32 s[72:73], s52, v161")
            a("s_and_b64 s[70:71], s[70:71], s[72:73]")
            a("s_or_b64 vcc, vcc, s[70:71]")
        a(f"s_cbranch_scc0 {done}A")
        a("s_sleep 8")
        a("s_sub_u32 s69, s69, 1")
        a(f"s_cbranch_scc0 {ls}")
        a(f"{done}A:")
        a("buffer_inv sc1")
        a("s_waitcnt vmcnt(0)")
        a(f"{done}:")

    a(f".globl {name}\n.p2align 8\n.type {name},@function\n{name}:")
    a("s_cmp_ge_u32 s2, 256")
    a("s_cbranch_scc1 KA_END")
    a.start()
    if NF:
        a("v_readfirstlane_b32 s48, v0")
        a("s_nop 1")
        a("s_cmp_lg_u32 s48, 64")
        a("s_cbranch_scc1 KA_P1")
        a("v_cmp_gt_u32 vcc, 88, v0")
        a(f"v_mov_b32 v5, {L_SY-256}")
        a("v_lshl_add_u32 v5, v0, 2, v5")
        a("v_mov_b32 v6, 0")
        a("v_addc_co_u32 v6, vcc, 0, v6, vcc")
        a("ds_write_b32 v5, v6")
        a("s_waitcnt lgkmcnt(0)")
        a("KA_P1:")
    a("s_load_dwordx16 s[4:19], s[0:1], 0")
    a("s_load_dwordx16 s[20:35], s[0:1], 64")
    if "dly" in X: a("s_sleep 16")
    if NF: a("s_barrier")
    else: a("v_readfirstlane_b32 s48, v0")
    a("v_and_b32 v1, 63, v0")
    a("s_and_b32 s49, s2, 7")
    for k in (1, 3, 5, 7):
        if f"gx{k}" in X: a(f"s_xor_b32 s49, s49, {k}")
    a("s_lshr_b32 s50, s2, 3")
    a("s_lshr_b32 s48, s48, 6")
    def cpf():
        if "cpf" in X:
            a("s_cmp_lg_u32 s48, 0")
            a("s_cbranch_scc1 " + ("KA_CPE" if "sb" in X else "KA_CONS"))
            a("s_getpc_b64 s[56:57]")
            a("KA_PCB:")
            a(f"s_sub_u32 s56, s56, KA_PCB-{name}")
            a("s_subb_u32 s57, s57, 0")
            a("v_lshl_add_u32 v8, v1, 5, s50")
            a("v_lshlrev_b32 v8, 6, v8")
            a(f"v_cmp_gt_u32 vcc, KA_END-{name}, v8")
            a("s_mov_b64 exec, vcc")
            a("v_mov_b32 v9, s57")
            a("v_add_co_u32 v8, vcc, s56, v8")
            a("v_addc_co_u32 v9, vcc, 0, v9, vcc")
            a("global_load_dword v24, v[8:9], off")
            a("s_mov_b64 exec, -1")

    a("s_cmp_lt_u32 s48, 4")
    a("s_cbranch_scc1 " + ("KA_CPF" if "cnear" in X else "KA_CONS0"))
    a("s_cmp_lt_u32 s48, 8")
    a("s_cbranch_scc1 KA_LOADER")
    a("s_setprio 3")
    a("s_sub_u32 s54, s48, 8")
    a("s_xor_b32 s55, s49, 4")
    a("s_lshl_b32 s55, s55, 5")
    a("s_add_u32 s55, s55, s50")
    a("s_lshl_b32 s59, s55, 9")
    a("s_lshl_b32 s60, s54, 7")
    a("s_add_u32 s59, s59, s60")
    a("v_lshl_add_u32 v2, v1, 1, s59")
    a("s_lshr_b32 s59, s59, 8")
    a("s_lshl_b32 s59, s59, 1")
    a("v_mov_b32 v5, s59")
    for i in range(8):
        a(f"v_mov_b32 v{8+i}, 0")
    a("s_waitcnt lgkmcnt(0)")
    a("global_load_short_d16_hi v14, v5, s[18:19]")
    for i in range(6):
        a(f"global_load_short_d16_hi v{8+i}, v2, s[{6+2*i}:{7+2*i}]{NP}")
    a("global_load_short_d16_hi v15, v5, s[20:21]")
    if "sb" in X: a("s_barrier")
    a("s_branch KA_AUX0")
    if "cnear" in X:
        a("KA_CPF:")
        cpf()
        a("KA_CPE:")
        if "sb" in X: a("s_barrier")
        a("s_branch KA_CONS")
    a("KA_LOADER:")
    def common():
        a(f"s_mul_i32 s51, s49, {GRS}")
        a("v_lshlrev_b32 v4, 4, v1")
        a("v_lshrrev_b32 v3, 5, v1")
        a(f"v_mov_b32 v{VSY}, {L_SY}")
        a(f"v_mov_b32 v{VONE}, 1")

    a("s_add_u32 s53, s49, s50")
    a("s_sub_u32 s54, s48, 4")
    a("v_lshrrev_b32 v5, 3, v1")
    a("v_and_b32 v6, 7, v1")
    a("v_lshrrev_b32 v7, 4, v1")
    a("v_xor_b32 v8, v6, v7")
    a("v_lshlrev_b32 v8, 4, v8")
    a("v_lshl_add_u32 v16, v5, 10, v8")
    a("s_and_b32 s73, s54, 1")
    a("s_lshl_b32 s58, s73, 6")
    a("s_lshl_b32 s55, s50, 16")
    a("s_lshl_b32 s60, s54, 13")
    a("s_add_u32 s60, s60, s55")
    a("v_xor_b32 v18, s58, v16")
    a("v_add_u32 v18, s60, v18")
    a("v_add_u32 v19, 32768, v18")
    a("v_and_b32 v7, 1, v7")
    a("v_lshlrev_b32 v7, 2, v7")
    a("v_xor_b32 v8, v6, v7")
    a("v_mul_u32_u24 v9, 3072, v5")
    a("v_lshl_add_u32 v9, v8, 4, v9")
    a("s_lshl_b32 s56, s49, 7")
    a("s_mul_i32 s62, s54, 3")
    for i in range(3):
        a(f"s_add_u32 s58, s62, {i}")
        a("s_and_b32 s59, s58, 3")
        a("s_mul_i32 s59, s59, 24576")
        a("s_lshr_b32 s58, s58, 2")
        a("s_lshl_b32 s58, s58, 10")
        a("s_add_u32 s58, s58, s59")
        a("s_add_u32 s58, s58, s56")
        if i: a(f"s_sub_u32 s58, s58, {1024*i}")
        a(f"v_add_u32 v{20+i}, s58, v9")
    a("s_lshl_b32 s61, s54, 10")
    a("s_lshl_b32 s62, s62, 10")
    a("s_and_b32 s64, s53, 7")
    a("s_lshl_b32 s65, s64, 7")
    a(f"s_mul_i32 s64, s64, {64*3072}")
    a("s_mov_b32 s38, %d\ns_mov_b32 s39, 0x20000\ns_mov_b32 s42, %d\ns_mov_b32 s43, 0x20000" % (2048*512*2, 512*1536*2))
    if NF:
        a("v_mov_b32 v23, 0x7ffffff0")
        a("s_lshl_b32 s72, s54, 2")
    a("s_mov_b32 m0, s61")
    a("s_waitcnt lgkmcnt(0)")
    a("s_mov_b32 s36, s4\ns_and_b32 s37, s5, 0xffff\ns_mov_b32 s40, s24\ns_and_b32 s41, s25, 0xffff")
    if "sb" in X: a("s_barrier")
    a.stamp(1)
    issued = []
    ops = []
    def vm(t, tag):
        a(t); ops.append(tag)
    def need(tag, extra=""):
        last = max(i for i, t in enumerate(ops) if t == tag)
        a(f"s_waitcnt vmcnt({len(ops)-1-last}){extra}")
    def sub(j):
        hi = j + 1
        if hi < 16:
            a(f"s_add_u32 m0, s61, {4096*hi}")
            if hi % 2 == 0:
                a("s_add_u32 s65, s65, 128")
                a("s_and_b32 s65, s65, 1023")
            else:
                a("s_nop 0")
            if "nox3" in X:
                a("s_cmp_eq_u32 s65, 384\ns_cselect_b32 s59, 256, s65")
                vm(f"buffer_load_dwordx4 v{18+(hi&1)}, s[36:39], s59 offen{NX} lds", j)
            else:
                vm(f"buffer_load_dwordx4 v{18+(hi&1)}, s[36:39], s65 offen{NX} lds", j)
        a(f"s_add_u32 m0, s62, {L_W+12288*(j%NSLOT)}")
        a(f"s_add_u32 s58, s64, {32*3072}")
        for i in range(3):
            vm(f"buffer_load_dwordx4 v{20+i}, s[40:43], s64 offen offset:{1024*i}{NW} lds", j)
        a(f"s_cmp_lt_u32 s58, {512*3072}")
        a("s_cselect_b32 s64, s58, 0")
        if j < NF:
            a(f"s_add_u32 m0, s72, {L_SY+S_OA+16*j}")
            a("s_mov_b64 exec, 1")
            vm("buffer_load_dword v23, s[36:39], 0 offen lds", "ds")
            a("s_mov_b64 exec, -1")
        issued.append(j)
    vm(f"buffer_load_dwordx4 v18, s[36:39], s65 offen{NX} lds", 0)
    sub(0)
    common()
    srd(a, 44, 34, 35, W2_END)
    a("v_xor_b32 v17, 64, v16")
    a("v_add_u32 v17, 7168, v17")
    a("s_sub_u32 s74, 4, s50")
    a("s_and_b32 s74, s74, 7")
    a("s_lshl_b32 s74, s74, 13")
    a("s_lshl_b32 s58, s54, 11")
    a("s_add_u32 s74, s74, s58")
    a("s_mov_b32 m0, s74")
    a("s_lshl_b32 s58, s54, 14")
    a("s_add_u32 s58, s58, s55")
    a("s_xor_b32 s59, s56, 512")
    a("s_add_u32 s58, s58, s59")
    vm("buffer_load_dwordx4 v16, s[36:39], s58 offen lds", "xs")
    vm("buffer_load_dwordx4 v17, s[36:39], s58 offen offset:1024 lds", "xs")
    sub(1); sub(2)
    a("v_lshlrev_b32 v5, 7, v1")
    a(f"s_add_u32 s67, s51, {G_FL}")
    a(f"s_mov_b32 m0, {L_GW}")
    a("s_lshl_b32 s58, 16, s54")
    a("s_or_b32 exec_lo, s58, 1")
    a("s_mov_b32 exec_hi, 0")
    vm("buffer_load_dword v163, v5, s[44:47], s67 offen " + ("nt" if "ntu" in X else "sc1"), "fl")
    a("s_lshl_b32 s58, s54, 4")
    a("s_lshl_b64 exec, 0xffff, s58")
    vm("global_load_lds_dwordx4 v4, s[28:29]", "gw")
    a("s_mov_b64 exec, -1")
    sub(3)
    a("v_bfe_u32 v5, v1, 2, 2")
    a("v_lshrrev_b32 v6, 4, v1")
    a("v_bfe_u32 v7, v1, 1, 1")
    a("v_lshl_add_u32 v6, v6, 1, v7")
    a("v_lshrrev_b32 v7, 1, v5")
    a("v_xor_b32 v6, v6, v7")
    a("v_lshlrev_b32 v6, 4, v6")
    a("v_lshl_add_u32 v6, v5, 7, v6")
    a("v_and_b32 v7, 1, v1")
    a("v_lshl_add_u32 v6, v7, 3, v6")
    a("v_add_u32 v28, s74, v6")
    for i in range(1, 4):
        a(f"v_xor_b32 v{28+i}, {32*i}, v28")
    need("xs")
    a("s_setprio 3")
    for i in range(4):
        a(f"ds_read_b64_tr_b16 {vr(32+2*i,2)}, v{28+i} offset:{512*i}")
    if "utw" in X:
        a("s_lshl_b32 s75, s50, 13")
        a("s_lshl_b32 s59, s54, 11")
        a("s_add_u32 s75, s75, s59")
        a("s_add_u32 s75, s75, s51")
        a(f"s_add_u32 s75, s75, {G_UT}")
        a("s_waitcnt lgkmcnt(0)")
        US = " sc1" if "usc" in X else ""
        vm("buffer_store_dwordx4 v[32:35], v4, s[44:47], s75 offen" + US, 3)
        vm("buffer_store_dwordx4 v[36:39], v4, s[44:47], s75 offen offset:1024" + US, 3)
    else:
        a("v_lshrrev_b32 v5, 1, v1")
        a("v_lshlrev_b32 v5, 13, v5")
        a("v_lshl_add_u32 v27, v7, 6, v5")
        a("s_lshl_b32 s75, s50, 8")
        a("s_lshr_b32 s59, s54, 1")
        a("s_lshl_b32 s59, s59, 7")
        a("s_add_u32 s75, s75, s59")
        a("s_add_u32 s75, s75, s51")
        a(f"s_add_u32 s75, s75, {G_UT}")
        a("s_lshl_b32 s58, s73, 5")
        a("s_add_u32 s75, s75, s58")
        a("s_waitcnt lgkmcnt(0)")
        vm("buffer_store_dwordx4 v[32:35], v27, s[44:47], s75 offen" + NT, 3)
        vm("buffer_store_dwordx4 v[36:39], v27, s[44:47], s75 offen offset:16" + NT, 3)
    if "lst" in X: a.stamp(3)
    PRE = 7 if "p7" in X else 6 if "p6" in X else 5 if "p5" in X else 4
    for j in range(4, PRE): sub(j)
    a("v_lshrrev_b32 v10, 3, v1")
    a("s_lshl_b32 s58, s49, 3")
    a("v_add_u32 v10, s58, v10")
    a("v_and_b32 v11, 7, v1")
    a("v_bfe_u32 v12, v10, 1, 3")
    a("v_xor_b32 v12, v12, v11")
    a("v_lshlrev_b32 v12, 4, v12")
    a("v_lshl_add_u32 v12, v10, 7, v12")
    a("s_and_b32 s58, s53, 7")
    a("s_lshl_b32 s58, s58, 7")
    a("v_lshl_add_u32 v11, v11, 4, s58")
    a("v_bfe_u32 v5, v1, 4, 1")
    a("v_lshlrev_b32 v5, 16, v5")
    a("v_and_b32 v6, 15, v1")
    a("v_lshl_add_u32 v13, v6, 7, v5")
    a(f"s_mul_i32 s71, s54, {G_HEAD}")
    a("s_lshl_b32 s58, s50, 11")
    a("s_add_u32 s71, s71, s58")
    a("s_add_u32 s71, s71, s51")
    a("s_and_b32 s58, s50, 15")
    a(f"s_cmp_lt_u32 s58, {16 if 'n16' in X else 6 if 'n6' in X else NEARLY}")
    a("s_cselect_b32 s58, 0, 0x7ff00000")
    a("v_add_u32 v13, s58, v13")
    for c in range(8):
        a(f"v_add_u32 v{40+c}, {128*c}, v11")
        a(f"v_and_b32 v{40+c}, 1023, v{40+c}")
        a(f"v_add_u32 v{40+c}, {L_GW}, v{40+c}")
    for j in range(NF, 12):
        need(j)
        if "lst" in X and j in (0, 4, 8): a.stamp(4 + j // 4)
        a("s_barrier")
        for k in range(len(issued), min(j + DD, 15) + 1): sub(k)
    if "tq" in X:
        a("s_mov_b32 exec_hi, 0")
        vm("buffer_load_dword v163, v13, s[44:47], s71 offen " + ("nt" if "ntu" in X else "sc1"), "tq")
        a("s_mov_b64 exec, -1")
    need(12)
    a("s_barrier")
    a("s_cmp_eq_u32 s54, 3")
    a("s_cbranch_scc1 KA_LG")
    for j in (13, 14, 15):
        need(j)
        a("s_barrier")
    a.stamp(2)
    a("s_cmp_eq_u32 s54, 2")
    a("s_cbranch_scc1 KA_LZ")

    a("KA_ATT:")
    if "lowp" in X: a("s_setprio 0")
    QA, QB, P, OA, OB, SA, SB = 8, 12, 28, 36, 52, 68, 84
    KBUF = [100, 112, 124, 136]
    IXV = 24
    SM32 = "v_smfmac_f32_32x32x32_bf16"
    a("s_and_b32 s54, s48, 3")
    a("s_lshr_b32 s55, s48, 2")
    a(f"s_mul_i32 s57, s54, {G_HEAD}")
    a("s_add_u32 s57, s57, s51")
    a("s_lshl_b32 s58, s55, 15")
    a("s_add_u32 s58, s58, s57")
    a("s_add_u32 s58, s58, 4096")
    a("s_add_u32 s58, s34, s58")
    a("s_addc_u32 s59, s35, 0")
    a("s_lshl_b32 s56, s50, 16")
    a("s_lshl_b32 s60, s49, 13")
    a("s_add_u32 s56, s56, s60")
    a(f"s_add_u32 s56, s56, {W2_O}")
    a("s_lshl_b32 s60, s48, 10")
    a("s_add_u32 s56, s56, s60")
    a(f"v_mov_b32 v{IXV}, 0xdddd")
    a("s_mov_b32 s62, 0xffff")
    a("s_mov_b32 s63, 0xffff")
    a("v_and_b32 v2, 27, v1")
    a("v_and_b32 v6, 15, v1")
    a("v_lshl_add_u32 v6, v3, 4, v6")
    a("v_lshlrev_b32 v6, 4, v6")
    a("v_add_u32 v6, 64512, v6")
    a("v_cmp_eq_u32 vcc, 16, v2")
    a("v_mov_b32 v7, 0x3f803f80")
    a("v_lshlrev_b32 v157, 3, v1")
    a("v_cndmask_b32 v7, 0, v7, vcc")
    a("s_lshl_b32 s60, s54, 11")
    a(f"s_add_u32 s60, s60, {L_Q}")
    a("v_add_u32 v5, s60, v4")
    a(f"s_mov_b32 s64, {hex((1<<PRIO1)|(1<<PRIO0))}")
    for B in KBUF:
        for i in range(8): a(f"v_mov_b32 v{B+4+i}, v7")
    for i in range(32): a(f"v_mov_b32 v{OA+i}, 0")
    for i in range(8): a(f"v_mov_b32 v{SB+8+i}, 0")
    a("s_mul_i32 s60, s48, 2304")
    a(f"s_add_u32 s60, s60, {L_OX}")
    a("s_xor_b32 s61, s48, 4")
    a("s_mul_i32 s61, s61, 2304")
    a(f"s_add_u32 s61, s61, {L_OX}")
    a("v_add_u32 v16, s60, v4")
    a("v_add_u32 v17, s61, v4")
    a("v_lshl_add_u32 v18, v1, 2, s60")
    a("v_lshl_add_u32 v19, v1, 2, s61")
    a("s_lshl_b32 s60, s54, 2")
    a(f"v_add_u32 v20, s60, v{VSY}")
    a(f"v_mov_b32 v21, {hex(f2u(2.0**-80))}")
    a(f"v_mov_b32 v22, {hex(f2u(2.0**80))}")
    a(f"v_mov_b32 v23, 0x7f7fffff")
    a("s_lshl_b32 s74, s50, 11")
    a(f"s_add_u32 s74, s74, {W2_FO}")
    a("v_lshlrev_b32 v154, %d, s49" % (2 if "pk1" in X else 7))
    if "pw" in X:
        a("s_lshl_b32 s60, s48, 2")
        a("v_add_u32 v154, s60, v154")
    a("s_mov_b32 s65, 0")
    a("s_cmp_eq_u32 s55, 0")
    a("s_cbranch_scc1 KA_AT1")
    wait(S_NONCE, 1, out=52, nap=(2 if "nap3" in X else 0))
    a("KA_AT1:")
    a("v_mov_b32 v153, s52")
    wait(S_QRDY, 4, nap=(4 if "nap2" in X else 2 if "naps" in X else 0))
    a(f"ds_read_b128 {vr(QA,4)}, v5")
    a(f"ds_read_b128 {vr(QB,4)}, v5 offset:1024")
    if "lst" not in X: a.stamp(4)
    a("s_cmp_eq_u32 s55, 0" if "pol4" in X else "s_cmp_lg_u32 s48, 4")
    a("s_cbranch_scc1 KA_AT2")
    mktag(512)
    a("v_lshlrev_b32 v156, 7, v1")
    a("s_lshl_b32 s60, s50, 2")
    a("v_add_u32 v156, s60, v156")
    wait(S_DONE, 4, nap=(1 if "nap3" in X else 0))
    collect(True, None, 15)
    sig(S_GO)
    if "pol4" in X:
        a("s_cmp_lg_u32 s48, 7")
        a("s_cbranch_scc1 KA_AT3")
        sig(S_CD)
    a("s_branch KA_AT3")
    a("KA_AT2:")
    a("s_waitcnt vmcnt(0)")
    a("s_cmp_lg_u32 s48, 7")
    a("s_cbranch_scc1 KA_NOGF")
    sig(S_CD)
    a("KA_NOGF:")
    wait(S_GO, 1, nap=(2 if "nap2" in X else 1 if "naps" in X else 0))
    a("KA_AT3:")
    def kload(B, off): a(f"global_load_dwordx4 {vr(B,4)}, v4, s[58:59] offset:{off}{NK}")
    def vload(B, off):
        a("s_mov_b64 exec, s[62:63]")
        a(f"global_load_dwordx4 {vr(B+4,4)}, v6, s[58:59] offset:{off}{NK}")
        a(f"global_load_dwordx4 {vr(B+8,4)}, v6, s[58:59] offset:{off+512}{NK}")
        a("s_mov_b64 exec, -1")
    if "dly2" in X: a("s_sleep 16")
    if "it7" in X: a("s_mov_b32 s65, 1")
    kload(KBUF[0], -4096)
    for t in range(3):
        vload(KBUF[t], 1024 * t - 3072); kload(KBUF[t+1], 1024 * t - 3072)
    if "run" in X:
        a("s_cmp_lg_u32 s48, 1")
        a("s_cbranch_scc1 KA_NRUN")
        sig(S_RUN)
        a("KA_NRUN:")
    a("s_setprio 2")
    if "lst" not in X: a.stamp(7)
    a("s_waitcnt vmcnt(9) lgkmcnt(0)")
    a.stamp(7 if "lst" in X else 5)
    a(f"{MF} {vr(SA,16)}, {vr(KBUF[0],4)}, {vr(QA,4)}, 0")
    a("s_nop 11")
    a(".p2align 6")
    if "ph4" in X: a("s_nop 0")
    a("KA_LOOP:")
    if "ast" in X:
        for k, b in enumerate((1, 2, 3, 5)):
            a(f"s_cmp_lg_u32 s65, {b}\ns_cbranch_scc1 KA_Q{k}")
            a.stamp(1 + k)
            a(f"KA_Q{k}:")
    for u in range(4):
        B, Bn, Bp = KBUF[u], KBUF[(u+1) % 4], KBUF[(u+3) % 4]
        if u == (3 if "h3" in X else 2):
            a("s_bitcmp1_b32 s64, s65")
            a("s_cbranch_scc1 KA_SPECIAL")
            a("KA_BODY:")
        for unit in range(2):
            Sc, Sn, Oc, Op, Qn = (SA, SB, OA, OB, QB) if unit == 0 else (SB, SA, OB, OA, QA)
            for i in range(16):
                if i == 2:
                    a(f"{SM32} {vr(Op,16)}, {vr((Bp if unit == 0 else B)+8,4)}, {vr(Sn+8,8)}, v{IXV}")
                    if unit == 0: vload(Bp, 1024 * u)
                if i == 5:
                    a(f"{MF} {vr(Sn,16)}, {vr(B if unit == 0 else Bn,4)}, {vr(Qn,4)}, 0")
                    if unit == 0: kload(B, 1024 * u)
                if i == 11:
                    if unit == 0: a("s_waitcnt vmcnt(9)")
                    a(f"{SM32} {vr(Oc,16)}, {vr(B+4,4)}, {vr(Sc,8)}, v{IXV}")
                if i == 13 and u == 3 and unit == 1:
                    a("s_add_u32 s58, s58, 4096")
                    a("s_addc_u32 s59, s59, 0")
                    a("s_add_u32 s65, s65, 1")
                    a("s_cmp_lt_u32 s65, 8")
                a(f"v_exp_f32{'_e64' if 'e64' in X and i in (4, 15) else ''} v{Sc+i}, v{Sc+i}")
    a("s_cbranch_scc1 KA_LOOP")
    a("s_nop 0")
    a(f"{SM32} {vr(OB,16)}, {vr(KBUF[3]+8,4)}, {vr(SB+8,8)}, v{IXV}")
    if "lst" not in X: a.stamp(6)
    a("s_cmp_eq_u32 s55, 0")
    a("s_cbranch_scc1 KA_XA")
    for keep, send, lab in ((OB, OA, None), (OA, OB, "KA_XA")):
        if lab:
            a(f"{lab}:")
            a("s_nop 9")
        a(f"ds_write_b128 v16, {vr(send,4)}")
        a(f"ds_write_b128 v16, {vr(send+4,4)} offset:1024")
        a(f"ds_write_b32 v18, v{send+8} offset:2048")
        a("s_mov_b64 exec, 1")
        a(f"ds_add_u32 v20, v{VONE} offset:{S_OX}")
        a(f"ds_add_u32 v{VSY}, v{VONE} offset:{S_FIN}")
        a("s_mov_b64 exec, -1")
        if "dp" in X: wait(S_PC, 4)
        wait(S_OX, 2, 20, nap=(1 if "oxn" in X else 0))
        a(f"ds_read_b32 v{send+8}, v19 offset:2048")
        a(f"ds_read_b128 {vr(send,4)}, v17")
        a(f"ds_read_b128 {vr(send+4,4)}, v17 offset:1024")
        if not lab: a("s_branch KA_XJ")
    a("KA_XJ:")
    a("s_waitcnt lgkmcnt(2)")
    a(f"v_add_f32 v{SA}, v{OA+8}, v{OB+8}")
    a("s_waitcnt lgkmcnt(0)")
    a(f"v_rcp_f32 v{SA+1}, v{SA}")
    for i in range(8):
        a(f"v_add_f32 v{OA+i}, v{OA+i}, v{OB+i}")
    a.c("safety check of the zero stand-in for the row max: l inside [2^-80, 2^80] and O finite")
    a(f"v_cmp_nge_f32 vcc, v{SA}, v21")
    a(f"v_cmp_nle_f32 s[68:69], v{SA}, v22")
    for i in range(8):
        a(f"v_mul_f32 v{OA+i}, v{OA+i}, v{SA+1}")
    a(f"v_add_f32 v{SA+2}, |v{OA}|, |v{OA+1}|")
    a(f"v_add_f32 v{SA+3}, |v{OA+2}|, |v{OA+3}|")
    a(f"v_add_f32 v{SA+4}, |v{OA+4}|, |v{OA+5}|")
    a(f"v_add_f32 v{SA+5}, |v{OA+6}|, |v{OA+7}|")
    a(f"v_add_f32 v{SA+2}, v{SA+2}, v{SA+3}")
    a(f"v_add_f32 v{SA+4}, v{SA+4}, v{SA+5}")
    a(f"v_add_f32 v{SA+2}, v{SA+2}, v{SA+4}")
    a("s_or_b64 vcc, vcc, s[68:69]")
    a(f"v_cmp_nle_f32 s[68:69], v{SA+2}, v23")
    for i in range(4):
        a(f"v_cvt_pk_bf16_f32 v{P+i}, v{OA+2*i}, v{OA+2*i+1}")
    a("s_or_b64 vcc, vcc, s[68:69]")
    a("s_cbranch_scc1 KA_SLOW")
    a("KA_FIN:")
    if "dly3" in X: a("s_sleep 16")
    a(f"buffer_store_dwordx4 {vr(P,4)}, v4, s[44:47], s56 offen sc1")
    a("s_waitcnt vmcnt(0)")
    a("s_mov_b64 exec, 1")
    if "pw" in X: a("buffer_atomic_swap v153, v154, s[44:47], s74 offen sc1")
    a(f"ds_add_rtn_u32 v{VTMP}, v{VSY}, v{VONE} offset:{S_OD}")
    a("s_waitcnt lgkmcnt(0)")
    a(f"v_readfirstlane_b32 s76, v{VTMP}")
    a("s_cmp_lg_u32 s76, %d" % (99 if "pw" in X else 7))
    a("s_cbranch_scc1 KA_NLAST")
    a("buffer_atomic_swap v153, v154, s[44:47], s74 offen sc1" if "fat" in X else "buffer_store_dword v153, v154, s[44:47], s74 offen sc1")
    a("KA_NLAST:")
    if "fet" in X:
        a("s_mov_b64 exec, -1")
        a("s_lshl_b32 s72, s49, 2")
        a("s_and_b32 s73, s50, 3")
        a("s_add_u32 s72, s72, s73")
        a("s_lshl_b32 s73, s72, 16")
        a("s_lshl_b32 s60, s48, 13")
        a("s_add_u32 s73, s73, s60")
        a(f"s_add_u32 s73, s73, {W2_O}")
        a("s_add_u32 s61, s73, 4096")
        a(f"s_add_u32 s60, s60, {L_O}")
        a("s_lshl_b32 s72, s72, 11")
        a(f"s_add_u32 s72, s72, {W2_FO}")
        a("v_lshlrev_b32 v16, 7, s48")
        a("v_mov_b32 v154, 0x7ffffff0")
        a("s_lshl_b32 s59, s48, 2")
        wait4(S_WA)
        wait(S_OD, 8)
        a(f"s_mov_b32 s69, {SLOW_TRIES}")
        a("s_mov_b64 exec, 1")
        a("buffer_load_dword v17, v16, s[44:47], s72 offen sc1")
        a("KA_WP:")
        for cur, nxt in ((17, 18), (18, 17)):
            a(f"s_sleep {PSL}")
            a(f"buffer_load_dword v{nxt}, v16, s[44:47], s72 offen sc1")
            a("s_waitcnt vmcnt(1)")
            a(f"v_cmp_eq_u32 vcc, s52, v{cur}")
            a("s_cbranch_vccnz KA_WPD")
        a("s_sub_u32 s69, s69, 1")
        a("s_cbranch_scc0 KA_WP")
        a("KA_WPD:")
        a("s_mov_b32 m0, s60")
        a("s_mov_b64 exec, -1")
        for q in range(4): a(f"buffer_load_dwordx4 v4, s[44:47], s73 offen offset:{1024*q} sc1 lds")
        a("s_add_u32 m0, s60, 4096")
        a("s_nop 0")
        for q in range(4): a(f"buffer_load_dwordx4 v4, s[44:47], s61 offen offset:{1024*q} sc1 lds")
        dsig(f"s_add_u32 m0, s59, {L_SY+S_OA}")
        a("s_waitcnt vmcnt(0)")
    else:
        a("s_cmp_lg_u32 s76, 0")
        a("s_cbranch_scc1 KA_NFIRST")
        def pl(r):
            if "pat" in X:
                a(f"v_mov_b32 v{r}, 0")
                a(f"buffer_atomic_or v{r}, v16, s[44:47], s72 offen sc0 sc1")
            else:
                a(f"buffer_load_dword v{r}, v16, s[44:47], s72 offen " + ("sc0 sc1" if "psys" in X else "sc1 nt" if "pnt" in X else "sc0 sc1 nt" if "pall" in X else "sc1"))
        a("s_mov_b64 exec, %s" % ("-1" if "pw" in X else "0xff"))
        a("s_lshl_b32 s72, s49, 2")
        a("s_and_b32 s73, s50, 3")
        a("s_add_u32 s72, s72, s73")
        a("s_lshl_b32 s72, s72, 11")
        a(f"s_add_u32 s72, s72, {W2_FO}")
        if "pw" in X:
            a("v_and_b32 v16, 7, v1")
            a("v_lshlrev_b32 v16, 7, v16")
            a("v_lshrrev_b32 v17, 3, v1")
            a("v_lshl_add_u32 v16, v17, 2, v16")
        else:
            a("v_lshlrev_b32 v16, %d, v1" % (2 if "pk1" in X else 7))
        if "dp" in X:
            a("s_mov_b64 exec, -1")
            a(f"s_sub_u32 s73, s72, {W2_FO}")
            a("s_lshl_b32 s73, s73, 5")
            a(f"s_add_u32 s73, s73, {W2_O+1020}")
            a("v_and_b32 v20, 7, v1")
            a("v_lshlrev_b32 v20, 13, v20")
            a("v_lshrrev_b32 v17, 3, v1")
            a("v_lshl_add_u32 v20, v17, 10, v20")
            wait4(S_WA)
            a(f"s_mov_b32 s69, {0 if 'dt0' in X else 60}")
            def pd(r):
                a(f"v_mov_b32 v{r}, 0")
                a(f"buffer_atomic_or v{r}, v20, s[44:47], s73 offen sc0 sc1")
            pd(24)
            a("KA_DP:")
            for cur, nxt in ((24, 25), (25, 24)):
                if PSL: a(f"s_sleep {PSL}")
                pd(nxt)
                a("s_waitcnt vmcnt(1)")
                a(f"v_cmp_ne_u32 vcc, -1, v{cur}")
                a("s_and_b32 s60, vcc_lo, vcc_hi")
                a("s_lshr_b32 s61, s60, 16")
                a("s_and_b32 s60, s60, s61")
                a("s_lshr_b32 s61, s60, 8")
                a("s_and_b32 s60, s60, s61")
                a("v_mov_b32 v19, s60")
                a(f"ds_write_b32 v{VSY}, v19 offset:{S_PO}")
                a("s_cmp_eq_u32 s60, 0xff")
                a("s_cbranch_scc1 KA_DPD")
            a("s_sub_u32 s69, s69, 1")
            a("s_cbranch_scc0 KA_DP")
            a("KA_DPD:")
            a("s_waitcnt vmcnt(0)")
            a("s_mov_b64 exec, 0xff")
        a(f"s_mov_b32 s69, {SLOW_TRIES}")
        for k in range(PDP - 1):
            pl(24 + k)
            if PSL and k < PDP - 2: a(f"s_sleep {PSL}")
        a("KA_WP:")
        for cur, nxt in [(24 + k, 24 + (k + PDP - 1) % PDP) for k in range(PDP)]:
            if PSL: a(f"s_sleep {PSL}")
            pl(nxt)
            a(f"s_waitcnt vmcnt({PDP-1})")
            a(f"v_cmp_eq_u32 vcc, s52, v{cur}")
            if "pw" in X:
                a("s_and_b32 s60, vcc_lo, vcc_hi")
                a("s_lshr_b32 s61, s60, 16")
                a("s_and_b32 s60, s60, s61")
                a("s_lshr_b32 s61, s60, 8")
                a("s_and_b32 s60, s60, s61")
                a("v_mov_b32 v19, s60")
                a(f"ds_write_b32 v{VSY}, v19 offset:{S_PO}")
                a("s_cmp_eq_u32 s60, 0xff")
            else:
                a("s_nop 1")
                a("v_mov_b32 v19, vcc_lo")
                if "dp" in X: a("v_mul_u32_u24 v19, 0x101, v19")
                a(f"ds_or_b32 v{VSY}, v19 offset:{S_PO}")
                a("s_cmp_eq_u32 vcc_lo, 0xff")
            a("s_cbranch_scc1 KA_NFIRST")
        a("s_sub_u32 s69, s69, 1")
        a("s_cbranch_scc0 KA_WP")
        a("KA_NFIRST:")
    a.end(0)
    a("KA_SPECIAL:")
    if "lkw" in X: sig(S_WB)
    a("s_setprio 1")
    a(f"s_cmp_eq_u32 s65, {PRIO1}")
    a("s_cbranch_scc1 KA_BODY")
    a("s_setprio 0")
    a("s_branch KA_BODY")
    a.c("fallback: true row max over all keys, then recompute this query tile")
    a("KA_SLOW:")
    B = KBUF[0]
    a("s_cmp_eq_u32 s55, 0")
    a("s_cbranch_scc1 KA_SLQ")
    for i in range(4): a(f"v_mov_b32 v{QA+i}, v{QB+i}")
    a("KA_SLQ:")
    a("s_waitcnt vmcnt(0)")
    a(f"v_mov_b32 v{SB}, 0xff800000")
    a("s_add_u32 s58, s34, s57")
    a("s_addc_u32 s59, s35, 0")
    a("s_mov_b32 s65, 0")
    a("KA_MAXL:")
    kload(B, 0)
    a("s_add_u32 s58, s58, 1024")
    a("s_addc_u32 s59, s59, 0")
    a("s_add_u32 s65, s65, 1")
    a("s_waitcnt vmcnt(0)")
    a(f"{MF} {vr(SA,16)}, {vr(B,4)}, {vr(QA,4)}, 0")
    a("s_nop 15")
    for i in range(8):
        a(f"v_max3_f32 v{SB}, v{SA+2*i}, v{SA+2*i+1}, v{SB}")
    a("s_cmp_lt_u32 s65, 64")
    a("s_cbranch_scc1 KA_MAXL")
    a(f"v_mov_b32 v{SB+1}, v{SB}")
    a("s_nop 1")
    a(f"v_permlane32_swap_b32 v{SB}, v{SB+1}")
    a(f"v_max_f32 v{SB}, v{SB}, v{SB+1}")
    for i in range(16):
        a(f"v_mov_b32 v{OA+i}, 0")
    a("s_add_u32 s58, s34, s57")
    a("s_addc_u32 s59, s35, 0")
    a("s_mov_b32 s65, 0")
    a("KA_SLOWL:")
    kload(B, 0); vload(B, 1024)
    a("s_add_u32 s58, s58, 1024")
    a("s_addc_u32 s59, s59, 0")
    a("s_add_u32 s65, s65, 1")
    a("s_waitcnt vmcnt(0)")
    a(f"{MF} {vr(SA,16)}, {vr(B,4)}, {vr(QA,4)}, 0")
    a("s_nop 15")
    for i in range(16):
        a(f"v_sub_f32 v{SA+i}, v{SA+i}, v{SB}")
    for i in range(16):
        a(f"v_exp_f32 v{SA+i}, v{SA+i}")
    a("s_nop 1")
    a(f"{SM32} {vr(OA,16)}, {vr(B+4,4)}, {vr(SA,8)}, v{IXV}")
    a(f"{SM32} {vr(OA,16)}, {vr(B+8,4)}, {vr(SA+8,8)}, v{IXV}")
    a("s_nop 7")
    a("s_cmp_lt_u32 s65, 64")
    a("s_cbranch_scc1 KA_SLOWL")
    a("s_nop 15")
    a(f"v_rcp_f32 v{SA}, v{OA+8}")
    a("s_nop 0")
    for i in range(8):
        a(f"v_mul_f32 v{OA+i}, v{OA+i}, v{SA}")
    for i in range(4):
        a(f"v_cvt_pk_bf16_f32 v{P+i}, v{OA+2*i}, v{OA+2*i+1}")
    a("s_branch KA_FIN")

    a("KA_LZ:")
    a("v_mov_b32 v8, 0")
    a("v_lshlrev_b32 v5, 2, v1")
    a(f"v_add_u32 v5, {L_KP+4100}, v5")
    for c in range(4):
        if c % 2 == 0: a("s_mov_b64 exec, %s" % ("0x7fff" if c == 0 else "0x7ffe"))
        for ch in range(2): a(f"ds_write_b32 v5, v8 offset:{c*KPC+ch*KPROW}")
    a("s_mov_b64 exec, 1")
    a(f"ds_add_u32 v{VSY}, v{VONE} offset:{S_KN}")
    a(f"ds_add_u32 v{VSY}, v{VONE} offset:{S_KN+4}")
    a("s_mov_b64 exec, -1")
    a("s_branch KA_ATT")
    a("KA_LG:")
    def grd(c):
        a(f"ds_read_b128 {vr(64+4*c,4)}, v12 offset:{8192*c}")
        a(f"ds_read_b128 {vr(96+4*c,4)}, v{40+c}")
    grd(0); grd(1); grd(2)
    need(13)
    a("s_barrier")
    grd(3); grd(4); grd(5); grd(6)
    need(14)
    a("s_barrier")
    a("s_waitcnt lgkmcnt(6)")
    grd(7)
    need(15, " lgkmcnt(0)")
    a("s_barrier")
    a.stamp(2)
    a("v_mov_b32 v9, 0")
    a("s_lshl_b32 s58, s50, 9")
    a(f"s_add_u32 s58, s58, {W2_G}")
    a("v_lshlrev_b32 v5, 3, v10")
    for i in range(32): a(f"v_dot2_f32_bf16 v9, v{64+i}, v{96+i}, v9")
    a("s_nop 3")
    a("v_add_f32_dpp v9, v9, v9 quad_perm:[1,0,3,2] row_mask:0xf bank_mask:0xf")
    a("s_nop 1")
    a("v_add_f32_dpp v9, v9, v9 quad_perm:[2,3,0,1] row_mask:0xf bank_mask:0xf")
    a("s_nop 1")
    a("v_add_f32_dpp v9, v9, v9 row_half_mirror row_mask:0xf bank_mask:0xf")
    a("v_cvt_pk_bf16_f32 v9, v9, v9")
    a("v_and_b32 v9, 0xffff0000, v9")
    a(f"v_mul_f32 v9, {hex(f2u(-LOG2E))}, v9")
    a("v_exp_f32 v9, v9")
    a("s_nop 0")
    a("v_add_f32 v9, 1.0, v9")
    a("v_rcp_f32 v9, v9")
    a("s_nop 0")
    a("v_cvt_pk_bf16_f32 v10, v9, v9")
    a("v_and_b32 v10, 0xffff0000, v10")
    a("v_sub_f32 v11, 1.0, v10")
    a("v_cvt_pk_bf16_f32 v11, v11, v11")
    a("v_and_b32 v11, 0xffff0000, v11")
    a("s_mov_b32 exec_lo, 0x01010101")
    a("s_mov_b32 exec_hi, 0x01010101")
    a("buffer_store_dwordx2 v[10:11], v5, s[44:47], s58 offen sc1")
    a("s_mov_b64 exec, -1")
    a("s_branch KA_ATT")

    a("KA_CONS0:")
    if "cnear" not in X: cpf()
    a("KA_CONS:")
    common()
    if not NF:
        a(f"v_lshl_add_u32 v5, v1, 2, v{VSY}")
        a("v_cmp_gt_u32 vcc, 24, v1")
        a("v_mov_b32 v6, 0")
        a("v_addc_co_u32 v6, vcc, 0, v6, vcc")
        a("ds_write_b32 v5, v6")
    a("s_setprio 3")
    ACC, FB = 112, 32
    XA, WAD, FLA = 16, 20, 21
    a("s_and_b32 s54, s48, 1")
    a("s_lshr_b32 s55, s48, 1")
    a("v_and_b32 v5, 31, v1")
    a("s_lshl_b32 s56, s54, 12")
    a("v_lshl_add_u32 v6, v5, 7, s56")
    a("v_bfe_u32 v7, v5, 1, 3")
    a("v_xor_b32 v7, v7, v3")
    a(f"v_lshl_add_u32 v{XA}, v7, 4, v6")
    for ks in range(1, 4):
        a(f"v_xor_b32 v{XA+ks}, {ks<<5}, v{XA}")
    a("v_bfe_u32 v7, v1, 2, 2")
    a("v_lshl_add_u32 v6, v3, 3, v7")
    a("v_lshlrev_b32 v6, 7, v6")
    a("v_lshrrev_b32 v7, 1, v7")
    a("v_xor_b32 v7, s55, v7")
    a("v_lshl_add_u32 v6, v7, 6, v6")
    a("v_bfe_u32 v7, v1, 4, 1")
    a("v_lshl_add_u32 v6, v7, 5, v6")
    a("v_and_b32 v7, 3, v1")
    a("v_lshl_add_u32 v6, v7, 3, v6")
    a(f"v_add_u32 v{WAD}, {L_W}, v6")
    for i in range(48):
        a(f"v_mov_b32 v{ACC+i}, 0")
    a("s_lshl_b32 s58, s48, 10")
    a(f"s_add_u32 s58, s58, {L_U}")
    a("v_add_u32 v5, s58, v4")
    a(f"ds_write_b128 v5, {vr(ACC,4)}")
    a(f"v_add_u32 v5, {L_U+4096}, v4")
    a("s_mov_b64 exec, 0x7fffff")
    a(f"ds_write_b128 v5, {vr(ACC,4)}")
    a("s_mov_b64 exec, -1")
    a("s_waitcnt lgkmcnt(0)")
    srd(a, 44, 34, 35, W2_END)
    WB = 22
    a("v_lshrrev_b32 v25, 1, v1")
    a("v_xor_b32 v25, v25, v1")
    a("v_and_b32 v25, 4, v25")
    a("v_mul_u32_u24 v25, 3, v25")
    a("v_xor_b32 v25, v25, v1")
    a("v_lshlrev_b32 v25, 4, v25")
    a(f"v_mov_b32 v{WB}, v{WAD}")
    def reads(step):
        F = FB + 16 * (step & 3)
        xo = (step >> 2) * 8192
        wo = (step & 1) * 2048
        r = [f"ds_read_b128 {vr(F,4)}, v{XA+(step&3)} offset:{xo}"]
        for ct in range(3):
            for hh in range(2):
                r.append(f"ds_read_b64_tr_b16 {vr(F+4+4*ct+2*hh,2)}, v{WAD} offset:{wo+ct*4096+hh*512}")
        return r
    def mfmas(step):
        F = FB + 16 * (step & 3)
        r = []
        for ct in range(3):
            x, w = vr(F, 4), vr(F + 4 + 4 * ct, 4)
            A, B = (w, x) if ct < 2 else (x, w)
            r.append(f"{MF} {vr(ACC+16*ct,16)}, {A}, {B}, {vr(ACC+16*ct,16)}")
        return r
    a("s_mov_b32 s58, 0")
    a("s_mov_b32 s57, 3")
    if NF: wait4(S_OA, nap=1)
    else: a("s_barrier")
    a.stamp(1)
    for t in reads(0) + reads(1): a(t)
    if "al" in X: a(".p2align 6")
    if "gph4" in X: a("s_nop 0")
    a("KA_GEMM:")
    for st in range(8):
        m, r = mfmas(st), reads(st + 2)
        if st % 2 == 0:
            a("s_add_u32 s58, s58, 12288")
            a(f"s_cmp_eq_u32 s58, {NSLOT*12288}")
            a("s_cselect_b32 s58, 0, s58")
            a(f"v_add_u32 v{WAD}, s58, v{WB}")
            if st == 6: a("s_cmp_eq_u32 s57, 0")
            elif st // 2 + 1 < NF: a("s_cmp_eq_u32 s57, 3")
        a("s_waitcnt lgkmcnt(7)")
        a(m[0])
        if st == 6: a("s_cbranch_scc1 KA_GEND")
        if st % 2 == 0:
            if st // 2 + 1 < NF: a(f"s_cbranch_scc1 KA_GW{st}")
            a("s_barrier")
            if st // 2 + 1 < NF: a(f"KA_GR{st}:")
        [a(t) for t in r[:3]]; a(m[1]); [a(t) for t in r[3:6]]; a(m[2]); a(r[6])
    for k in range(4):
        a(f"v_add_u32 v{XA+k}, 16384, v{XA+k}")
    a("s_sub_u32 s57, s57, 1")
    a("s_branch KA_GEMM")
    for st in (0, 2, 4):
        if st // 2 + 1 < NF:
            a(f"KA_GW{st}:")
            wait4(S_OA + 16 * (st // 2 + 1))
            a(f"s_branch KA_GR{st}")
    a("KA_GEND:")
    m = mfmas(6); a(m[1]); a(m[2])
    a("s_waitcnt lgkmcnt(0)")
    for t in mfmas(7): a(t)
    a.stamp(2)
    a("s_lshl_b32 s58, s50, 1")
    a("s_add_u32 s58, s58, s54")
    a("s_lshl_b32 s58, s58, 10")
    a(f"s_mul_i32 s59, s55, {2*G_HEAD}")
    a("s_add_u32 s58, s58, s59")
    a("s_add_u32 s58, s58, s51")
    a(f"s_add_u32 s59, s58, {G_HEAD}")
    a("s_add_u32 s62, s58, 65536")
    a(f"s_mov_b32 s63, {hex(QSCALE)}")
    a("v_bfe_u32 v5, v1, 4, 1")
    a(f"v_mul_u32_u24 v5, {G_HEAD}, v5")
    a("v_and_b32 v6, 15, v1")
    a("v_lshl_add_u32 v6, v3, 4, v6")
    a("v_lshl_add_u32 v6, v6, 4, v5")
    for i in range(8):
        a(f"v_cvt_pk_bf16_f32 v{16+i}, v{ACC+16+2*i}, v{ACC+16+2*i+1}")
    a("buffer_store_dwordx4 v[16:19], v25, s[44:47], s58 offen" + NT)
    a("buffer_store_dwordx4 v[20:23], v25, s[44:47], s59 offen" + NT)
    for i in range(8):
        a(f"v_cvt_pk_bf16_f32 v{96+i}, v{ACC+32+2*i}, v{ACC+32+2*i+1}")
    a("buffer_store_dwordx4 v[96:99], v6, s[44:47], s62 offen" + NT)
    a("buffer_store_dwordx4 v[100:103], v6, s[44:47], s62 offen offset:512" + NT)
    wait(S_NONCE, 1, out=52)
    for i in range(16):
        a(f"v_mul_f32 v{ACC+i}, s63, v{ACC+i}")
    a("s_lshl_b32 s60, s55, 12")
    a("s_lshl_b32 s61, s54, 10")
    a("s_add_u32 s60, s60, s61")
    a(f"s_add_u32 s60, s60, {L_Q}")
    a("v_add_u32 v5, s60, v4")
    for i in range(8):
        a(f"v_cvt_pk_bf16_f32 v{32+i}, v{ACC+2*i}, v{ACC+2*i+1}")
    a("ds_write_b128 v5, v[32:35]")
    a("ds_write_b128 v5, v[36:39] offset:2048")
    sig(S_QRDY)
    mktag(512)
    a("s_lshl_b32 s60, s48, 7")
    a("s_lshl_b32 s61, s50, 2")
    a("s_add_u32 s60, s60, s61")
    a("v_mov_b32 v156, s60")
    a("s_waitcnt vmcnt(0)")
    publish()
    sig(S_DONE)
    if "tq2" in X:
        a("s_and_b32 s60, s50, 15")
        a("s_cmp_ge_u32 s60, 2")
        a("s_cbranch_scc1 KA_NTQ")
        a("v_bfe_u32 v5, v1, 4, 2")
        a("v_lshlrev_b32 v5, 16, v5")
        a("v_and_b32 v7, 15, v1")
        a("v_lshl_add_u32 v5, v7, 6, v5")
        a("buffer_load_dword v163, v5, s[44:47], s58 offen sc1")
        a("KA_NTQ:")
    a.stamp(3)
    a("s_branch KA_ATT")

    a("KA_AUX0:")
    common()
    import ka_aux
    ka_aux.gen_aux(a, sig, wait, wait4, lbl, X, gettag, mktag, publish, collect, dsig, NF)
    a("KA_END:")
    a("s_endpgm")
    return a.text(), 168
```

```python
from common import *
from ka import *

def gen_aux(a, sig, wait, wait4, lbl, X, gettag, mktag, publish, collect, dsig, NF):
    import ka
    cmul = ka.cmul if "nopk" in X else ka.cmul_pk
    PSL = 1 if "ps1" in X else 8 if "ps8" in X else 3
    FINN = 4 if "f4" in X else 1 if "f1" in X else 8
    DATA_TRIES = 0 if "dt0" in X else 200
    st = (lambda i: None) if "p3st" in X else a.stamp
    a("KA_AUX:")
    a("s_and_b32 s61, s54, 1")
    a("s_lshr_b32 s62, s54, 1")
    a("s_mov_b32 s52, 0")
    srd(a, 44, 34, 35, W2_END)
    a("s_lshl_b32 s63, s2, 2")
    a("s_add_u32 s63, s63, s54")
    a("s_cmp_lg_u32 s63, 3")
    a("s_cbranch_scc1 KA_NOPUB")
    a("s_memrealtime s[64:65]")
    a("s_waitcnt lgkmcnt(0)")
    a("s_or_b32 s64, s64, 1")
    a("v_mov_b32 v158, 0")
    a("v_mov_b32 v159, s64")
    a("s_mov_b64 exec, 1")
    a("global_store_dword v158, v159, s[32:33] sc1")
    a("s_mov_b64 exec, -1")
    a("KA_NOPUB:")
    a("v_and_b32 v7, 31, v1")
    Z = 160
    a("v_and_b32 v36, 1, v1")
    a("v_lshlrev_b32 v36, 4, v36")
    a("v_mov_b32 v37, 0x3f80")
    a("v_lshlrev_b32 v36, v36, v37")
    a("v_bfe_u32 v37, v1, 1, 2")
    for d in range(4):
        a(f"v_cmp_eq_u32 s[{64+2*d}:{65+2*d}], {d}, v37")
    a("s_nop 0")
    for d in range(4):
        a(f"v_cndmask_b32 v{Z+d}, 0, v36, s[{64+2*d}:{65+2*d}]")
    a("s_lshl_b32 s63, s54, 11")
    a(f"s_add_u32 s63, s63, {L_XCH}")
    a("v_add_u32 v16, s63, v4")
    a(f"s_mul_i32 s63, s62, {KPROW}")
    a(f"s_add_u32 s63, s63, {L_KP}")
    a("v_lshl_add_u32 v19, v7, 4, s63")
    a("s_lshl_b32 s64, s62, 2")
    a(f"v_add_u32 v167, s64, v{VSY}")
    a("v_lshrrev_b32 v32, 2, v7")
    a("v_lshlrev_b32 v32, 3, v32")
    a("v_sub_u32 v33, 4128, v32")
    a("v_lshl_add_u32 v33, v3, 4, v33")
    a("v_and_b32 v32, 3, v7")
    a(f"v_mul_u32_u24 v32, {KPC}, v32")
    a("s_lshl_b32 s64, s61, 6")
    a("s_sub_u32 s64, s63, s64")
    a("s_sub_u32 s64, s64, 416")
    a("v_add3_u32 v38, v32, v33, s64")
    a("v_mul_u32_u24 v39, 144, v7")
    a("v_lshl_add_u32 v39, v3, %d, v39" % (5 if "utw" in X else 4))
    a("s_lshl_b32 s64, s62, %d" % (4 if "utw" in X else 6))
    a("s_mul_i32 s65, s61, 144")
    a("s_sub_u32 s64, s64, s65")
    a(f"s_add_u32 s64, s64, {L_U+31*144-864}")
    a("v_add_u32 v39, s64, v39")
    a("s_lshl_b32 s64, s54, 6")
    for k, r in enumerate((2, 5, 6)):
        a("v_add_u32 v32, s64, v1")
        if k: a(f"v_add_u32 v32, {256*k}, v32")
        a("v_mul_u32_u24 v33, 7282, v32")
        a("v_lshrrev_b32 v33, 16, v33")
        a("v_mul_u32_u24 v34, 9, v33")
        a("v_sub_u32 v34, v32, v34")
        a("v_min_u32 v34, 7, v34")
        if "utw" in X:
            a("v_lshrrev_b32 v35, 1, v34")
            a("v_lshl_add_u32 v33, v33, 2, v35")
            a("v_and_b32 v34, 1, v34")
            a("v_lshlrev_b32 v34, 4, v34")
            a(f"v_lshl_add_u32 v{r}, v33, 10, v34")
        else:
            a("v_lshlrev_b32 v34, 4, v34")
            a(f"v_lshl_add_u32 v{r}, v33, 7, v34")
    a("s_lshl_b32 s74, s50, %d" % (5 if "utw" in X else 13))
    a("s_add_u32 s74, s74, s51")
    a(f"s_add_u32 s74, s74, {G_UT}")
    a("s_lshl_b32 s75, s54, 10")
    a(f"s_add_u32 s75, s75, {L_U+31*144}")
    a("s_lshl_b32 s60, s54, 2")
    a(f"s_add_u32 s60, s60, {L_SY+S_UA}")
    a("s_lshl_b32 s58, s61, 12")
    a("s_sub_u32 s58, 2048, s58")
    a(f"s_mov_b32 s63, {hex(LOG2E_HI)}")
    a("s_waitcnt vmcnt(7)")
    a("v_mul_f32 v17, s63, v14")
    a("v_fma_f32 v18, v14, s63, -v17")
    a(f"v_fmac_f32 v18, {hex(LOG2E_LO)}, v14")
    a("v_exp_f32 v17, v17")
    a(f"v_mul_f32 v18, {hex(LN2)}, v18")
    a("v_fma_f32 v17, v17, v18, v17")
    a("v_cvt_pk_bf16_f32 v17, v17, v17")
    a("v_and_b32 v17, 0xffff0000, v17")
    a("s_waitcnt vmcnt(0)")
    st(1)
    for r in (8, 9, 10, 11):
        a(f"v_mul_f32 v{r}, v17, v{r}")
    a("v_mul_f32 v8, s63, v8")
    a("v_mul_f32 v9, 0.15915494, v9")
    W1, W8, W256, W2, W4, W16 = 20, 22, 24, 26, 28, 30
    tmp = 32
    for k, mult in enumerate((1.0, 8.0, 256.0)):
        t = tmp + 2 * k
        a(f"v_mul_f32 v{t}, {hex(f2u(mult))}, v8")
        a(f"v_mul_f32 v{t+1}, {hex(f2u(mult))}, v9")
    for k in range(3):
        t = tmp + 2 * k
        a(f"v_exp_f32 v{t}, v{t}")
        a(f"v_fract_f32 v{t+1}, v{t+1}")
    for k, wr in enumerate((W1, W8, W256)):
        t = tmp + 2 * k
        a(f"v_cos_f32 v{wr}, v{t+1}")
        a(f"v_sin_f32 v{wr+1}, v{t+1}")
    U = {}
    nxt = [40]
    def newU(av):
        U[av] = {524: 8, 780: 10}.get(av) or nxt[0]
        if U[av] == nxt[0]: nxt[0] += 2
        return U[av]
    for l in cmul(newU(0), 12, 10): a(l)
    for k, wr in enumerate((W1, W8, W256)):
        t = tmp + 2 * k
        a(f"v_mul_f32 v{wr}, v{t}, v{wr}")
        a(f"v_mul_f32 v{wr+1}, v{t}, v{wr+1}")
    for l in interleave([cmul(W2, W1, W1), cmul(W16, W8, W8)]): a(l)
    for l in cmul(W4, W2, W2): a(l)
    WA, WB, WR, WI, UR, UI = 96, 100, 112, 128, 144, 96
    wops = [f"v_cvt_pk_bf16_f32 v{WR+15}, v{W8}, 1.0", f"v_cvt_pk_bf16_f32 v{WI+15}, v{W8+1}, 0"]
    ca, cb = W16, None
    wops += cmul(WB, W8, W16); cb = WB
    for k in range(1, 16):
        pk = [f"v_cvt_pk_bf16_f32 v{WR+15-k}, v{cb}, v{ca}", f"v_cvt_pk_bf16_f32 v{WI+15-k}, v{cb+1}, v{ca+1}"]
        if k < 15:
            na, nb = WA + 2 * (k & 1), WB + 2 * (k & 1)
            wops += interleave([cmul(na, ca, W16), cmul(nb, cb, W16), pk])
            ca, cb = na, nb
        else:
            wops += pk
    u1 = []; prev = 0
    for av in (256, 512, 768, 1024, 1280, 1536, 1792):
        u1 += cmul(newU(av), U[prev], W256); prev = av
    for av in (1024, 1280, 1536, 1792):
        u1 += cmul(newU(av + 8), U[av], W8)
    for av in (516, 520, 524):
        u1 += cmul(newU(av), U[av - 4], W4)
    u2 = []
    for av in range(1, 9):
        u2 += cmul(newU(av), U[av - 1], W1)
    for av in (258, 260, 262, 264):
        u2 += cmul(newU(av), U[av - 2], W2)
    for av in (772, 776, 780):
        u2 += cmul(newU(av), U[av - 4], W4)
    assert nxt[0] <= 96
    for l in interleave([wops, interleave([u1, u2])]): a(l)
    rows = [0,1,2,3,4,5,6,7, 256,258,260,4,260,262,264,8, 512,516,520,524,768,772,776,780,
            1024,1032,1280,1288,1536,1544,1792,1800]
    for p in range(16):
        x, y = U[rows[2*p]], U[rows[2*p+1]]
        a(f"v_cvt_pk_bf16_f32 v{UR+p}, v{x}, v{y}")
        a(f"v_cvt_pk_bf16_f32 v{UI+p}, -v{x+1}, -v{y+1}")
    TD, ES, KD = 40, 88, 20
    nb = [NF]
    def bar(n=1):
        for _ in range(n):
            a("s_barrier"); nb[0] += 1
    for q in range(2):
        a(f"s_mov_b32 s64, {hex(0xff << (8*q))}")
        a(f"s_mov_b32 s65, {hex(0xff0000 << (8*q))}")
        for d in range(4):
            a(f"v_cndmask_b32 v{ES+4*q+d}, 0, v{Z+d}, s[64:65]")
    a("s_load_dword s52, s[32:33], 0")
    halves = [Xm + 8 * hf for Xm in (WR, UR, WI, UI) for hf in range(2)]
    def tm(i):
        T = TD + 16 * (i % 3)
        return [f"{MF} {vr(T,16)}, {vr(halves[i],4)}, {vr(ES,4)}, 0", f"{MF} {vr(T,16)}, {vr(halves[i]+4,4)}, {vr(ES+4,4)}, {vr(T,16)}"]
    def tc(i):
        T = TD + 16 * (i % 3)
        return [f"v_cvt_pk_bf16_f32 v{halves[i]+k}, v{T+2*k}, v{T+2*k+1}" for k in range(8)]
    def ts(Xm): return [f"v_permlane16_swap_b32 v{Xm+k}, v{Xm+8+k}" for k in range(8)]
    def fin(XU, XW, first): return [f"{MF} {vr(KD,16)}, {vr(XU+4*i,4)}, {vr(XW+4*i,4)}, " + ("0" if first and i == 0 else vr(KD,16)) for i in range(4)]
    def mixm(m, v):
        n = (len(v) + len(m) - 1) // len(m)
        for i, t in enumerate(m):
            a(t)
            for u in v[i*n:(i+1)*n]: a(u)
    a("s_nop 0")
    for t in tm(0) + tm(1) + tm(2): a(t)
    a("s_nop 7")
    for t in tc(0): a(t)
    mixm(tm(3), ["s_nop 0"] + tc(1))
    mixm(tm(4), tc(2) + ts(WR))
    mixm(tm(5), tc(3))
    mixm(tm(6), tc(4) + ts(UR))
    mixm(tm(7), tc(5))
    mixm(fin(UR, WR, True), tc(6) + ts(WI) + tc(7))
    a("s_nop 1")
    for t in ts(UI): a(t)
    a("s_nop 1")
    for t in fin(UI, WI, False): a(t)
    NPRE = 4
    a("v_lshlrev_b32 v157, 2, v7")
    a("v_lshlrev_b32 v156, 2, s50")
    a("v_mov_b32 v154, 0x7ffffff0")
    a("v_add_u32 v17, s58, v16")
    a("s_cmp_eq_u32 s61, s62")
    a("s_nop 6")
    a("s_cbranch_scc1 KA_X0")
    for i in range(8): a(f"v_swap_b32 v{KD+i}, v{KD+8+i}")
    a("KA_X0:")
    a(f"ds_write_b128 v16, {vr(KD+8,4)}")
    a(f"ds_write_b128 v16, {vr(KD+12,4)} offset:1024")
    if "xw" in X: a("s_waitcnt lgkmcnt(0)")
    if NPRE == 4: st(2)
    bar(max(4 - nb[0], 1))
    gettag()
    mktag(0)
    a("s_cmp_lg_u32 s54, 0")
    a("s_cbranch_scc1 KA_NPB")
    publish()
    a("KA_NPB:")
    bar(5 - nb[0])
    D0, D1, FA, FB, FC = 112, 128, 48, 64, 80
    PW, PG, PA, PF, POF, PWF, POUT, PM, PS, PD = 144, 148, 149, 150, 151, 152, 153, 100, 108, 109
    w = ["v_lshrrev_b32 v8, 3, v1", "v_bfe_u32 v9, v1, 4, 1", "v_lshlrev_b32 v9, 2, v9", "v_and_b32 v10, 7, v1", "v_xor_b32 v9, v9, v10",
         "v_lshlrev_b32 v9, 4, v9", f"v_lshl_add_u32 v{PW}, v8, 10, v9"] + [f"v_add_u32 v{PW+q}, {7168*q}, v{PW}" for q in range(1, 4)]
    w += [f"v_lshlrev_b32 v{PF}, 7, v10", f"v_lshlrev_b32 v{PG}, 3, v7", f"v_lshlrev_b32 v{PD}, 12, v8", f"v_lshl_add_u32 v{PD}, v10, 4, v{PD}",
          "s_lshl_b32 s63, s62, 12", "s_lshl_b32 s64, s61, 4", "s_add_u32 s63, s63, s64", f"s_add_u32 s63, s63, {L_GA}",
          f"v_lshl_add_u32 v{PA}, v7, 7, s63", f"v_lshl_add_u32 v{PA}, v3, 5, v{PA}",
          f"v_lshlrev_b32 v{POUT}, 10, v7", f"v_lshl_add_u32 v{POUT}, v3, 4, v{POUT}",
          "s_lshl_b32 s63, s54, 11", f"s_add_u32 s63, s63, {L_GT}", f"v_add_u32 v{POF}, s63, v4",
          "v_lshrrev_b32 v8, 1, v7", f"v_lshl_add_u32 v{PS}, v8, 7, s63", f"v_lshl_add_u32 v{PS}, v3, 5, v{PS}", "v_and_b32 v8, 1, v7", f"v_lshl_add_u32 v{PS}, v8, 4, v{PS}",
          "v_bfe_u32 v8, v1, 2, 2", f"v_lshl_add_u32 v{PWF}, v3, 2, v8", f"v_lshlrev_b32 v{PWF}, 7, v{PWF}", "v_lshrrev_b32 v8, 1, v8", "v_xor_b32 v8, s62, v8",
          f"v_lshl_add_u32 v{PWF}, v8, 6, v{PWF}", "v_bfe_u32 v8, v1, 4, 1", f"v_lshl_add_u32 v{PWF}, v8, 5, v{PWF}", "v_and_b32 v8, 3, v1",
          f"v_lshl_add_u32 v{PWF}, v8, 3, v{PWF}", f"v_add_u32 v{PWF}, {L_WO}, v{PWF}"]
    w += ["v_lshrrev_b32 v8, 3, v7", "v_bfe_u32 v9, v7, 1, 1", "v_lshl_add_u32 v8, v8, 1, v9", "v_bfe_u32 v9, v7, 2, 1", "v_xor_b32 v9, v9, v3",
          "v_lshl_add_u32 v8, v9, 3, v8", "v_and_b32 v9, 1, v7", "v_lshlrev_b32 v9, 4, v9", "v_mov_b32 v10, 0xffff", "v_lshlrev_b32 v9, v9, v10"]
    w += [f"v_cmp_eq_u32 s[{4+2*k}:{5+2*k}], {k}, v8" for k in range(8)] + ["s_nop 0"]
    w += [f"v_cndmask_b32 v{PM+k}, 0, v9, s[{4+2*k}:{5+2*k}]" for k in range(8)]
    n = (len(w) + 3) // 4
    for k in range(3):
        bar()
        for t in w[k*n:(k+1)*n]: a(t)
    a("s_waitcnt lgkmcnt(0)")
    bar()
    a(f"ds_read_b128 {vr(KD+8,4)}, v17")
    a(f"ds_read_b128 {vr(KD+12,4)}, v17 offset:1024")
    for t in w[3*n:]: a(t)
    bar()
    a("buffer_load_dword v158, v157, s[44:47], s67 offen sc1")
    a("s_waitcnt lgkmcnt(0)")
    for i in range(8):
        a(f"v_add_f32 v{KD+i}, v{KD+i}, v{KD+8+i}")
    def uload():
        l = lbl("UL")
        a("s_mov_b32 m0, s75")
        a("s_cmp_lg_u32 s54, 0")
        a("buffer_load_dwordx4 v2, s[44:47], s74 offen" + (" nt" if "ntu" in X else "") + " lds")
        a(f"s_cbranch_scc1 {l}")
        a("s_add_u32 m0, s75, 8192")
        a("s_nop 0")
        a("buffer_load_dwordx4 v6, s[44:47], s74 offen" + (" nt" if "ntu" in X else "") + " lds")
        a(f"{l}:")
        a("s_add_u32 m0, s75, 4096")
        a("s_nop 0")
        a("buffer_load_dwordx4 v5, s[44:47], s74 offen" + (" nt" if "ntu" in X else "") + " lds")
        dsig("s_mov_b32 m0, s60")
    def tail(work):
        l = lbl("UE")
        work = work + [f"v_mov_b32 v{D0+i}, 0" for i in range(32)]
        n = (len(work) + 3) // 4
        parts = [work[i*n:(i+1)*n] for i in range(4)]
        a("s_barrier")
        for t in parts[0]: a(t)
        a("s_barrier")
        for t in parts[1]: a(t)
        a("s_barrier")
        a("s_waitcnt vmcnt(0)")
        a("v_cmp_ne_u32 vcc, s66, v158")
        a("s_mov_b32 s59, 1")
        a(f"s_cbranch_vccnz {l}")
        a("s_mov_b32 s59, 0")
        uload()
        a(f"{l}:")
        a("s_barrier")
        for t in parts[2]: a(t)
        a("s_barrier")
        for t in parts[3]: a(t)
        a("s_barrier")
        st(3)
    def ready():
        l = lbl("UK")
        a("s_cmp_eq_u32 s59, 0")
        a(f"s_cbranch_scc1 {l}")
        collect(False, "s_cmp_eq_u32 s54, 0")
        uload()
        a(f"{l}:")
        st(4)
        wait4(S_UA)
        st(5)
        wait(S_KN, 2, 167)
        st(6)
        if "noaux" in X: a("s_branch KA_AUXEND")
    a0 = a
    def rdA(slot, step, w=False):
        if "cnr" in X and step >= 4: return
        o = 416 - 128 * (step >> 1) - 32 * (step & 1)
        a(f"ds_read_b64 {vr(FA+4*slot,2)}, v38 offset:{o}")
        a(f"ds_read_b64 {vr(FA+4*slot+2,2)}, v38 offset:{o+8}")
    def rdB(R, slot, step, extra=0):
        if "cnr" in X and step >= 4:
            a(f"ds_read_b32 v13, v{VSY}"); return
        a(f"ds_read_b128 {vr(R+4*slot,4)}, v39 offset:{864-288*(step>>1)+(0 if step&1 else (64 if 'utw' in X else 32))+extra}")
    def steps(near, paced, flag, extra=None):
        def a(t, _a=a0):
            if "cnm" in X and t.startswith(MF): return
            _a(t)
        for s in range(4):
            n = (11 if near else 9) - (1 if near and s == 0 and flag else 0)
            a("s_waitcnt lgkmcnt(%d)" % (0 if paced else n))
            a(f"{MF} {vr(D1,16)}, {vr(FA+4*s,4)}, {vr(FB+4*s,4)}, {vr(D1,16)}")
            if near:
                rdB(FB, s, s + 4, 32 * 144)
                if paced: a("s_waitcnt lgkmcnt(0)")
                if extra and extra[s]: [a(t) for t in extra[s][:-1]]
                a(f"{MF} {vr(D0,16)}, {vr(FA+4*s,4)}, {vr(FC+4*s,4)}, {vr(D0,16)}")
                rdA(s, s + 4)
                if paced and "slow" in X: a("s_waitcnt lgkmcnt(0)")
                rdB(FC, s, s + 4)
                if extra and extra[s]: a(extra[s][-1])
            else:
                rdA(s, s + 4)
                if paced and "slow" in X: a("s_waitcnt lgkmcnt(0)")
                rdB(FB, s, s + 4, 32 * 144)
        a("v_subrev_u32 v38, 256, v38")
        a(f"v_subrev_u32 v39, {288*2}, v39")
    def prime():
        for s in range(4):
            if s == 3: a("s_waitcnt lgkmcnt(8)")
            rdB(FB, s, s, 32 * 144); rdA(s, s); rdB(FC, s, s)
    assert nb[0] == 10
    a("s_cmp_eq_u32 s61, s62")
    a("s_cbranch_scc0 KA_X1")
    tail(["v_cmp_eq_u32 s[72:73], 31, v1", "v_lshlrev_b32 v8, 3, v3", "v_xor_b32 v8, 8, v8",
          "v_cndmask_b32 v9, 0, v15, s[72:73]", "v_add_u32 v18, v19, v8", f"v_add_f32 v{KD}, v{KD}, v9",
          f"v_add_u32 v36, {KPC+4+3072}, v18", f"v_add_u32 v37, {2*KPC+4+3072}, v18",
          f"v_cvt_pk_bf16_f32 v40, v{KD+3}, v{KD+2}", f"v_cvt_pk_bf16_f32 v41, v{KD+1}, v{KD+0}",
          f"v_cvt_pk_bf16_f32 v42, v{KD+6}, v{KD+5}", f"v_cvt_pk_bf16_f32 v43, v{KD+4}, v{KD+4}",
          f"v_cvt_pk_bf16_f32 v44, v{KD+7}, v{KD+3}", f"v_cvt_pk_bf16_f32 v45, v{KD+2}, v{KD+1}",
          f"v_cvt_pk_bf16_f32 v46, v{KD+6}, v{KD+6}", f"v_cvt_pk_bf16_f32 v47, v{KD+5}, v{KD+4}",
          "v_lshrrev_b32 v9, 16, v41"])
    a("ds_write_b64 v18, v[44:45] offset:3584")
    a("ds_write_b64 v18, v[46:47] offset:3072")
    a("ds_write2_b32 v36, v40, v41 offset0:128 offset1:129")
    a("ds_write2_b32 v36, v42, v43 offset0:0 offset1:1")
    a("ds_write2_b32 v37, v44, v45 offset0:128 offset1:129")
    a("ds_write2_b32 v37, v46, v47 offset0:0 offset1:1")
    a(f"ds_write_b64 v18, v[40:41] offset:{3*KPC+8+3584}")
    a(f"ds_write_b64 v18, v[42:43] offset:{3*KPC+8+3072}")
    a("s_mov_b64 exec, s[72:73]")
    a("ds_write_b32 v18, v9 offset:3592")
    a("ds_write_b32 v37, v9 offset:520")
    a(f"ds_add_u32 v167, v{VONE} offset:{S_KN}")
    a("s_mov_b64 exec, -1")
    ready()
    prime()
    a("s_mov_b32 s63, 3")
    a("KA_CV0:")
    steps(True, False, False)
    a("s_sub_u32 s63, s63, 1")
    a("s_cmp_lg_u32 s63, 0")
    a("s_cbranch_scc1 KA_CV0")
    wait(S_KF, 1, 167)
    a("s_branch KA_XD")
    a("KA_X1:")
    r8, r9, r10, r11, r12, r13, r14, r15 = [KD + i for i in range(8)]
    V4 = [r8]*3 + [r9]*3 + [r10]*5 + [r11]
    V8a = [r12]*4 + [36] + [r13]*7
    V8b = [r14]*4 + [37] + [r15]*7
    def grp(V, ad, off, c, R):
        return [f"v_cvt_pk_bf16_f32 v{R+d}, v{V[8+c-2*d]}, v{V[7+c-2*d]}" for d in range(4)] + [f"ds_write_b128 v{ad}, {vr(R,4)} offset:{c*KPC+off}"]
    early = [grp(V4, 19, 2560, c, 48 + 4 * c) for c in range(4)] if "v4e" in X else []
    tail(["v_and_b32 v8, 1, v1", "v_cmp_eq_u32 s[72:73], 1, v8", "v_cmp_eq_u32 s[70:71], 32, v1", "v_lshlrev_b32 v8, 9, v3", "v_sub_u32 v19, v19, v8", "v_sub_u32 v18, v19, v8",
          f"v_cndmask_b32 v36, v{r13}, v{r12}, s[72:73]", f"v_cndmask_b32 v37, v{r15}, v{r14}, s[72:73]", f"v_cndmask_b32 v{r11}, v{r11}, v{r10}, s[70:71]",
          f"v_cvt_pk_bf16_f32 v8, v{r9}, v{r8}", f"v_cvt_pk_bf16_f32 v9, v{r8}, v{r8}", "v_mov_b32 v12, s52"] + [t for g in early for t in g[:-1]])
    a("s_mov_b32 exec_lo, 0x80000000\ns_mov_b32 exec_hi, 0")
    a(f"ds_write_b32 v{VSY}, v12 offset:{S_NONCE}")
    a(f"ds_write_b32 v19, v9 offset:{KPC+2560+16}")
    a(f"ds_write_b32 v19, v9 offset:{2*KPC+2560+16}")
    a(f"ds_write_b64 v19, v[8:9] offset:{3*KPC+2560+16}")
    a("s_mov_b64 exec, -1")
    for g in early: a(g[-1])
    ready()
    prime()
    rest = [grp(V, ad, off, c, 40 + 4 * (c & 1)) for (V, ad, off) in ([] if early else [(V4, 19, 2560)]) + [(V8a, 18, 1536), (V8b, 18, 1024)] for c in range(4)]
    if early: rest = rest[:3] + [None] + rest[3:6] + [None] + rest[6:] + [None, None]
    for i in range(3): steps(True, False, False, rest[4*i:4*i+4])
    sig(S_KF, 167)
    a("KA_XD:")
    if "cst" in X: a.stamp(1)
    if "c24" in X: a("s_branch KA_CVE")
    def loop(lab, nxt, near, paced):
        a(f"{lab}:")
        if paced and "xcv" in X: a("s_branch KA_CVE")
        if paced and "cst" in X: a(f"s_add_u32 s84, s84, {8 if near else 4}")
        if not paced: a(f"ds_read_b32 v{VTMP}, v{VSY} offset:{S_RUN if 'run' in X else S_GO}")
        steps(near, paced, True)
        if not paced: a(f"v_readfirstlane_b32 s76, v{VTMP}")
        a("s_sub_u32 s63, s63, 1")
        a("s_cmp_lg_u32 s63, 0")
        if not paced:
            a(f"s_cbranch_scc0 {nxt}")
            a("s_cmp_eq_u32 s76, 0")
        a(f"s_cbranch_scc1 {lab}")
    if "cst" in X: a("s_mov_b32 s84, s80")
    a("s_mov_b32 s63, 5")
    loop("KA_CV1", "KA_CVM", True, False)
    loop("KA_CV1P", None, True, True)
    a("KA_CVM:")
    if "c64" in X: a("s_branch KA_CVE")
    a("s_mov_b32 s63, 8")
    a("s_cmp_lg_u32 s76, 0")
    a("s_cbranch_scc1 KA_CV2P")
    loop("KA_CV2", "KA_CVE", False, False)
    loop("KA_CV2P", None, False, True)
    a("KA_CVE:")
    st(7)
    a("s_lshl_b32 s63, s54, 12")
    a(f"s_add_u32 s63, s63, {L_CX}")
    a("v_add_u32 v13, s63, v4")
    a("v_xor_b32 v14, 4096, v13")
    wait(S_QRDY, 4)
    a("s_cmp_eq_u32 s61, 0")
    a("s_cbranch_scc0 KA_CVS")
    for i in range(4): a(f"ds_write_b128 v13, {vr(D1+4*i,4)} offset:{1024*i}")
    sig(S_CV, 167)
    wait(S_CV, 2, 167, nap=1)
    for i in range(4): a(f"ds_read_b128 {vr(D1+4*i,4)}, v14 offset:{1024*i}")
    a("s_branch KA_CVJ")
    a("KA_CVS:")
    for i in range(4): a(f"ds_write_b128 v13, {vr(D0+4*i,4)} offset:{1024*i}")
    sig(S_CV, 167)
    wait(S_CV, 2, 167, nap=1)
    for i in range(4): a(f"ds_read_b128 {vr(D0+4*i,4)}, v14 offset:{1024*i}")
    a("KA_CVJ:")
    a("s_lshl_b32 s56, s49, 2")
    a("s_and_b32 s57, s50, 3")
    a("s_add_u32 s56, s56, s57")
    a("s_lshr_b32 s57, s50, 2")
    a("s_lshl_b32 s72, s56, 11")
    a(f"s_add_u32 s72, s72, {W2_FO}")
    a("s_lshl_b32 s65, s56, 1")
    a("s_add_u32 s65, s65, s61")
    a("s_lshl_b32 s63, s57, 1")
    a("s_add_u32 s63, s63, s62")
    a("s_lshl_b32 s74, s63, 6")
    a("s_lshl_b32 s64, s65, 15")
    a("s_add_u32 s74, s74, s64")
    a("s_lshl_b32 s73, s57, 18")
    a("s_lshl_b32 s64, s54, 16")
    a("s_add_u32 s73, s73, s64")
    a("s_lshl_b32 s64, s56, 7")
    a("s_add_u32 s73, s73, s64")
    a(f"s_add_u32 s73, s73, {W2_GA}")
    a("s_lshl_b32 s75, s65, 8")
    a(f"s_add_u32 s75, s75, {W2_G}")
    a("v_mov_b32 v155, s52")
    a("s_lshl_b32 s63, s55, 13")
    a("s_lshl_b32 s64, s54, 11")
    a("s_add_u32 s63, s63, s64")
    a(f"s_add_u32 s63, s63, {W2_GA}")
    a("s_waitcnt lgkmcnt(0)")
    sig(S_CD)
    for i in range(16): a(f"v_add_f32 v{D0+i}, v{D0+i}, v{D1+i}")
    for i in range(8): a(f"v_cvt_pk_bf16_f32 v{64+i}, v{D0+2*i}, v{D0+2*i+1}")
    a(f"ds_write_b128 v{PS}, v[64:67]")
    a(f"ds_write_b128 v{PS}, v[68:71] offset:64")
    a(f"ds_read_b128 v[64:67], v{POF}")
    a(f"ds_read_b128 v[68:71], v{POF} offset:1024")
    a("s_waitcnt lgkmcnt(0)")
    a("buffer_store_dwordx4 v[64:67], v4, s[44:47], s63 offen sc1")
    a("buffer_store_dwordx4 v[68:71], v4, s[44:47], s63 offen offset:1024 sc1")
    if "nop3" in X: a("s_branch KA_AUXEND")
    a("s_lshl_b32 s63, s50, 11")
    a(f"s_add_u32 s71, s63, {W2_FO}")
    a("s_lshl_b32 s70, s49, 7")
    a("s_add_u32 s63, s71, s70")
    if "nofl" not in X: a("s_load_dword s68, s[34:35], s63")
    srd(a, 36, 26, 27, 512 * 512 * 2)
    srd(a, 40, 30, 31, 2048 * 512 * 2)
    a("v_lshlrev_b32 v12, 2, s49")
    if "dp" in X:
        a("s_lshl_b32 s4, s50, 16")
        a("s_lshl_b32 s5, s49, 13")
        a("s_add_u32 s4, s4, s5")
        a("s_lshl_b32 s5, s54, 11")
        a("s_add_u32 s4, s4, s5")
        a(f"s_add_u32 s4, s4, {W2_O}")
        for i in range(4): a(f"v_mov_b32 v{8+i}, -1")
        a("buffer_store_dwordx4 v[8:11], v4, s[44:47], s4 offen sc1")
        a("buffer_store_dwordx4 v[8:11], v4, s[44:47], s4 offen offset:1024 sc1")
    wait(S_CD, 5, nap=4)
    a("s_waitcnt vmcnt(0)")
    a("s_mov_b64 exec, 1")
    a(f"ds_add_rtn_u32 v{VTMP}, v{VSY}, v{VONE} offset:{S_PC}")
    a("s_waitcnt lgkmcnt(0)")
    a(f"v_readfirstlane_b32 s76, v{VTMP}")
    a("s_cmp_lg_u32 s76, 3")
    a("s_cbranch_scc1 KA_NCL")
    a("buffer_store_dword v155, v156, s[44:47], s67 offen offset:2048 sc1")
    a("buffer_store_dword v155, v12, s[44:47], s71 offen offset:1024 sc1")
    a("KA_NCL:")
    a("s_mov_b64 exec, -1")
    a("s_lshl_b32 s58, s54, 12")
    a(f"s_add_u32 s58, s58, {L_WO}")
    a("s_lshl_b32 s59, s54, 15")
    a("s_lshl_b32 s63, s57, 7")
    a("s_add_u32 s59, s59, s63")
    for c in range(4):
        if "wrot" in X:
            a(f"s_add_u32 s64, s50, {c}")
            a("s_and_b32 s64, s64, 3")
            a("s_lshl_b32 s63, s64, 14")
            a("s_add_u32 m0, s58, s63")
            a("s_lshl_b32 s63, s64, 17")
            a("s_add_u32 s63, s63, s59")
        else:
            a(f"s_add_u32 m0, s58, {16384*c}")
            a(f"s_add_u32 s63, s59, {131072*c}")
        for q in range(4):
            if "xwo" not in X: a(f"buffer_load_dwordx4 v{PW+q}, s[36:39], s63 offen offset:{1024*q} lds")
        a("s_waitcnt vmcnt(0)")
    a("s_xor_b32 s63, s57, 4")
    a(f"s_mul_i32 s63, s63, {GRS}")
    a(f"s_add_u32 s63, s63, {G_FL+2048}")
    a("s_add_u32 s64, s34, s63")
    a("s_addc_u32 s65, s35, 0")
    a("s_add_u32 s70, s72, 1024")
    if "p3st" in X: a.stamp(1)
    if "preout" in X:
        a("s_lshl_b32 s4, s56, 16")
        a("s_lshl_b32 s5, s54, 14")
        a("s_add_u32 s4, s4, s5")
        a("s_lshl_b32 s5, s57, 7")
        a("s_add_u32 s4, s4, s5")
        a("s_add_u32 s4, s30, s4")
        a("s_addc_u32 s5, s31, 0")
        for i in range(16): a(f"s_load_dwordx2 s[68:69], s[4:5], {1024*i+60}")
    if "aot" in X:
        a("s_lshl_b32 s4, s50, 16")
        a("s_lshl_b32 s5, s49, 13")
        a("s_add_u32 s4, s4, s5")
        a("s_lshl_b32 s5, s54, 11")
        a("s_add_u32 s4, s4, s5")
        a(f"s_add_u32 s4, s4, {W2_O}")
        a("s_add_u32 s4, s34, s4")
        a("s_addc_u32 s5, s35, 0")
        for i in range(16): a(f"s_load_dwordx2 s[68:69], s[4:5], {128*i+60}")
    if "lkw" in X: wait(S_WB, 1, nap=16)
    a("s_mov_b32 s71, 0")
    G = ""
    a("s_load_dwordx16 s[4:19], s[64:65], 0" + G)
    a("s_load_dwordx8 s[20:27], s[34:35], s70" + G)
    a("s_load_dword s68, s[64:65], 64" + G)
    a("s_waitcnt lgkmcnt(0)")
    for r in range(4, 28):
        a(f"s_xor_b32 s{r}, s{r}, s52")
        a(f"s_or_b32 s71, s71, s{r}")
    a("s_load_dwordx16 s[4:19], s[64:65], 64" + G)
    a("s_waitcnt lgkmcnt(0)")
    for r in range(4, 20):
        a(f"s_xor_b32 s{r}, s{r}, s52")
        a(f"s_or_b32 s71, s71, s{r}")
    a("s_cbranch_scc0 KA_PCD")
    a("v_and_b32 v9, 7, v1")
    a("v_lshlrev_b32 v9, 2, v9")
    a(f"s_mov_b32 s69, {SLOW_TRIES}")
    a("KA_PC:")
    a("s_sleep 32")
    a("buffer_load_dword v10, v157, s[44:47], s63 offen sc1")
    a("buffer_load_dword v11, v9, s[44:47], s70 offen sc1")
    a("s_waitcnt vmcnt(0)")
    a("v_cmp_ne_u32 vcc, s52, v10")
    a("v_cmp_ne_u32 s[4:5], s52, v11")
    a("s_or_b64 vcc, vcc, s[4:5]")
    a("s_cbranch_scc0 KA_PCD")
    a("s_sub_u32 s69, s69, 1")
    a("s_cbranch_scc0 KA_PC")
    a("KA_PCD:")
    if "p3st" in X: a.stamp(2)
    if "gat" in X:
        a("s_add_u32 s64, s34, s73")
        a("s_addc_u32 s65, s35, 0")
        for i in range(16): a(f"s_load_dwordx2 s[68:69], s[64:65], {4096*i+60}")
    D, DA, GA, DG = 112, 128, 32, 40
    a("s_lshl_b32 s58, s54, 11")
    a(f"s_add_u32 m0, s58, {L_GA}")
    a("s_add_u32 s63, s73, 31744")
    a("s_waitcnt vmcnt(0) lgkmcnt(0)")
    if "xga" not in X:
        a(f"buffer_load_dwordx4 v{PD}, s[44:47], s73 offen sc1 lds")
        a(f"buffer_load_dwordx4 v{PD}, s[44:47], s63 offen offset:1024 sc1 lds")
    a(f"buffer_load_dwordx2 v[14:15], v{PG}, s[44:47], s75 offen sc1")
    dsig(f"s_add_u32 m0, s60, {S_WA-S_UA}")
    a("s_lshl_b32 s58, s61, 12")
    a("s_lshl_b32 s59, s56, 16")
    a("s_add_u32 s59, s59, s58")
    a(f"s_add_u32 s59, s59, {W2_O}")
    a("s_waitcnt vmcnt(0)")
    wait4(S_WA, nap=4)
    a(f"ds_read_b128 {vr(GA,4)}, v{PA}")
    a(f"ds_read_b128 {vr(GA+4,4)}, v{PA} offset:64")
    a("v_lshrrev_b32 v13, 16, v14")
    a("v_or_b32 v13, v13, v14")
    for k in range(8):
        a(f"v_and_b32 v{DG+k}, v13, v{PM+k}")
    a("s_waitcnt lgkmcnt(0)")
    a("s_nop 0")
    a(f"{MF} {vr(DA,16)}, {vr(GA,4)}, {vr(DG,4)}, 0")
    a(f"{MF} {vr(DA,16)}, {vr(GA+4,4)}, {vr(DG+4,4)}, {vr(DA,16)}")
    if "p3st" in X: a.stamp(3)
    if "wb" in X:
        a("s_lshl_b32 s63, s50, 2")
        a("s_add_u32 s63, s63, s54")
        a("s_cmp_lg_u32 s63, 0")
        a("s_cbranch_scc1 KA_NOWB")
        a("buffer_wbl2 sc1")
        a("KA_NOWB:")
    if "fet" in X:
        W0, O0 = 48, 64
        a(f"v_mov_b32 v2, v{POUT}")
        a("s_lshl_b32 s63, s61, 12")
        a(f"s_add_u32 s63, s63, {L_O}")
        a("v_add_u32 v5, s63, v4")
        a("v_and_b32 v6, 7, v1")
        a(f"v_lshl_add_u32 v6, v6, 2, v{VSY}")
        for i in range(4): a(f"v_mov_b32 v{W0+i}, 0")
        a("s_mov_b32 s4, 0xff")
        a(f"s_mov_b32 s7, {LDS_SPIN}")
        a(f"{MF} {vr(D,16)}, {vr(W0,4)}, {vr(W0,4)}, 0")
        wait(S_FIN, 8, nap=8)
        if "p3st" in X: a.stamp(4)
        a("KA_OL:")
        a(f"ds_read_b32 v10, v6 offset:{S_OA}")
        a("s_sub_u32 s7, s7, 1")
        a("s_cselect_b32 s6, 0xff, 0")
        a("s_waitcnt lgkmcnt(0)")
        a("v_cmp_eq_u32 vcc, 0, v10")
        a("s_or_b32 s5, s6, vcc_lo")
        a("s_and_b32 s5, s5, s4")
        a("s_cbranch_scc0 KA_OL")
        a("KA_OP:")
        a("s_ff1_i32_b32 s8, s5")
        a("s_lshl_b32 s63, s8, 13")
        a(f"v_add_u32 v12, s63, v{PWF}")
        a("v_add_u32 v13, s63, v5")
        for q in range(4):
            a(f"ds_read_b128 {vr(O0+4*q,4)}, v13 offset:{1024*q}")
            a(f"ds_read_b64_tr_b16 {vr(W0+4*q,2)}, v12 offset:{2048*q}")
            a(f"ds_read_b64_tr_b16 {vr(W0+4*q+2,2)}, v12 offset:{2048*q+1024}")
        a("s_bitset0_b32 s4, s8")
        a("s_bitset0_b32 s5, s8")
        for q in range(4):
            a(f"s_waitcnt lgkmcnt({9-3*q})")
            a(f"{MF} {vr(D,16)}, {vr(W0+4*q,4)}, {vr(O0+4*q,4)}, {vr(D,16)}")
        a("s_cmp_lg_u32 s5, 0")
        a("s_cbranch_scc1 KA_OP")
        a("s_cmp_lg_u32 s4, 0")
        a("s_cbranch_scc1 KA_OL")
        if "p3st" in X: a.stamp(7)
        a("s_nop 7")
        for i in range(16): a(f"v_fmac_f32 v{DA+i}, v15, v{D+i}")
    else:
        OB4, W0, W1, D2 = 48, 16, 32, 144
        a(f"v_mov_b32 v2, v{POUT}")
        a(f"v_mov_b32 v5, v{PWF}")
        a("s_lshl_b32 s63, s54, 12")
        a(f"s_add_u32 s64, s63, {L_GT}")
        a("v_add_u32 v6, s64, v4")
        a("s_xor_b32 s63, s63, 8192")
        a(f"s_add_u32 s64, s63, {L_GT}")
        a("v_add_u32 v11, s64, v4")
        a("s_lshl_b32 s63, s61, 2")
        a(f"v_add_u32 v14, s63, v{VSY}")
        if "mz" in X:
            for i in range(4): a(f"v_mov_b32 v{W0+i}, 0")
            a("s_nop 1")
            a(f"{MF} {vr(D,16)}, {vr(W0,4)}, {vr(W0,4)}, 0")
            a(f"{MF} {vr(D2,16)}, {vr(W0,4)}, {vr(W0,4)}, 0")
        else:
            for i in range(16):
                a(f"v_mov_b32 v{D+i}, 0")
                a(f"v_mov_b32 v{D2+i}, 0")
        if "otr" in X:
            a("s_mul_i32 s63, s54, 2560")
            a(f"s_add_u32 s63, s63, {L_U}")
            a("v_mul_u32_u24 v160, 80, v7")
            a("v_lshl_add_u32 v160, v3, 4, v160")
            a("v_add_u32 v160, s63, v160")
            a("v_lshrrev_b32 v162, 2, v1")
            a("v_and_b32 v163, 3, v1")
            a("v_mul_u32_u24 v161, 80, v162")
            a("v_lshl_add_u32 v161, v163, 4, v161")
            a("v_add_u32 v161, s63, v161")
            a("v_lshlrev_b32 v162, 10, v162")
            a("v_lshl_add_u32 v162, v163, 4, v162")
        a("s_lshl_b32 s4, 0x55, s62")
        a(f"s_mov_b32 s7, {LDS_SPIN}")
        wait(S_FIN, FINN, nap=8)
        if "p3st" in X: a.stamp(4)
        a("KA_OL:")
        if "nap4" in X: a("s_sleep 1")
        a(f"ds_read_b32 v10, v{VSY} offset:{S_PO}")
        a("s_sub_u32 s7, s7, 1")
        a("s_cselect_b32 s6, 0xffff, 0")
        a("s_waitcnt lgkmcnt(0)")
        a("v_readfirstlane_b32 s5, v10")
        a("s_or_b32 s5, s5, s6")
        a("s_lshr_b32 s12, s5, 8")
        a("s_and_b32 s5, s5, s4")
        a("s_cbranch_scc0 KA_OL")
        for k in range(4):
            a(f"s_ff1_i32_b32 s{8+k}, s5")
            a(f"s_lshl_b32 s63, s{8+k}, 13")
            a("s_add_u32 s63, s63, s59")
            for q in range(4): a(f"buffer_load_dwordx4 {vr(OB4+16*k+4*q,4)}, v4, s[44:47], s63 offen offset:{1024*q} sc1")
            a(f"s_bitset0_b32 s4, s{8+k}")
            a(f"s_bitset0_b32 s5, s{8+k}")
            if k < 3:
                a("s_cmp_eq_u32 s5, 0")
                a(f"s_cbranch_scc1 KA_OP{k+1}")
        def wadr(k):
            a(f"s_lshl_b32 s63, s{8+k}, 13")
            a("v_add_u32 v12, s63, v5")
            a("v_xor_b32 v13, 64, v12")
        def rdw(W, ad, q):
            a(f"ds_read_b64_tr_b16 {vr(W+4*q,2)}, v{ad} offset:{2048*q}")
            a(f"ds_read_b64_tr_b16 {vr(W+4*q+2,2)}, v{ad} offset:{2048*q+1024}")
        for n in (4, 3, 2, 1):
            a(f"KA_OP{n}:")
            wadr(0)
            for q in range(4): rdw(W1, 13, q)
            a("s_waitcnt lgkmcnt(4)")
            for q in range(4): rdw(W0, 12, q)
            for k in range(n):
                B = OB4 + 16 * k
                a(f"s_waitcnt vmcnt({4*(n-1-k)}) lgkmcnt(7)")
                if "dp" in X:
                    ok = lbl("DK")
                    a(f"v_max3_u32 v8, v{B}, v{B+1}, v{B+2}")
                    a(f"v_max3_u32 v9, v{B+3}, v{B+4}, v{B+5}")
                    for i in range(5): a(f"v_max3_u32 v{8+(i&1)}, v{B+6+2*i}, v{B+7+2*i}, v{8+(i&1)}")
                    a("v_max_u32 v8, v8, v9")
                    a("v_cmp_eq_u32 vcc, -1, v8")
                    a(f"s_cbranch_vccz {ok}")
                    a(f"s_bitcmp1_b32 s12, s{8+k}")
                    a(f"s_cbranch_scc1 {ok}")
                    a(f"s_bitset1_b32 s4, s{8+k}")
                    for i in range(16): a(f"v_mov_b32 v{B+i}, 0")
                    a("s_nop 1")
                    a(f"{ok}:")
                if k + 1 < n: wadr(k + 1)
                for q in range(4):
                    a(f"{MF} {vr(D2,16)}, {vr(W1+4*q,4)}, {vr(B+4*q,4)}, {vr(D2,16)}")
                    if k + 1 < n: rdw(W1, 13, q)
                a("s_waitcnt lgkmcnt(%d)" % (7 if k + 1 < n else 0))
                for q in range(4):
                    a(f"{MF} {vr(D,16)}, {vr(W0+4*q,4)}, {vr(B+4*q,4)}, {vr(D,16)}")
                    if k + 1 < n: rdw(W0, 12, q)
            a("s_cmp_lg_u32 s4, 0")
            a("s_cbranch_scc1 KA_OL")
            if n > 1: a("s_branch KA_OD")
        a("KA_OD:")
        if "p3st" in X: a.stamp(6)
        a("s_nop 4")
        for i in range(4): a(f"ds_write_b128 v6, {vr(D2+4*i,4)} offset:{1024*i}")
        sig(S_FX, 14)
        for i in range(16): a(f"v_fmac_f32 v{DA+i}, v15, v{D+i}")
        wait(S_FX, 2, 14)
        for i in range(4): a(f"ds_read_b128 {vr(D2+4*i,4)}, v11 offset:{1024*i}")
        if "p3st" in X: a.stamp(7)
        for i in range(4):
            a(f"s_waitcnt lgkmcnt({3-i})")
            for j in range(4): a(f"v_fmac_f32 v{DA+4*i+j}, v15, v{D2+4*i+j}")
    for i in range(8): a(f"v_cvt_pk_bf16_f32 v{GA+i}, v{DA+2*i}, v{DA+2*i+1}")
    a("s_nop 1")
    a(f"v_permlane32_swap_b32 v{GA}, v{GA+2}")
    a(f"v_permlane32_swap_b32 v{GA+1}, v{GA+3}")
    a(f"v_permlane32_swap_b32 v{GA+4}, v{GA+6}")
    a(f"v_permlane32_swap_b32 v{GA+5}, v{GA+7}")
    OF = " nt" if "ont" in X else " sc1" if "osc" in X else " sc0 sc1 nt" if "oall" in X else ""
    if "otr" in X:
        a(f"ds_write_b128 v160, {vr(GA,4)}")
        a(f"ds_write_b128 v160, {vr(GA+4,4)} offset:32")
        a(f"ds_read_b128 {vr(GA,4)}, v161")
        a(f"ds_read_b128 {vr(GA+4,4)}, v161 offset:1280")
        a("s_add_u32 s75, s74, 16384")
        a("s_waitcnt lgkmcnt(1)")
        a(f"buffer_store_dwordx4 {vr(GA,4)}, v162, s[40:43], s74 offen{OF}")
        a("s_waitcnt lgkmcnt(0)")
        a(f"buffer_store_dwordx4 {vr(GA+4,4)}, v162, s[40:43], s75 offen{OF}")
    else:
        a(f"buffer_store_dwordx4 {vr(GA,4)}, v2, s[40:43], s74 offen{OF}")
        a(f"buffer_store_dwordx4 {vr(GA+4,4)}, v2, s[40:43], s74 offen offset:32{OF}")
    a("KA_AUXEND:")
    a.end(0)
```
